```python
import torch

def _softmax(x, axis=-1):
    return torch.softmax(x, dim=axis)
def _gelu(x):
    return torch.nn.functional.gelu(x, approximate="tanh")
def _silu(x):
    return torch.nn.functional.silu(x)
def _sigmoid(x):
    return torch.sigmoid(x)
def _layernorm(x, axis=-1, eps=1e-5):
    m = x.mean(dim=axis, keepdim=True)
    v = x.var(dim=axis, keepdim=True, unbiased=False)
    return (x - m) / torch.sqrt(v + eps)
def _scatter_add(tgt, idx, src, axis=0):
    return tgt.clone().index_add_(axis, idx, src)
def _segment_sum(src, seg, n):
    out = torch.zeros((n,) + src.shape[1:], dtype=src.dtype)
    return out.index_add_(0, seg, src)
def _pad(x, pw):
    flat = tuple(v for pair in reversed(pw) for v in pair)
    return torch.nn.functional.pad(x, flat)

kernel_name = 'concat_heads__gqa_block_cached__gqa_block_cached__near_ridge'

def setup_inputs():

    _w = (lambda a: (lambda t: t.to(torch.bfloat16) if t.is_floating_point() else t)(torch.as_tensor(a)))
    def _A_setup():
        B, Sq, D = 8, 160, 512
        Hq, Hkv, Sk, Dh = 32, 32, 512, 128
        assert Hq % Hkv == 0, (Hq, Hkv)
        return {
            "x": _w((lambda *s: torch.randn(*s, dtype=torch.bfloat16) * 0.8)(B, Sq, D)),
            "k_cache": _w((lambda *s: torch.randn(*s, dtype=torch.bfloat16) * 0.8)(B, Hkv, Sk, Dh)),
            "v_cache": _w((lambda *s: torch.randn(*s, dtype=torch.bfloat16) * 0.05)(B, Hkv, Sk, Dh)),
            "wq": _w((lambda *s: torch.randn(*s, dtype=torch.bfloat16) * 0.8)(D, Hq * Dh) * (D ** -0.5)),
            "wo": _w((lambda *s: torch.randn(*s, dtype=torch.bfloat16) * 0.05)(Hq * Dh, D) * ((Hq * Dh) ** -0.5)),
        }
    _A_in = _A_setup()

    def _B_setup():
        B, Sq, D = 8, 160, 512
        Hq, Hkv, Sk, Dh = 32, 32, 512, 128
        assert Hq % Hkv == 0, (Hq, Hkv)
        return {
            "x": _w((lambda *s: torch.randn(*s, dtype=torch.bfloat16) * 0.8)(B, Sq, D)),
            "k_cache": _w((lambda *s: torch.randn(*s, dtype=torch.bfloat16) * 0.8)(B, Hkv, Sk, Dh)),
            "v_cache": _w((lambda *s: torch.randn(*s, dtype=torch.bfloat16) * 0.05)(B, Hkv, Sk, Dh)),
            "wq": _w((lambda *s: torch.randn(*s, dtype=torch.bfloat16) * 0.8)(D, Hq * Dh) * (D ** -0.5)),
            "wo": _w((lambda *s: torch.randn(*s, dtype=torch.bfloat16) * 0.05)(Hq * Dh, D) * ((Hq * Dh) ** -0.5)),
        }
    _B_in = _B_setup()

    return {
        "A_x": _A_in["x"],
        "A_k_cache": _A_in["k_cache"],
        "A_v_cache": _A_in["v_cache"],
        "A_wq": _A_in["wq"],
        "A_wo": _A_in["wo"],
        "B_x": _B_in["x"],
        "B_k_cache": _B_in["k_cache"],
        "B_v_cache": _B_in["v_cache"],
        "B_wq": _B_in["wq"],
        "B_wo": _B_in["wo"],
    }

def reference(A_x, A_k_cache, A_v_cache, A_wq, A_wo, B_x, B_k_cache, B_v_cache, B_wq, B_wo):
    def _A_ref(x, k_cache, v_cache, wq, wo):
        B, Sq, D = x.shape
        Hq, Dh = 32, 128
        Hkv = k_cache.shape[1]
        rep = Hq // Hkv
        q = (lambda x, *d: x.permute(*d))((x @ wq).reshape(B, Sq, Hq, Dh), 0, 2, 1, 3)
        k = (lambda x, n, axis: torch.repeat_interleave(x, n, dim=axis))(k_cache, rep, axis=1)
        v = (lambda x, n, axis: torch.repeat_interleave(x, n, dim=axis))(v_cache, rep, axis=1)
        scores = torch.einsum("bhqd,bhkd->bhqk", q, k) * (Dh ** -0.5)
        p = _softmax(scores, axis=-1)
        o = torch.einsum("bhqk,bhkd->bhqd", p, v)
        return (lambda x, *d: x.permute(*d))(o, 0, 2, 1, 3).reshape(B, Sq, Hq * Dh) @ wo

    def _B_ref(x, k_cache, v_cache, wq, wo):
        B, Sq, D = x.shape
        Hq, Dh = 32, 128
        Hkv = k_cache.shape[1]
        rep = Hq // Hkv
        q = (lambda x, *d: x.permute(*d))((x @ wq).reshape(B, Sq, Hq, Dh), 0, 2, 1, 3)
        k = (lambda x, n, axis: torch.repeat_interleave(x, n, dim=axis))(k_cache, rep, axis=1)
        v = (lambda x, n, axis: torch.repeat_interleave(x, n, dim=axis))(v_cache, rep, axis=1)
        scores = torch.einsum("bhqd,bhkd->bhqk", q, k) * (Dh ** -0.5)
        p = _softmax(scores, axis=-1)
        o = torch.einsum("bhqk,bhkd->bhqd", p, v)
        return (lambda x, *d: x.permute(*d))(o, 0, 2, 1, 3).reshape(B, Sq, Hq * Dh) @ wo

    a = _A_ref(A_x, A_k_cache, A_v_cache, A_wq, A_wo)
    b = _B_ref(B_x, B_k_cache, B_v_cache, B_wq, B_wo)
    return torch.concatenate([a, b], axis=-1)
```

```python
import struct, math
def f32hex(x):
    return "0x%08x" % struct.unpack("<I", struct.pack("<f", x))[0]
C_SCALE = math.log2(math.e) / math.sqrt(128.0)
def vr(b, n=1):
    return f"v{b}" if n == 1 else f"v[{b}:{b+n-1}]"
def ar(b, n=1):
    return f"a{b}" if n == 1 else f"a[{b}:{b+n-1}]"
def sr(b, n=1):
    return f"s{b}" if n == 1 else f"s[{b}:{b+n-1}]"
MFMA = "v_mfma_f32_16x16x32_bf16"
def kernel_head(name):
    return f""".globl {name}
.p2align 8
.type {name},@function
{name}:
"""
def kernel_desc(name, vgpr, accum, sgpr=102):
    return f""".section .rodata,"a"
.p2align 6
.amdhsa_kernel {name}
  .amdhsa_next_free_vgpr {vgpr}
  .amdhsa_next_free_sgpr {sgpr}
  .amdhsa_accum_offset {accum}
  .amdhsa_group_segment_fixed_size 0
  .amdhsa_kernarg_size 104
  .amdhsa_user_sgpr_count 2
  .amdhsa_user_sgpr_kernarg_segment_ptr 1
  .amdhsa_system_sgpr_workgroup_id_x 1
.end_amdhsa_kernel
.text
"""
```

```python
from common import *
from sched import *

KRING = 0
VRING = 98304
WQ0 = 32768; WQ_HEAD = 8224; WQ_SLOT = 2 * WQ_HEAD
X0 = 82176; X_SLOT = 20480
LDS_BYTES = 163840
VTOG = 0x38000
S_W, S_HH, S_RH = 4, 5, 6
SRD_X, SRD_WQ, SRD_K, SRD_V, SRD_O = 8, 12, 16, 20, 24
S_T0, S_T1 = 32, 33
S_WQL, S_XL, S_XG, S_WQG = 35, 36, 37, 38
S_KDST, S_VDST, S_KOFF, S_VOFF, S_CNT = 40, 41, 42, 43, 44
S_IDX, S_HG, S_B, S_BR, S_H = 45, 46, 47, 48, 49
S_SC = 50
S_KV = 39; S_WQK = 51; S_XK = 34; S_PT = 7
V_Q = 0
V_XB = [0, 20]
V_AW = 40
V_AX = 44
V_OWQ = 46
V_OX = 50
V_T = 56
V_ACC = 80
V_S = [80, 120]
V_P = [160, 180]
V_OV = 200
V_E = 202
V_OV0 = 70
V_AK = 240; V_AV = 244; V_OK = 252
A_O = 0; A_L = 160; A_ONE = 180; A_F = 184
A_SAVE = 216
SRD_WO, SRD_P = 28, 24
S_WA, S_WB, S_WL = 52, 53, 54
POFF = 32 * 1024 * 1024
WRING = 98304
V_OW = 232
V_AW2 = 236
V_XA = 231
A_ACC2 = [0, 80]

def acc(dt, qt): return V_ACC + (dt * 5 + qt) * 4
def qf(j, qt): return V_Q + (j * 5 + qt) * 4
def sreg(par, kt, qt): return V_S[par] + (kt * 5 + qt) * 4
def preg(par, qt): return V_P[par] + qt * 4
def oacc(dt, qt): return A_O + (dt * 5 + qt) * 4
def fbuf(n): return A_F + 4 * (n % 8)

class Opt:
    kv_flag = "nt"
    q_flag = ""
    o_flag = ""
    stamps = False
    pre_all = True
    pf_start = 0
    pf_per = 3
    pf_late = False
    q_nodma = False
    q_nowait = False
    q_nobar = False
    q_nods = False
    rot = True
    pace = 4
    stamp_set = "q"
    t3 = True
    p_flag = ""
    w_flag = ""
    w_pace = 2
    w_touch = -1
    dbg = False

NSTAMP = [0]
def stamp(e, o, tag):
    if not o.stamps: return
    early = tag in ("issued", "bar0", "B3", "B9", "qconv")
    late = tag.startswith("T")
    if (o.stamp_set == "tail" and early) or (o.stamp_set != "tail" and late): return
    k = NSTAMP[0]; NSTAMP[0] += 1
    assert k < 12
    e.comment("stamp " + tag)
    e(f"s_memtime s[{70 + 2*k}:{71 + 2*k}]")

def prologue(e, o, name):
    e(f"""
    s_cmp_ge_u32 s2, 256
    s_cbranch_scc1 L_end_{name}
    s_load_dwordx8 s[52:59], s[0:1], 0       ; A_x A_k A_v A_wq
    s_load_dwordx8 s[60:67], s[0:1], 40      ; B_x B_k B_v B_wq
    s_load_dwordx2 s[68:69], s[0:1], 96      ; ws
    s_load_dwordx2 s[98:99], s[0:1], 32      ; A_wo
    s_load_dwordx2 s[100:101], s[0:1], 72    ; B_wo
    v_lshrrev_b32 v{V_T}, 6, v0
    v_and_b32 v{V_T+1}, 63, v0               ; lane
    v_readfirstlane_b32 s{S_W}, v{V_T}
    s_and_b32 s3, s2, 7
    s_lshr_b32 s{S_IDX}, s2, 3
    s_lshr_b32 s{S_BR}, s3, 2
    s_and_b32 s{S_HG}, s3, 3
    s_lshr_b32 s{S_B}, s{S_IDX}, 2
    s_and_b32 s7, s{S_IDX}, 3
    s_lshr_b32 s{S_HH}, s{S_W}, 1
    s_and_b32 s{S_RH}, s{S_W}, 1
    s_lshl_b32 s{S_H}, s{S_HG}, 3
    s_lshl_b32 s7, s7, 1
    s_add_u32 s{S_H}, s{S_H}, s7
    s_add_u32 s{S_H}, s{S_H}, s{S_HH}
    """)
    if o.stamps:
        e("s_memrealtime s[94:95]")
    stamp(e, o, "start")
    L = V_T + 1
    c, g, rp, cp, t0, t1 = V_T + 2, V_T + 3, V_T + 4, V_T + 5, V_T + 6, V_T + 7
    e(f"""
    v_and_b32 v{c}, 15, v{L}
    v_lshrrev_b32 v{g}, 4, v{L}
    v_bfe_u32 v{rp}, v{L}, 2, 2
    v_and_b32 v{cp}, 3, v{L}
    """)
    e(f"""
    v_lshlrev_b32 v{t0}, 2, v{g}
    v_xor_b32 v{t0}, v{t0}, v{c}
    v_lshlrev_b32 v{t0}, 4, v{t0}
    v_lshl_add_u32 v{V_OWQ}, v{g}, 13, v{t0}
    """)
    for u in range(1, 4):
        e(f"v_add_u32 v{V_OWQ+u}, {u * 32768 - wq_imm(u)}, v{V_OWQ}")
    e(f"""
    v_and_b32 v{t0}, 7, v{L}
    v_xor_b32 v{t0}, v{t0}, v{g}
    v_lshlrev_b32 v{t0}, 4, v{t0}
    v_lshrrev_b32 v{t1}, 3, v{L}
    v_lshl_add_u32 v{t0}, v{t1}, 10, v{t0}
    s_and_b32 s3, s{S_W}, 1
    s_lshl_b32 s3, s3, 6
    v_xor_b32 v{t0}, s3, v{t0}
    v_xor_b32 v{t1}, 64, v{t0}
    """)
    for u in range(5):
        src = t0 if u % 2 == 0 else t1
        e(f"v_add_u32 v{V_OX+u}, {u * 8192 - (u & 3) * 1024}, v{src}")
    e(f"""
    v_xor_b32 v{t0}, v{c}, v{g}
    v_lshlrev_b32 v{t0}, 4, v{t0}
    v_lshl_add_u32 v{V_OK}, v{g}, 8, v{t0}
    v_xor_b32 v{V_OK+1}, 64, v{V_OK}
    v_xor_b32 v{V_OK+2}, 0x80, v{V_OK}
    v_xor_b32 v{V_OK+3}, 0xc0, v{V_OK}
    """)
    e(f"""
    v_lshlrev_b32 v{t0}, 1, v{g}
    v_xor_b32 v{t0}, v{t0}, v{c}
    v_lshlrev_b32 v{t0}, 4, v{t0}
    v_lshl_add_u32 v{V_OV0}, v{g}, 8, v{t0}
    v_xor_b32 v{V_OV0+1}, 0x80, v{V_OV0}
    """)
    e(f"""
    s_mul_i32 s3, s{S_HH}, {WQ_HEAD}
    s_add_u32 s3, s3, {WQ0}
    v_mul_u32_u24 v{t0}, 2056, v{g}
    v_lshl_add_u32 v{t0}, v{rp}, 8, v{t0}
    v_lshl_add_u32 v{t0}, v{cp}, 4, v{t0}
    v_add_u32 v{t0}, s3, v{t0}
    s_mul_i32 s7, s{S_RH}, {4 * 1024 + 16}
    s_add_u32 s{S_WQL}, s3, s7
    s_lshl_b32 s{S_WQG}, s{S_RH}, 17
    """)
    for j in range(4):
        e(f"""
    v_xor_b32 v{t1}, {j}, v{rp}
    v_lshl_add_u32 v{V_AW+j}, v{t1}, 6, v{t0}""")
    e(f"""
    s_mul_i32 s3, s{S_RH}, {80*128}
    s_add_u32 s3, s3, {X0}
    v_lshrrev_b32 v{t0}, 1, v{c}
    v_xor_b32 v{t0}, v{t0}, v{g}
    v_lshlrev_b32 v{t0}, 4, v{t0}
    v_lshl_add_u32 v{t0}, v{c}, 7, v{t0}
    v_add_u32 v{V_AX}, s3, v{t0}
    v_xor_b32 v{V_AX+1}, 64, v{V_AX}
    s_mul_i32 s{S_XL}, s{S_W}, 5120
    s_add_u32 s{S_XL}, s{S_XL}, {X0}
    s_mul_i32 s{S_XG}, s{S_W}, 40960
    """)
    e(f"""
    s_lshl_b32 s3, s{S_HH}, 13
    s_lshl_b32 s7, s{S_RH}, 12
    s_add_u32 s{S_KV}, s3, s7
    v_xor_b32 v{t0}, v{g}, v{c}
    v_lshlrev_b32 v{t0}, 4, v{t0}
    v_lshl_add_u32 v{t0}, v{c}, 8, v{t0}
    v_add_u32 v{V_AK}, s3, v{t0}
    v_xor_b32 v{V_AK+1}, 64, v{V_AK}
    v_xor_b32 v{V_AK+2}, 0x80, v{V_AK}
    v_xor_b32 v{V_AK+3}, 0xc0, v{V_AK}
    """)
    e(f"""
    s_add_u32 s3, s3, 0x20000
    v_lshl_add_u32 v{t0}, v{g}, 2, v{rp}       ; 4g + r'
    v_and_b32 v{t1}, 7, v{t0}                  ; rho7
    v_lshlrev_b32 v{t0}, 8, v{t0}
    v_lshl_add_u32 v{t0}, v{t1}, 5, v{t0}
    v_lshl_add_u32 v{t0}, v{cp}, 3, v{t0}
    v_add_u32 v{V_AV}, s3, v{t0}
    """)
    for dt in range(1, 8):
        e(f"v_xor_b32 v{V_AV+dt}, {32*dt}, v{V_AV}")
    e(f"""
    s_waitcnt lgkmcnt(0)
    s_cmp_eq_u32 s{S_BR}, 0
    s_cselect_b32 s52, s52, s60
    s_cselect_b32 s53, s53, s61
    s_cselect_b32 s54, s54, s62
    s_cselect_b32 s55, s55, s63
    s_cselect_b32 s56, s56, s64
    s_cselect_b32 s57, s57, s65
    s_cselect_b32 s58, s58, s66
    s_cselect_b32 s59, s59, s67
    s_lshl_b32 s3, s{S_H}, 8
    s_add_u32 s{SRD_WQ}, s58, s3
    s_addc_u32 s{SRD_WQ+1}, s59, 0
    s_sub_u32 s{SRD_WQ+2}, 4194304, s3
    s_mov_b32 s{SRD_WQ+3}, 0x20000
    s_mul_i32 s3, s{S_B}, 163840
    s_add_u32 s{SRD_X}, s52, s3
    s_addc_u32 s{SRD_X+1}, s53, 0
    s_mov_b32 s{SRD_X+2}, 163840
    s_mov_b32 s{SRD_X+3}, 0x20000
    """)
    if o.rot:
        e(f"""
    s_and_b32 s3, s{S_IDX}, 3                ; p
    s_lshl_b32 s3, s3, 1
    s_add_u32 s3, s3, s{S_B}
    s_and_b32 s3, s3, 7
    s_lshl_b32 s{S_WQK}, s3, 7
    s_lshl_b32 s3, s3, 19                    ; 64 rows * 8192
    s_add_u32 s{S_WQG}, s{S_WQG}, s3
    """)
    else:
        e(f"s_mov_b32 s{S_WQK}, 0")

def prologue2(e, o):
    e(f"""
    s_lshl_b32 s3, s{S_B}, 5
    s_add_u32 s3, s3, s{S_H}
    s_lshl_b32 s3, s3, 17
    s_add_u32 s{SRD_K}, s54, s3
    s_addc_u32 s{SRD_K+1}, s55, 0
    s_mov_b32 s{SRD_K+2}, 131072
    s_mov_b32 s{SRD_K+3}, 0x20000
    s_add_u32 s{SRD_V}, s56, s3
    s_addc_u32 s{SRD_V+1}, s57, 0
    s_mov_b32 s{SRD_V+2}, 131072
    s_mov_b32 s{SRD_V+3}, 0x20000
    s_lshl_b32 s3, s{S_BR}, 3
    s_add_u32 s3, s3, s{S_B}
    s_lshl_b32 s3, s3, 1
    s_add_u32 s3, s3, s{S_RH}
    s_lshl_b32 s3, s3, 5
    s_add_u32 s3, s3, s{S_H}
    s_mul_i32 s3, s3, 20480
    s_add_u32 s{SRD_O}, s68, s3
    s_addc_u32 s{SRD_O+1}, s69, 0
    s_mov_b32 s{SRD_O+2}, 20480
    s_mov_b32 s{SRD_O+3}, 0x20000
    s_mov_b32 s{S_SC}, {f32hex(C_SCALE)}
    """)

def wq_imm(u): return u * 1024 + 8 * (u >> 1)

def dma_wq(o, m, after=-1, before=10**9, pace=0):
    fl = [F('s', txt(f"s_add_u32 m0, s{S_WQL}, {(m % 3) * WQ_SLOT}"), after, before)]
    for u in range(4):
        fl.append(F('l', lambda e, u=u: e.vm_op(f"buffer_load_dwordx4 v{V_OWQ+u}, s[{SRD_WQ}:{SRD_WQ+3}], s{S_WQG} offen offset:{wq_imm(u)} {o.q_flag} lds", f"wq{m}"), after + pace * u, before))
    fl.append(F('s', txt(f"s_add_u32 s{S_WQG}, s{S_WQG}, {32 * 8192}"), after, before))
    fl.append(F('s', txt(f"s_and_b32 s{S_WQG}, s{S_WQG}, 0x3fffff"), after, before))
    return fl

def dma_x(o, M, after=-1, before=10**9, pace=0):
    fl = [F('s', txt(f"s_add_u32 m0, s{S_XL}, {(M % 2) * X_SLOT}"), after, before),
          F('s', txt(f"s_add_u32 s{S_T1}, s{S_XG}, s{S_WQK}"), after, before)]
    for u in range(5):
        if u == 4: fl.append(F('s', txt(f"s_add_u32 m0, s{S_XL}, {(M % 2) * X_SLOT + 4096}"), after, before))
        if u == 4: fl.append(F('s', txt("s_nop 0"), after, before))
        fl.append(F('l', lambda e, u=u: e.vm_op(f"buffer_load_dwordx4 v{V_OX+u}, s[{SRD_X}:{SRD_X+3}], s{S_T1} offen offset:{(u & 3) * 1024} {o.q_flag} lds", f"x{M}"), after + pace * u, before))
    fl.append(F('s', txt(f"s_add_u32 s{S_WQK}, s{S_WQK}, 128"), after, before))
    fl.append(F('s', txt(f"s_and_b32 s{S_WQK}, s{S_WQK}, 0x3ff"), after, before))
    return fl

def dma_pref(o, which, s, after=-1, before=10**9, pace=0):
    if which == 'K':
        base = KRING + 16384 * s; srd = SRD_K; vo = lambda t: V_OK + t
    else:
        base = 0x20000 + 16384 * s; srd = SRD_V; vo = lambda t: V_OV0 + (t & 1)
    fl = [F('s', txt(f"s_add_u32 m0, s{S_KV}, {base}"), after, before),
          F('s', txt(f"s_lshl_b32 s34, s{S_RH}, 12"), after, before),
          F('s', txt(f"s_add_u32 s34, s34, {s * 8192}"), after, before)]
    for t in range(4):
        fl.append(F('l', lambda e, t=t: e.vm_op(f"buffer_load_dwordx4 v{vo(t)}, s[{srd}:{srd+3}], s34 offen offset:{t * 1024} {o.kv_flag} lds", f"{which}{s}"), after + pace * t, before))
    return fl

def zero_acc(e):
    for r in range(A_O, A_O + 180):
        e(f"v_accvgpr_write_b32 a{r}, 0")
    e(f"v_mov_b32 v{V_T+8}, 0x3f803f80")
    for r in range(4):
        e(f"v_accvgpr_write_b32 a{A_ONE + r}, v{V_T+8}")

def run(e, fl):
    for f in fl: f.fn(e)

def qphase(e, o):
    run(e, dma_wq(o, 0) + dma_x(o, 0) + dma_wq(o, 1))
    if o.pre_all: run(e, dma_wq(o, 2) + dma_x(o, 1))
    prologue2(e, o)
    stamp(e, o, "issued")
    zero_acc(e)
    idx = lambda m, dt, qt: 40 * m + 5 * dt + qt
    def wfrag(m, dt, after=-1, before=10**9):
        j, tp = dt >> 1, dt & 1
        return [F('d', lambda e, n=n: e.ds_op(f"ds_read_b64_tr_b16 a[{fbuf(dt) + 2 * n}:{fbuf(dt) + 2 * n + 1}], v{V_AW + j} offset:{(m % 3) * WQ_SLOT + n * 1024 + 8 * tp}", f"F{m}_{dt}"), after, before) for n in range(2)]
    def xfrag(m, qt, after=-1, before=10**9):
        M, h = m >> 1, m & 1
        b = V_XB[m & 1] + 4 * qt
        return [F('d', lambda e: e.ds_op(f"ds_read_b128 v[{b}:{b+3}], v{V_AX + h} offset:{(M % 2) * X_SLOT + qt * 2048}", f"B{m}_{qt}"), after, before)]
    def barrier(m):
        def fn(e):
            e.ds_all()
            tags = [f"wq{m+1}"]
            if (m + 1) % 2 == 0: tags.append(f"x{(m+1)//2}")
            if m == 15:
                e.vm_all()
            elif not o.q_nowait or m < 0:
                e.need_vm(tags)
            if not o.q_nobar or m in (-1, 15): e("s_barrier")
            if m in (3, 9): stamp(e, o, f"B{m}")
        return fn
    barrier(-1)(e)
    stamp(e, o, "bar0")
    def nextfrags(m, after, before):
        fl = wfrag(m, 0, after, before)
        for q in range(5): fl += xfrag(m, q, after, before)
        return fl + wfrag(m, 1, after, before) + wfrag(m, 2, after, before)
    run(e, nextfrags(0, -1, 0))
    mains = []; rd = []; dm = []
    pref = [('K', 0), ('K', 1), ('V', 0), ('V', 1)]
    tnext = [0]
    for m in range(16):
        for dt in range(8):
            for qt in range(5):
                cin = "0" if m == 0 else vr(acc(dt, qt), 4)
                needs = []
                if qt == 0: needs.append(f"F{m}_{dt}")
                if dt == 0: needs.append(f"B{m}_{qt}")
                pre = barrier(m) if (dt == 5 and qt == 0) else None
                mains.append(Main(f"{MFMA} {vr(acc(dt, qt), 4)}, {ar(fbuf(dt), 4)}, {vr(V_XB[m & 1] + 4 * qt, 4)}, {cin}", needs, pre))
        for dt in (3, 4, 5):
            rd += wfrag(m, dt, idx(m, dt - 3, 0), idx(m, dt - 1, 0))
        for dt in (6, 7):
            rd += wfrag(m, dt, idx(m, 2, 2), idx(m, 4, 3))
        if m < 15:
            rd += nextfrags(m + 1, idx(m, 5, 0), idx(m, 7, 4))
        a = idx(m, 5, 0); b = idx(m + 1, 5, 0) if m < 15 else 10**9
        if m == 0 and not o.pre_all:
            dm += dma_wq(o, 2, -1, idx(0, 4, 0)) + dma_x(o, 1, -1, idx(0, 4, 4))
        t = max(a, tnext[0])
        if m + 3 < 16 and not o.q_nodma:
            dm += dma_wq(o, m + 3, t, b, o.pace); t += 4 * o.pace
        if m % 2 == 1 and (m - 1) // 2 + 2 < 8 and not o.q_nodma:
            dm += dma_x(o, (m - 1) // 2 + 2, t, idx(m + 2, 4, 0) if m < 14 else 10**9, o.pace); t += 5 * o.pace
        for n_, (w, s) in enumerate(pref):
            if m == min(o.pf_start + n_ * o.pf_per, 15 if o.pf_late else 13):
                dm += dma_pref(o, w, s, t, idx(m + 2, 5, 0) if m < 14 else 10**9, o.pace); t += 4 * o.pace
        tnext[0] = t
        if m == 15:
            for s in (2, 3):
                dm += [F('s', txt(f"s_add_u32 m0, s{S_KV}, {KRING + 16384 * s}"), a),
                       F('s', txt(f"s_lshl_b32 s34, s{S_RH}, 12"), a),
                       F('s', txt(f"s_add_u32 s34, s34, {s * 8192}"), a)]
                for t in range(4):
                    dm.append(F('l', lambda e, t=t, s=s: e.vm_op(f"buffer_load_dwordx4 v{V_OK + t}, s[{SRD_K}:{SRD_K+3}], s34 offen offset:{t * 1024} {o.kv_flag} lds", f"K{s}"), a))
    if o.q_nods: rd = []
    zip2(e, mains, [rd, dm])

def qconvert(e):
    e("s_nop 7")
    for r in range(V_ACC, V_ACC + 160, 2):
        e(f"v_pk_mul_f32 v[{r}:{r+1}], v[{r}:{r+1}], s[{S_SC}:{S_SC+1}] op_sel_hi:[1,0]")
    for j in range(4):
        for qt in range(5):
            for tp in range(2):
                a0 = acc(2 * j + tp, qt); d = qf(j, qt) + 2 * tp
                e(f"v_cvt_pk_bf16_f32 v{d}, v{a0}, v{a0+1}")
                e(f"v_cvt_pk_bf16_f32 v{d+1}, v{a0+2}, v{a0+3}")

def dma_kv(o, which, after):
    fl = []
    if 'K' in which:
        fl.append(F('s', txt(f"s_mov_b32 m0, s{S_KDST}"), after))
        fl.append(F('s', txt(f"s_add_u32 s{S_KDST}, s{S_KDST}, 16384"), after))
        for t in range(4):
            fl.append(F('l', lambda e, t=t: e.vm_op(f"buffer_load_dwordx4 v{V_OK + t}, s[{SRD_K}:{SRD_K+3}], s{S_KOFF} offen offset:{t * 1024} {o.kv_flag} lds", "K"), after))
        fl.append(F('s', txt(f"s_and_b32 s{S_KDST}, s{S_KDST}, 0xffff"), after))
        fl.append(F('s', txt(f"s_add_u32 s{S_KOFF}, s{S_KOFF}, 8192"), after))
    if 'V' in which:
        fl.append(F('s', txt(f"s_add_u32 m0, s{S_VDST}, {VRING}"), after))
        fl.append(F('s', txt(f"s_add_u32 s{S_VDST}, s{S_VDST}, 16384"), after))
        for t in range(4):
            fl.append(F('l', lambda e, t=t: e.vm_op(f"buffer_load_dwordx4 v{V_OV + (t & 1)}, s[{SRD_V}:{SRD_V+3}], s{S_VOFF} offen offset:{t * 1024} {o.kv_flag} lds", "V"), after))
        fl.append(F('s', txt(f"s_and_b32 s{S_VDST}, s{S_VDST}, 0xffff"), after))
        fl.append(F('s', txt(f"s_add_u32 s{S_VOFF}, s{S_VOFF}, 8192"), after))
    return fl

def kfrag(par_slot, kt, j, n, after=-1, before=10**9):
    return [F('d', lambda e: e.ds_op(f"ds_read_b128 a[{fbuf(n)}:{fbuf(n)+3}], v{V_AK + j} offset:{kt * 4096 + 16384 * par_slot}", f"F{n}"), after, before)]
def vfrag(par_slot, dt, n, after=-1, before=10**9):
    return [F('d', lambda e, h=h: e.ds_op(f"ds_read_b64_tr_b16 a[{fbuf(n) + 2*h}:{fbuf(n) + 2*h + 1}], v{V_AV + dt} offset:{h * 4096 + 16384 * par_slot}", f"F{n}"), after, before) for h in range(2)]

def softmax_fill(par):
    seq = []
    for qt in range(5):
        for kt in range(2):
            s = sreg(par, kt, qt); p = preg(par, qt) + 2 * kt
            seq += [("e", s), ("e", s + 1), ("c", p, s, s + 1), ("e", s + 2), ("e", s + 3), ("c", p + 1, s + 2, s + 3)]
    out = []; pend = None
    for x in seq:
        if x[0] == "c": pend = x
        else:
            out.append(x)
            if pend is not None: out.append(pend); pend = None
    if pend is not None: out.append(("n",)); out.append(pend)
    fl = []
    for x in out:
        if x[0] == "e": fl.append(F('e', txt(f"v_exp_f32 v{x[1]}, v{x[1]}")))
        elif x[0] == "c": fl.append(F('v', txt(f"v_cvt_pk_bf16_f32 v{x[1]}, v{x[2]}, v{x[3]}")))
        else: fl.append(F('s', txt("s_nop 0")))
    return fl

def attn_iter(e, o, i, qk, sm, pv, vwait, dma, pre_next, epi=None):
    par = i & 1; ks = (i + 1) & 1
    mains = []; rd = []; dm = []
    gstart = {}
    if qk:
        for kt in range(2):
            for j in range(4):
                n = kt * 4 + j
                gstart[n] = len(mains)
                for qt in range(5):
                    d = sreg(par ^ 1, kt, qt)
                    cin = "0" if j == 0 else vr(d, 4)
                    mains.append(Main(f"{MFMA} {vr(d, 4)}, {ar(fbuf(n), 4)}, {vr(qf(j, qt), 4)}, {cin}", [f"F{n}"] if qt == 0 else []))
    if pv:
        gstart['l'] = len(mains)
        for qt in range(5):
            mains.append(Main(f"{MFMA} {ar(A_L + 4 * qt, 4)}, {ar(A_ONE, 4)}, {vr(preg(par ^ 1, qt), 4)}, {ar(A_L + 4 * qt, 4)}"))
        for dt in range(8):
            n = 8 + dt
            gstart[n] = len(mains)
            for qt in range(5):
                mains.append(Main(f"{MFMA} {ar(oacc(dt, qt), 4)}, {ar(fbuf(n), 4)}, {vr(preg(par ^ 1, qt), 4)}, {ar(oacc(dt, qt), 4)}", [f"F{n}"] if qt == 0 else []))
    order = [n for n in range(16) if n in gstart]
    ln = len(order)
    for k, n in enumerate(order):
        if qk and n < 3: continue
        after = gstart[order[k - 4]] if k >= 4 else -1
        if k >= ln - 3 and ln >= 6: after = gstart[order[ln - 6]]
        before = gstart[order[k - 1]] if k >= 1 else 0
        if k >= ln - 3 and ln >= 4: before = min(before, gstart[order[ln - 3]])
        rd += kfrag(ks, n >> 2, n & 3, n, after, before) if n < 8 else vfrag(ks, n - 8, n, after, before)
    has_bar = pre_next or vwait is not None
    if has_bar:
        bpos = gstart[order[-2]]
        def bar(e):
            e.ds_all()
            if vwait is not None: e(f"s_waitcnt vmcnt({vwait})")
            e("s_barrier")
        mains[bpos].pre = bar
        if par == 0 and qk:
            for j in range(4): rd.append(F('v', txt(f"v_xor_b32 v{V_AK + j}, 0x8000, v{V_AK + j}"), bpos))
        if pre_next:
            for n in range(3): rd += kfrag(ks ^ 1, 0, n, n, bpos, len(mains) - 1)
        if par == 0 and pv:
            for dt in range(8): rd.append(F('v', txt(f"v_xor_b32 v{V_AV + dt}, {hex(VTOG)}, v{V_AV + dt}"), bpos))
    dm += dma_kv(o, dma, -1)
    sf = softmax_fill(par) if sm else []
    qs = [rd, dm, sf]
    if epi: qs.append(epi(gstart))
    zip2(e, mains, qs, flush_nop=bool(epi))

def epilogue_fill(o):
    def build(gstart):
        fl = []
        RL = V_E
        W = V_E + 6
        l0 = gstart['l']
        for qt in range(5):
            fl.append(F('v', txt(f"v_accvgpr_read_b32 v{RL + qt}, a{A_L + 4 * qt}"), l0 + 5 + 8))
        for qt in range(5):
            fl.append(F('e', txt(f"v_rcp_f32 v{RL + qt}, v{RL + qt}"), l0 + 5 + 8))
        k = 0
        for jj in range(4):
            ready = gstart[8 + 2 * jj + 1] + 5 + 4
            for qt in range(5):
                w = W + 12 * (k & 1); k += 1
                for tp in range(2):
                    for i in range(4):
                        fl.append(F('v', txt(f"v_accvgpr_read_b32 v{w + 4*tp + i}, a{oacc(2*jj + tp, qt) + i}"), ready))
                for r in range(8):
                    fl.append(F('v', txt(f"v_mul_f32 v{w + r}, v{w + r}, v{RL + qt}"), ready))
                for r in range(4):
                    fl.append(F('v', txt(f"v_cvt_pk_bf16_f32 v{w + 8 + r}, v{w + 2*r}, v{w + 2*r + 1}"), ready))
                off = (jj * 5 + qt) * 1024
                fl.append(F('s', txt(f"s_mov_b32 s{S_T0}, {off}"), ready))
                fl.append(F('l', lambda e, w=w: e.vm_op(f"buffer_store_dwordx4 v[{w+8}:{w+11}], v{V_E + 5}, s[{SRD_O}:{SRD_O+3}], s{S_T0} offen {o.o_flag}", "st"), ready))
        return fl
    return build

WO_A = [131072, 147456, 98304, 81920, 114688]
WO_B = [0, 16384, 32768, 49152, 65536]
def wo_slot(si): return WO_A[si] if si < 5 else WO_B[si - 5] if si < 10 else WO_A[si - 10] if si < 15 else WO_B[0]
V_AWS = 160

def t3_setup(e, o):
    L = V_E + 5
    t0, t1, t2, t3_ = V_E, V_E + 1, V_E + 2, V_E + 3
    e(f"""
    v_lshrrev_b32 v{t0}, 4, v{L}             ; lane
    v_lshrrev_b32 v{t1}, 4, v{t0}            ; g
    v_and_b32 v{t2}, 7, v{t0}
    v_lshlrev_b32 v{t3_}, 1, v{t1}
    v_xor_b32 v{t2}, v{t2}, v{t3_}
    v_lshlrev_b32 v{t2}, 4, v{t2}
    v_lshrrev_b32 v{t3_}, 3, v{t0}
    v_lshl_add_u32 v{V_OW}, v{t3_}, 10, v{t2}
    v_add_u32 v{V_OW+1}, {7168}, v{V_OW}
    v_add_u32 v{V_OW+2}, {2*7168}, v{V_OW}
    v_add_u32 v{V_OW+3}, {3*7168}, v{V_OW}
    v_bfe_u32 v{t2}, v{t0}, 2, 2             ; r'
    v_lshl_add_u32 v{t2}, v{t1}, 2, v{t2}    ; 4g + r'
    v_lshrrev_b32 v{t3_}, 1, v{t2}
    v_and_b32 v{t3_}, 3, v{t3_}
    v_lshlrev_b32 v{t2}, 7, v{t2}
    v_lshl_add_u32 v{t2}, v{t3_}, 5, v{t2}
    v_and_b32 v{t3_}, 3, v{t0}               ; c'
    v_lshl_add_u32 v{t2}, v{t3_}, 3, v{t2}
    s_lshl_b32 s3, s{S_HH}, 13
    v_add_u32 v{V_AW2}, s3, v{t2}
    v_xor_b32 v{V_AW2+1}, 32, v{V_AW2}
    v_xor_b32 v{V_AW2+2}, 64, v{V_AW2}
    v_xor_b32 v{V_AW2+3}, 0x60, v{V_AW2}
    s_mul_i32 s3, s{S_W}, 20480
    v_add_u32 v{V_XA}, s3, v{L}
    s_mov_b32 s{S_WL}, s{S_KV}
    s_lshl_b32 s3, s{S_RH}, 15
    s_lshl_b32 s7, s{S_HH}, 9
    s_add_u32 s3, s3, s7
    s_lshl_b32 s7, s{S_HH}, 17
    s_add_u32 s{S_WA}, s3, s7
    s_xor_b32 s7, s7, 0x20000
    s_add_u32 s{S_WB}, s3, s7
    s_cmp_eq_u32 s{S_BR}, 0
    s_cselect_b32 s60, s98, s100
    s_cselect_b32 s61, s99, s101
    s_sub_u32 s3, s{S_H}, s{S_HH}
    s_lshl_b32 s3, s3, 17                    ; * 128 rows * 1024
    s_add_u32 s{SRD_WO}, s60, s3
    s_addc_u32 s{SRD_WO+1}, s61, 0
    s_mov_b32 s{SRD_WO+2}, 262144
    s_mov_b32 s{SRD_WO+3}, 0x20000
    s_lshl_b32 s3, s{S_BR}, 3
    s_add_u32 s3, s3, s{S_B}
    s_lshl_b32 s3, s3, 4
    s_lshr_b32 s7, s{S_H}, 1
    s_add_u32 s3, s3, s7
    s_lshl_b32 s3, s3, 2
    s_lshl_b32 s7, s{S_RH}, 1
    s_add_u32 s3, s3, s7
    s_add_u32 s3, s3, s{S_HH}
    s_mul_i32 s3, s3, 40960
    s_add_u32 s3, s3, {POFF}
    s_add_u32 s{SRD_P}, s68, s3
    s_addc_u32 s{SRD_P+1}, s69, 0
    s_mov_b32 s{SRD_P+2}, 40960
    s_mov_b32 s{SRD_P+3}, 0x20000
    s_lshl_b32 s3, s{S_HG}, 20
    s_add_u32 s56, s60, s3
    s_addc_u32 s57, s61, 0
    s_mov_b32 s58, 0x100000
    s_mov_b32 s59, 0x20000
    s_lshl_b32 s3, s{S_IDX}, 2
    s_add_u32 s3, s3, s{S_W}
    s_lshl_b32 s3, s3, 13
    v_lshlrev_b32 v{t0}, 3, v{L}             ; lane*128
    v_add_u32 v{t0}, s3, v{t0}
    """)

def dma_wo(o, p, kq, after=-1, before=10**9, pace=0):
    src = S_WA if kq < 2 else S_WB
    fl = [F('s', txt(f"s_add_u32 m0, s{S_WL}, {wo_slot(4 * p + kq)}"), after, before),
          F('s', txt(f"s_add_u32 s{S_T1}, s{src}, {(kq & 1) * 65536 + 128 * p}"), after, before)]
    for t in range(4):
        fl.append(F('l', lambda e, t=t: e.vm_op(f"buffer_load_dwordx4 v{V_OW+t}, s[{SRD_WO}:{SRD_WO+3}], s{S_T1} offen offset:{t*1024} {o.w_flag} lds", f"W{p}_{kq}"), after + pace * t, before))
    return fl

def t3_tail(e, o):
    i = 16; par = 0; ks = 1
    mains = []; rd = []; dm = []; cv = []; st = []
    gstart = {}
    gstart['l'] = 0
    for qt in range(5):
        mains.append(Main(f"{MFMA} {ar(A_L + 4 * qt, 4)}, {ar(A_ONE, 4)}, {vr(preg(1, qt), 4)}, {ar(A_L + 4 * qt, 4)}"))
    for dt in range(8):
        n = 8 + dt
        gstart[n] = len(mains)
        for qt in range(5):
            mains.append(Main(f"{MFMA} {ar(oacc(dt, qt), 4)}, {ar(fbuf(n), 4)}, {vr(preg(1, qt), 4)}, {ar(oacc(dt, qt), 4)}", [f"F{n}"] if qt == 0 else []))
    for k in range(8):
        n = 8 + k
        after = gstart[8 + k - 4] if k >= 4 else -1
        before = gstart[8 + k - 1] if k >= 1 else 0
        rd += vfrag(ks, k, n, after, before)
    NPV = len(mains)
    def a2(p, nt, qt): return A_ACC2[p & 1] + (nt * 5 + qt) * 4
    def bfr(kk, qt): return (kk * 5 + qt) * 4
    S0 = {}
    nfrag = 16
    for p in range(4):
        for kq in range(4):
            S0[(p, kq)] = len(mains)
            for ks2 in range(2):
                kk = 2 * kq + ks2
                for nt in range(4):
                    n = nfrag; nfrag += 1
                    g0 = len(mains)
                    for qt in range(5):
                        cin = "0" if (kq == 0 and ks2 == 0) else ar(a2(p, nt, qt), 4)
                        needs = [f"G{n}"] if qt == 0 else []
                        if p == 0 and kk >= 4 and nt == 0: needs = needs + [f"X{kk}_{qt}"]
                        mains.append(Main(f"{MFMA} {ar(a2(p, nt, qt), 4)}, {ar(fbuf(n), 4)}, {vr(bfr(kk, qt), 4)}, {cin}", needs))
                    gstart[('g', p, kq, ks2, nt)] = (g0, n)
    N = len(mains)
    stages = [(p, kq) for p in range(4) for kq in range(4)]
    def gidx(p, kq, j): return gstart[('g', p, kq, j >> 2, j & 3)]
    BAR = {}
    for si, (p, kq) in enumerate(stages):
        BAR[si] = gidx(p, kq, 5)[0]
    def wfrag(p, kq, j, after, before):
        g0, n = gidx(p, kq, j)
        return [F('d', lambda e, h=h, n=n: e.ds_op(f"ds_read_b64_tr_b16 a[{fbuf(n) + 2*h}:{fbuf(n) + 2*h + 1}], v{V_AWS + 4 * (wo_slot(4 * p + kq) >> 16) + (j & 3)} offset:{(wo_slot(4 * p + kq) & 0xffff) + (j >> 2) * 4096 + h * 2048}", f"G{n}"), after, before) for h in range(2)]
    pv_bar = gstart[8 + 6]
    def bar_first(e):
        e.ds_all()
        e.need_vm("W0_0")
        e("s_barrier")
    mains[pv_bar].pre = bar_first
    rd_pv_last = [f for f in rd]
    for f in rd:
        f.before = min(f.before, pv_bar - 3)
    for si, (p, kq) in enumerate(stages):
        prevbar = pv_bar if si == 0 else BAR[si - 1]
        for j in range(8):
            g0 = gidx(p, kq, j)[0]
            if j < 3:
                after = prevbar; before = S0[(p, kq)] - 1 if j == 0 else gidx(p, kq, j - 1)[0]
                if si == 0 and j == 0: before = NPV - 1
            elif j < 6:
                after = gidx(p, kq, j - 3)[0]; before = gidx(p, kq, j - 1)[0]
            else:
                after = gidx(p, kq, 2)[0] + 2; before = gidx(p, kq, 4)[0] + 3
            rd += wfrag(p, kq, j, after, before)
        def bar(e, si=si):
            if si in (0, 3, 7, 11, 15): stamp(e, o, f"T{si}")
            e.ds_all()
            if si + 1 < 16:
                pn, kn = stages[si + 1]
                e.need_vm(f"W{pn}_{kn}")
            e("s_barrier")
        mains[BAR[si]].pre = bar
    pre = dma_wo(o, 0, 0, -1, 3) + dma_wo(o, 0, 1, -1, 10) + dma_wo(o, 0, 2, -1, 18) + dma_wo(o, 0, 3, -1, 26)
    def st_(si): return stages[si]
    P = o.w_pace
    dm = pre + dma_wo(o, *st_(4), pv_bar, BAR[0], P)
    dm += dma_wo(o, *st_(10), BAR[0], BAR[1], P)
    dm += dma_wo(o, *st_(11), BAR[1], BAR[2], P)
    t = BAR[2]
    for si in (5, 6, 7, 8, 9):
        dm += dma_wo(o, *st_(si), t, BAR[si - 2] if si > 5 else BAR[3], P); t += 4 * P
    dm += dma_wo(o, *st_(12), t, BAR[8], P); t += 4 * P
    dm += dma_wo(o, *st_(13), max(t, BAR[3]), BAR[9], P); t += 4 * P
    dm += dma_wo(o, *st_(14), max(t, BAR[4]), BAR[10], P); t += 4 * P
    dm += dma_wo(o, *st_(15), max(t, BAR[5]), BAR[11], P)
    RL = V_E; W = V_E + 6
    l0 = 0
    for qt in range(5): cv.append(F('v', txt(f"v_accvgpr_read_b32 v{RL + qt}, a{A_L + 4 * qt}"), l0 + 5 + 6))
    for qt in range(5): cv.append(F('e', txt(f"v_rcp_f32 v{RL + qt}, v{RL + qt}"), l0 + 5 + 6))
    k = 0
    for jj in range(4):
        ready = gstart[8 + 2 * jj + 1] + 5 + 4
        need = gidx(0, jj >> 1, (jj & 1) * 4)[0]
        if jj == 1: need = gidx(0, 0, 2)[0]
        for qt in range(5):
            w = W + 8 * (k & 1); k += 1
            dl = need + qt - 2 if need + qt - 2 > ready else need
            for tp in range(2):
                for i_ in range(4):
                    cv.append(F('v', txt(f"v_accvgpr_read_b32 v{w + 4*tp + i_}, a{oacc(2*jj + tp, qt) + i_}"), ready, need - 2))
            for r in range(8):
                cv.append(F('v', txt(f"v_mul_f32 v{w + r}, v{w + r}, v{RL + qt}"), ready, need - 2))
            d = bfr(jj, qt)
            for r in range(4):
                cv.append(F('v', txt(f"v_cvt_pk_bf16_f32 v{d + r}, v{w + 2*r}, v{w + 2*r + 1}"), ready, need - 2))
            cv.append(F('d', lambda e, d=d, jj=jj, qt=qt: e.ds_op(f"ds_write_b128 v{V_XA}, v[{d}:{d+3}] offset:{(jj * 5 + qt) * 1024}", "XW"), ready, need - 1))
    xbar = BAR[1]
    cv.append(F('v', txt(f"v_xor_b32 v{V_XA}, {40960}, v{V_XA}") if False else txt(f"v_add_u32 v{V_XA}, s55, v{V_XA}"), xbar, xbar + 2))
    for jj in range(4):
        for qt in range(5):
            d = bfr(4 + jj, qt)
            cv.append(F('d', lambda e, d=d, jj=jj, qt=qt: e.ds_op(f"ds_read_b128 v[{d}:{d+3}], v{V_XA} offset:{(jj * 5 + qt) * 1024}", f"X{4+jj}_{qt}"), xbar + 1, S0[(0, 2)] - 6 if jj < 2 else BAR[2] - 4))
    W2 = V_E + 6
    k = 0
    for p in range(4):
        start = S0[(p + 1, 0)] + 6 if p < 3 else N
        end = S0[(p + 1, 3)] if p < 2 else 10**9
        if p == 2: end = N - 10
        for u in range(2):
            for qt in range(5):
                w = W2 + 12 * (k & 1); k += 1
                for tp in range(2):
                    for i_ in range(4):
                        st.append(F('v', txt(f"v_accvgpr_read_b32 v{w + 4*tp + i_}, a{a2(p, 2*u + tp, qt) + i_}"), start, end))
                for r in range(4):
                    st.append(F('v', txt(f"v_cvt_pk_bf16_f32 v{w + 8 + r}, v{w + 2*r}, v{w + 2*r + 1}"), start, end))
                off = (p * 10 + u * 5 + qt) * 1024
                st.append(F('s', txt(f"s_mov_b32 s{S_T0}, {off}"), start, end))
                st.append(F('l', lambda e, w=w: e.vm_op(f"buffer_store_dwordx4 v[{w+8}:{w+11}], v{V_E + 5}, s[{SRD_P}:{SRD_P+3}], s{S_T0} offen {o.p_flag}", "st"), start, end))
    for k_ in range(3):
        for j in range(4):
            e(f"v_add_u32 v{V_AWS + 4 * k_ + j}, {65536 * k_}, v{V_AW2 + j}")
    e(f"s_lshl_b32 s{S_T0}, s{S_HH}, 1")
    e(f"s_sub_u32 s{S_T0}, 1, s{S_T0}")
    e(f"s_mul_i32 s{S_T0}, s{S_T0}, 40960")
    e(f"s_mov_b32 s55, s{S_T0}")
    for f in cv:
        pass
    zip2(e, mains, [rd, dm, cv, st], flush_nop=True)

def gen_k1(name, o):
    NSTAMP[0] = 0
    e = Em()
    e.lines.append(kernel_head(name))
    prologue(e, o, name)
    qphase(e, o)
    stamp(e, o, "qdone")
    e(f"v_accvgpr_write_b32 a{A_SAVE}, v{V_OV0}")
    e(f"v_accvgpr_write_b32 a{A_SAVE+1}, v{V_OV0+1}")
    e(f"v_accvgpr_write_b32 a{A_SAVE+2}, v{V_T+1}")
    for n in range(3): run(e, kfrag(0, 0, n, n))
    qconvert(e)
    stamp(e, o, "qconv")
    e(f"""
    v_accvgpr_read_b32 v{V_OV}, a{A_SAVE}
    v_accvgpr_read_b32 v{V_OV+1}, a{A_SAVE+1}
    v_accvgpr_read_b32 v{V_E+5}, a{A_SAVE+2}
    s_mov_b32 s{S_KDST}, s{S_KV}             ; K(4) -> slot 0
    s_add_u32 s{S_VDST}, s{S_KV}, 0
    s_lshl_b32 s7, s{S_RH}, 12
    s_add_u32 s{S_KOFF}, s7, {4 * 8192}
    s_add_u32 s{S_VOFF}, s7, {2 * 8192}
    v_lshlrev_b32 v{V_E+5}, 4, v{V_E+5}
    """)
    if o.t3: t3_setup(e, o)
    if o.pf_late:
        e("s_waitcnt vmcnt(0)"); e("s_barrier"); e.vm = []
        for n in range(3): run(e, kfrag(0, 0, n, n))
    attn_iter(e, o, -1, True, False, False, None, '', True)
    attn_iter(e, o, 0, True, True, False, 12, 'KV', True)
    stamp(e, o, "iter0 done")
    e(f"s_mov_b32 s{S_CNT}, 0")
    ds0 = list(e.ds)
    e.label(f"L_loop_{name}")
    if o.t3 and o.w_touch >= 0:
        e(f"s_cmp_eq_u32 s{S_CNT}, {o.w_touch}")
        e(f"s_cbranch_scc0 L_nowt_{name}")
        e(f"buffer_load_dword v{V_E + 1}, v{V_E}, s[56:59], 0 offen")
        e.label(f"L_nowt_{name}")
    attn_iter(e, o, 1, True, True, True, 16, 'KV', True)
    attn_iter(e, o, 2, True, True, True, 16, 'KV', True)
    assert e.ds == ds0, (e.ds, ds0)
    e(f"s_add_u32 s{S_CNT}, s{S_CNT}, 1")
    e(f"s_cmp_lt_u32 s{S_CNT}, 7")
    e(f"s_cbranch_scc1 L_loop_{name}")
    e.ds_all()
    stamp(e, o, "loop done")
    attn_iter(e, o, 15, False, True, True, 0, '', False)
    if o.t3:
        t3_tail(e, o)
    else:
        attn_iter(e, o, 16, False, False, True, None, '', False, epi=epilogue_fill(o))
    stamp(e, o, "stores issued")
    e("s_waitcnt vmcnt(0)")
    stamp(e, o, "end")
    if o.stamps:
        e(f"""
    s_memrealtime s[96:97]
    s_waitcnt lgkmcnt(0)
    s_lshl_b32 s3, s2, 2
    s_add_u32 s3, s3, s{S_W}
    s_lshl_b32 s3, s3, 7
    s_add_u32 s3, s3, {200*1024*1024}
    v_mov_b32 v30, s3
    s_mov_b64 exec, 1
    """)
        for k in range(14):
            e(f"v_mov_b32 v0, s{70 + 2*k}")
            e(f"v_mov_b32 v1, s{71 + 2*k}")
            e(f"global_store_dwordx2 v30, v[0:1], s[68:69] offset:{8*k}")
            e("s_nop 1")
        e("s_waitcnt vmcnt(0)")
        if o.dbg:
            e(f"""
    s_or_b32 s3, s2, s{S_W}
    s_cmp_eq_u32 s3, 0
    s_cbranch_scc0 L_end_{name}
    s_load_dwordx2 s[98:99], s[0:1], 88
    s_waitcnt lgkmcnt(0)
    v_mov_b32 v30, 0
    """)
            for k in range(1, 11):
                e(f"s_sub_u32 s3, s{70 + 2*k}, s70")
                e(f"v_mov_b32 v0, s3")
                e(f"global_store_dword v30, v0, s[98:99] offset:{4*k}")
                e("s_nop 1")
            e("s_sub_u32 s3, s96, s94")
            e("v_mov_b32 v0, s3")
            e("global_store_dword v30, v0, s[98:99] offset:0")
            e("s_waitcnt vmcnt(0)")
    e.label(f"L_end_{name}")
    e("s_endpgm")
    return e.text() + kernel_desc(name, 512, 256)
```

```python
from common import *
from sched import *

S_W = 4
SRD_O, SRD_WO, SRD_OUT, SRD_TO, SRD_TW = 8, 12, 16, 20, 24
S_T0, S_T1 = 32, 33
S_OOFF, S_WOFF, S_LB, S_CNT, S_TOO, S_TWO = 36, 37, 38, 39, 40, 41
S_BR, S_B, S_RH, S_NB, S_IDX = 45, 46, 47, 48, 49
V_B = 0
V_AW = 80
V_OO = 84
V_OW = 86
V_TO, V_TW, V_TD = 90, 91, 92
V_T = 96
A_ACC = 0
A_F = 80
RING = 4096
LDS_BYTES = 4 * 8 * 4096

class Opt2:
    o_flag = ""
    w_flag = ""
    t_flag = ""
    stamps = False
    dbg = False
    touch = True
    D = 4

def accr(nt, qt): return A_ACC + (nt * 5 + qt) * 4
def fb(n): return A_F + 4 * (n % 8)

def gen_k2(name, o):
    D = o.D
    e = Em()
    e.lines.append(kernel_head(name))
    L = V_T; c, g, rp, cp, t0, t1 = V_T + 1, V_T + 2, V_T + 3, V_T + 4, V_T + 5, V_T + 6
    e(f"""
    s_cmp_ge_u32 s2, 256
    s_cbranch_scc1 L_end_{name}
    s_load_dwordx2 s[52:53], s[0:1], 32      ; A_wo
    s_load_dwordx2 s[54:55], s[0:1], 72      ; B_wo
    s_load_dwordx2 s[56:57], s[0:1], 80      ; out
    s_load_dwordx2 s[58:59], s[0:1], 96      ; ws
    v_lshrrev_b32 v{t0}, 6, v0
    v_and_b32 v{L}, 63, v0
    v_readfirstlane_b32 s{S_W}, v{t0}
    s_and_b32 s3, s2, 7
    s_lshr_b32 s{S_IDX}, s2, 3               ; idx
    s_lshr_b32 s{S_BR}, s3, 2
    s_and_b32 s3, s3, 3
    s_lshl_b32 s42, s3, 1
    s_lshr_b32 s{S_B}, s{S_IDX}, 4
    s_add_u32 s{S_B}, s{S_B}, s42
    s_bfe_u32 s{S_RH}, s{S_IDX}, 0x10003
    s_and_b32 s{S_NB}, s{S_IDX}, 7
    """)
    if o.stamps: e("s_memrealtime s[90:91]")
    if o.stamps: e("s_memtime s[70:71]")
    e(f"""
    v_and_b32 v{c}, 15, v{L}
    v_lshrrev_b32 v{g}, 4, v{L}
    v_bfe_u32 v{rp}, v{L}, 2, 2
    v_and_b32 v{cp}, 3, v{L}
    v_lshlrev_b32 v{V_OO}, 4, v{L}
    v_add_u32 v{V_OO+1}, 4096, v{V_OO}
    v_lshlrev_b32 v{t0}, 1, v{g}
    v_and_b32 v{t1}, 7, v{L}
    v_xor_b32 v{t0}, v{t0}, v{t1}
    v_lshlrev_b32 v{t0}, 4, v{t0}
    v_lshrrev_b32 v{t1}, 3, v{L}
    v_lshl_add_u32 v{V_OW}, v{t1}, 10, v{t0}
    v_add_u32 v{V_OW+1}, {7168}, v{V_OW}
    v_add_u32 v{V_OW+2}, {2*7168}, v{V_OW}
    v_add_u32 v{V_OW+3}, {3*7168}, v{V_OW}
    v_lshl_add_u32 v{t0}, v{g}, 2, v{rp}      ; 4g + r'
    v_lshrrev_b32 v{t1}, 1, v{t0}
    v_and_b32 v{t1}, 3, v{t1}
    v_lshlrev_b32 v{t0}, 7, v{t0}
    v_lshl_add_u32 v{t0}, v{t1}, 5, v{t0}
    v_lshl_add_u32 v{t0}, v{cp}, 3, v{t0}
    s_lshl_b32 s{S_LB}, s{S_W}, 15
    v_add_u32 v{V_AW}, s{S_LB}, v{t0}
    v_xor_b32 v{V_AW+1}, 32, v{V_AW}
    v_xor_b32 v{V_AW+2}, 64, v{V_AW}
    v_xor_b32 v{V_AW+3}, 0x60, v{V_AW}
    s_lshl_b32 s3, s{S_IDX}, 13
    s_lshl_b32 s7, s{S_W}, 20
    s_add_u32 s3, s3, s7
    v_lshlrev_b32 v{V_TW}, 7, v{L}
    v_add_u32 v{V_TW}, s3, v{V_TW}
    s_lshr_b32 s3, s{S_IDX}, 1
    s_mul_i32 s3, s3, 163840
    s_and_b32 s7, s{S_IDX}, 1
    s_mul_i32 s7, s7, {160*128}
    s_add_u32 s3, s3, s7
    s_mul_i32 s7, s{S_W}, {40*128}
    s_add_u32 s3, s3, s7
    v_min_u32 v{V_TO}, 39, v{L}
    v_lshlrev_b32 v{V_TO}, 7, v{V_TO}
    v_add_u32 v{V_TO}, s3, v{V_TO}
    s_waitcnt lgkmcnt(0)
    s_cmp_eq_u32 s{S_BR}, 0
    s_cselect_b32 s52, s52, s54
    s_cselect_b32 s53, s53, s55
    s_lshl_b32 s3, s{S_BR}, 3
    s_add_u32 s3, s3, s42
    s_mul_i32 s3, s3, {2*655360}
    s_add_u32 s{SRD_TO}, s58, s3
    s_addc_u32 s{SRD_TO+1}, s59, 0
    s_mov_b32 s{SRD_TO+2}, {4*655360}
    s_mov_b32 s{SRD_TO+3}, 0x20000
    s_mov_b32 s{SRD_TW}, s52
    s_mov_b32 s{SRD_TW+1}, s53
    s_mov_b32 s{SRD_TW+2}, 0x400000
    s_mov_b32 s{SRD_TW+3}, 0x20000
    s_mov_b32 s{S_TOO}, 0
    s_mov_b32 s{S_TWO}, 0
    """)
    def touch(e):
        e.vm_op(f"buffer_load_dword v{V_TD}, v{V_TW}, s[{SRD_TW}:{SRD_TW+3}], s{S_TWO} offen {o.t_flag}", "T")
        e.vm_op(f"buffer_load_dword v{V_TD+1}, v{V_TO}, s[{SRD_TO}:{SRD_TO+3}], s{S_TOO} offen {o.t_flag}", "T")
        e(f"s_add_u32 s{S_TWO}, s{S_TWO}, {256*1024}")
        e(f"s_add_u32 s{S_TOO}, s{S_TOO}, 40960")
    if o.touch: touch(e)
    e(f"""
    s_lshl_b32 s3, s{S_BR}, 3
    s_add_u32 s3, s3, s{S_B}
    s_lshl_b32 s3, s3, 1
    s_add_u32 s3, s3, s{S_RH}
    s_lshl_b32 s3, s3, 2
    s_add_u32 s3, s3, s{S_W}
    s_mul_i32 s3, s3, 163840
    s_add_u32 s{SRD_O}, s58, s3
    s_addc_u32 s{SRD_O+1}, s59, 0
    s_mov_b32 s{SRD_O+2}, 163840
    s_mov_b32 s{SRD_O+3}, 0x20000
    s_lshl_b32 s3, s{S_W}, 20
    s_lshl_b32 s7, s{S_NB}, 7
    s_add_u32 s3, s3, s7
    s_add_u32 s{SRD_WO}, s52, s3
    s_addc_u32 s{SRD_WO+1}, s53, 0
    s_sub_u32 s{SRD_WO+2}, 0x100000, s7
    s_mov_b32 s{SRD_WO+3}, 0x20000
    s_mov_b32 s{SRD_OUT}, s56
    s_mov_b32 s{SRD_OUT+1}, s57
    s_mov_b32 s{SRD_OUT+2}, 2621440
    s_mov_b32 s{SRD_OUT+3}, 0x20000
    s_mov_b32 s{S_OOFF}, 0
    s_mov_b32 s{S_WOFF}, 0
    """)
    def wloads(slot, after=-1):
        fl = [F('s', txt(f"s_add_u32 m0, s{S_LB}, {slot * RING}"), after)]
        for t in range(4):
            fl.append(F('l', lambda e, t=t: e.vm_op(f"buffer_load_dwordx4 v{V_OW+t}, s[{SRD_WO}:{SRD_WO+3}], s{S_WOFF} offen offset:{t*1024} {o.w_flag} lds", "W"), after + 2 * t))
        fl.append(F('s', txt(f"s_add_u32 s{S_WOFF}, s{S_WOFF}, 32768"), after))
        return fl
    def oloads(slot, after=None):
        fl = []
        for qt in range(5):
            b = V_B + (slot % D) * 20 + 4 * qt
            a = -1 if after is None else after + qt
            if qt < 4: fl.append(F('l', lambda e, b=b, qt=qt: e.vm_op(f"buffer_load_dwordx4 v[{b}:{b+3}], v{V_OO}, s[{SRD_O}:{SRD_O+3}], s{S_OOFF} offen offset:{qt * 1024} {o.o_flag}", "O"), a))
            else:
                fl.append(F('l', lambda e, b=b: e.vm_op(f"buffer_load_dwordx4 v[{b}:{b+3}], v{V_OO+1}, s[{SRD_O}:{SRD_O+3}], s{S_OOFF} offen {o.o_flag}", "O"), a))
                fl.append(F('s', txt(f"s_add_u32 s{S_OOFF}, s{S_OOFF}, 5120"), a))
        return fl
    for s in range(D):
        for f in wloads(s) + oloads(s): f.fn(e)
    for r in range(80): e(f"v_accvgpr_write_b32 a{A_ACC + r}, 0")
    def afrag(slot, nt, n, before):
        return [F('d', lambda e, h=h: e.ds_op(f"ds_read_b64_tr_b16 a[{fb(n) + 2*h}:{fb(n) + 2*h + 1}], v{V_AW + nt} offset:{slot * RING + h * 2048}", f"F{n}"), -1, before) for h in range(2)]
    if o.stamps: e("s_memtime s[72:73]")
    e(f"s_mov_b32 s{S_CNT}, 0")
    e.label(f"L_loop_{name}")
    for u in range(8):
        extra = 2 if (o.touch and u < D) else 0
        if o.touch:
            pass
        e(f"s_waitcnt vmcnt({9 * (D - 1)})")
        if o.stamps and u == 0:
            e(f"s_cmp_eq_u32 s{S_CNT}, 0")
            e(f"s_cbranch_scc0 L_ns_{name}")
            e("s_memtime s[74:75]")
            e.label(f"L_ns_{name}")
        mains = []; rd = []; dm = []
        for nt in range(4):
            rd += afrag(u, nt, 4 * (u & 1) + nt, 0 if nt == 0 else 5 * nt - 3)
        for nt in range(4):
            n = 4 * (u & 1) + nt
            for qt in range(5):
                mains.append(Main(f"{MFMA} {ar(accr(nt, qt), 4)}, {ar(fb(n), 4)}, {vr(V_B + (u % D) * 20 + 4 * qt, 4)}, {ar(accr(nt, qt), 4)}", [f"F{n}"] if qt == 0 else []))
        dm += wloads((u + D) % 8, 3)
        dm += oloads((u + D) % 8, 15)
        zip2(e, mains, [rd, dm])
        if o.touch and u == 0:
            e(f"s_cmp_lt_u32 s{S_CNT}, 3")
            e(f"s_cbranch_scc0 L_notouch_{name}")
            touch(e)
            e.label(f"L_notouch_{name}")
    if o.stamps:
        for t in range(4):
            e(f"s_cmp_eq_u32 s{S_CNT}, {t}")
            e(f"s_cbranch_scc0 L_nt{t}_{name}")
            e(f"s_memtime s[{76+2*t}:{77+2*t}]")
            e.label(f"L_nt{t}_{name}")
    e(f"s_add_u32 s{S_CNT}, s{S_CNT}, 1")
    e(f"s_cmp_lt_u32 s{S_CNT}, 4")
    e(f"s_cbranch_scc1 L_loop_{name}")
    e("s_waitcnt vmcnt(0) lgkmcnt(0)")
    e("s_barrier")
    e("s_nop 7")
    e(f"s_mul_i32 s3, s{S_W}, 20480")
    e(f"v_add_u32 v{t0}, s3, v{V_OO}")
    for nt in range(4):
        for qt in range(5):
            b = V_B + ((nt * 5 + qt) % 8) * 4
            for i in range(4): e(f"v_accvgpr_read_b32 v{b+i}, a{accr(nt, qt) + i}")
            e(f"ds_write_b128 v{t0}, v[{b}:{b+3}] offset:{(nt * 5 + qt) * 1024}")
    e("s_waitcnt lgkmcnt(0)")
    e("s_barrier")
    e(f"s_mul_i32 s3, s{S_W}, 5120")
    e(f"v_add_u32 v{t0}, s3, v{V_OO}")
    e(f"v_add_u32 v{t1}, 40960, v{t0}")
    for qt in range(5):
        for sw in range(4):
            b = V_B + (qt * 4 + sw) * 4
            base = t0 if sw < 2 else t1
            e(f"ds_read_b128 v[{b}:{b+3}], v{base} offset:{(sw & 1) * 20480 + qt * 1024}")
    e(f"""
    s_mul_i32 s3, s{S_B}, 160
    s_mul_i32 s7, s{S_RH}, 80
    s_add_u32 s3, s3, s7
    s_lshl_b32 s3, s3, 11
    s_lshl_b32 s7, s{S_BR}, 10
    s_add_u32 s3, s3, s7
    s_lshl_b32 s7, s{S_NB}, 7
    s_add_u32 s3, s3, s7
    s_lshl_b32 s7, s{S_W}, 5
    s_add_u32 s3, s3, s7
    v_lshlrev_b32 v{c}, 11, v{c}
    v_lshl_add_u32 v{c}, v{g}, 3, v{c}
    v_add_u32 v{c}, s3, v{c}
    s_waitcnt lgkmcnt(0)
    """)
    for qt in range(5):
        b = V_B + qt * 16
        for i in range(4):
            e(f"v_add_f32 v{b+i}, v{b+i}, v{b+4+i}")
            e(f"v_add_f32 v{b+8+i}, v{b+8+i}, v{b+12+i}")
        for i in range(4):
            e(f"v_add_f32 v{b+i}, v{b+i}, v{b+8+i}")
        e(f"v_cvt_pk_bf16_f32 v{b+4}, v{b}, v{b+1}")
        e(f"v_cvt_pk_bf16_f32 v{b+5}, v{b+2}, v{b+3}")
        e(f"s_mov_b32 s{S_T0}, {qt * 16 * 2048}")
        e(f"buffer_store_dwordx2 v[{b+4}:{b+5}], v{c}, s[{SRD_OUT}:{SRD_OUT+3}], s{S_T0} offen")
    if o.stamps:
        e("s_waitcnt vmcnt(0)")
        e(f"""
    s_memrealtime s[94:95]
    s_memtime s[84:85]
    s_waitcnt lgkmcnt(0)
    s_cmp_eq_u32 s{S_W}, 0
    s_cbranch_scc0 L_end_{name}
    v_mov_b32 v0, s90
    v_mov_b32 v1, s91
    v_mov_b32 v2, s94
    v_mov_b32 v3, s95
    s_lshl_b32 s3, s2, 7
    s_add_u32 s3, s3, {201*1024*1024}
    v_mov_b32 v6, s3
    s_mov_b64 exec, 1
    global_store_dwordx4 v6, v[0:3], s[58:59]
    s_sub_u32 s72, s72, s70
    s_sub_u32 s74, s74, s70
    s_sub_u32 s76, s76, s70
    s_sub_u32 s78, s78, s70
    s_sub_u32 s80, s80, s70
    s_sub_u32 s82, s82, s70
    s_sub_u32 s84, s84, s70
    v_mov_b32 v0, s72
    v_mov_b32 v1, s74
    v_mov_b32 v2, s76
    v_mov_b32 v3, s78
    global_store_dwordx4 v6, v[0:3], s[58:59] offset:16
    s_nop 1
    v_mov_b32 v0, s80
    v_mov_b32 v1, s82
    v_mov_b32 v2, s84
    v_mov_b32 v3, 0
    global_store_dwordx4 v6, v[0:3], s[58:59] offset:32
    s_waitcnt vmcnt(0)
    """)
        if o.dbg:
            e(f"""
    s_cmp_eq_u32 s2, 0
    s_cbranch_scc0 L_end_{name}
    s_load_dwordx2 s[60:61], s[0:1], 88
    s_mov_b64 exec, 0xffff
    v_and_b32 v8, 63, v{V_T}
    v_lshlrev_b32 v9, 3, v8
    v_add_u32 v9, {200*1024*1024}, v9
    global_load_dword v10, v9, s[58:59] sc1
    v_lshlrev_b32 v8, 2, v8
    s_waitcnt vmcnt(0) lgkmcnt(0)
    v_mov_b32 v11, s90
    v_mov_b32 v12, s94
    v_cmp_eq_u32 vcc, 56, v8
    s_nop 1
    v_cndmask_b32 v10, v10, v11, vcc
    v_cmp_eq_u32 vcc, 60, v8
    s_nop 1
    v_cndmask_b32 v10, v10, v12, vcc
    global_store_dword v8, v10, s[60:61]
    s_waitcnt vmcnt(0)
    """)
    e.label(f"L_end_{name}")
    e("s_endpgm")
    return e.text() + kernel_desc(name, 256, 128)
```

```python
from common import *
from sched import *
POFF = 32 * 1024 * 1024
class Opt3:
    p_flag = ""
    stamps = False
    dbg = False
def gen_k3(name, o):
    e = Em()
    e.lines.append(kernel_head(name))
    e(f"""
    s_cmp_ge_u32 s2, 256
    s_cbranch_scc1 L_end_{name}
    s_load_dwordx2 s[4:5], s[0:1], 80        ; out
    s_load_dwordx2 s[6:7], s[0:1], 96        ; ws
    v_lshrrev_b32 v1, 6, v0
    v_and_b32 v2, 63, v0
    v_readfirstlane_b32 s8, v1               ; wave
    s_lshr_b32 s9, s2, 4                     ; group
    s_and_b32 s10, s2, 15
    s_mul_i32 s10, s10, 10
    s_add_u32 s10, s10, s8                   ; piece j
    v_lshlrev_b32 v3, 4, v2                  ; lane*16
    """)
    if o.stamps: e("s_memrealtime s[40:41]")
    e(f"""
    s_waitcnt lgkmcnt(0)
    s_mul_i32 s11, s9, {16 * 163840}
    s_lshl_b32 s12, s10, 10
    s_add_u32 s11, s11, {POFF}
    s_add_u32 s16, s6, s11
    s_addc_u32 s17, s7, 0
    s_mov_b32 s18, {16 * 163840}
    s_mov_b32 s19, 0x20000
    """)
    for hp in range(16):
        e(f"buffer_load_dwordx4 v[{8 + 4*hp}:{11 + 4*hp}], v3, s[16:19], s12 offen {o.p_flag}")
        if hp < 15: e(f"s_add_u32 s12, s12, 163840")
    e(f"""
    s_mul_hi_u32 s13, s10, 0x1999999a        ; j / 10
    s_mul_i32 s14, s13, 10
    s_sub_u32 s14, s10, s14                  ; u*5 + qt
    s_cmp_ge_u32 s14, 5
    s_cselect_b32 s15, 1, 0                  ; u
    s_mul_i32 s20, s15, 5
    s_sub_u32 s14, s14, s20                  ; qt
    s_and_b32 s20, s13, 3                    ; p
    s_bfe_u32 s21, s13, 0x10002              ; hh
    s_lshr_b32 s22, s13, 3                   ; rh
    s_and_b32 s23, s9, 7                     ; b
    s_lshr_b32 s24, s9, 3                    ; branch
    s_mul_i32 s23, s23, 160
    s_mul_i32 s22, s22, 80
    s_add_u32 s23, s23, s22
    s_lshl_b32 s14, s14, 4
    s_add_u32 s23, s23, s14
    s_lshl_b32 s23, s23, 11
    s_lshl_b32 s24, s24, 10
    s_add_u32 s23, s23, s24
    s_lshl_b32 s21, s21, 9
    s_add_u32 s23, s23, s21
    s_lshl_b32 s20, s20, 7
    s_add_u32 s23, s23, s20
    s_lshl_b32 s15, s15, 6
    s_add_u32 s23, s23, s15
    v_and_b32 v4, 15, v2
    v_lshrrev_b32 v5, 4, v2
    v_lshlrev_b32 v4, 11, v4
    v_lshl_add_u32 v4, v5, 3, v4
    s_mov_b32 s28, s4
    s_mov_b32 s29, s5
    s_mov_b32 s30, 2621440
    s_mov_b32 s31, 0x20000
    """)
    A = 72; T = 80
    for hp in range(16):
        e(f"s_waitcnt vmcnt({15 - hp})")
        for d in range(4):
            r = 8 + 4 * hp + d
            if hp == 0:
                e(f"v_lshlrev_b32 v{A + 2*d}, 16, v{r}")
                e(f"v_and_b32 v{A + 2*d + 1}, 0xffff0000, v{r}")
            else:
                e(f"v_lshlrev_b32 v{T}, 16, v{r}")
                e(f"v_and_b32 v{T+1}, 0xffff0000, v{r}")
                e(f"v_add_f32 v{A + 2*d}, v{A + 2*d}, v{T}")
                e(f"v_add_f32 v{A + 2*d + 1}, v{A + 2*d + 1}, v{T+1}")
    for d in range(4):
        e(f"v_cvt_pk_bf16_f32 v{84 + d}, v{A + 2*d}, v{A + 2*d + 1}")
    e(f"buffer_store_dwordx2 v[84:85], v4, s[28:31], s23 offen")
    e(f"buffer_store_dwordx2 v[86:87], v4, s[28:31], s23 offen offset:32")
    if o.stamps:
        e(f"""
    s_waitcnt vmcnt(0)
    s_memrealtime s[42:43]
    s_waitcnt lgkmcnt(0)
    s_cmp_eq_u32 s8, 0
    s_cbranch_scc0 L_end_{name}
    v_mov_b32 v0, s40
    v_mov_b32 v1, s41
    v_mov_b32 v2, s42
    v_mov_b32 v3, s43
    s_lshl_b32 s3, s2, 7
    s_add_u32 s3, s3, {201*1024*1024}
    v_mov_b32 v6, s3
    s_mov_b64 exec, 1
    global_store_dwordx4 v6, v[0:3], s[6:7]
    s_waitcnt vmcnt(0)
    """)
        if o.dbg:
            e(f"""
    s_cmp_eq_u32 s2, 0
    s_cbranch_scc0 L_end_{name}
    s_load_dwordx2 s[60:61], s[0:1], 88
    s_mov_b64 exec, 0xffff
    v_mbcnt_lo_u32_b32 v8, -1, 0
    v_lshlrev_b32 v9, 3, v8
    v_add_u32 v9, {200*1024*1024}, v9
    global_load_dword v10, v9, s[6:7] sc1
    v_lshlrev_b32 v8, 2, v8
    s_waitcnt vmcnt(0) lgkmcnt(0)
    v_mov_b32 v11, s40
    v_mov_b32 v12, s42
    v_cmp_eq_u32 vcc, 56, v8
    s_nop 1
    v_cndmask_b32 v10, v10, v11, vcc
    v_cmp_eq_u32 vcc, 60, v8
    s_nop 1
    v_cndmask_b32 v10, v10, v12, vcc
    global_store_dword v8, v10, s[60:61]
    s_waitcnt vmcnt(0)
    """)
    e.label(f"L_end_{name}")
    e("s_endpgm")
    return e.text() + kernel_desc(name, 96, 96, 64)
```

```python
class Em:
    def __init__(self):
        self.lines = []
        self.ds = []
        self.vm = []
    def __call__(self, s):
        for l in s.split("\n"):
            l = l.rstrip()
            if l.strip():
                self.lines.append(l if l.startswith(("L", ".", ";")) and (l.rstrip().endswith(":") or l.startswith((".", ";"))) else "    " + l.strip())
    def label(self, name):
        self.lines.append(name + ":")
    def comment(self, s):
        self.lines.append("    ; " + s)
    def ds_op(self, text, tag):
        self(text); self.ds.append(tag)
    def need_ds(self, tags):
        if isinstance(tags, str): tags = [tags]
        last = -1
        for i, t in enumerate(self.ds):
            if t in tags: last = i
        if last < 0: return False
        n = len(self.ds) - 1 - last
        assert n <= 15
        self(f"s_waitcnt lgkmcnt({n})")
        self.ds = self.ds[last + 1:]
        return True
    def ds_all(self):
        self("s_waitcnt lgkmcnt(0)"); self.ds = []
    def vm_op(self, text, tag):
        self(text); self.vm.append(tag)
    def need_vm(self, tags):
        if isinstance(tags, str): tags = [tags]
        last = -1
        for i, t in enumerate(self.vm):
            if t in tags: last = i
        if last < 0: return False
        n = len(self.vm) - 1 - last
        assert n <= 63, n
        self(f"s_waitcnt vmcnt({n})")
        self.vm = self.vm[last + 1:]
        return True
    def vm_all(self):
        self("s_waitcnt vmcnt(0)"); self.vm = []
    def text(self):
        return "\n".join(self.lines) + "\n"

class Fill:
    def __init__(self, fn, cost=4, after=-1, before=10**9, name=""):
        self.fn = fn; self.cost = cost; self.after = after; self.before = before; self.name = name

class Main:
    def __init__(self, text, needs=None, pre=None):
        self.text = text; self.needs = needs or []; self.pre = pre

def zipper(em, mains, queues, gap=8, carry_max=16, flush_nop=False):
    qs = [list(q) for q in queues]
    budget = 0
    for idx, m in enumerate(mains):
        for q in qs:
            while q and q[0].before <= idx:
                f = q.pop(0); f.fn(em); budget -= f.cost
        if m.pre:
            n0 = len(em.lines); m.pre(em); budget -= 4 * (len(em.lines) - n0)
        if m.needs:
            if em.need_ds(m.needs): budget -= 4
        em(m.text)
        budget = min(budget + gap, gap + carry_max)
        progress = True
        while progress:
            progress = False
            for q in qs:
                if q and q[0].after <= idx and q[0].cost <= budget:
                    f = q.pop(0); f.fn(em); budget -= f.cost; progress = True
                    break
    if flush_nop and any(qs): em("s_nop 7")
    for q in qs:
        for f in q: f.fn(em)

class F:
    __slots__ = ("kind", "fn", "after", "before")
    def __init__(self, kind, fn, after=-1, before=10**9):
        self.kind = kind; self.fn = fn; self.after = after; self.before = before

def txt(s):
    return lambda e: e(s)

def zip2(em, mains, queues, flush_nop=False, urgency=3):
    qs = [list(q) for q in queues]
    N = len(mains)
    def head(q, idx):
        return q[0] if q and q[0].after <= idx else None
    for idx, m in enumerate(mains):
        for q in qs:
            while q and q[0].before <= idx:
                q.pop(0).fn(em)
        if m.pre: m.pre(em)
        if m.needs: em.need_ds(m.needs)
        em(m.text)
        nsc = 0
        if idx + 1 < N and mains[idx + 1].needs and not mains[idx + 1].pre:
            if em.need_ds(mains[idx + 1].needs): nsc += 1
        def take_scalars(limit):
            nonlocal nsc
            prog = True
            while prog and nsc < limit:
                prog = False
                for q in qs:
                    h = head(q, idx)
                    if h and h.kind == 's':
                        q.pop(0).fn(em); nsc += 1; prog = True
                        break
        def find(kinds, urgent_only=False):
            for q in qs:
                h = head(q, idx)
                if h and h.kind in kinds and (not urgent_only or h.before <= idx + urgency):
                    return q
            return None
        take_scalars(1)
        qd_urg = find('d', True); ql_urg = find('l', True)
        qe = find('e'); qd = find('d'); qv = find('v'); ql = find('l')
        choice = None
        if qd_urg: choice = 'd'
        elif ql_urg and nsc <= 1: choice = 'l'
        elif qd and qv: choice = 'd'
        elif not qe:
            if qd: choice = 'd'
            elif ql and nsc <= 1: choice = 'l'
            elif qv: choice = 'v'
        elif ql and nsc <= 1: choice = 'l'
        elif nsc <= 1: choice = 'e'
        elif qd: choice = 'd'
        elif qv: choice = 'v'
        if choice == 'e':
            qe.pop(0).fn(em)
        elif choice == 'l':
            ql.pop(0).fn(em)
        elif choice == 'd':
            q = qd_urg or qd
            if nsc == 0: take_scalars(1)
            q.pop(0).fn(em)
            if nsc <= 1:
                qv = find('v')
                if qv: qv.pop(0).fn(em)
        elif choice == 'v':
            take_scalars(2)
            qv = find('v') if False else qv
            if qv and qv[0].kind == 'v' and qv[0].after <= idx: qv.pop(0).fn(em)
        else:
            take_scalars(3)
    if flush_nop and any(qs): em("s_nop 7")
    for q in qs:
        for f in q: f.fn(em)
```

```python
import sys, os
sys.path.insert(0, os.path.dirname(os.path.abspath(__file__)))
import k1, k2, k3
NAME = "concat_heads__gqa_block_cached__gqa_block_cached__near_ridge"
HEADER = open(os.path.join(os.path.dirname(os.path.abspath(__file__)), "header.txt")).read()
def build(path, o1=None, o2=None, o3=None):
    o1 = o1 or k1.Opt(); o2 = o2 or k2.Opt2(); o3 = o3 or k3.Opt3()
    t = HEADER
    t += f"; @launch kernel=attn_kernel grid=(256,1,1) block=(256,1,1) lds={k1.LDS_BYTES}\n"
    if o1.t3:
        t += f"; @launch kernel=reduce_kernel grid=(256,1,1) block=(640,1,1) lds=0\n"
    else:
        t += f"; @launch kernel=oproj_kernel grid=(256,1,1) block=(256,1,1) lds={k2.LDS_BYTES}\n"
    t += '.amdgcn_target "amdgcn-amd-amdhsa--gfx950"\n.text\n'
    t += k1.gen_k1("attn_kernel", o1)
    t += k3.gen_k3("reduce_kernel", o3) if o1.t3 else k2.gen_k2("oproj_kernel", o2)
    open(path, "w").write(t)
if __name__ == "__main__":
    out = sys.argv[1] if len(sys.argv) > 1 else "cdna_kernels/" + NAME + ".s"
    o = {"k1": k1.Opt(), "k2": k2.Opt2(), "k3": k3.Opt3()}
    for a in sys.argv[2:]:
        k, v = a.split("=", 1)
        tgt, key = o[k[:2]], k[3:]
        cur = getattr(tgt, key)
        setattr(tgt, key, (v not in ("0", "False", "")) if isinstance(cur, bool) else type(cur)(v))
    build(out, o["k1"], o["k2"], o["k3"])
```

```python
from common import *
from sched import *

KRING = 0
VRING = 98304
WQ0 = 32768; WQ_HEAD = 8224; WQ_SLOT = 2 * WQ_HEAD
X0 = 82176; X_SLOT = 20480
LDS_BYTES = 163840
VTOG = 0x38000
S_W, S_HH, S_RH = 4, 5, 6
SRD_X, SRD_WQ, SRD_K, SRD_V, SRD_O = 8, 12, 16, 20, 24
S_T0, S_T1 = 32, 33
S_WQL, S_XL, S_XG, S_WQG = 35, 36, 37, 38
S_KDST, S_VDST, S_KOFF, S_VOFF, S_CNT = 40, 41, 42, 43, 44
S_IDX, S_HG, S_B, S_BR, S_H = 45, 46, 47, 48, 49
S_SC = 50
S_KV = 39; S_WQK = 51; S_XK = 34; S_PT = 7
V_Q = 0
V_XB = [0, 20]
V_AW = 40
V_AX = 44
V_OWQ = 46
V_OX = 50
V_T = 56
V_ACC = 80
V_S = [80, 120]
V_P = [160, 180]
V_OV = 200
V_E = 202
V_OV0 = 70
V_AK = 240; V_AV = 244; V_OK = 252
A_O = 0; A_L = 160; A_ONE = 180; A_F = 184
A_SAVE = 216
SRD_WO, SRD_P = 28, 24
S_WA, S_WB, S_WL = 52, 53, 54
POFF = 32 * 1024 * 1024
WRING = 98304
V_OW = 232
V_AW2 = 236
V_XA = 231
A_ACC2 = [0, 80]
V_BIAS = 208
S_MODE = 92
S_BAD = 64
R_LO, R_HI = 0x27800000, 0x4f800000

def acc(dt, qt): return V_ACC + (dt * 5 + qt) * 4
def qf(j, qt): return V_Q + (j * 5 + qt) * 4
def sreg(par, kt, qt): return V_S[par] + (kt * 5 + qt) * 4
def preg(par, qt): return V_P[par] + qt * 4
def oacc(dt, qt): return A_O + (dt * 5 + qt) * 4
def fbuf(n): return A_F + 4 * (n % 8)

class Opt:
    kv_flag = "nt"
    q_flag = ""
    o_flag = ""
    stamps = False
    pre_all = True
    pf_start = 0
    pf_per = 3
    pf_late = False
    pf_steps = ""
    q_nodma = False
    q_nowait = False
    q_nobar = False
    q_nods = False
    rotg = 8
    rot = True
    pace = 4
    apf = True
    stamp_set = "q"
    t3 = True
    p_flag = ""
    w_flag = ""
    w_pace = 2
    kv_pace = 0
    t3_nostore = False
    t3_nodma = False
    w_touch = -1
    dbg = False

NSTAMP = [0]
def stamp(e, o, tag):
    if not o.stamps: return
    early = tag in ("issued", "bar0", "B3", "B9", "qconv")
    late = tag.startswith("T")
    if (o.stamp_set == "tail" and early) or (o.stamp_set != "tail" and late): return
    k = NSTAMP[0]; NSTAMP[0] += 1
    assert k < 12
    e.comment("stamp " + tag)
    e(f"s_memtime s[{70 + 2*k}:{71 + 2*k}]")

def prologue(e, o, name):
    e(f"""
    s_cmp_ge_u32 s2, 256
    s_cbranch_scc1 L_end_{name}
    s_mov_b32 s{S_MODE}, 0
L_restart_{name}:
    s_load_dwordx8 s[52:59], s[0:1], 0       ; A_x A_k A_v A_wq
    s_load_dwordx8 s[60:67], s[0:1], 40      ; B_x B_k B_v B_wq
    s_load_dwordx2 s[68:69], s[0:1], 96      ; ws
    s_load_dwordx2 s[98:99], s[0:1], 32      ; A_wo
    s_load_dwordx2 s[100:101], s[0:1], 72    ; B_wo
    v_lshrrev_b32 v{V_T}, 6, v0
    v_and_b32 v{V_T+1}, 63, v0               ; lane
    v_readfirstlane_b32 s{S_W}, v{V_T}
    s_and_b32 s3, s2, 7
    s_lshr_b32 s{S_IDX}, s2, 3
    s_lshr_b32 s{S_BR}, s3, 2
    s_and_b32 s{S_HG}, s3, 3
    s_lshr_b32 s{S_B}, s{S_IDX}, 2
    s_and_b32 s7, s{S_IDX}, 3
    s_lshr_b32 s{S_HH}, s{S_W}, 1
    s_and_b32 s{S_RH}, s{S_W}, 1
    s_lshl_b32 s{S_H}, s{S_HG}, 3
    s_lshl_b32 s7, s7, 1
    s_add_u32 s{S_H}, s{S_H}, s7
    s_add_u32 s{S_H}, s{S_H}, s{S_HH}
    """)
    if o.stamps:
        e("s_memrealtime s[94:95]")
    stamp(e, o, "start")
    L = V_T + 1
    c, g, rp, cp, t0, t1 = V_T + 2, V_T + 3, V_T + 4, V_T + 5, V_T + 6, V_T + 7
    e(f"""
    v_and_b32 v{c}, 15, v{L}
    v_lshrrev_b32 v{g}, 4, v{L}
    v_bfe_u32 v{rp}, v{L}, 2, 2
    v_and_b32 v{cp}, 3, v{L}
    """)
    e(f"""
    v_lshlrev_b32 v{t0}, 2, v{g}
    v_xor_b32 v{t0}, v{t0}, v{c}
    v_lshlrev_b32 v{t0}, 4, v{t0}
    v_lshl_add_u32 v{V_OWQ}, v{g}, 13, v{t0}
    """)
    for u in range(1, 4):
        e(f"v_add_u32 v{V_OWQ+u}, {u * 32768 - wq_imm(u)}, v{V_OWQ}")
    e(f"""
    v_and_b32 v{t0}, 7, v{L}
    v_xor_b32 v{t0}, v{t0}, v{g}
    v_lshlrev_b32 v{t0}, 4, v{t0}
    v_lshrrev_b32 v{t1}, 3, v{L}
    v_lshl_add_u32 v{t0}, v{t1}, 10, v{t0}
    s_and_b32 s3, s{S_W}, 1
    s_lshl_b32 s3, s3, 6
    v_xor_b32 v{t0}, s3, v{t0}
    v_xor_b32 v{t1}, 64, v{t0}
    """)
    for u in range(5):
        src = t0 if u % 2 == 0 else t1
        e(f"v_add_u32 v{V_OX+u}, {u * 8192 - (u & 3) * 1024}, v{src}")
    e(f"""
    v_xor_b32 v{t0}, v{c}, v{g}
    v_lshlrev_b32 v{t0}, 4, v{t0}
    v_lshl_add_u32 v{V_OK}, v{g}, 8, v{t0}
    v_xor_b32 v{V_OK+1}, 64, v{V_OK}
    v_xor_b32 v{V_OK+2}, 0x80, v{V_OK}
    v_xor_b32 v{V_OK+3}, 0xc0, v{V_OK}
    """)
    e(f"""
    v_lshlrev_b32 v{t0}, 1, v{g}
    v_xor_b32 v{t0}, v{t0}, v{c}
    v_lshlrev_b32 v{t0}, 4, v{t0}
    v_lshl_add_u32 v{V_OV0}, v{g}, 8, v{t0}
    v_xor_b32 v{V_OV0+1}, 0x80, v{V_OV0}
    """)
    e(f"""
    s_mul_i32 s3, s{S_HH}, {WQ_HEAD}
    s_add_u32 s3, s3, {WQ0}
    v_mul_u32_u24 v{t0}, 2056, v{g}
    v_lshl_add_u32 v{t0}, v{rp}, 8, v{t0}
    v_lshl_add_u32 v{t0}, v{cp}, 4, v{t0}
    v_add_u32 v{t0}, s3, v{t0}
    s_mul_i32 s7, s{S_RH}, {4 * 1024 + 16}
    s_add_u32 s{S_WQL}, s3, s7
    s_lshl_b32 s{S_WQG}, s{S_RH}, 17
    """)
    for j in range(4):
        e(f"""
    v_xor_b32 v{t1}, {j}, v{rp}
    v_lshl_add_u32 v{V_AW+j}, v{t1}, 6, v{t0}""")
    e(f"""
    s_mul_i32 s3, s{S_RH}, {80*128}
    s_add_u32 s3, s3, {X0}
    v_lshrrev_b32 v{t0}, 1, v{c}
    v_xor_b32 v{t0}, v{t0}, v{g}
    v_lshlrev_b32 v{t0}, 4, v{t0}
    v_lshl_add_u32 v{t0}, v{c}, 7, v{t0}
    v_add_u32 v{V_AX}, s3, v{t0}
    v_xor_b32 v{V_AX+1}, 64, v{V_AX}
    s_mul_i32 s{S_XL}, s{S_W}, 5120
    s_add_u32 s{S_XL}, s{S_XL}, {X0}
    s_mul_i32 s{S_XG}, s{S_W}, 40960
    """)
    e(f"""
    s_lshl_b32 s3, s{S_HH}, 13
    s_lshl_b32 s7, s{S_RH}, 12
    s_add_u32 s{S_KV}, s3, s7
    v_xor_b32 v{t0}, v{g}, v{c}
    v_lshlrev_b32 v{t0}, 4, v{t0}
    v_lshl_add_u32 v{t0}, v{c}, 8, v{t0}
    v_add_u32 v{V_AK}, s3, v{t0}
    v_xor_b32 v{V_AK+1}, 64, v{V_AK}
    v_xor_b32 v{V_AK+2}, 0x80, v{V_AK}
    v_xor_b32 v{V_AK+3}, 0xc0, v{V_AK}
    """)
    e(f"""
    v_lshlrev_b32 v{V_APA}, 4, v{L}
    v_add_u32 v{V_APA}, s{S_KV}, v{V_APA}
    v_add_u32 v{V_APA+1}, {VRING}, v{V_APA}
    """)
    e(f"""
    s_add_u32 s3, s3, 0x20000
    v_lshl_add_u32 v{t0}, v{g}, 2, v{rp}       ; 4g + r'
    v_and_b32 v{t1}, 7, v{t0}                  ; rho7
    v_lshlrev_b32 v{t0}, 8, v{t0}
    v_lshl_add_u32 v{t0}, v{t1}, 5, v{t0}
    v_lshl_add_u32 v{t0}, v{cp}, 3, v{t0}
    v_add_u32 v{V_AV}, s3, v{t0}
    """)
    for dt in range(1, 8):
        e(f"v_xor_b32 v{V_AV+dt}, {32*dt}, v{V_AV}")
    e(f"""
    s_waitcnt lgkmcnt(0)
    s_cmp_eq_u32 s{S_BR}, 0
    s_cselect_b32 s52, s52, s60
    s_cselect_b32 s53, s53, s61
    s_cselect_b32 s54, s54, s62
    s_cselect_b32 s55, s55, s63
    s_cselect_b32 s56, s56, s64
    s_cselect_b32 s57, s57, s65
    s_cselect_b32 s58, s58, s66
    s_cselect_b32 s59, s59, s67
    s_lshl_b32 s3, s{S_H}, 8
    s_add_u32 s{SRD_WQ}, s58, s3
    s_addc_u32 s{SRD_WQ+1}, s59, 0
    s_sub_u32 s{SRD_WQ+2}, 4194304, s3
    s_mov_b32 s{SRD_WQ+3}, 0x20000
    s_mul_i32 s3, s{S_B}, 163840
    s_add_u32 s{SRD_X}, s52, s3
    s_addc_u32 s{SRD_X+1}, s53, 0
    s_mov_b32 s{SRD_X+2}, 163840
    s_mov_b32 s{SRD_X+3}, 0x20000
    """)
    if o.rot and o.rotg > 1:
        G = o.rotg
        e(f"""
    s_and_b32 s3, s{S_IDX}, 3                ; p
    s_lshl_b32 s3, s3, {1 if G == 8 else 0}
    s_add_u32 s3, s3, s{S_B}
    s_and_b32 s3, s3, {G - 1}
    s_mul_i32 s3, s3, {8 // G}
    s_lshl_b32 s{S_WQK}, s3, 7
    s_lshl_b32 s3, s3, 19                    ; 64 rows * 8192
    s_add_u32 s{S_WQG}, s{S_WQG}, s3
    """)
    else:
        e(f"s_mov_b32 s{S_WQK}, 0")

def prologue2(e, o):
    e(f"""
    s_lshl_b32 s3, s{S_B}, 5
    s_add_u32 s3, s3, s{S_H}
    s_lshl_b32 s3, s3, 17
    s_add_u32 s{SRD_K}, s54, s3
    s_addc_u32 s{SRD_K+1}, s55, 0
    s_mov_b32 s{SRD_K+2}, 131072
    s_mov_b32 s{SRD_K+3}, 0x20000
    s_add_u32 s{SRD_V}, s56, s3
    s_addc_u32 s{SRD_V+1}, s57, 0
    s_mov_b32 s{SRD_V+2}, 131072
    s_mov_b32 s{SRD_V+3}, 0x20000
    s_lshl_b32 s3, s{S_BR}, 3
    s_add_u32 s3, s3, s{S_B}
    s_lshl_b32 s3, s3, 1
    s_add_u32 s3, s3, s{S_RH}
    s_lshl_b32 s3, s3, 5
    s_add_u32 s3, s3, s{S_H}
    s_mul_i32 s3, s3, 20480
    s_add_u32 s{SRD_O}, s68, s3
    s_addc_u32 s{SRD_O+1}, s69, 0
    s_mov_b32 s{SRD_O+2}, 20480
    s_mov_b32 s{SRD_O+3}, 0x20000
    s_mov_b32 s{S_SC}, {f32hex(C_SCALE)}
    """)

def wq_imm(u): return u * 1024 + 8 * (u >> 1)

def dma_wq(o, m, after=-1, before=10**9, pace=0):
    fl = [F('s', txt(f"s_add_u32 m0, s{S_WQL}, {(m % 3) * WQ_SLOT}"), after, before)]
    for u in range(4):
        fl.append(F('l', lambda e, u=u: e.vm_op(f"buffer_load_dwordx4 v{V_OWQ+u}, s[{SRD_WQ}:{SRD_WQ+3}], s{S_WQG} offen offset:{wq_imm(u)} {o.q_flag} lds", f"wq{m}"), after + pace * u, before))
    fl.append(F('s', txt(f"s_add_u32 s{S_WQG}, s{S_WQG}, {32 * 8192}"), after, before))
    fl.append(F('s', txt(f"s_and_b32 s{S_WQG}, s{S_WQG}, 0x3fffff"), after, before))
    return fl

def dma_x(o, M, after=-1, before=10**9, pace=0):
    fl = [F('s', txt(f"s_add_u32 m0, s{S_XL}, {(M % 2) * X_SLOT}"), after, before),
          F('s', txt(f"s_add_u32 s{S_T1}, s{S_XG}, s{S_WQK}"), after, before)]
    for u in range(5):
        if u == 4: fl.append(F('s', txt(f"s_add_u32 m0, s{S_XL}, {(M % 2) * X_SLOT + 4096}"), after, before))
        if u == 4: fl.append(F('s', txt("s_nop 0"), after, before))
        fl.append(F('l', lambda e, u=u: e.vm_op(f"buffer_load_dwordx4 v{V_OX+u}, s[{SRD_X}:{SRD_X+3}], s{S_T1} offen offset:{(u & 3) * 1024} {o.q_flag} lds", f"x{M}"), after + pace * u, before))
    fl.append(F('s', txt(f"s_add_u32 s{S_WQK}, s{S_WQK}, 128"), after, before))
    fl.append(F('s', txt(f"s_and_b32 s{S_WQK}, s{S_WQK}, 0x3ff"), after, before))
    return fl

def dma_pref(o, which, s, after=-1, before=10**9, pace=0):
    if which == 'K':
        base = KRING + 16384 * s; srd = SRD_K; vo = lambda t: V_OK + t
    else:
        base = 0x20000 + 16384 * s; srd = SRD_V; vo = lambda t: V_OV0 + (t & 1)
    fl = [F('s', txt(f"s_add_u32 m0, s{S_KV}, {base}"), after, before),
          F('s', txt(f"s_lshl_b32 s34, s{S_RH}, 12"), after, before),
          F('s', txt(f"s_add_u32 s34, s34, {s * 8192}"), after, before)]
    for t in range(4):
        fl.append(F('l', lambda e, t=t: e.vm_op(f"buffer_load_dwordx4 v{vo(t)}, s[{srd}:{srd+3}], s34 offen offset:{t * 1024} {o.kv_flag} lds", f"{which}{s}"), after + pace * t, before))
    return fl

APF = {('K', 2): 0, ('K', 3): 16, ('V', 2): 32, ('V', 3): 48}
def dma_apf(o, which, s, after=-1, before=10**9, pace=0):
    srd = SRD_K if which == 'K' else SRD_V
    vo = (lambda t: V_OK + t) if which == 'K' else (lambda t: V_OV0 + (t & 1))
    fl = [F('s', txt(f"s_lshl_b32 s34, s{S_RH}, 12"), after, before),
          F('s', txt(f"s_add_u32 s34, s34, {s * 8192}"), after, before)]
    for t in range(4):
        a = APF[(which, s)] + 4 * t
        fl.append(F('l', lambda e, t=t, a=a: e.vm_op(f"buffer_load_dwordx4 a[{a}:{a+3}], v{vo(t)}, s[{srd}:{srd+3}], s34 offen offset:{t * 1024} {o.kv_flag}", f"{which}{s}"), after + pace * t, before))
    return fl
V_APA = 72
def apf_copy(after):
    fl = []
    for (which, s), a0 in APF.items():
        for t in range(4):
            a = a0 + 4 * t
            if which == 'K': txt_ = f"ds_write_b128 v{V_APA}, a[{a}:{a+3}] offset:{KRING + 16384 * s + 1024 * t}"
            else: txt_ = f"ds_write_b128 v{V_APA+1}, a[{a}:{a+3}] offset:{16384 * (s - 2) + 1024 * t}"
            fl.append(F('d', lambda e, txt_=txt_: e.ds_op(txt_, "APF"), after))
    return fl

def zero_acc(e):
    e(f"v_mov_b32 v{V_T+8}, 0x3f803f80")
    for r in range(4):
        e(f"v_accvgpr_write_b32 a{A_ONE + r}, v{V_T+8}")

def run(e, fl):
    for f in fl: f.fn(e)

def qphase(e, o):
    run(e, dma_wq(o, 0) + dma_x(o, 0) + dma_wq(o, 1))
    if o.pre_all: run(e, dma_wq(o, 2) + dma_x(o, 1))
    prologue2(e, o)
    stamp(e, o, "issued")
    zero_acc(e)
    idx = lambda m, dt, qt: 40 * m + 5 * dt + qt
    def wfrag(m, dt, after=-1, before=10**9):
        j, tp = dt >> 1, dt & 1
        return [F('d', lambda e, n=n: e.ds_op(f"ds_read_b64_tr_b16 a[{fbuf(dt) + 2 * n}:{fbuf(dt) + 2 * n + 1}], v{V_AW + j} offset:{(m % 3) * WQ_SLOT + n * 1024 + 8 * tp}", f"F{m}_{dt}"), after, before) for n in range(2)]
    def xfrag(m, qt, after=-1, before=10**9):
        M, h = m >> 1, m & 1
        b = V_XB[m & 1] + 4 * qt
        return [F('d', lambda e: e.ds_op(f"ds_read_b128 v[{b}:{b+3}], v{V_AX + h} offset:{(M % 2) * X_SLOT + qt * 2048}", f"B{m}_{qt}"), after, before)]
    def barrier(m):
        def fn(e):
            e.ds_all()
            tags = [f"wq{m+1}"]
            if (m + 1) % 2 == 0: tags.append(f"x{(m+1)//2}")
            if m == 15:
                e.vm_all()
            elif not o.q_nowait or m < 0:
                e.need_vm(tags)
            if not o.q_nobar or m in (-1, 15): e("s_barrier")
            if m in (3, 9): stamp(e, o, f"B{m}")
        return fn
    barrier(-1)(e)
    stamp(e, o, "bar0")
    def nextfrags(m, after, before):
        fl = wfrag(m, 0, after, before)
        for q in range(5): fl += xfrag(m, q, after, before)
        return fl + wfrag(m, 1, after, before) + wfrag(m, 2, after, before)
    run(e, nextfrags(0, -1, 0))
    mains = []; rd = []; dm = []
    pref = [('K', 0), ('K', 1), ('V', 0), ('V', 1)]
    if o.apf: pref += [('K', 2), ('K', 3), ('V', 2), ('V', 3)]
    tnext = [0]
    for m in range(16):
        for dt in range(8):
            for qt in range(5):
                cin = "0" if m == 0 else vr(acc(dt, qt), 4)
                needs = []
                if qt == 0: needs.append(f"F{m}_{dt}")
                if dt == 0: needs.append(f"B{m}_{qt}")
                pre = barrier(m) if (dt == 5 and qt == 0) else None
                mains.append(Main(f"{MFMA} {vr(acc(dt, qt), 4)}, {ar(fbuf(dt), 4)}, {vr(V_XB[m & 1] + 4 * qt, 4)}, {cin}", needs, pre))
        for dt in (3, 4, 5):
            rd += wfrag(m, dt, idx(m, dt - 3, 0), idx(m, dt - 1, 0))
        for dt in (6, 7):
            rd += wfrag(m, dt, idx(m, 2, 2), idx(m, 4, 3))
        if m < 15:
            rd += nextfrags(m + 1, idx(m, 5, 0), idx(m, 7, 4))
        a = idx(m, 5, 0); b = idx(m + 1, 5, 0) if m < 15 else 10**9
        if m == 0 and not o.pre_all:
            dm += dma_wq(o, 2, -1, idx(0, 4, 0)) + dma_x(o, 1, -1, idx(0, 4, 4))
        t = max(a, tnext[0])
        if m + 3 < 16 and not o.q_nodma:
            dm += dma_wq(o, m + 3, t, b, o.pace); t += 4 * o.pace
        if m % 2 == 1 and (m - 1) // 2 + 2 < 8 and not o.q_nodma:
            dm += dma_x(o, (m - 1) // 2 + 2, t, idx(m + 2, 4, 0) if m < 14 else 10**9, o.pace); t += 5 * o.pace
        for n_, (w, s) in enumerate(pref):
            when = int(o.pf_steps.split(",")[n_]) if o.pf_steps else min(o.pf_start + n_ * o.pf_per, 15 if o.pf_late else 13)
            if m == when:
                fn_ = dma_pref if s < 2 else dma_apf
                dm += fn_(o, w, s, t, idx(m + 2, 5, 0) if m < 14 else 10**9, o.pace); t += 4 * o.pace
        tnext[0] = t
        if m == 15 and o.apf:
            rd += apf_copy(a)
        if m == 15 and not o.apf:
            for s in (2, 3):
                dm += [F('s', txt(f"s_add_u32 m0, s{S_KV}, {KRING + 16384 * s}"), a),
                       F('s', txt(f"s_lshl_b32 s34, s{S_RH}, 12"), a),
                       F('s', txt(f"s_add_u32 s34, s34, {s * 8192}"), a)]
                for t in range(4):
                    dm.append(F('l', lambda e, t=t, s=s: e.vm_op(f"buffer_load_dwordx4 v{V_OK + t}, s[{SRD_K}:{SRD_K+3}], s34 offen offset:{t * 1024} {o.kv_flag} lds", f"K{s}"), a))
    if o.q_nods: rd = []
    zip2(e, mains, [rd, dm])

def qconvert(e):
    e("s_nop 7")
    for r in range(V_ACC, V_ACC + 160, 2):
        e(f"v_pk_mul_f32 v[{r}:{r+1}], v[{r}:{r+1}], s[{S_SC}:{S_SC+1}] op_sel_hi:[1,0]")
    for j in range(4):
        for qt in range(5):
            for tp in range(2):
                a0 = acc(2 * j + tp, qt); d = qf(j, qt) + 2 * tp
                e(f"v_cvt_pk_bf16_f32 v{d}, v{a0}, v{a0+1}")
                e(f"v_cvt_pk_bf16_f32 v{d+1}, v{a0+2}, v{a0+3}")

def dma_kv(o, which, after0):
    fl = []
    P = o.kv_pace
    after = after0
    if 'K' in which:
        fl.append(F('s', txt(f"s_mov_b32 m0, s{S_KDST}"), after))
        fl.append(F('s', txt(f"s_add_u32 s{S_KDST}, s{S_KDST}, 16384"), after))
        for t in range(4):
            fl.append(F('l', lambda e, t=t: e.vm_op(f"buffer_load_dwordx4 v{V_OK + t}, s[{SRD_K}:{SRD_K+3}], s{S_KOFF} offen offset:{t * 1024} {o.kv_flag} lds", "K"), after))
            after += P
        fl.append(F('s', txt(f"s_and_b32 s{S_KDST}, s{S_KDST}, 0xffff"), after0))
        fl.append(F('s', txt(f"s_add_u32 s{S_KOFF}, s{S_KOFF}, 8192"), after0))
    if 'V' in which:
        fl.append(F('s', txt(f"s_add_u32 m0, s{S_VDST}, {VRING}"), after0))
        fl.append(F('s', txt(f"s_add_u32 s{S_VDST}, s{S_VDST}, 16384"), after0))
        for t in range(4):
            fl.append(F('l', lambda e, t=t: e.vm_op(f"buffer_load_dwordx4 v{V_OV + (t & 1)}, s[{SRD_V}:{SRD_V+3}], s{S_VOFF} offen offset:{t * 1024} {o.kv_flag} lds", "V"), after))
            after += P
        fl.append(F('s', txt(f"s_and_b32 s{S_VDST}, s{S_VDST}, 0xffff"), after0))
        fl.append(F('s', txt(f"s_add_u32 s{S_VOFF}, s{S_VOFF}, 8192"), after0))
    return fl

def kfrag(par_slot, kt, j, n, after=-1, before=10**9):
    return [F('d', lambda e: e.ds_op(f"ds_read_b128 a[{fbuf(n)}:{fbuf(n)+3}], v{V_AK + j} offset:{kt * 4096 + 16384 * par_slot}", f"F{n}"), after, before)]
def vfrag(par_slot, dt, n, after=-1, before=10**9):
    return [F('d', lambda e, h=h: e.ds_op(f"ds_read_b64_tr_b16 a[{fbuf(n) + 2*h}:{fbuf(n) + 2*h + 1}], v{V_AV + dt} offset:{h * 4096 + 16384 * par_slot}", f"F{n}"), after, before) for h in range(2)]

def softmax_fill(par):
    seq = []
    for qt in range(5):
        for kt in range(2):
            s = sreg(par, kt, qt); p = preg(par, qt) + 2 * kt
            seq += [("e", s), ("e", s + 1), ("c", p, s, s + 1), ("e", s + 2), ("e", s + 3), ("c", p + 1, s + 2, s + 3)]
    out = []; pend = None
    for x in seq:
        if x[0] == "c": pend = x
        else:
            out.append(x)
            if pend is not None: out.append(pend); pend = None
    if pend is not None: out.append(("n",)); out.append(pend)
    fl = []
    for x in out:
        if x[0] == "e": fl.append(F('e', txt(f"v_exp_f32 v{x[1]}, v{x[1]}")))
        elif x[0] == "c": fl.append(F('v', txt(f"v_cvt_pk_bf16_f32 v{x[1]}, v{x[2]}, v{x[3]}")))
        else: fl.append(F('s', txt("s_nop 0")))
    return fl

def attn_iter(e, o, i, qk, sm, pv, vwait, dma, pre_next, epi=None, first_pv=False):
    par = i & 1; ks = (i + 1) & 1
    mains = []; rd = []; dm = []
    gstart = {}
    if qk:
        for kt in range(2):
            for j in range(4):
                n = kt * 4 + j
                gstart[n] = len(mains)
                for qt in range(5):
                    d = sreg(par ^ 1, kt, qt)
                    cin = vr(V_BIAS + 4 * qt, 4) if j == 0 else vr(d, 4)
                    mains.append(Main(f"{MFMA} {vr(d, 4)}, {ar(fbuf(n), 4)}, {vr(qf(j, qt), 4)}, {cin}", [f"F{n}"] if qt == 0 else []))
    if pv:
        gstart['l'] = len(mains)
        for qt in range(5):
            mains.append(Main(f"{MFMA} {ar(A_L + 4 * qt, 4)}, {ar(A_ONE, 4)}, {vr(preg(par ^ 1, qt), 4)}, {'0' if first_pv else ar(A_L + 4 * qt, 4)}"))
        for dt in range(8):
            n = 8 + dt
            gstart[n] = len(mains)
            for qt in range(5):
                mains.append(Main(f"{MFMA} {ar(oacc(dt, qt), 4)}, {ar(fbuf(n), 4)}, {vr(preg(par ^ 1, qt), 4)}, {'0' if first_pv else ar(oacc(dt, qt), 4)}", [f"F{n}"] if qt == 0 else []))
    order = [n for n in range(16) if n in gstart]
    ln = len(order)
    for k, n in enumerate(order):
        if qk and n < 3: continue
        after = gstart[order[k - 4]] if k >= 4 else -1
        if k >= ln - 3 and ln >= 6: after = gstart[order[ln - 6]]
        before = gstart[order[k - 1]] if k >= 1 else 0
        if k >= ln - 3 and ln >= 4: before = min(before, gstart[order[ln - 3]])
        rd += kfrag(ks, n >> 2, n & 3, n, after, before) if n < 8 else vfrag(ks, n - 8, n, after, before)
    has_bar = pre_next or vwait is not None
    if has_bar:
        bpos = gstart[order[-2]]
        def bar(e):
            e.ds_all()
            if vwait is not None: e(f"s_waitcnt vmcnt({vwait})")
            e("s_barrier")
        mains[bpos].pre = bar
        if par == 0 and qk:
            for j in range(4): rd.append(F('v', txt(f"v_xor_b32 v{V_AK + j}, 0x8000, v{V_AK + j}"), bpos))
        if pre_next:
            for n in range(3): rd += kfrag(ks ^ 1, 0, n, n, bpos, len(mains) - 1)
        if par == 0 and pv:
            for dt in range(8): rd.append(F('v', txt(f"v_xor_b32 v{V_AV + dt}, {hex(VTOG)}, v{V_AV + dt}"), bpos))
    dm += dma_kv(o, dma, -1)
    sf = softmax_fill(par) if sm else []
    qs = [rd, dm, sf]
    if epi: qs.append(epi(gstart))
    zip2(e, mains, qs, flush_nop=bool(epi))

def epilogue_fill(o):
    def build(gstart):
        fl = []
        RL = V_E
        W = V_E + 6
        l0 = gstart['l']
        for qt in range(5):
            fl.append(F('v', txt(f"v_accvgpr_read_b32 v{RL + qt}, a{A_L + 4 * qt}"), l0 + 5 + 8))
        for qt in range(5):
            fl.append(F('e', txt(f"v_rcp_f32 v{RL + qt}, v{RL + qt}"), l0 + 5 + 8))
        k = 0
        for jj in range(4):
            ready = gstart[8 + 2 * jj + 1] + 5 + 4
            for qt in range(5):
                w = W + 12 * (k & 1); k += 1
                for tp in range(2):
                    for i in range(4):
                        fl.append(F('v', txt(f"v_accvgpr_read_b32 v{w + 4*tp + i}, a{oacc(2*jj + tp, qt) + i}"), ready))
                for r in range(8):
                    fl.append(F('v', txt(f"v_mul_f32 v{w + r}, v{w + r}, v{RL + qt}"), ready))
                for r in range(4):
                    fl.append(F('v', txt(f"v_cvt_pk_bf16_f32 v{w + 8 + r}, v{w + 2*r}, v{w + 2*r + 1}"), ready))
                off = (jj * 5 + qt) * 1024
                fl.append(F('s', txt(f"s_mov_b32 s{S_T0}, {off}"), ready))
                fl.append(F('l', lambda e, w=w: e.vm_op(f"buffer_store_dwordx4 v[{w+8}:{w+11}], v{V_E + 5}, s[{SRD_O}:{SRD_O+3}], s{S_T0} offen {o.o_flag}", "st"), ready))
        return fl
    return build

WO_A = [131072, 147456, 98304, 81920, 114688]
WO_B = [0, 16384, 32768, 49152, 65536]
def wo_slot(si): return WO_A[si] if si < 5 else WO_B[si - 5] if si < 10 else WO_A[si - 10] if si < 15 else WO_B[0]
V_AWS = 160

def t3_setup(e, o):
    L = V_E + 5
    t0, t1, t2, t3_ = V_E, V_E + 1, V_E + 2, V_E + 3
    e(f"""
    v_lshrrev_b32 v{t0}, 4, v{L}             ; lane
    v_lshrrev_b32 v{t1}, 4, v{t0}            ; g
    v_and_b32 v{t2}, 7, v{t0}
    v_lshlrev_b32 v{t3_}, 1, v{t1}
    v_xor_b32 v{t2}, v{t2}, v{t3_}
    v_lshlrev_b32 v{t2}, 4, v{t2}
    v_lshrrev_b32 v{t3_}, 3, v{t0}
    v_lshl_add_u32 v{V_OW}, v{t3_}, 10, v{t2}
    v_add_u32 v{V_OW+1}, {7168}, v{V_OW}
    v_add_u32 v{V_OW+2}, {2*7168}, v{V_OW}
    v_add_u32 v{V_OW+3}, {3*7168}, v{V_OW}
    v_bfe_u32 v{t2}, v{t0}, 2, 2             ; r'
    v_lshl_add_u32 v{t2}, v{t1}, 2, v{t2}    ; 4g + r'
    v_lshrrev_b32 v{t3_}, 1, v{t2}
    v_and_b32 v{t3_}, 3, v{t3_}
    v_lshlrev_b32 v{t2}, 7, v{t2}
    v_lshl_add_u32 v{t2}, v{t3_}, 5, v{t2}
    v_and_b32 v{t3_}, 3, v{t0}               ; c'
    v_lshl_add_u32 v{t2}, v{t3_}, 3, v{t2}
    s_lshl_b32 s3, s{S_HH}, 13
    v_add_u32 v{V_AW2}, s3, v{t2}
    v_xor_b32 v{V_AW2+1}, 32, v{V_AW2}
    v_xor_b32 v{V_AW2+2}, 64, v{V_AW2}
    v_xor_b32 v{V_AW2+3}, 0x60, v{V_AW2}
    s_mul_i32 s3, s{S_W}, 20480
    v_add_u32 v{V_XA}, s3, v{L}
    s_mov_b32 s{S_WL}, s{S_KV}
    s_lshl_b32 s3, s{S_RH}, 15
    s_lshl_b32 s7, s{S_HH}, 9
    s_add_u32 s3, s3, s7
    s_lshl_b32 s7, s{S_HH}, 17
    s_add_u32 s{S_WA}, s3, s7
    s_xor_b32 s7, s7, 0x20000
    s_add_u32 s{S_WB}, s3, s7
    s_cmp_eq_u32 s{S_BR}, 0
    s_cselect_b32 s60, s98, s100
    s_cselect_b32 s61, s99, s101
    s_sub_u32 s3, s{S_H}, s{S_HH}
    s_lshl_b32 s3, s3, 17                    ; * 128 rows * 1024
    s_add_u32 s{SRD_WO}, s60, s3
    s_addc_u32 s{SRD_WO+1}, s61, 0
    s_mov_b32 s{SRD_WO+2}, 262144
    s_mov_b32 s{SRD_WO+3}, 0x20000
    s_lshl_b32 s3, s{S_BR}, 3
    s_add_u32 s3, s3, s{S_B}
    s_lshl_b32 s3, s3, 4
    s_lshr_b32 s7, s{S_H}, 1
    s_add_u32 s3, s3, s7
    s_lshl_b32 s3, s3, 2
    s_lshl_b32 s7, s{S_RH}, 1
    s_add_u32 s3, s3, s7
    s_add_u32 s3, s3, s{S_HH}
    s_mul_i32 s3, s3, 40960
    s_add_u32 s3, s3, {POFF}
    s_add_u32 s{SRD_P}, s68, s3
    s_addc_u32 s{SRD_P+1}, s69, 0
    s_mov_b32 s{SRD_P+2}, 40960
    s_mov_b32 s{SRD_P+3}, 0x20000
    s_lshl_b32 s3, s{S_HG}, 20
    s_add_u32 s56, s60, s3
    s_addc_u32 s57, s61, 0
    s_mov_b32 s58, 0x100000
    s_mov_b32 s59, 0x20000
    s_lshl_b32 s3, s{S_IDX}, 2
    s_add_u32 s3, s3, s{S_W}
    s_lshl_b32 s3, s3, 13
    v_lshlrev_b32 v{t0}, 3, v{L}             ; lane*128
    v_add_u32 v{t0}, s3, v{t0}
    """)

def dma_wo(o, p, kq, after=-1, before=10**9, pace=0):
    src = S_WA if kq < 2 else S_WB
    fl = [F('s', txt(f"s_add_u32 m0, s{S_WL}, {wo_slot(4 * p + kq)}"), after, before),
          F('s', txt(f"s_add_u32 s{S_T1}, s{src}, {(kq & 1) * 65536 + 128 * p}"), after, before)]
    for t in range(4):
        fl.append(F('l', lambda e, t=t: e.vm_op(f"buffer_load_dwordx4 v{V_OW+t}, s[{SRD_WO}:{SRD_WO+3}], s{S_T1} offen offset:{t*1024} {o.w_flag} lds", f"W{p}_{kq}"), after + pace * t, before))
    return fl

def t3_tail(e, o):
    i = 16; par = 0; ks = 1
    mains = []; rd = []; dm = []; cv = []; st = []
    gstart = {}
    gstart['l'] = 0
    for qt in range(5):
        mains.append(Main(f"{MFMA} {ar(A_L + 4 * qt, 4)}, {ar(A_ONE, 4)}, {vr(preg(1, qt), 4)}, {ar(A_L + 4 * qt, 4)}"))
    for dt in range(8):
        n = 8 + dt
        gstart[n] = len(mains)
        for qt in range(5):
            mains.append(Main(f"{MFMA} {ar(oacc(dt, qt), 4)}, {ar(fbuf(n), 4)}, {vr(preg(1, qt), 4)}, {ar(oacc(dt, qt), 4)}", [f"F{n}"] if qt == 0 else []))
    for k in range(8):
        n = 8 + k
        after = gstart[8 + k - 4] if k >= 4 else -1
        before = gstart[8 + k - 1] if k >= 1 else 0
        rd += vfrag(ks, k, n, after, before)
    NPV = len(mains)
    def a2(p, nt, qt): return A_ACC2[p & 1] + (nt * 5 + qt) * 4
    def bfr(kk, qt): return (kk * 5 + qt) * 4
    S0 = {}
    nfrag = 16
    for p in range(4):
        for kq in range(4):
            S0[(p, kq)] = len(mains)
            for ks2 in range(2):
                kk = 2 * kq + ks2
                for nt in range(4):
                    n = nfrag; nfrag += 1
                    g0 = len(mains)
                    for qt in range(5):
                        cin = "0" if (kq == 0 and ks2 == 0) else ar(a2(p, nt, qt), 4)
                        needs = [f"G{n}"] if qt == 0 else []
                        if p == 0 and kk >= 4 and nt == 0: needs = needs + [f"X{kk}_{qt}"]
                        mains.append(Main(f"{MFMA} {ar(a2(p, nt, qt), 4)}, {ar(fbuf(n), 4)}, {vr(bfr(kk, qt), 4)}, {cin}", needs))
                    gstart[('g', p, kq, ks2, nt)] = (g0, n)
    N = len(mains)
    stages = [(p, kq) for p in range(4) for kq in range(4)]
    def gidx(p, kq, j): return gstart[('g', p, kq, j >> 2, j & 3)]
    BAR = {}
    for si, (p, kq) in enumerate(stages):
        BAR[si] = gidx(p, kq, 5)[0]
    def wfrag(p, kq, j, after, before):
        g0, n = gidx(p, kq, j)
        return [F('d', lambda e, h=h, n=n: e.ds_op(f"ds_read_b64_tr_b16 a[{fbuf(n) + 2*h}:{fbuf(n) + 2*h + 1}], v{V_AWS + 4 * (wo_slot(4 * p + kq) >> 16) + (j & 3)} offset:{(wo_slot(4 * p + kq) & 0xffff) + (j >> 2) * 4096 + h * 2048}", f"G{n}"), after, before) for h in range(2)]
    pv_bar = gstart[8 + 6]
    def bar_first(e):
        e.ds_all()
        e.need_vm("W0_0")
        e("s_barrier")
    mains[pv_bar].pre = bar_first
    rd_pv_last = [f for f in rd]
    for f in rd:
        f.before = min(f.before, pv_bar - 3)
    for si, (p, kq) in enumerate(stages):
        prevbar = pv_bar if si == 0 else BAR[si - 1]
        for j in range(8):
            g0 = gidx(p, kq, j)[0]
            if j < 3:
                after = prevbar; before = S0[(p, kq)] - 1 if j == 0 else gidx(p, kq, j - 1)[0]
                if si == 0 and j == 0: before = NPV - 1
            elif j < 6:
                after = gidx(p, kq, j - 3)[0]; before = gidx(p, kq, j - 1)[0]
            else:
                after = gidx(p, kq, 2)[0] + 2; before = gidx(p, kq, 4)[0] + 3
            rd += wfrag(p, kq, j, after, before)
        def bar(e, si=si):
            if si in (0, 3, 7, 11, 15): stamp(e, o, f"T{si}")
            e.ds_all()
            if si + 1 < 16:
                pn, kn = stages[si + 1]
                e.need_vm(f"W{pn}_{kn}")
            e("s_barrier")
        mains[BAR[si]].pre = bar
    pre = dma_wo(o, 0, 0, -1, 3) + dma_wo(o, 0, 1, -1, 10) + dma_wo(o, 0, 2, -1, 18) + dma_wo(o, 0, 3, -1, 26)
    def st_(si): return stages[si]
    P = o.w_pace
    dm = pre + dma_wo(o, *st_(4), pv_bar, BAR[0], P)
    dm += dma_wo(o, *st_(10), BAR[0], BAR[1], P)
    dm += dma_wo(o, *st_(11), BAR[1], BAR[2], P)
    t = BAR[2]
    for si in (5, 6, 7, 8, 9):
        dm += dma_wo(o, *st_(si), t, BAR[si - 2] if si > 5 else BAR[3], P); t += 4 * P
    dm += dma_wo(o, *st_(12), t, BAR[8], P); t += 4 * P
    dm += dma_wo(o, *st_(13), max(t, BAR[3]), BAR[9], P); t += 4 * P
    dm += dma_wo(o, *st_(14), max(t, BAR[4]), BAR[10], P); t += 4 * P
    dm += dma_wo(o, *st_(15), max(t, BAR[5]), BAR[11], P)
    if o.t3_nodma: dm = pre
    RL = V_E; W = V_E + 6
    l0 = 0
    for qt in range(5): cv.append(F('v', txt(f"v_accvgpr_read_b32 v{RL + qt}, a{A_L + 4 * qt}"), l0 + 5 + 6))
    for qt in range(5): cv.append(F('e', txt(f"v_rcp_f32 v{RL + qt}, v{RL + qt}"), l0 + 5 + 6))
    k = 0
    for jj in range(4):
        ready = gstart[8 + 2 * jj + 1] + 5 + 4
        need = gidx(0, jj >> 1, (jj & 1) * 4)[0]
        if jj == 1: need = gidx(0, 0, 2)[0]
        for qt in range(5):
            w = W + 8 * (k & 1); k += 1
            dl = need + qt - 2 if need + qt - 2 > ready else need
            for tp in range(2):
                for i_ in range(4):
                    cv.append(F('v', txt(f"v_accvgpr_read_b32 v{w + 4*tp + i_}, a{oacc(2*jj + tp, qt) + i_}"), ready, need - 2))
            for r in range(8):
                cv.append(F('v', txt(f"v_mul_f32 v{w + r}, v{w + r}, v{RL + qt}"), ready, need - 2))
            d = bfr(jj, qt)
            for r in range(4):
                cv.append(F('v', txt(f"v_cvt_pk_bf16_f32 v{d + r}, v{w + 2*r}, v{w + 2*r + 1}"), ready, need - 2))
            cv.append(F('d', lambda e, d=d, jj=jj, qt=qt: e.ds_op(f"ds_write_b128 v{V_XA}, v[{d}:{d+3}] offset:{(jj * 5 + qt) * 1024}", "XW"), ready, need - 1))
    xbar = BAR[1]
    cv.append(F('v', txt(f"v_xor_b32 v{V_XA}, {40960}, v{V_XA}") if False else txt(f"v_add_u32 v{V_XA}, s55, v{V_XA}"), xbar, xbar + 2))
    for jj in range(4):
        for qt in range(5):
            d = bfr(4 + jj, qt)
            cv.append(F('d', lambda e, d=d, jj=jj, qt=qt: e.ds_op(f"ds_read_b128 v[{d}:{d+3}], v{V_XA} offset:{(jj * 5 + qt) * 1024}", f"X{4+jj}_{qt}"), xbar + 1, S0[(0, 2)] - 6 if jj < 2 else BAR[2] - 4))
    gd = []
    for qt in range(5):
        a_, b_ = S0[(0, 2)], S0[(1, 0)] - 2
        gd.append(F('v', txt(f"v_med3_f32 v224, v{RL + qt}, s66, v225"), a_, b_))
        gd.append(F('v', txt(f"v_cmp_neq_f32 s[62:63], v224, v{RL + qt}"), a_, b_))
        gd.append(F('s', txt("s_nop 1"), a_, b_))
        gd.append(F('s', txt(f"s_or_b64 s[{S_BAD}:{S_BAD+1}], s[{S_BAD}:{S_BAD+1}], s[62:63]"), a_, b_))
    W2 = V_E + 6
    k = 0
    for p in range(4):
        start = S0[(p + 1, 0)] + 6 if p < 3 else N
        end = S0[(p + 1, 3)] if p < 2 else 10**9
        if p == 2: end = N - 10
        for u in range(2):
            for qt in range(5):
                w = W2 + 12 * (k & 1); k += 1
                for tp in range(2):
                    for i_ in range(4):
                        st.append(F('v', txt(f"v_accvgpr_read_b32 v{w + 4*tp + i_}, a{a2(p, 2*u + tp, qt) + i_}"), start, end))
                for r in range(4):
                    st.append(F('v', txt(f"v_cvt_pk_bf16_f32 v{w + 8 + r}, v{w + 2*r}, v{w + 2*r + 1}"), start, end))
                off = (p * 10 + u * 5 + qt) * 1024
                st.append(F('s', txt(f"s_mov_b32 s{S_T0}, {off}"), start, end))
                if not o.t3_nostore: st.append(F('l', lambda e, w=w: e.vm_op(f"buffer_store_dwordx4 v[{w+8}:{w+11}], v{V_E + 5}, s[{SRD_P}:{SRD_P+3}], s{S_T0} offen {o.p_flag}", "st"), start, end))
    e(f"s_mov_b64 s[{S_BAD}:{S_BAD+1}], 0")
    e(f"s_mov_b32 s66, {hex(R_LO)}")
    e(f"v_mov_b32 v225, {hex(R_HI)}")
    for k_ in range(3):
        for j in range(4):
            e(f"v_add_u32 v{V_AWS + 4 * k_ + j}, {65536 * k_}, v{V_AW2 + j}")
    e(f"s_lshl_b32 s{S_T0}, s{S_HH}, 1")
    e(f"s_sub_u32 s{S_T0}, 1, s{S_T0}")
    e(f"s_mul_i32 s{S_T0}, s{S_T0}, 40960")
    e(f"s_mov_b32 s55, s{S_T0}")
    for f in cv:
        pass
    zip2(e, mains, [rd, dm, cv, gd, st], flush_nop=True)

def max_pass(e, o, name):
    M = 120; L16 = V_E + 5; T = 126
    e.label(f"L_maxpass_{name}")
    e("s_waitcnt vmcnt(0) lgkmcnt(0)")
    for qt in range(5): e(f"v_mov_b32 v{M + qt}, 0xff800000")
    e(f"s_mov_b32 s{S_CNT}, 0")
    e(f"s_lshl_b32 s{S_T1}, s{S_RH}, 12")
    e.label(f"L_maxloop_{name}")
    e("s_barrier")
    e(f"s_mov_b32 m0, s{S_KV}")
    e("s_nop 0")
    for t in range(4):
        e(f"buffer_load_dwordx4 v{V_OK + t}, s[{SRD_K}:{SRD_K+3}], s{S_T1} offen offset:{t * 1024} lds")
    e("s_waitcnt vmcnt(0)")
    e("s_barrier")
    for n in range(8):
        e(f"ds_read_b128 a[{fbuf(n)}:{fbuf(n)+3}], v{V_AK + (n & 3)} offset:{(n >> 2) * 4096}")
    e("s_waitcnt lgkmcnt(0)")
    for kt in range(2):
        for j in range(4):
            for qt in range(5):
                d = sreg(0, kt, qt)
                e(f"{MFMA} {vr(d, 4)}, {ar(fbuf(kt * 4 + j), 4)}, {vr(qf(j, qt), 4)}, {'0' if j == 0 else vr(d, 4)}")
    e("s_nop 7")
    e("s_nop 3")
    for qt in range(5):
        for kt in range(2):
            d = sreg(0, kt, qt)
            e(f"v_max3_f32 v{M + qt}, v{d}, v{d+1}, v{M + qt}")
            e(f"v_max3_f32 v{M + qt}, v{d+2}, v{d+3}, v{M + qt}")
    e(f"s_add_u32 s{S_T1}, s{S_T1}, 8192")
    e(f"s_add_u32 s{S_CNT}, s{S_CNT}, 1")
    e(f"s_cmp_lt_u32 s{S_CNT}, 16")
    e(f"s_cbranch_scc1 L_maxloop_{name}")
    e("s_barrier")
    e(f"s_lshl_b32 s{S_T1}, s{S_RH}, 12")
    e(f"s_mov_b32 m0, s{S_KV}")
    e("s_nop 0")
    for t in range(4):
        e(f"buffer_load_dwordx4 v{V_OK + t}, s[{SRD_K}:{SRD_K+3}], s{S_T1} offen offset:{t * 1024} lds")
    e(f"v_lshrrev_b32 v{T}, 2, v{L16}")
    e(f"v_xor_b32 v{T+1}, 64, v{T}")
    e(f"v_xor_b32 v{T+2}, 0x80, v{T}")
    for x in (1, 2):
        for qt in range(5): e(f"ds_bpermute_b32 v{T + 3 + qt}, v{T + x}, v{M + qt}")
        e("s_waitcnt lgkmcnt(0)")
        for qt in range(5): e(f"v_max_f32 v{M + qt}, v{M + qt}, v{T + 3 + qt}")
    for qt in range(5):
        for r in range(4): e(f"v_sub_f32 v{V_BIAS + 4 * qt + r}, 0, v{M + qt}")
    e("s_waitcnt vmcnt(0)")
    e("s_barrier")
    for n in range(3): run(e, kfrag(0, 0, n, n))
    e(f"s_branch L_maxdone_{name}")

def vote(e, o, name):
    T = V_E
    e(f"s_cmp_lg_u64 s[{S_BAD}:{S_BAD+1}], 0")
    e(f"s_cselect_b32 s3, 1, 0")
    e(f"v_mov_b32 v{T}, s3")
    e(f"s_lshl_b32 s7, s{S_W}, 2")
    e(f"v_mov_b32 v{T+1}, s7")
    e(f"ds_write_b32 v{T+1}, v{T}")
    e("s_waitcnt lgkmcnt(0)")
    e("s_barrier")
    e(f"v_mov_b32 v{T+1}, 0")
    e(f"ds_read_b128 v[{T+2}:{T+5}], v{T+1}")
    e("s_waitcnt lgkmcnt(0)")
    e(f"v_or_b32 v{T+2}, v{T+2}, v{T+3}")
    e(f"v_or3_b32 v{T+2}, v{T+2}, v{T+4}, v{T+5}")
    e("s_nop 0")
    e(f"v_readfirstlane_b32 s3, v{T+2}")
    e(f"s_cmp_eq_u32 s{S_MODE}, 0")
    e(f"s_cselect_b32 s3, s3, 0")
    e(f"s_cmp_eq_u32 s3, 0")
    e(f"s_cbranch_scc1 L_fine_{name}")
    e(f"s_mov_b32 s{S_MODE}, 1")
    e("s_waitcnt vmcnt(0)")
    e("s_barrier")
    e("v_mbcnt_lo_u32_b32 v0, -1, 0")
    e("v_mbcnt_hi_u32_b32 v0, -1, v0")
    e(f"s_lshl_b32 s3, s{S_W}, 6")
    e("v_add_u32 v0, s3, v0")
    e(f"s_branch L_restart_{name}")
    e.label(f"L_fine_{name}")

def gen_k1(name, o):
    NSTAMP[0] = 0
    e = Em()
    e.lines.append(kernel_head(name))
    prologue(e, o, name)
    qphase(e, o)
    stamp(e, o, "qdone")
    e(f"v_accvgpr_write_b32 a{A_SAVE}, v{V_OV0}")
    e(f"v_accvgpr_write_b32 a{A_SAVE+1}, v{V_OV0+1}")
    e(f"v_accvgpr_write_b32 a{A_SAVE+2}, v{V_T+1}")
    for n in range(3): run(e, kfrag(0, 0, n, n))
    qconvert(e)
    stamp(e, o, "qconv")
    e(f"""
    v_accvgpr_read_b32 v{V_OV}, a{A_SAVE}
    v_accvgpr_read_b32 v{V_OV+1}, a{A_SAVE+1}
    v_accvgpr_read_b32 v{V_E+5}, a{A_SAVE+2}
    s_mov_b32 s{S_KDST}, s{S_KV}             ; K(4) -> slot 0
    s_add_u32 s{S_VDST}, s{S_KV}, {32768 if o.apf else 0}          ; V(4) / V(2)
    s_lshl_b32 s7, s{S_RH}, 12
    s_add_u32 s{S_KOFF}, s7, {4 * 8192}
    s_add_u32 s{S_VOFF}, s7, {(4 if o.apf else 2) * 8192}
    v_lshlrev_b32 v{V_E+5}, 4, v{V_E+5}
    """)
    if o.t3: t3_setup(e, o)
    for r in range(20): e(f"v_mov_b32 v{V_BIAS + r}, 0")
    e(f"s_cmp_eq_u32 s{S_MODE}, 0")
    e(f"s_cbranch_scc0 L_maxpass_{name}")
    e.label(f"L_maxdone_{name}")
    if o.pf_late:
        e("s_waitcnt vmcnt(0)"); e("s_barrier"); e.vm = []
        for n in range(3): run(e, kfrag(0, 0, n, n))
    attn_iter(e, o, -1, True, False, False, None, '', True)
    if o.apf:
        attn_iter(e, o, 0, True, True, False, None, 'K', True)
        attn_iter(e, o, 1, True, True, True, None, 'K', True, first_pv=True)
        attn_iter(e, o, 2, True, True, True, 12, 'KV', True)
    else:
        attn_iter(e, o, 0, True, True, False, 12, 'KV', True)
        attn_iter(e, o, 1, True, True, True, 16, 'KV', True, first_pv=True)
        attn_iter(e, o, 2, True, True, True, 16, 'KV', True)
    stamp(e, o, "iter0 done")
    e(f"s_mov_b32 s{S_CNT}, 0")
    ds0 = list(e.ds)
    e.label(f"L_loop_{name}")
    if o.t3 and o.w_touch >= 0:
        e(f"s_cmp_eq_u32 s{S_CNT}, {o.w_touch}")
        e(f"s_cbranch_scc0 L_nowt_{name}")
        e(f"buffer_load_dword v{V_E + 1}, v{V_E}, s[56:59], 0 offen")
        e.label(f"L_nowt_{name}")
    attn_iter(e, o, 3, True, True, True, 16, 'KV', True)
    attn_iter(e, o, 4, True, True, True, 16, 'KV', True)
    assert e.ds == ds0, (e.ds, ds0)
    e(f"s_add_u32 s{S_CNT}, s{S_CNT}, 1")
    e(f"s_cmp_lt_u32 s{S_CNT}, 6")
    e(f"s_cbranch_scc1 L_loop_{name}")
    e.ds_all()
    stamp(e, o, "loop done")
    attn_iter(e, o, 15, False, True, True, 0, '', False)
    if o.t3:
        t3_tail(e, o)
    else:
        attn_iter(e, o, 16, False, False, True, None, '', False, epi=epilogue_fill(o))
    stamp(e, o, "stores issued")
    vote(e, o, name)
    if o.stamps: e("s_waitcnt vmcnt(0)")
    stamp(e, o, "end")
    if o.stamps:
        e(f"""
    s_memrealtime s[96:97]
    s_waitcnt lgkmcnt(0)
    s_lshl_b32 s3, s2, 2
    s_add_u32 s3, s3, s{S_W}
    s_lshl_b32 s3, s3, 7
    s_add_u32 s3, s3, {200*1024*1024}
    v_mov_b32 v30, s3
    s_mov_b64 exec, 1
    """)
        for k in range(14):
            e(f"v_mov_b32 v0, s{70 + 2*k}")
            e(f"v_mov_b32 v1, s{71 + 2*k}")
            e(f"global_store_dwordx2 v30, v[0:1], s[68:69] offset:{8*k}")
            e("s_nop 1")
        e("s_waitcnt vmcnt(0)")
        if o.dbg:
            e(f"""
    s_or_b32 s3, s2, s{S_W}
    s_cmp_eq_u32 s3, 0
    s_cbranch_scc0 L_end_{name}
    s_load_dwordx2 s[98:99], s[0:1], 88
    s_waitcnt lgkmcnt(0)
    v_mov_b32 v30, 0
    """)
            for k in range(1, 11):
                e(f"s_sub_u32 s3, s{70 + 2*k}, s70")
                e(f"v_mov_b32 v0, s3")
                e(f"global_store_dword v30, v0, s[98:99] offset:{4*k}")
                e("s_nop 1")
            e("s_sub_u32 s3, s96, s94")
            e("v_mov_b32 v0, s3")
            e("global_store_dword v30, v0, s[98:99] offset:0")
            e("s_waitcnt vmcnt(0)")
    e.label(f"L_end_{name}")
    e("s_endpgm")
    dsq, vmq = list(e.ds), list(e.vm)
    max_pass(e, o, name)
    return e.text() + kernel_desc(name, 512, 256)
```

```python
from common import *
from sched import *

KRING = 0
VRING = 98304
WQ0 = 32768; WQ_HEAD = 8224; WQ_SLOT = 2 * WQ_HEAD
X0 = 82176; X_SLOT = 20480
LDS_BYTES = 163840
VTOG = 0x38000
S_W, S_HH, S_RH = 4, 5, 6
SRD_X, SRD_WQ, SRD_K, SRD_V, SRD_O = 8, 12, 16, 20, 24
S_T0, S_T1 = 32, 33
S_WQL, S_XL, S_XG, S_WQG = 35, 36, 37, 38
S_KDST, S_VDST, S_KOFF, S_VOFF, S_CNT = 40, 41, 42, 43, 44
S_IDX, S_HG, S_B, S_BR, S_H = 45, 46, 47, 48, 49
S_SC = 50
S_KV = 39; S_WQK = 51; S_XK = 34; S_PT = 7
V_Q = 0
V_XB = [0, 20]
V_AW = 40
V_AX = 44
V_OWQ = 46
V_OX = 50
V_T = 56
V_ACC = 80
V_S = [80, 120]
V_P = [160, 180]
V_OV = 200
V_E = 202
V_OV0 = 70
V_AK = 240; V_AV = 244; V_OK = 252
A_O = 0; A_L = 160; A_ONE = 180; A_F = 184
A_SAVE = 216
SRD_WO, SRD_P = 28, 24
S_WA, S_WB, S_WL = 52, 53, 54
POFF = 32 * 1024 * 1024
WRING = 98304
V_OW = 232
V_AW2 = 236
V_XA = 231
A_ACC2 = [0, 80]
V_BIAS = 208
S_MODE = 92
S_BAD = 64
R_LO, R_HI = 0x27800000, 0x4f800000

def acc(dt, qt): return V_ACC + (dt * 5 + qt) * 4
def qf(j, qt): return V_Q + (j * 5 + qt) * 4
def sreg(par, kt, qt): return V_S[par] + (kt * 5 + qt) * 4
def preg(par, qt): return V_P[par] + qt * 4
def oacc(dt, qt): return A_O + (dt * 5 + qt) * 4
def fbuf(n): return A_F + 4 * (n % 8)

class Opt:
    kv_flag = "nt"
    q_flag = ""
    o_flag = ""
    stamps = False
    pre_all = True
    pf_start = 0
    pf_per = 3
    pf_late = False
    pf_steps = ""
    q_nodma = False
    q_nowait = False
    q_nobar = False
    q_nods = False
    rotg = 8
    rot = True
    pace = 4
    apf = True
    stamp_set = "q"
    t3 = True
    p_flag = ""
    w_flag = ""
    w_pace = 2
    kv_pace = 0
    t3_nostore = False
    t3_nodma = False
    w_touch = -1
    dbg = False

NSTAMP = [0]
def stamp(e, o, tag):
    if not o.stamps: return
    early = tag in ("issued", "bar0", "B3", "B9", "qconv")
    late = tag.startswith("T")
    if (o.stamp_set == "tail" and early) or (o.stamp_set != "tail" and late): return
    k = NSTAMP[0]; NSTAMP[0] += 1
    assert k < 12
    e.comment("stamp " + tag)
    e(f"s_memtime s[{70 + 2*k}:{71 + 2*k}]")

def prologue(e, o, name):
    e(f"""
    s_cmp_ge_u32 s2, 256
    s_cbranch_scc1 L_end_{name}
    s_mov_b32 s{S_MODE}, 0
L_restart_{name}:
    s_load_dwordx8 s[52:59], s[0:1], 0       ; A_x A_k A_v A_wq
    s_load_dwordx8 s[60:67], s[0:1], 40      ; B_x B_k B_v B_wq
    s_load_dwordx2 s[68:69], s[0:1], 96      ; ws
    s_load_dwordx2 s[98:99], s[0:1], 32      ; A_wo
    s_load_dwordx2 s[100:101], s[0:1], 72    ; B_wo
    v_lshrrev_b32 v{V_T}, 6, v0
    v_and_b32 v{V_T+1}, 63, v0               ; lane
    v_readfirstlane_b32 s{S_W}, v{V_T}
    s_and_b32 s3, s2, 7
    s_lshr_b32 s{S_IDX}, s2, 3
    s_lshr_b32 s{S_BR}, s3, 2
    s_and_b32 s{S_HG}, s3, 3
    s_lshr_b32 s{S_B}, s{S_IDX}, 2
    s_and_b32 s7, s{S_IDX}, 3
    s_lshr_b32 s{S_HH}, s{S_W}, 1
    s_and_b32 s{S_RH}, s{S_W}, 1
    s_lshl_b32 s{S_H}, s{S_HG}, 3
    s_lshl_b32 s7, s7, 1
    s_add_u32 s{S_H}, s{S_H}, s7
    s_add_u32 s{S_H}, s{S_H}, s{S_HH}
    """)
    if o.stamps:
        e("s_memrealtime s[94:95]")
    stamp(e, o, "start")
    L = V_T + 1
    c, g, rp, cp, t0, t1 = V_T + 2, V_T + 3, V_T + 4, V_T + 5, V_T + 6, V_T + 7
    e(f"""
    v_and_b32 v{c}, 15, v{L}
    v_lshrrev_b32 v{g}, 4, v{L}
    v_bfe_u32 v{rp}, v{L}, 2, 2
    v_and_b32 v{cp}, 3, v{L}
    """)
    e(f"""
    v_lshlrev_b32 v{t0}, 2, v{g}
    v_xor_b32 v{t0}, v{t0}, v{c}
    v_lshlrev_b32 v{t0}, 4, v{t0}
    v_lshl_add_u32 v{V_OWQ}, v{g}, 13, v{t0}
    """)
    for u in range(1, 4):
        e(f"v_add_u32 v{V_OWQ+u}, {u * 32768 - wq_imm(u)}, v{V_OWQ}")
    e(f"""
    v_and_b32 v{t0}, 7, v{L}
    v_xor_b32 v{t0}, v{t0}, v{g}
    v_lshlrev_b32 v{t0}, 4, v{t0}
    v_lshrrev_b32 v{t1}, 3, v{L}
    v_lshl_add_u32 v{t0}, v{t1}, 10, v{t0}
    s_and_b32 s3, s{S_W}, 1
    s_lshl_b32 s3, s3, 6
    v_xor_b32 v{t0}, s3, v{t0}
    v_xor_b32 v{t1}, 64, v{t0}
    """)
    for u in range(5):
        src = t0 if u % 2 == 0 else t1
        e(f"v_add_u32 v{V_OX+u}, {u * 8192 - (u & 3) * 1024}, v{src}")
    e(f"""
    v_xor_b32 v{t0}, v{c}, v{g}
    v_lshlrev_b32 v{t0}, 4, v{t0}
    v_lshl_add_u32 v{V_OK}, v{g}, 8, v{t0}
    v_xor_b32 v{V_OK+1}, 64, v{V_OK}
    v_xor_b32 v{V_OK+2}, 0x80, v{V_OK}
    v_xor_b32 v{V_OK+3}, 0xc0, v{V_OK}
    """)
    e(f"""
    v_lshlrev_b32 v{t0}, 1, v{g}
    v_xor_b32 v{t0}, v{t0}, v{c}
    v_lshlrev_b32 v{t0}, 4, v{t0}
    v_lshl_add_u32 v{V_OV0}, v{g}, 8, v{t0}
    v_xor_b32 v{V_OV0+1}, 0x80, v{V_OV0}
    """)
    e(f"""
    s_mul_i32 s3, s{S_HH}, {WQ_HEAD}
    s_add_u32 s3, s3, {WQ0}
    v_mul_u32_u24 v{t0}, 2056, v{g}
    v_lshl_add_u32 v{t0}, v{rp}, 8, v{t0}
    v_lshl_add_u32 v{t0}, v{cp}, 4, v{t0}
    v_add_u32 v{t0}, s3, v{t0}
    s_mul_i32 s7, s{S_RH}, {4 * 1024 + 16}
    s_add_u32 s{S_WQL}, s3, s7
    s_lshl_b32 s{S_WQG}, s{S_RH}, 17
    """)
    for j in range(4):
        e(f"""
    v_xor_b32 v{t1}, {j}, v{rp}
    v_lshl_add_u32 v{V_AW+j}, v{t1}, 6, v{t0}""")
    e(f"""
    s_mul_i32 s3, s{S_RH}, {80*128}
    s_add_u32 s3, s3, {X0}
    v_lshrrev_b32 v{t0}, 1, v{c}
    v_xor_b32 v{t0}, v{t0}, v{g}
    v_lshlrev_b32 v{t0}, 4, v{t0}
    v_lshl_add_u32 v{t0}, v{c}, 7, v{t0}
    v_add_u32 v{V_AX}, s3, v{t0}
    v_xor_b32 v{V_AX+1}, 64, v{V_AX}
    s_mul_i32 s{S_XL}, s{S_W}, 5120
    s_add_u32 s{S_XL}, s{S_XL}, {X0}
    s_mul_i32 s{S_XG}, s{S_W}, 40960
    """)
    e(f"""
    s_lshl_b32 s3, s{S_HH}, 13
    s_lshl_b32 s7, s{S_RH}, 12
    s_add_u32 s{S_KV}, s3, s7
    v_xor_b32 v{t0}, v{g}, v{c}
    v_lshlrev_b32 v{t0}, 4, v{t0}
    v_lshl_add_u32 v{t0}, v{c}, 8, v{t0}
    v_add_u32 v{V_AK}, s3, v{t0}
    v_xor_b32 v{V_AK+1}, 64, v{V_AK}
    v_xor_b32 v{V_AK+2}, 0x80, v{V_AK}
    v_xor_b32 v{V_AK+3}, 0xc0, v{V_AK}
    """)
    e(f"""
    v_lshlrev_b32 v{V_APA}, 4, v{L}
    v_add_u32 v{V_APA}, s{S_KV}, v{V_APA}
    v_add_u32 v{V_APA+1}, {VRING}, v{V_APA}
    """)
    e(f"""
    s_add_u32 s3, s3, 0x20000
    v_lshl_add_u32 v{t0}, v{g}, 2, v{rp}       ; 4g + r'
    v_and_b32 v{t1}, 7, v{t0}                  ; rho7
    v_lshlrev_b32 v{t0}, 8, v{t0}
    v_lshl_add_u32 v{t0}, v{t1}, 5, v{t0}
    v_lshl_add_u32 v{t0}, v{cp}, 3, v{t0}
    v_add_u32 v{V_AV}, s3, v{t0}
    """)
    for dt in range(1, 8):
        e(f"v_xor_b32 v{V_AV+dt}, {32*dt}, v{V_AV}")
    e(f"""
    s_waitcnt lgkmcnt(0)
    s_cmp_eq_u32 s{S_BR}, 0
    s_cselect_b32 s52, s52, s60
    s_cselect_b32 s53, s53, s61
    s_cselect_b32 s54, s54, s62
    s_cselect_b32 s55, s55, s63
    s_cselect_b32 s56, s56, s64
    s_cselect_b32 s57, s57, s65
    s_cselect_b32 s58, s58, s66
    s_cselect_b32 s59, s59, s67
    s_lshl_b32 s3, s{S_H}, 8
    s_add_u32 s{SRD_WQ}, s58, s3
    s_addc_u32 s{SRD_WQ+1}, s59, 0
    s_sub_u32 s{SRD_WQ+2}, 4194304, s3
    s_mov_b32 s{SRD_WQ+3}, 0x20000
    s_mul_i32 s3, s{S_B}, 163840
    s_add_u32 s{SRD_X}, s52, s3
    s_addc_u32 s{SRD_X+1}, s53, 0
    s_mov_b32 s{SRD_X+2}, 163840
    s_mov_b32 s{SRD_X+3}, 0x20000
    """)
    if o.rot and o.rotg > 1:
        G = o.rotg
        e(f"""
    s_and_b32 s3, s{S_IDX}, 3                ; p
    s_lshl_b32 s3, s3, {1 if G == 8 else 0}
    s_add_u32 s3, s3, s{S_B}
    s_and_b32 s3, s3, {G - 1}
    s_mul_i32 s3, s3, {8 // G}
    s_lshl_b32 s{S_WQK}, s3, 7
    s_lshl_b32 s3, s3, 19                    ; 64 rows * 8192
    s_add_u32 s{S_WQG}, s{S_WQG}, s3
    """)
    else:
        e(f"s_mov_b32 s{S_WQK}, 0")

def prologue2(e, o):
    e(f"""
    s_lshl_b32 s3, s{S_B}, 5
    s_add_u32 s3, s3, s{S_H}
    s_lshl_b32 s3, s3, 17
    s_add_u32 s{SRD_K}, s54, s3
    s_addc_u32 s{SRD_K+1}, s55, 0
    s_mov_b32 s{SRD_K+2}, 131072
    s_mov_b32 s{SRD_K+3}, 0x20000
    s_add_u32 s{SRD_V}, s56, s3
    s_addc_u32 s{SRD_V+1}, s57, 0
    s_mov_b32 s{SRD_V+2}, 131072
    s_mov_b32 s{SRD_V+3}, 0x20000
    s_lshl_b32 s3, s{S_BR}, 3
    s_add_u32 s3, s3, s{S_B}
    s_lshl_b32 s3, s3, 1
    s_add_u32 s3, s3, s{S_RH}
    s_lshl_b32 s3, s3, 5
    s_add_u32 s3, s3, s{S_H}
    s_mul_i32 s3, s3, 20480
    s_add_u32 s{SRD_O}, s68, s3
    s_addc_u32 s{SRD_O+1}, s69, 0
    s_mov_b32 s{SRD_O+2}, 20480
    s_mov_b32 s{SRD_O+3}, 0x20000
    s_mov_b32 s{S_SC}, {f32hex(C_SCALE)}
    """)

def wq_imm(u): return u * 1024 + 8 * (u >> 1)

def dma_wq(o, m, after=-1, before=10**9, pace=0):
    fl = [F('s', txt(f"s_add_u32 m0, s{S_WQL}, {(m % 3) * WQ_SLOT}"), after, before)]
    for u in range(4):
        fl.append(F('l', lambda e, u=u: e.vm_op(f"buffer_load_dwordx4 v{V_OWQ+u}, s[{SRD_WQ}:{SRD_WQ+3}], s{S_WQG} offen offset:{wq_imm(u)} {o.q_flag} lds", f"wq{m}"), after + pace * u, before))
    fl.append(F('s', txt(f"s_add_u32 s{S_WQG}, s{S_WQG}, {32 * 8192}"), after, before))
    fl.append(F('s', txt(f"s_and_b32 s{S_WQG}, s{S_WQG}, 0x3fffff"), after, before))
    return fl

def dma_x(o, M, after=-1, before=10**9, pace=0):
    fl = [F('s', txt(f"s_add_u32 m0, s{S_XL}, {(M % 2) * X_SLOT}"), after, before),
          F('s', txt(f"s_add_u32 s{S_T1}, s{S_XG}, s{S_WQK}"), after, before)]
    for u in range(5):
        if u == 4: fl.append(F('s', txt(f"s_add_u32 m0, s{S_XL}, {(M % 2) * X_SLOT + 4096}"), after, before))
        if u == 4: fl.append(F('s', txt("s_nop 0"), after, before))
        fl.append(F('l', lambda e, u=u: e.vm_op(f"buffer_load_dwordx4 v{V_OX+u}, s[{SRD_X}:{SRD_X+3}], s{S_T1} offen offset:{(u & 3) * 1024} {o.q_flag} lds", f"x{M}"), after + pace * u, before))
    fl.append(F('s', txt(f"s_add_u32 s{S_WQK}, s{S_WQK}, 128"), after, before))
    fl.append(F('s', txt(f"s_and_b32 s{S_WQK}, s{S_WQK}, 0x3ff"), after, before))
    return fl

def dma_pref(o, which, s, after=-1, before=10**9, pace=0):
    if which == 'K':
        base = KRING + 16384 * s; srd = SRD_K; vo = lambda t: V_OK + t
    else:
        base = 0x20000 + 16384 * s; srd = SRD_V; vo = lambda t: V_OV0 + (t & 1)
    fl = [F('s', txt(f"s_add_u32 m0, s{S_KV}, {base}"), after, before),
          F('s', txt(f"s_lshl_b32 s34, s{S_RH}, 12"), after, before),
          F('s', txt(f"s_add_u32 s34, s34, {s * 8192}"), after, before)]
    for t in range(4):
        fl.append(F('l', lambda e, t=t: e.vm_op(f"buffer_load_dwordx4 v{vo(t)}, s[{srd}:{srd+3}], s34 offen offset:{t * 1024} {o.kv_flag} lds", f"{which}{s}"), after + pace * t, before))
    return fl

APF = {('K', 2): 0, ('K', 3): 16, ('V', 2): 32, ('V', 3): 48}
def dma_apf(o, which, s, after=-1, before=10**9, pace=0):
    srd = SRD_K if which == 'K' else SRD_V
    vo = (lambda t: V_OK + t) if which == 'K' else (lambda t: V_OV0 + (t & 1))
    fl = [F('s', txt(f"s_lshl_b32 s34, s{S_RH}, 12"), after, before),
          F('s', txt(f"s_add_u32 s34, s34, {s * 8192}"), after, before)]
    for t in range(4):
        a = APF[(which, s)] + 4 * t
        fl.append(F('l', lambda e, t=t, a=a: e.vm_op(f"buffer_load_dwordx4 a[{a}:{a+3}], v{vo(t)}, s[{srd}:{srd+3}], s34 offen offset:{t * 1024} {o.kv_flag}", f"{which}{s}"), after + pace * t, before))
    return fl
V_APA = 72
def apf_copy(after):
    fl = []
    for (which, s), a0 in APF.items():
        for t in range(4):
            a = a0 + 4 * t
            if which == 'K': txt_ = f"ds_write_b128 v{V_APA}, a[{a}:{a+3}] offset:{KRING + 16384 * s + 1024 * t}"
            else: txt_ = f"ds_write_b128 v{V_APA+1}, a[{a}:{a+3}] offset:{16384 * (s - 2) + 1024 * t}"
            fl.append(F('d', lambda e, txt_=txt_: e.ds_op(txt_, "APF"), after))
    return fl

def zero_acc(e):
    e(f"v_mov_b32 v{V_T+8}, 0x3f803f80")
    for r in range(4):
        e(f"v_accvgpr_write_b32 a{A_ONE + r}, v{V_T+8}")

def run(e, fl):
    for f in fl: f.fn(e)

def qphase(e, o):
    run(e, dma_wq(o, 0) + dma_x(o, 0) + dma_wq(o, 1))
    if o.pre_all: run(e, dma_wq(o, 2) + dma_x(o, 1))
    prologue2(e, o)
    stamp(e, o, "issued")
    zero_acc(e)
    idx = lambda m, dt, qt: 40 * m + 5 * dt + qt
    def wfrag(m, dt, after=-1, before=10**9):
        j, tp = dt >> 1, dt & 1
        return [F('d', lambda e, n=n: e.ds_op(f"ds_read_b64_tr_b16 a[{fbuf(dt) + 2 * n}:{fbuf(dt) + 2 * n + 1}], v{V_AW + j} offset:{(m % 3) * WQ_SLOT + n * 1024 + 8 * tp}", f"F{m}_{dt}"), after, before) for n in range(2)]
    def xfrag(m, qt, after=-1, before=10**9):
        M, h = m >> 1, m & 1
        b = V_XB[m & 1] + 4 * qt
        return [F('d', lambda e: e.ds_op(f"ds_read_b128 v[{b}:{b+3}], v{V_AX + h} offset:{(M % 2) * X_SLOT + qt * 2048}", f"B{m}_{qt}"), after, before)]
    def barrier(m):
        def fn(e):
            e.ds_all()
            tags = [f"wq{m+1}"]
            if (m + 1) % 2 == 0: tags.append(f"x{(m+1)//2}")
            if m == 15:
                e.vm_all()
            elif not o.q_nowait or m < 0:
                e.need_vm(tags)
            if not o.q_nobar or m in (-1, 15): e("s_barrier")
            if m in (3, 9): stamp(e, o, f"B{m}")
        return fn
    barrier(-1)(e)
    stamp(e, o, "bar0")
    def nextfrags(m, after, before):
        fl = wfrag(m, 0, after, before)
        for q in range(5): fl += xfrag(m, q, after, before)
        return fl + wfrag(m, 1, after, before) + wfrag(m, 2, after, before)
    run(e, nextfrags(0, -1, 0))
    mains = []; rd = []; dm = []
    pref = [('K', 0), ('K', 1), ('V', 0), ('V', 1)]
    if o.apf: pref += [('K', 2), ('K', 3), ('V', 2), ('V', 3)]
    tnext = [0]
    for m in range(16):
        for dt in range(8):
            for qt in range(5):
                cin = "0" if m == 0 else vr(acc(dt, qt), 4)
                needs = []
                if qt == 0: needs.append(f"F{m}_{dt}")
                if dt == 0: needs.append(f"B{m}_{qt}")
                pre = barrier(m) if (dt == 5 and qt == 0) else None
                mains.append(Main(f"{MFMA} {vr(acc(dt, qt), 4)}, {ar(fbuf(dt), 4)}, {vr(V_XB[m & 1] + 4 * qt, 4)}, {cin}", needs, pre))
        for dt in (3, 4, 5):
            rd += wfrag(m, dt, idx(m, dt - 3, 0), idx(m, dt - 1, 0))
        for dt in (6, 7):
            rd += wfrag(m, dt, idx(m, 2, 2), idx(m, 4, 3))
        if m < 15:
            rd += nextfrags(m + 1, idx(m, 5, 0), idx(m, 7, 4))
        a = idx(m, 5, 0); b = idx(m + 1, 5, 0) if m < 15 else 10**9
        if m == 0 and not o.pre_all:
            dm += dma_wq(o, 2, -1, idx(0, 4, 0)) + dma_x(o, 1, -1, idx(0, 4, 4))
        t = max(a, tnext[0])
        if m + 3 < 16 and not o.q_nodma:
            dm += dma_wq(o, m + 3, t, b, o.pace); t += 4 * o.pace
        if m % 2 == 1 and (m - 1) // 2 + 2 < 8 and not o.q_nodma:
            dm += dma_x(o, (m - 1) // 2 + 2, t, idx(m + 2, 4, 0) if m < 14 else 10**9, o.pace); t += 5 * o.pace
        for n_, (w, s) in enumerate(pref):
            when = int(o.pf_steps.split(",")[n_]) if o.pf_steps else min(o.pf_start + n_ * o.pf_per, 15 if o.pf_late else 13)
            if m == when:
                fn_ = dma_pref if s < 2 else dma_apf
                dm += fn_(o, w, s, t, idx(m + 2, 5, 0) if m < 14 else 10**9, o.pace); t += 4 * o.pace
        tnext[0] = t
        if m == 15 and o.apf:
            rd += apf_copy(a)
        if m == 15 and not o.apf:
            for s in (2, 3):
                dm += [F('s', txt(f"s_add_u32 m0, s{S_KV}, {KRING + 16384 * s}"), a),
                       F('s', txt(f"s_lshl_b32 s34, s{S_RH}, 12"), a),
                       F('s', txt(f"s_add_u32 s34, s34, {s * 8192}"), a)]
                for t in range(4):
                    dm.append(F('l', lambda e, t=t, s=s: e.vm_op(f"buffer_load_dwordx4 v{V_OK + t}, s[{SRD_K}:{SRD_K+3}], s34 offen offset:{t * 1024} {o.kv_flag} lds", f"K{s}"), a))
    if o.q_nods: rd = []
    zip2(e, mains, [rd, dm])

def qconvert(e):
    e("s_nop 7")
    for r in range(V_ACC, V_ACC + 160, 2):
        e(f"v_pk_mul_f32 v[{r}:{r+1}], v[{r}:{r+1}], s[{S_SC}:{S_SC+1}] op_sel_hi:[1,0]")
    for j in range(4):
        for qt in range(5):
            for tp in range(2):
                a0 = acc(2 * j + tp, qt); d = qf(j, qt) + 2 * tp
                e(f"v_cvt_pk_bf16_f32 v{d}, v{a0}, v{a0+1}")
                e(f"v_cvt_pk_bf16_f32 v{d+1}, v{a0+2}, v{a0+3}")

def dma_kv(o, which, after0, i):
    fl = []
    P = o.kv_pace
    after = after0
    if 'K' in which:
        fl.append(F('s', txt(f"s_mov_b32 m0, s{S_KDST}"), after))
        fl.append(F('s', txt(f"s_add_u32 s{S_KDST}, s{S_KDST}, 16384"), after))
        for t in range(4):
            fl.append(F('l', lambda e, t=t: e.vm_op(f"buffer_load_dwordx4 v{V_OK + t}, s[{SRD_K}:{SRD_K+3}], s{S_KOFF} offen offset:{t * 1024} {o.kv_flag} lds", f"K{i+4}"), after))
            after += P
        fl.append(F('s', txt(f"s_and_b32 s{S_KDST}, s{S_KDST}, 0xffff"), after0))
        fl.append(F('s', txt(f"s_add_u32 s{S_KOFF}, s{S_KOFF}, 8192"), after0))
    if 'V' in which:
        fl.append(F('s', txt(f"s_add_u32 m0, s{S_VDST}, {VRING}"), after0))
        fl.append(F('s', txt(f"s_add_u32 s{S_VDST}, s{S_VDST}, 16384"), after0))
        for t in range(4):
            fl.append(F('l', lambda e, t=t: e.vm_op(f"buffer_load_dwordx4 v{V_OV + (t & 1)}, s[{SRD_V}:{SRD_V+3}], s{S_VOFF} offen offset:{t * 1024} {o.kv_flag} lds", f"V{i+2}"), after))
            after += P
        fl.append(F('s', txt(f"s_and_b32 s{S_VDST}, s{S_VDST}, 0xffff"), after0))
        fl.append(F('s', txt(f"s_add_u32 s{S_VOFF}, s{S_VOFF}, 8192"), after0))
    return fl

def kfrag(par_slot, kt, j, n, after=-1, before=10**9):
    return [F('d', lambda e: e.ds_op(f"ds_read_b128 a[{fbuf(n)}:{fbuf(n)+3}], v{V_AK + j} offset:{kt * 4096 + 16384 * par_slot}", f"F{n}"), after, before)]
def vfrag(par_slot, dt, n, after=-1, before=10**9):
    return [F('d', lambda e, h=h: e.ds_op(f"ds_read_b64_tr_b16 a[{fbuf(n) + 2*h}:{fbuf(n) + 2*h + 1}], v{V_AV + dt} offset:{h * 4096 + 16384 * par_slot}", f"F{n}"), after, before) for h in range(2)]

def softmax_fill(par):
    seq = []
    for qt in range(5):
        for kt in range(2):
            s = sreg(par, kt, qt); p = preg(par, qt) + 2 * kt
            seq += [("e", s), ("e", s + 1), ("c", p, s, s + 1), ("e", s + 2), ("e", s + 3), ("c", p + 1, s + 2, s + 3)]
    out = []; pend = None
    for x in seq:
        if x[0] == "c": pend = x
        else:
            out.append(x)
            if pend is not None: out.append(pend); pend = None
    if pend is not None: out.append(("n",)); out.append(pend)
    fl = []
    for x in out:
        if x[0] == "e": fl.append(F('e', txt(f"v_exp_f32 v{x[1]}, v{x[1]}")))
        elif x[0] == "c": fl.append(F('v', txt(f"v_cvt_pk_bf16_f32 v{x[1]}, v{x[2]}, v{x[3]}")))
        else: fl.append(F('s', txt("s_nop 0")))
    return fl

def attn_iter(e, o, i, qk, sm, pv, vwait, dma, pre_next, epi=None, first_pv=False):
    par = i & 1; ks = (i + 1) & 1
    mains = []; rd = []; dm = []
    gstart = {}
    if qk:
        for kt in range(2):
            for j in range(4):
                n = kt * 4 + j
                gstart[n] = len(mains)
                for qt in range(5):
                    d = sreg(par ^ 1, kt, qt)
                    cin = vr(V_BIAS + 4 * qt, 4) if j == 0 else vr(d, 4)
                    mains.append(Main(f"{MFMA} {vr(d, 4)}, {ar(fbuf(n), 4)}, {vr(qf(j, qt), 4)}, {cin}", [f"F{n}"] if qt == 0 else []))
    if pv:
        gstart['l'] = len(mains)
        for qt in range(5):
            mains.append(Main(f"{MFMA} {ar(A_L + 4 * qt, 4)}, {ar(A_ONE, 4)}, {vr(preg(par ^ 1, qt), 4)}, {'0' if first_pv else ar(A_L + 4 * qt, 4)}"))
        for dt in range(8):
            n = 8 + dt
            gstart[n] = len(mains)
            for qt in range(5):
                mains.append(Main(f"{MFMA} {ar(oacc(dt, qt), 4)}, {ar(fbuf(n), 4)}, {vr(preg(par ^ 1, qt), 4)}, {'0' if first_pv else ar(oacc(dt, qt), 4)}", [f"F{n}"] if qt == 0 else []))
    order = [n for n in range(16) if n in gstart]
    ln = len(order)
    for k, n in enumerate(order):
        if qk and n < 3: continue
        after = gstart[order[k - 4]] if k >= 4 else -1
        if k >= ln - 3 and ln >= 6: after = gstart[order[ln - 6]]
        before = gstart[order[k - 1]] if k >= 1 else 0
        if k >= ln - 3 and ln >= 4: before = min(before, gstart[order[ln - 3]])
        rd += kfrag(ks, n >> 2, n & 3, n, after, before) if n < 8 else vfrag(ks, n - 8, n, after, before)
    has_bar = pre_next or vwait is not None
    if has_bar:
        bpos = gstart[order[-2]]
        def bar(e):
            e.ds_all()
            if vwait == 0: e.vm_all()
            elif vwait is not None: e.need_vm([f"K{i+2}", f"V{i}"])
            e("s_barrier")
        mains[bpos].pre = bar
        if par == 0 and qk:
            for j in range(4): rd.append(F('v', txt(f"v_xor_b32 v{V_AK + j}, 0x8000, v{V_AK + j}"), bpos))
        if pre_next:
            for n in range(3): rd += kfrag(ks ^ 1, 0, n, n, bpos, len(mains) - 1)
        if par == 0 and pv:
            for dt in range(8): rd.append(F('v', txt(f"v_xor_b32 v{V_AV + dt}, {hex(VTOG)}, v{V_AV + dt}"), bpos))
    dm += dma_kv(o, dma, -1, i)
    sf = softmax_fill(par) if sm else []
    qs = [rd, dm, sf]
    if epi: qs.append(epi(gstart))
    zip2(e, mains, qs, flush_nop=bool(epi))

def epilogue_fill(o):
    def build(gstart):
        fl = []
        RL = V_E
        W = V_E + 6
        l0 = gstart['l']
        for qt in range(5):
            fl.append(F('v', txt(f"v_accvgpr_read_b32 v{RL + qt}, a{A_L + 4 * qt}"), l0 + 5 + 8))
        for qt in range(5):
            fl.append(F('e', txt(f"v_rcp_f32 v{RL + qt}, v{RL + qt}"), l0 + 5 + 8))
        k = 0
        for jj in range(4):
            ready = gstart[8 + 2 * jj + 1] + 5 + 4
            for qt in range(5):
                w = W + 12 * (k & 1); k += 1
                for tp in range(2):
                    for i in range(4):
                        fl.append(F('v', txt(f"v_accvgpr_read_b32 v{w + 4*tp + i}, a{oacc(2*jj + tp, qt) + i}"), ready))
                for r in range(8):
                    fl.append(F('v', txt(f"v_mul_f32 v{w + r}, v{w + r}, v{RL + qt}"), ready))
                for r in range(4):
                    fl.append(F('v', txt(f"v_cvt_pk_bf16_f32 v{w + 8 + r}, v{w + 2*r}, v{w + 2*r + 1}"), ready))
                off = (jj * 5 + qt) * 1024
                fl.append(F('s', txt(f"s_mov_b32 s{S_T0}, {off}"), ready))
                fl.append(F('l', lambda e, w=w: e.vm_op(f"buffer_store_dwordx4 v[{w+8}:{w+11}], v{V_E + 5}, s[{SRD_O}:{SRD_O+3}], s{S_T0} offen {o.o_flag}", "st"), ready))
        return fl
    return build

WO_A = [131072, 147456, 98304, 81920, 114688]
WO_B = [0, 16384, 32768, 49152, 65536]
def wo_slot(si): return WO_A[si] if si < 5 else WO_B[si - 5] if si < 10 else WO_A[si - 10] if si < 15 else WO_B[0]
V_AWS = 160

def t3_setup(e, o):
    L = V_E + 5
    t0, t1, t2, t3_ = V_E, V_E + 1, V_E + 2, V_E + 3
    e(f"""
    v_lshrrev_b32 v{t0}, 4, v{L}             ; lane
    v_lshrrev_b32 v{t1}, 4, v{t0}            ; g
    v_and_b32 v{t2}, 7, v{t0}
    v_lshlrev_b32 v{t3_}, 1, v{t1}
    v_xor_b32 v{t2}, v{t2}, v{t3_}
    v_lshlrev_b32 v{t2}, 4, v{t2}
    v_lshrrev_b32 v{t3_}, 3, v{t0}
    v_lshl_add_u32 v{V_OW}, v{t3_}, 10, v{t2}
    v_add_u32 v{V_OW+1}, {7168}, v{V_OW}
    v_add_u32 v{V_OW+2}, {2*7168}, v{V_OW}
    v_add_u32 v{V_OW+3}, {3*7168}, v{V_OW}
    v_bfe_u32 v{t2}, v{t0}, 2, 2             ; r'
    v_lshl_add_u32 v{t2}, v{t1}, 2, v{t2}    ; 4g + r'
    v_lshrrev_b32 v{t3_}, 1, v{t2}
    v_and_b32 v{t3_}, 3, v{t3_}
    v_lshlrev_b32 v{t2}, 7, v{t2}
    v_lshl_add_u32 v{t2}, v{t3_}, 5, v{t2}
    v_and_b32 v{t3_}, 3, v{t0}               ; c'
    v_lshl_add_u32 v{t2}, v{t3_}, 3, v{t2}
    s_lshl_b32 s3, s{S_HH}, 13
    v_add_u32 v{V_AW2}, s3, v{t2}
    v_xor_b32 v{V_AW2+1}, 32, v{V_AW2}
    v_xor_b32 v{V_AW2+2}, 64, v{V_AW2}
    v_xor_b32 v{V_AW2+3}, 0x60, v{V_AW2}
    s_mul_i32 s3, s{S_W}, 20480
    v_add_u32 v{V_XA}, s3, v{L}
    s_mov_b32 s{S_WL}, s{S_KV}
    s_lshl_b32 s3, s{S_RH}, 15
    s_lshl_b32 s7, s{S_HH}, 9
    s_add_u32 s3, s3, s7
    s_lshl_b32 s7, s{S_HH}, 17
    s_add_u32 s{S_WA}, s3, s7
    s_xor_b32 s7, s7, 0x20000
    s_add_u32 s{S_WB}, s3, s7
    s_cmp_eq_u32 s{S_BR}, 0
    s_cselect_b32 s60, s98, s100
    s_cselect_b32 s61, s99, s101
    s_sub_u32 s3, s{S_H}, s{S_HH}
    s_lshl_b32 s3, s3, 17                    ; * 128 rows * 1024
    s_add_u32 s{SRD_WO}, s60, s3
    s_addc_u32 s{SRD_WO+1}, s61, 0
    s_mov_b32 s{SRD_WO+2}, 262144
    s_mov_b32 s{SRD_WO+3}, 0x20000
    s_lshl_b32 s3, s{S_BR}, 3
    s_add_u32 s3, s3, s{S_B}
    s_lshl_b32 s3, s3, 4
    s_lshr_b32 s7, s{S_H}, 1
    s_add_u32 s3, s3, s7
    s_lshl_b32 s3, s3, 2
    s_lshl_b32 s7, s{S_RH}, 1
    s_add_u32 s3, s3, s7
    s_add_u32 s3, s3, s{S_HH}
    s_mul_i32 s3, s3, 40960
    s_add_u32 s3, s3, {POFF}
    s_add_u32 s{SRD_P}, s68, s3
    s_addc_u32 s{SRD_P+1}, s69, 0
    s_mov_b32 s{SRD_P+2}, 40960
    s_mov_b32 s{SRD_P+3}, 0x20000
    s_lshl_b32 s3, s{S_HG}, 20
    s_add_u32 s56, s60, s3
    s_addc_u32 s57, s61, 0
    s_mov_b32 s58, 0x100000
    s_mov_b32 s59, 0x20000
    s_lshl_b32 s3, s{S_IDX}, 2
    s_add_u32 s3, s3, s{S_W}
    s_lshl_b32 s3, s3, 13
    v_lshlrev_b32 v{t0}, 3, v{L}             ; lane*128
    v_add_u32 v{t0}, s3, v{t0}
    """)

def dma_wo(o, p, kq, after=-1, before=10**9, pace=0):
    src = S_WA if kq < 2 else S_WB
    fl = [F('s', txt(f"s_add_u32 m0, s{S_WL}, {wo_slot(4 * p + kq)}"), after, before),
          F('s', txt(f"s_add_u32 s{S_T1}, s{src}, {(kq & 1) * 65536 + 128 * p}"), after, before)]
    for t in range(4):
        fl.append(F('l', lambda e, t=t: e.vm_op(f"buffer_load_dwordx4 v{V_OW+t}, s[{SRD_WO}:{SRD_WO+3}], s{S_T1} offen offset:{t*1024} {o.w_flag} lds", f"W{p}_{kq}"), after + pace * t, before))
    return fl

def t3_tail(e, o):
    i = 16; par = 0; ks = 1
    mains = []; rd = []; dm = []; cv = []; st = []
    gstart = {}
    gstart['l'] = 0
    for qt in range(5):
        mains.append(Main(f"{MFMA} {ar(A_L + 4 * qt, 4)}, {ar(A_ONE, 4)}, {vr(preg(1, qt), 4)}, {ar(A_L + 4 * qt, 4)}"))
    for dt in range(8):
        n = 8 + dt
        gstart[n] = len(mains)
        for qt in range(5):
            mains.append(Main(f"{MFMA} {ar(oacc(dt, qt), 4)}, {ar(fbuf(n), 4)}, {vr(preg(1, qt), 4)}, {ar(oacc(dt, qt), 4)}", [f"F{n}"] if qt == 0 else []))
    for k in range(8):
        n = 8 + k
        after = gstart[8 + k - 4] if k >= 4 else -1
        before = gstart[8 + k - 1] if k >= 1 else 0
        rd += vfrag(ks, k, n, after, before)
    NPV = len(mains)
    def a2(p, nt, qt): return A_ACC2[p & 1] + (nt * 5 + qt) * 4
    def bfr(kk, qt): return (kk * 5 + qt) * 4
    S0 = {}
    nfrag = 16
    for p in range(4):
        for kq in range(4):
            S0[(p, kq)] = len(mains)
            for ks2 in range(2):
                kk = 2 * kq + ks2
                for nt in range(4):
                    n = nfrag; nfrag += 1
                    g0 = len(mains)
                    for qt in range(5):
                        cin = "0" if (kq == 0 and ks2 == 0) else ar(a2(p, nt, qt), 4)
                        needs = [f"G{n}"] if qt == 0 else []
                        if p == 0 and kk >= 4 and nt == 0: needs = needs + [f"X{kk}_{qt}"]
                        mains.append(Main(f"{MFMA} {ar(a2(p, nt, qt), 4)}, {ar(fbuf(n), 4)}, {vr(bfr(kk, qt), 4)}, {cin}", needs))
                    gstart[('g', p, kq, ks2, nt)] = (g0, n)
    N = len(mains)
    stages = [(p, kq) for p in range(4) for kq in range(4)]
    def gidx(p, kq, j): return gstart[('g', p, kq, j >> 2, j & 3)]
    BAR = {}
    for si, (p, kq) in enumerate(stages):
        BAR[si] = gidx(p, kq, 5)[0]
    def wfrag(p, kq, j, after, before):
        g0, n = gidx(p, kq, j)
        return [F('d', lambda e, h=h, n=n: e.ds_op(f"ds_read_b64_tr_b16 a[{fbuf(n) + 2*h}:{fbuf(n) + 2*h + 1}], v{V_AWS + 4 * (wo_slot(4 * p + kq) >> 16) + (j & 3)} offset:{(wo_slot(4 * p + kq) & 0xffff) + (j >> 2) * 4096 + h * 2048}", f"G{n}"), after, before) for h in range(2)]
    pv_bar = gstart[8 + 6]
    def bar_first(e):
        e.ds_all()
        e.need_vm("W0_0")
        e("s_barrier")
    mains[pv_bar].pre = bar_first
    rd_pv_last = [f for f in rd]
    for f in rd:
        f.before = min(f.before, pv_bar - 3)
    for si, (p, kq) in enumerate(stages):
        prevbar = pv_bar if si == 0 else BAR[si - 1]
        for j in range(8):
            g0 = gidx(p, kq, j)[0]
            if j < 3:
                after = prevbar; before = S0[(p, kq)] - 1 if j == 0 else gidx(p, kq, j - 1)[0]
                if si == 0 and j == 0: before = NPV - 1
            elif j < 6:
                after = gidx(p, kq, j - 3)[0]; before = gidx(p, kq, j - 1)[0]
            else:
                after = gidx(p, kq, 2)[0] + 2; before = gidx(p, kq, 4)[0] + 3
            rd += wfrag(p, kq, j, after, before)
        def bar(e, si=si):
            if si in (0, 3, 7, 11, 15): stamp(e, o, f"T{si}")
            e.ds_all()
            if si + 1 < 16:
                pn, kn = stages[si + 1]
                e.need_vm(f"W{pn}_{kn}")
            e("s_barrier")
        mains[BAR[si]].pre = bar
    pre = dma_wo(o, 0, 0, -1, 3) + dma_wo(o, 0, 1, -1, 10) + dma_wo(o, 0, 2, -1, 18) + dma_wo(o, 0, 3, -1, 26)
    def st_(si): return stages[si]
    P = o.w_pace
    dm = pre + dma_wo(o, *st_(4), pv_bar, BAR[0], P)
    dm += dma_wo(o, *st_(10), BAR[0], BAR[1], P)
    dm += dma_wo(o, *st_(11), BAR[1], BAR[2], P)
    t = BAR[2]
    for si in (5, 6, 7, 8, 9):
        dm += dma_wo(o, *st_(si), t, BAR[si - 2] if si > 5 else BAR[3], P); t += 4 * P
    dm += dma_wo(o, *st_(12), t, BAR[8], P); t += 4 * P
    dm += dma_wo(o, *st_(13), max(t, BAR[3]), BAR[9], P); t += 4 * P
    dm += dma_wo(o, *st_(14), max(t, BAR[4]), BAR[10], P); t += 4 * P
    dm += dma_wo(o, *st_(15), max(t, BAR[5]), BAR[11], P)
    if o.t3_nodma: dm = pre
    RL = V_E; W = V_E + 6
    l0 = 0
    for qt in range(5): cv.append(F('v', txt(f"v_accvgpr_read_b32 v{RL + qt}, a{A_L + 4 * qt}"), l0 + 5 + 6))
    for qt in range(5): cv.append(F('e', txt(f"v_rcp_f32 v{RL + qt}, v{RL + qt}"), l0 + 5 + 6))
    k = 0
    for jj in range(4):
        ready = gstart[8 + 2 * jj + 1] + 5 + 4
        need = gidx(0, jj >> 1, (jj & 1) * 4)[0]
        if jj == 1: need = gidx(0, 0, 2)[0]
        for qt in range(5):
            w = W + 8 * (k & 1); k += 1
            dl = need + qt - 2 if need + qt - 2 > ready else need
            for tp in range(2):
                for i_ in range(4):
                    cv.append(F('v', txt(f"v_accvgpr_read_b32 v{w + 4*tp + i_}, a{oacc(2*jj + tp, qt) + i_}"), ready, need - 2))
            for r in range(8):
                cv.append(F('v', txt(f"v_mul_f32 v{w + r}, v{w + r}, v{RL + qt}"), ready, need - 2))
            d = bfr(jj, qt)
            for r in range(4):
                cv.append(F('v', txt(f"v_cvt_pk_bf16_f32 v{d + r}, v{w + 2*r}, v{w + 2*r + 1}"), ready, need - 2))
            cv.append(F('d', lambda e, d=d, jj=jj, qt=qt: e.ds_op(f"ds_write_b128 v{V_XA}, v[{d}:{d+3}] offset:{(jj * 5 + qt) * 1024}", "XW"), ready, need - 1))
    xbar = BAR[1]
    cv.append(F('v', txt(f"v_xor_b32 v{V_XA}, {40960}, v{V_XA}") if False else txt(f"v_add_u32 v{V_XA}, s55, v{V_XA}"), xbar, xbar + 2))
    for jj in range(4):
        for qt in range(5):
            d = bfr(4 + jj, qt)
            cv.append(F('d', lambda e, d=d, jj=jj, qt=qt: e.ds_op(f"ds_read_b128 v[{d}:{d+3}], v{V_XA} offset:{(jj * 5 + qt) * 1024}", f"X{4+jj}_{qt}"), xbar + 1, S0[(0, 2)] - 6 if jj < 2 else BAR[2] - 4))
    gd = []
    for qt in range(5):
        a_, b_ = S0[(0, 2)], S0[(1, 0)] - 2
        gd.append(F('v', txt(f"v_med3_f32 v224, v{RL + qt}, s66, v225"), a_, b_))
        gd.append(F('v', txt(f"v_cmp_neq_f32 s[62:63], v224, v{RL + qt}"), a_, b_))
        gd.append(F('s', txt("s_nop 1"), a_, b_))
        gd.append(F('s', txt(f"s_or_b64 s[{S_BAD}:{S_BAD+1}], s[{S_BAD}:{S_BAD+1}], s[62:63]"), a_, b_))
    W2 = V_E + 6
    k = 0
    for p in range(4):
        start = S0[(p + 1, 0)] + 6 if p < 3 else N
        end = S0[(p + 1, 3)] if p < 2 else 10**9
        if p == 2: end = N - 10
        for u in range(2):
            for qt in range(5):
                w = W2 + 12 * (k & 1); k += 1
                for tp in range(2):
                    for i_ in range(4):
                        st.append(F('v', txt(f"v_accvgpr_read_b32 v{w + 4*tp + i_}, a{a2(p, 2*u + tp, qt) + i_}"), start, end))
                for r in range(4):
                    st.append(F('v', txt(f"v_cvt_pk_bf16_f32 v{w + 8 + r}, v{w + 2*r}, v{w + 2*r + 1}"), start, end))
                off = (p * 10 + u * 5 + qt) * 1024
                st.append(F('s', txt(f"s_mov_b32 s{S_T0}, {off}"), start, end))
                if not o.t3_nostore: st.append(F('l', lambda e, w=w: e.vm_op(f"buffer_store_dwordx4 v[{w+8}:{w+11}], v{V_E + 5}, s[{SRD_P}:{SRD_P+3}], s{S_T0} offen {o.p_flag}", "st"), start, end))
    e(f"s_mov_b64 s[{S_BAD}:{S_BAD+1}], 0")
    e(f"s_mov_b32 s66, {hex(R_LO)}")
    e(f"v_mov_b32 v225, {hex(R_HI)}")
    for k_ in range(3):
        for j in range(4):
            e(f"v_add_u32 v{V_AWS + 4 * k_ + j}, {65536 * k_}, v{V_AW2 + j}")
    e(f"s_lshl_b32 s{S_T0}, s{S_HH}, 1")
    e(f"s_sub_u32 s{S_T0}, 1, s{S_T0}")
    e(f"s_mul_i32 s{S_T0}, s{S_T0}, 40960")
    e(f"s_mov_b32 s55, s{S_T0}")
    for f in cv:
        pass
    zip2(e, mains, [rd, dm, cv, gd, st], flush_nop=True)

def max_pass(e, o, name):
    M = 120; L16 = V_E + 5; T = 126
    e.label(f"L_maxpass_{name}")
    e("s_waitcnt vmcnt(0) lgkmcnt(0)")
    for qt in range(5): e(f"v_mov_b32 v{M + qt}, 0xff800000")
    e(f"s_mov_b32 s{S_CNT}, 0")
    e(f"s_lshl_b32 s{S_T1}, s{S_RH}, 12")
    e.label(f"L_maxloop_{name}")
    e("s_barrier")
    e(f"s_mov_b32 m0, s{S_KV}")
    e("s_nop 0")
    for t in range(4):
        e(f"buffer_load_dwordx4 v{V_OK + t}, s[{SRD_K}:{SRD_K+3}], s{S_T1} offen offset:{t * 1024} lds")
    e("s_waitcnt vmcnt(0)")
    e("s_barrier")
    for n in range(8):
        e(f"ds_read_b128 a[{fbuf(n)}:{fbuf(n)+3}], v{V_AK + (n & 3)} offset:{(n >> 2) * 4096}")
    e("s_waitcnt lgkmcnt(0)")
    for kt in range(2):
        for j in range(4):
            for qt in range(5):
                d = sreg(0, kt, qt)
                e(f"{MFMA} {vr(d, 4)}, {ar(fbuf(kt * 4 + j), 4)}, {vr(qf(j, qt), 4)}, {'0' if j == 0 else vr(d, 4)}")
    e("s_nop 7")
    e("s_nop 3")
    for qt in range(5):
        for kt in range(2):
            d = sreg(0, kt, qt)
            e(f"v_max3_f32 v{M + qt}, v{d}, v{d+1}, v{M + qt}")
            e(f"v_max3_f32 v{M + qt}, v{d+2}, v{d+3}, v{M + qt}")
    e(f"s_add_u32 s{S_T1}, s{S_T1}, 8192")
    e(f"s_add_u32 s{S_CNT}, s{S_CNT}, 1")
    e(f"s_cmp_lt_u32 s{S_CNT}, 16")
    e(f"s_cbranch_scc1 L_maxloop_{name}")
    e("s_barrier")
    e(f"s_lshl_b32 s{S_T1}, s{S_RH}, 12")
    e(f"s_mov_b32 m0, s{S_KV}")
    e("s_nop 0")
    for t in range(4):
        e(f"buffer_load_dwordx4 v{V_OK + t}, s[{SRD_K}:{SRD_K+3}], s{S_T1} offen offset:{t * 1024} lds")
    e(f"v_lshrrev_b32 v{T}, 2, v{L16}")
    e(f"v_xor_b32 v{T+1}, 64, v{T}")
    e(f"v_xor_b32 v{T+2}, 0x80, v{T}")
    for x in (1, 2):
        for qt in range(5): e(f"ds_bpermute_b32 v{T + 3 + qt}, v{T + x}, v{M + qt}")
        e("s_waitcnt lgkmcnt(0)")
        for qt in range(5): e(f"v_max_f32 v{M + qt}, v{M + qt}, v{T + 3 + qt}")
    for qt in range(5):
        for r in range(4): e(f"v_sub_f32 v{V_BIAS + 4 * qt + r}, 0, v{M + qt}")
    e("s_waitcnt vmcnt(0)")
    e("s_barrier")
    for n in range(3): run(e, kfrag(0, 0, n, n))
    e(f"s_branch L_maxdone_{name}")

def vote(e, o, name):
    T = V_E
    e(f"s_cmp_lg_u64 s[{S_BAD}:{S_BAD+1}], 0")
    e(f"s_cselect_b32 s3, 1, 0")
    e(f"v_mov_b32 v{T}, s3")
    e(f"s_lshl_b32 s7, s{S_W}, 2")
    e(f"v_mov_b32 v{T+1}, s7")
    e(f"ds_write_b32 v{T+1}, v{T}")
    e("s_waitcnt lgkmcnt(0)")
    e("s_barrier")
    e(f"v_mov_b32 v{T+1}, 0")
    e(f"ds_read_b128 v[{T+2}:{T+5}], v{T+1}")
    e("s_waitcnt lgkmcnt(0)")
    e(f"v_or_b32 v{T+2}, v{T+2}, v{T+3}")
    e(f"v_or3_b32 v{T+2}, v{T+2}, v{T+4}, v{T+5}")
    e("s_nop 0")
    e(f"v_readfirstlane_b32 s3, v{T+2}")
    e(f"s_cmp_eq_u32 s{S_MODE}, 0")
    e(f"s_cselect_b32 s3, s3, 0")
    e(f"s_cmp_eq_u32 s3, 0")
    e(f"s_cbranch_scc1 L_fine_{name}")
    e(f"s_mov_b32 s{S_MODE}, 1")
    e("s_waitcnt vmcnt(0)")
    e("s_barrier")
    e("v_mbcnt_lo_u32_b32 v0, -1, 0")
    e("v_mbcnt_hi_u32_b32 v0, -1, v0")
    e(f"s_lshl_b32 s3, s{S_W}, 6")
    e("v_add_u32 v0, s3, v0")
    e(f"s_branch L_restart_{name}")
    e.label(f"L_fine_{name}")

def gen_k1(name, o):
    NSTAMP[0] = 0
    e = Em()
    e.lines.append(kernel_head(name))
    prologue(e, o, name)
    qphase(e, o)
    stamp(e, o, "qdone")
    e(f"v_accvgpr_write_b32 a{A_SAVE}, v{V_OV0}")
    e(f"v_accvgpr_write_b32 a{A_SAVE+1}, v{V_OV0+1}")
    e(f"v_accvgpr_write_b32 a{A_SAVE+2}, v{V_T+1}")
    for n in range(3): run(e, kfrag(0, 0, n, n))
    qconvert(e)
    stamp(e, o, "qconv")
    e(f"""
    v_accvgpr_read_b32 v{V_OV}, a{A_SAVE}
    v_accvgpr_read_b32 v{V_OV+1}, a{A_SAVE+1}
    v_accvgpr_read_b32 v{V_E+5}, a{A_SAVE+2}
    s_mov_b32 s{S_KDST}, s{S_KV}             ; K(4) -> slot 0
    s_add_u32 s{S_VDST}, s{S_KV}, {32768 if o.apf else 0}          ; V(4) / V(2)
    s_lshl_b32 s7, s{S_RH}, 12
    s_add_u32 s{S_KOFF}, s7, {4 * 8192}
    s_add_u32 s{S_VOFF}, s7, {(4 if o.apf else 2) * 8192}
    v_lshlrev_b32 v{V_E+5}, 4, v{V_E+5}
    """)
    if o.t3: t3_setup(e, o)
    for r in range(20): e(f"v_mov_b32 v{V_BIAS + r}, 0")
    e(f"s_cmp_eq_u32 s{S_MODE}, 0")
    e(f"s_cbranch_scc0 L_maxpass_{name}")
    e.label(f"L_maxdone_{name}")
    if o.pf_late:
        e("s_waitcnt vmcnt(0)"); e("s_barrier"); e.vm = []
        for n in range(3): run(e, kfrag(0, 0, n, n))
    attn_iter(e, o, -1, True, False, False, 1, '', True)
    if o.apf:
        attn_iter(e, o, 0, True, True, False, 1, 'K', True)
        attn_iter(e, o, 1, True, True, True, 1, 'K', True, first_pv=True)
        attn_iter(e, o, 2, True, True, True, 1, 'KV', True)
    else:
        attn_iter(e, o, 0, True, True, False, 1, 'KV', True)
        attn_iter(e, o, 1, True, True, True, 1, 'KV', True, first_pv=True)
        attn_iter(e, o, 2, True, True, True, 1, 'KV', True)
    stamp(e, o, "iter0 done")
    e(f"s_mov_b32 s{S_CNT}, 0")
    ds0 = list(e.ds)
    e.label(f"L_loop_{name}")
    if o.t3 and o.w_touch >= 0:
        e(f"s_cmp_eq_u32 s{S_CNT}, {o.w_touch}")
        e(f"s_cbranch_scc0 L_nowt_{name}")
        e(f"buffer_load_dword v{V_E + 1}, v{V_E}, s[56:59], 0 offen")
        e.label(f"L_nowt_{name}")
    n0 = len(e.lines)
    attn_iter(e, o, 3, True, True, True, 1, 'KV', True)
    attn_iter(e, o, 4, True, True, True, 1, 'KV', True)
    import copy
    e2 = copy.deepcopy(e); n1 = len(e2.lines)
    attn_iter(e2, o, 5, True, True, True, 1, 'KV', True)
    attn_iter(e2, o, 6, True, True, True, 1, 'KV', True)
    assert e.lines[n0:n1] == e2.lines[n1:], "loop body is not in steady state"
    assert e.ds == ds0, (e.ds, ds0)
    e(f"s_add_u32 s{S_CNT}, s{S_CNT}, 1")
    e(f"s_cmp_lt_u32 s{S_CNT}, 6")
    e(f"s_cbranch_scc1 L_loop_{name}")
    e.ds_all()
    stamp(e, o, "loop done")
    attn_iter(e, o, 15, False, True, True, 0, '', False)
    if o.t3:
        t3_tail(e, o)
    else:
        attn_iter(e, o, 16, False, False, True, None, '', False, epi=epilogue_fill(o))
    stamp(e, o, "stores issued")
    vote(e, o, name)
    if o.stamps: e("s_waitcnt vmcnt(0)")
    stamp(e, o, "end")
    if o.stamps:
        e(f"""
    s_memrealtime s[96:97]
    s_waitcnt lgkmcnt(0)
    s_lshl_b32 s3, s2, 2
    s_add_u32 s3, s3, s{S_W}
    s_lshl_b32 s3, s3, 7
    s_add_u32 s3, s3, {200*1024*1024}
    v_mov_b32 v30, s3
    s_mov_b64 exec, 1
    """)
        for k in range(14):
            e(f"v_mov_b32 v0, s{70 + 2*k}")
            e(f"v_mov_b32 v1, s{71 + 2*k}")
            e(f"global_store_dwordx2 v30, v[0:1], s[68:69] offset:{8*k}")
            e("s_nop 1")
        e("s_waitcnt vmcnt(0)")
        if o.dbg:
            e(f"""
    s_or_b32 s3, s2, s{S_W}
    s_cmp_eq_u32 s3, 0
    s_cbranch_scc0 L_end_{name}
    s_load_dwordx2 s[98:99], s[0:1], 88
    s_waitcnt lgkmcnt(0)
    v_mov_b32 v30, 0
    """)
            for k in range(1, 11):
                e(f"s_sub_u32 s3, s{70 + 2*k}, s70")
                e(f"v_mov_b32 v0, s3")
                e(f"global_store_dword v30, v0, s[98:99] offset:{4*k}")
                e("s_nop 1")
            e("s_sub_u32 s3, s96, s94")
            e("v_mov_b32 v0, s3")
            e("global_store_dword v30, v0, s[98:99] offset:0")
            e("s_waitcnt vmcnt(0)")
    e.label(f"L_end_{name}")
    e("s_endpgm")
    dsq, vmq = list(e.ds), list(e.vm)
    max_pass(e, o, name)
    return e.text() + kernel_desc(name, 512, 256)
```

```python
class Em:
    def __init__(self):
        self.lines = []
        self.ds = []
        self.vm = []
        self.fresh = {}; self.relax = set()
        self.vm_waited = set()
    def __call__(self, s):
        for l in s.split("\n"):
            l = l.rstrip()
            if l.strip():
                self.lines.append(l if l.startswith(("L", ".", ";")) and (l.rstrip().endswith(":") or l.startswith((".", ";"))) else "    " + l.strip())
    def label(self, name):
        self.lines.append(name + ":")
    def comment(self, s):
        self.lines.append("    ; " + s)
    def ds_op(self, text, tag):
        self(text); self.ds.append(tag)
        self.fresh[tag] = self.fresh.get(tag, 0) + 1
    def check_emitted(self, tag):
        n = self.fresh.get(tag, 0)
        if tag[0] == 'F': want = 2 if ('_' in tag or int(tag[1:]) >= 8) else 1
        elif tag[0] == 'G': want = 2
        else: want = 1
        if tag in self.relax: want = n if n >= 1 else want
        assert n == want, ("fragment reads issued before its consumer", tag, n, want)
        self.fresh[tag] = 0
    def need_ds(self, tags):
        if isinstance(tags, str): tags = [tags]
        last = -1
        for i, t in enumerate(self.ds):
            if t in tags: last = i
        if last < 0: return False
        n = len(self.ds) - 1 - last
        assert n <= 15
        self(f"s_waitcnt lgkmcnt({n})")
        self.ds = self.ds[last + 1:]
        return True
    def ds_all(self):
        self("s_waitcnt lgkmcnt(0)"); self.ds = []
    def vm_op(self, text, tag):
        assert tag not in self.vm_waited, ("vector-memory op issued after the wait that covers it", tag)
        self(text); self.vm.append(tag)
    def need_vm(self, tags):
        if isinstance(tags, str): tags = [tags]
        self.vm_waited.update(tags)
        last = -1
        for i, t in enumerate(self.vm):
            if t in tags: last = i
        if last < 0: return False
        n = len(self.vm) - 1 - last
        assert n <= 63, n
        self(f"s_waitcnt vmcnt({n})")
        self.vm = self.vm[last + 1:]
        return True
    def vm_all(self):
        self("s_waitcnt vmcnt(0)"); self.vm = []
    def text(self):
        return "\n".join(self.lines) + "\n"

class Fill:
    def __init__(self, fn, cost=4, after=-1, before=10**9, name=""):
        self.fn = fn; self.cost = cost; self.after = after; self.before = before; self.name = name

class Main:
    def __init__(self, text, needs=None, pre=None):
        self.text = text; self.needs = needs or []; self.pre = pre

def zipper(em, mains, queues, gap=8, carry_max=16, flush_nop=False):
    qs = [list(q) for q in queues]
    budget = 0
    for idx, m in enumerate(mains):
        for q in qs:
            while q and q[0].before <= idx:
                f = q.pop(0); f.fn(em); budget -= f.cost
        if m.pre:
            n0 = len(em.lines); m.pre(em); budget -= 4 * (len(em.lines) - n0)
        if m.needs:
            if em.need_ds(m.needs): budget -= 4
        em(m.text)
        budget = min(budget + gap, gap + carry_max)
        progress = True
        while progress:
            progress = False
            for q in qs:
                if q and q[0].after <= idx and q[0].cost <= budget:
                    f = q.pop(0); f.fn(em); budget -= f.cost; progress = True
                    break
    if flush_nop and any(qs): em("s_nop 7")
    for q in qs:
        for f in q: f.fn(em)

class F:
    __slots__ = ("kind", "fn", "after", "before")
    def __init__(self, kind, fn, after=-1, before=10**9):
        self.kind = kind; self.fn = fn; self.after = after; self.before = before

def txt(s):
    return lambda e: e(s)

def zip2(em, mains, queues, flush_nop=False, urgency=3):
    qs = [list(q) for q in queues]
    N = len(mains)
    def head(q, idx):
        return q[0] if q and q[0].after <= idx else None
    for idx, m in enumerate(mains):
        for q in qs:
            last = -1
            for k, f in enumerate(q):
                if f.before <= idx: last = k
            for k in range(last + 1):
                f = q.pop(0)
                assert f.after < idx or f.before <= idx and f.after <= idx, ("forced before its earliest slot", idx, f.after, f.before)
                f.fn(em)
        if m.pre: m.pre(em)
        if m.needs:
            for t in m.needs: em.check_emitted(t)
            em.need_ds(m.needs)
        em(m.text)
        nsc = 0
        if idx + 1 < N and mains[idx + 1].needs and not mains[idx + 1].pre:
            if em.need_ds(mains[idx + 1].needs): nsc += 1
        def take_scalars(limit):
            nonlocal nsc
            prog = True
            while prog and nsc < limit:
                prog = False
                for q in qs:
                    h = head(q, idx)
                    if h and h.kind == 's':
                        q.pop(0).fn(em); nsc += 1; prog = True
                        break
        def find(kinds, urgent_only=False):
            for q in qs:
                h = head(q, idx)
                if h and h.kind in kinds and (not urgent_only or h.before <= idx + urgency):
                    return q
            return None
        take_scalars(1)
        qd_urg = find('d', True); ql_urg = find('l', True)
        qe = find('e'); qd = find('d'); qv = find('v'); ql = find('l')
        choice = None
        if qd_urg: choice = 'd'
        elif ql_urg and nsc <= 1: choice = 'l'
        elif qd and qv: choice = 'd'
        elif not qe:
            if qd: choice = 'd'
            elif ql and nsc <= 1: choice = 'l'
            elif qv: choice = 'v'
        elif ql and nsc <= 1: choice = 'l'
        elif nsc <= 1: choice = 'e'
        elif qd: choice = 'd'
        elif qv: choice = 'v'
        if choice == 'e':
            qe.pop(0).fn(em)
        elif choice == 'l':
            ql.pop(0).fn(em)
        elif choice == 'd':
            q = qd_urg or qd
            if nsc == 0: take_scalars(1)
            q.pop(0).fn(em)
            if nsc <= 1:
                qv = find('v')
                if qv: qv.pop(0).fn(em)
        elif choice == 'v':
            take_scalars(2)
            qv = find('v') if False else qv
            if qv and qv[0].kind == 'v' and qv[0].after <= idx: qv.pop(0).fn(em)
        else:
            take_scalars(3)
    if flush_nop and any(qs): em("s_nop 7")
    for q in qs:
        for f in q: f.fn(em)
```

```python
from common import *
from sched import *

KRING = 0
VRING = 98304
WQ0 = 32768; WQ_HEAD = 8224; WQ_SLOT = 2 * WQ_HEAD
X0 = 82176; X_SLOT = 20480
LDS_BYTES = 163840
VTOG = 0x38000
S_W, S_HH, S_RH = 4, 5, 6
SRD_X, SRD_WQ, SRD_K, SRD_V, SRD_O = 8, 12, 16, 20, 24
S_T0, S_T1 = 32, 33
S_WQL, S_XL, S_XG, S_WQG = 35, 36, 37, 38
S_KDST, S_VDST, S_KOFF, S_VOFF, S_CNT = 40, 41, 42, 43, 44
S_IDX, S_HG, S_B, S_BR, S_H = 45, 46, 47, 48, 49
S_SC = 50
S_KV = 39; S_WQK = 51; S_XK = 34; S_PT = 7
V_Q = 0
V_XB = [0, 20]
V_AW = 40
V_AX = 44
V_OWQ = 46
V_OX = 50
V_T = 56
V_ACC = 80
V_S = [80, 120]
V_P = [160, 180]
V_OV = 200
V_E = 202
V_OV0 = 70
V_AK = 240; V_AV = 244; V_OK = 252
A_O = 0; A_L = 160; A_ONE = 180; A_F = 184
A_SAVE = 216
SRD_WO, SRD_P = 28, 24
S_WA, S_WB, S_WL = 52, 53, 54
POFF = 32 * 1024 * 1024
WRING = 98304
V_OW = 232
V_AW2 = 236
V_XA = 231
A_ACC2 = [0, 80]
V_BIAS = 208
S_MODE = 92
S_BAD = 64
R_LO, R_HI = 0x27800000, 0x4f800000

def acc(dt, qt): return V_ACC + (dt * 5 + qt) * 4
def qf(j, qt): return V_Q + (j * 5 + qt) * 4
def sreg(par, kt, qt): return V_S[par] + (kt * 5 + qt) * 4
def preg(par, qt): return V_P[par] + qt * 4
def oacc(dt, qt): return A_O + (dt * 5 + qt) * 4
def fbuf(n): return A_F + 4 * (n % 8)

class Opt:
    kv_flag = "nt"
    q_flag = ""
    o_flag = ""
    stamps = False
    pre_all = True
    pf_start = 0
    pf_per = 3
    pf_late = False
    pf_steps = ""
    q_nodma = False
    q_nowait = False
    q_nobar = False
    q_nods = False
    rotg = 8
    rot = True
    pace = 4
    apf = True
    stamp_list = ""
    stamp_set = "q"
    fuse = False
    spin_sleep = 1
    nosync = False
    r_depth = 12
    r_loop = False
    r_flag = "sc1"
    cnt_ws = False
    t3 = True
    p_flag = ""
    w_flag = ""
    c_touch = 0
    w_pace = 2
    kv_pace = 0
    t3_nostore = False
    t3_nodma = False
    w_touch = -1
    dbg = False

NSTAMP = [0]
def stamp(e, o, tag):
    if not o.stamps: return
    if o.stamp_list:
        if tag not in o.stamp_list.split(","): return
        k = NSTAMP[0]; NSTAMP[0] += 1
        assert k < 11
        e.comment("stamp " + tag)
        e(f"s_memtime s[{70 + 2*k}:{71 + 2*k}]")
        return
    early = tag in ("issued", "bar0", "B3", "B9", "qconv")
    late = tag.startswith("T")
    if (o.stamp_set == "tail" and early) or (o.stamp_set != "tail" and late): return
    if o.fuse and o.stamp_set != "tail" and tag == "stores_issued": pass
    k = NSTAMP[0]; NSTAMP[0] += 1
    assert k < 12
    e.comment("stamp " + tag)
    e(f"s_memtime s[{70 + 2*k}:{71 + 2*k}]")

def prologue(e, o, name):
    e(f"""
    s_cmp_ge_u32 s2, 256
    s_cbranch_scc1 L_end_{name}
    s_mov_b32 s{S_MODE}, 0
L_restart_{name}:
    s_load_dwordx8 s[52:59], s[0:1], 0       ; A_x A_k A_v A_wq
    s_load_dwordx8 s[60:67], s[0:1], 40      ; B_x B_k B_v B_wq
    s_load_dwordx2 s[68:69], s[0:1], 96      ; ws
    s_load_dwordx2 s[98:99], s[0:1], 32      ; A_wo
    s_load_dwordx2 s[100:101], s[0:1], 72    ; B_wo
    v_lshrrev_b32 v{V_T}, 6, v0
    v_and_b32 v{V_T+1}, 63, v0               ; lane
    v_readfirstlane_b32 s{S_W}, v{V_T}
    s_and_b32 s3, s2, 7
    s_lshr_b32 s{S_IDX}, s2, 3
    s_lshr_b32 s{S_BR}, s3, 2
    s_and_b32 s{S_HG}, s3, 3
    s_lshr_b32 s{S_B}, s{S_IDX}, 2
    s_and_b32 s7, s{S_IDX}, 3
    s_lshr_b32 s{S_HH}, s{S_W}, 1
    s_and_b32 s{S_RH}, s{S_W}, 1
    s_lshl_b32 s{S_H}, s{S_HG}, 3
    s_lshl_b32 s7, s7, 1
    s_add_u32 s{S_H}, s{S_H}, s7
    s_add_u32 s{S_H}, s{S_H}, s{S_HH}
    """)
    if o.stamps:
        e("s_memrealtime s[94:95]")
    stamp(e, o, "start")
    L = V_T + 1
    c, g, rp, cp, t0, t1 = V_T + 2, V_T + 3, V_T + 4, V_T + 5, V_T + 6, V_T + 7
    e(f"""
    v_and_b32 v{c}, 15, v{L}
    v_lshrrev_b32 v{g}, 4, v{L}
    v_bfe_u32 v{rp}, v{L}, 2, 2
    v_and_b32 v{cp}, 3, v{L}
    """)
    e(f"""
    v_lshlrev_b32 v{t0}, 2, v{g}
    v_xor_b32 v{t0}, v{t0}, v{c}
    v_lshlrev_b32 v{t0}, 4, v{t0}
    v_lshl_add_u32 v{V_OWQ}, v{g}, 13, v{t0}
    """)
    for u in range(1, 4):
        e(f"v_add_u32 v{V_OWQ+u}, {u * 32768 - wq_imm(u)}, v{V_OWQ}")
    e(f"""
    v_and_b32 v{t0}, 7, v{L}
    v_xor_b32 v{t0}, v{t0}, v{g}
    v_lshlrev_b32 v{t0}, 4, v{t0}
    v_lshrrev_b32 v{t1}, 3, v{L}
    v_lshl_add_u32 v{t0}, v{t1}, 10, v{t0}
    s_and_b32 s3, s{S_W}, 1
    s_lshl_b32 s3, s3, 6
    v_xor_b32 v{t0}, s3, v{t0}
    v_xor_b32 v{t1}, 64, v{t0}
    """)
    for u in range(5):
        src = t0 if u % 2 == 0 else t1
        e(f"v_add_u32 v{V_OX+u}, {u * 8192 - (u & 3) * 1024}, v{src}")
    e(f"""
    v_xor_b32 v{t0}, v{c}, v{g}
    v_lshlrev_b32 v{t0}, 4, v{t0}
    v_lshl_add_u32 v{V_OK}, v{g}, 8, v{t0}
    v_xor_b32 v{V_OK+1}, 64, v{V_OK}
    v_xor_b32 v{V_OK+2}, 0x80, v{V_OK}
    v_xor_b32 v{V_OK+3}, 0xc0, v{V_OK}
    """)
    e(f"""
    v_lshlrev_b32 v{t0}, 1, v{g}
    v_xor_b32 v{t0}, v{t0}, v{c}
    v_lshlrev_b32 v{t0}, 4, v{t0}
    v_lshl_add_u32 v{V_OV0}, v{g}, 8, v{t0}
    v_xor_b32 v{V_OV0+1}, 0x80, v{V_OV0}
    """)
    e(f"""
    s_mul_i32 s3, s{S_HH}, {WQ_HEAD}
    s_add_u32 s3, s3, {WQ0}
    v_mul_u32_u24 v{t0}, 2056, v{g}
    v_lshl_add_u32 v{t0}, v{rp}, 8, v{t0}
    v_lshl_add_u32 v{t0}, v{cp}, 4, v{t0}
    v_add_u32 v{t0}, s3, v{t0}
    s_mul_i32 s7, s{S_RH}, {4 * 1024 + 16}
    s_add_u32 s{S_WQL}, s3, s7
    s_lshl_b32 s{S_WQG}, s{S_RH}, 17
    """)
    for j in range(4):
        e(f"""
    v_xor_b32 v{t1}, {j}, v{rp}
    v_lshl_add_u32 v{V_AW+j}, v{t1}, 6, v{t0}""")
    e(f"""
    s_mul_i32 s3, s{S_RH}, {80*128}
    s_add_u32 s3, s3, {X0}
    v_lshrrev_b32 v{t0}, 1, v{c}
    v_xor_b32 v{t0}, v{t0}, v{g}
    v_lshlrev_b32 v{t0}, 4, v{t0}
    v_lshl_add_u32 v{t0}, v{c}, 7, v{t0}
    v_add_u32 v{V_AX}, s3, v{t0}
    v_xor_b32 v{V_AX+1}, 64, v{V_AX}
    s_mul_i32 s{S_XL}, s{S_W}, 5120
    s_add_u32 s{S_XL}, s{S_XL}, {X0}
    s_mul_i32 s{S_XG}, s{S_W}, 40960
    """)
    e(f"""
    s_lshl_b32 s3, s{S_HH}, 13
    s_lshl_b32 s7, s{S_RH}, 12
    s_add_u32 s{S_KV}, s3, s7
    v_xor_b32 v{t0}, v{g}, v{c}
    v_lshlrev_b32 v{t0}, 4, v{t0}
    v_lshl_add_u32 v{t0}, v{c}, 8, v{t0}
    v_add_u32 v{V_AK}, s3, v{t0}
    v_xor_b32 v{V_AK+1}, 64, v{V_AK}
    v_xor_b32 v{V_AK+2}, 0x80, v{V_AK}
    v_xor_b32 v{V_AK+3}, 0xc0, v{V_AK}
    """)
    e(f"""
    v_lshlrev_b32 v{V_APA}, 4, v{L}
    v_add_u32 v{V_APA}, s{S_KV}, v{V_APA}
    v_add_u32 v{V_APA+1}, {VRING}, v{V_APA}
    """)
    e(f"""
    s_add_u32 s3, s3, 0x20000
    v_lshl_add_u32 v{t0}, v{g}, 2, v{rp}       ; 4g + r'
    v_and_b32 v{t1}, 7, v{t0}                  ; rho7
    v_lshlrev_b32 v{t0}, 8, v{t0}
    v_lshl_add_u32 v{t0}, v{t1}, 5, v{t0}
    v_lshl_add_u32 v{t0}, v{cp}, 3, v{t0}
    v_add_u32 v{V_AV}, s3, v{t0}
    """)
    for dt in range(1, 8):
        e(f"v_xor_b32 v{V_AV+dt}, {32*dt}, v{V_AV}")
    e(f"""
    s_waitcnt lgkmcnt(0)
    s_cmp_eq_u32 s{S_BR}, 0
    s_cselect_b32 s52, s52, s60
    s_cselect_b32 s53, s53, s61
    s_cselect_b32 s54, s54, s62
    s_cselect_b32 s55, s55, s63
    s_cselect_b32 s56, s56, s64
    s_cselect_b32 s57, s57, s65
    s_cselect_b32 s58, s58, s66
    s_cselect_b32 s59, s59, s67
    s_lshl_b32 s3, s{S_H}, 8
    s_add_u32 s{SRD_WQ}, s58, s3
    s_addc_u32 s{SRD_WQ+1}, s59, 0
    s_sub_u32 s{SRD_WQ+2}, 4194304, s3
    s_mov_b32 s{SRD_WQ+3}, 0x20000
    s_mul_i32 s3, s{S_B}, 163840
    s_add_u32 s{SRD_X}, s52, s3
    s_addc_u32 s{SRD_X+1}, s53, 0
    s_mov_b32 s{SRD_X+2}, 163840
    s_mov_b32 s{SRD_X+3}, 0x20000
    """)
    if o.rot and o.rotg > 1:
        G = o.rotg
        e(f"""
    s_and_b32 s3, s{S_IDX}, 3                ; p
    s_lshl_b32 s3, s3, {1 if G == 8 else 0}
    s_add_u32 s3, s3, s{S_B}
    s_and_b32 s3, s3, {G - 1}
    s_mul_i32 s3, s3, {8 // G}
    s_lshl_b32 s{S_WQK}, s3, 7
    s_lshl_b32 s3, s3, 19                    ; 64 rows * 8192
    s_add_u32 s{S_WQG}, s{S_WQG}, s3
    """)
    else:
        e(f"s_mov_b32 s{S_WQK}, 0")

def prologue2(e, o):
    e(f"""
    s_lshl_b32 s3, s{S_B}, 5
    s_add_u32 s3, s3, s{S_H}
    s_lshl_b32 s3, s3, 17
    s_add_u32 s{SRD_K}, s54, s3
    s_addc_u32 s{SRD_K+1}, s55, 0
    s_mov_b32 s{SRD_K+2}, 131072
    s_mov_b32 s{SRD_K+3}, 0x20000
    s_add_u32 s{SRD_V}, s56, s3
    s_addc_u32 s{SRD_V+1}, s57, 0
    s_mov_b32 s{SRD_V+2}, 131072
    s_mov_b32 s{SRD_V+3}, 0x20000
    s_lshl_b32 s3, s{S_BR}, 3
    s_add_u32 s3, s3, s{S_B}
    s_lshl_b32 s3, s3, 1
    s_add_u32 s3, s3, s{S_RH}
    s_lshl_b32 s3, s3, 5
    s_add_u32 s3, s3, s{S_H}
    s_mul_i32 s3, s3, 20480
    s_add_u32 s{SRD_O}, s68, s3
    s_addc_u32 s{SRD_O+1}, s69, 0
    s_mov_b32 s{SRD_O+2}, 20480
    s_mov_b32 s{SRD_O+3}, 0x20000
    s_mov_b32 s{S_SC}, {f32hex(C_SCALE)}
    """)

def wq_imm(u): return u * 1024 + 8 * (u >> 1)

def dma_wq(o, m, after=-1, before=10**9, pace=0):
    fl = [F('s', txt(f"s_add_u32 m0, s{S_WQL}, {(m % 3) * WQ_SLOT}"), after, before)]
    for u in range(4):
        fl.append(F('l', lambda e, u=u: e.vm_op(f"buffer_load_dwordx4 v{V_OWQ+u}, s[{SRD_WQ}:{SRD_WQ+3}], s{S_WQG} offen offset:{wq_imm(u)} {o.q_flag} lds", f"wq{m}"), after + pace * u, before))
    fl.append(F('s', txt(f"s_add_u32 s{S_WQG}, s{S_WQG}, {32 * 8192}"), after, before))
    fl.append(F('s', txt(f"s_and_b32 s{S_WQG}, s{S_WQG}, 0x3fffff"), after, before))
    return fl

def dma_x(o, M, after=-1, before=10**9, pace=0):
    fl = [F('s', txt(f"s_add_u32 m0, s{S_XL}, {(M % 2) * X_SLOT}"), after, before),
          F('s', txt(f"s_add_u32 s{S_T1}, s{S_XG}, s{S_WQK}"), after, before)]
    for u in range(5):
        if u == 4: fl.append(F('s', txt(f"s_add_u32 m0, s{S_XL}, {(M % 2) * X_SLOT + 4096}"), after, before))
        if u == 4: fl.append(F('s', txt("s_nop 0"), after, before))
        fl.append(F('l', lambda e, u=u: e.vm_op(f"buffer_load_dwordx4 v{V_OX+u}, s[{SRD_X}:{SRD_X+3}], s{S_T1} offen offset:{(u & 3) * 1024} {o.q_flag} lds", f"x{M}"), after + pace * u, before))
    fl.append(F('s', txt(f"s_add_u32 s{S_WQK}, s{S_WQK}, 128"), after, before))
    fl.append(F('s', txt(f"s_and_b32 s{S_WQK}, s{S_WQK}, 0x3ff"), after, before))
    return fl

def dma_pref(o, which, s, after=-1, before=10**9, pace=0):
    if which == 'K':
        base = KRING + 16384 * s; srd = SRD_K; vo = lambda t: V_OK + t
    else:
        base = 0x20000 + 16384 * s; srd = SRD_V; vo = lambda t: V_OV0 + (t & 1)
    fl = [F('s', txt(f"s_add_u32 m0, s{S_KV}, {base}"), after, before),
          F('s', txt(f"s_lshl_b32 s34, s{S_RH}, 12"), after, before),
          F('s', txt(f"s_add_u32 s34, s34, {s * 8192}"), after, before)]
    for t in range(4):
        fl.append(F('l', lambda e, t=t: e.vm_op(f"buffer_load_dwordx4 v{vo(t)}, s[{srd}:{srd+3}], s34 offen offset:{t * 1024} {o.kv_flag} lds", f"{which}{s}"), after + pace * t, before))
    return fl

APF = {('K', 2): 0, ('K', 3): 16, ('V', 2): 32, ('V', 3): 48}
def dma_apf(o, which, s, after=-1, before=10**9, pace=0):
    srd = SRD_K if which == 'K' else SRD_V
    vo = (lambda t: V_OK + t) if which == 'K' else (lambda t: V_OV0 + (t & 1))
    fl = [F('s', txt(f"s_lshl_b32 s34, s{S_RH}, 12"), after, before),
          F('s', txt(f"s_add_u32 s34, s34, {s * 8192}"), after, before)]
    for t in range(4):
        a = APF[(which, s)] + 4 * t
        fl.append(F('l', lambda e, t=t, a=a: e.vm_op(f"buffer_load_dwordx4 a[{a}:{a+3}], v{vo(t)}, s[{srd}:{srd+3}], s34 offen offset:{t * 1024} {o.kv_flag}", f"{which}{s}"), after + pace * t, before))
    return fl
V_APA = 72
def apf_copy(after):
    fl = []
    for (which, s), a0 in APF.items():
        for t in range(4):
            a = a0 + 4 * t
            if which == 'K': txt_ = f"ds_write_b128 v{V_APA}, a[{a}:{a+3}] offset:{KRING + 16384 * s + 1024 * t}"
            else: txt_ = f"ds_write_b128 v{V_APA+1}, a[{a}:{a+3}] offset:{16384 * (s - 2) + 1024 * t}"
            fl.append(F('d', lambda e, txt_=txt_: e.ds_op(txt_, "APF"), after))
    return fl

def zero_acc(e):
    e(f"v_mov_b32 v{V_T+8}, 0x3f803f80")
    for r in range(4):
        e(f"v_accvgpr_write_b32 a{A_ONE + r}, v{V_T+8}")

def code_touch(e, va, vd, first):
    e("s_getpc_b64 s[66:67]")
    e.label(f"L_pc{first}_{CODE_NAME[0]}")
    e(f"s_sub_u32 s66, s66, L_pc{first}_{CODE_NAME[0]}-{CODE_NAME[0]}")
    e("s_subb_u32 s67, s67, 0")
    e(f"s_lshl_b32 s3, s{S_IDX}, 11")
    e(f"v_mbcnt_lo_u32_b32 v{va}, -1, 0")
    e(f"v_mbcnt_hi_u32_b32 v{va}, -1, v{va}")
    e(f"v_and_b32 v{va}, 15, v{va}")
    e(f"v_lshlrev_b32 v{va}, 7, v{va}")
    e(f"v_add_u32 v{va}, s3, v{va}")
    e(f"v_min_u32 v{va}, CODE_END-{CODE_NAME[0]}-4, v{va}")
    e.vm_op(f"global_load_dword v{vd}, v{va}, s[66:67]", "ctouch")

CODE_NAME = [""]
def run(e, fl):
    for f in fl: f.fn(e)

def qphase(e, o):
    run(e, dma_wq(o, 0) + dma_x(o, 0) + dma_wq(o, 1))
    if o.pre_all: run(e, dma_wq(o, 2) + dma_x(o, 1))
    prologue2(e, o)
    if o.c_touch: code_touch(e, V_T + 9, V_T + 10, 0)
    stamp(e, o, "issued")
    zero_acc(e)
    idx = lambda m, dt, qt: 40 * m + 5 * dt + qt
    def wfrag(m, dt, after=-1, before=10**9):
        j, tp = dt >> 1, dt & 1
        return [F('d', lambda e, n=n: e.ds_op(f"ds_read_b64_tr_b16 a[{fbuf(dt) + 2 * n}:{fbuf(dt) + 2 * n + 1}], v{V_AW + j} offset:{(m % 3) * WQ_SLOT + n * 1024 + 8 * tp}", f"F{m}_{dt}"), after, before) for n in range(2)]
    def xfrag(m, qt, after=-1, before=10**9):
        M, h = m >> 1, m & 1
        b = V_XB[m & 1] + 4 * qt
        return [F('d', lambda e: e.ds_op(f"ds_read_b128 v[{b}:{b+3}], v{V_AX + h} offset:{(M % 2) * X_SLOT + qt * 2048}", f"B{m}_{qt}"), after, before)]
    def barrier(m):
        def fn(e):
            e.ds_all()
            tags = [f"wq{m+1}"]
            if (m + 1) % 2 == 0: tags.append(f"x{(m+1)//2}")
            if m == 15:
                e.vm_all()
            elif not o.q_nowait or m < 0:
                e.need_vm(tags)
            if not o.q_nobar or m in (-1, 15): e("s_barrier")
            if m in (3, 9): stamp(e, o, f"B{m}")
        return fn
    barrier(-1)(e)
    stamp(e, o, "bar0")
    def nextfrags(m, after, before):
        fl = wfrag(m, 0, after, before)
        for q in range(5): fl += xfrag(m, q, after, before)
        return fl + wfrag(m, 1, after, before) + wfrag(m, 2, after, before)
    run(e, nextfrags(0, -1, 0))
    mains = []; rd = []; dm = []
    pref = [('K', 0), ('K', 1), ('V', 0), ('V', 1)]
    if o.apf: pref += [('K', 2), ('K', 3), ('V', 2), ('V', 3)]
    tnext = [0]
    for m in range(16):
        for dt in range(8):
            for qt in range(5):
                cin = "0" if m == 0 else vr(acc(dt, qt), 4)
                needs = []
                if qt == 0: needs.append(f"F{m}_{dt}")
                if dt == 0: needs.append(f"B{m}_{qt}")
                pre = barrier(m) if (dt == 5 and qt == 0) else None
                mains.append(Main(f"{MFMA} {vr(acc(dt, qt), 4)}, {ar(fbuf(dt), 4)}, {vr(V_XB[m & 1] + 4 * qt, 4)}, {cin}", needs, pre))
        for dt in (3, 4, 5):
            rd += wfrag(m, dt, idx(m, dt - 3, 0), idx(m, dt - 1, 0))
        for dt in (6, 7):
            rd += wfrag(m, dt, idx(m, 2, 2), idx(m, 4, 3))
        if m < 15:
            rd += nextfrags(m + 1, idx(m, 5, 0), idx(m, 7, 4))
        a = idx(m, 5, 0); b = idx(m + 1, 5, 0) if m < 15 else 10**9
        if m == 0 and not o.pre_all:
            dm += dma_wq(o, 2, -1, idx(0, 4, 0)) + dma_x(o, 1, -1, idx(0, 4, 4))
        t = max(a, tnext[0])
        if m + 3 < 16 and not o.q_nodma:
            dm += dma_wq(o, m + 3, t, b, o.pace); t += 4 * o.pace
        if m % 2 == 1 and (m - 1) // 2 + 2 < 8 and not o.q_nodma:
            dm += dma_x(o, (m - 1) // 2 + 2, t, idx(m + 2, 4, 0) if m < 14 else 10**9, o.pace); t += 5 * o.pace
        for n_, (w, s) in enumerate(pref):
            when = int(o.pf_steps.split(",")[n_]) if o.pf_steps else min(o.pf_start + n_ * o.pf_per, 15 if o.pf_late else 13)
            if m == when:
                fn_ = dma_pref if s < 2 else dma_apf
                dm += fn_(o, w, s, t, idx(m + 2, 5, 0) if m < 14 else 10**9, o.pace); t += 4 * o.pace
        tnext[0] = t
        if m == 15 and o.apf:
            rd += apf_copy(a)
        if m == 15 and not o.apf:
            for s in (2, 3):
                dm += [F('s', txt(f"s_add_u32 m0, s{S_KV}, {KRING + 16384 * s}"), a),
                       F('s', txt(f"s_lshl_b32 s34, s{S_RH}, 12"), a),
                       F('s', txt(f"s_add_u32 s34, s34, {s * 8192}"), a)]
                for t in range(4):
                    dm.append(F('l', lambda e, t=t, s=s: e.vm_op(f"buffer_load_dwordx4 v{V_OK + t}, s[{SRD_K}:{SRD_K+3}], s34 offen offset:{t * 1024} {o.kv_flag} lds", f"K{s}"), a))
    if o.q_nods: rd = []
    zip2(e, mains, [rd, dm])

def qconvert(e):
    e("s_nop 7")
    for r in range(V_ACC, V_ACC + 160, 2):
        e(f"v_pk_mul_f32 v[{r}:{r+1}], v[{r}:{r+1}], s[{S_SC}:{S_SC+1}] op_sel_hi:[1,0]")
    for j in range(4):
        for qt in range(5):
            for tp in range(2):
                a0 = acc(2 * j + tp, qt); d = qf(j, qt) + 2 * tp
                e(f"v_cvt_pk_bf16_f32 v{d}, v{a0}, v{a0+1}")
                e(f"v_cvt_pk_bf16_f32 v{d+1}, v{a0+2}, v{a0+3}")

def dma_kv(o, which, after0, i):
    fl = []
    P = o.kv_pace
    after = after0
    if 'K' in which:
        fl.append(F('s', txt(f"s_mov_b32 m0, s{S_KDST}"), after))
        fl.append(F('s', txt(f"s_add_u32 s{S_KDST}, s{S_KDST}, 16384"), after))
        for t in range(4):
            fl.append(F('l', lambda e, t=t: e.vm_op(f"buffer_load_dwordx4 v{V_OK + t}, s[{SRD_K}:{SRD_K+3}], s{S_KOFF} offen offset:{t * 1024} {o.kv_flag} lds", f"K{i+4}"), after))
            after += P
        fl.append(F('s', txt(f"s_and_b32 s{S_KDST}, s{S_KDST}, 0xffff"), after0))
        fl.append(F('s', txt(f"s_add_u32 s{S_KOFF}, s{S_KOFF}, 8192"), after0))
    if 'V' in which:
        fl.append(F('s', txt(f"s_add_u32 m0, s{S_VDST}, {VRING}"), after0))
        fl.append(F('s', txt(f"s_add_u32 s{S_VDST}, s{S_VDST}, 16384"), after0))
        for t in range(4):
            fl.append(F('l', lambda e, t=t: e.vm_op(f"buffer_load_dwordx4 v{V_OV + (t & 1)}, s[{SRD_V}:{SRD_V+3}], s{S_VOFF} offen offset:{t * 1024} {o.kv_flag} lds", f"V{i+2}"), after))
            after += P
        fl.append(F('s', txt(f"s_and_b32 s{S_VDST}, s{S_VDST}, 0xffff"), after0))
        fl.append(F('s', txt(f"s_add_u32 s{S_VOFF}, s{S_VOFF}, 8192"), after0))
    return fl

def kfrag(par_slot, kt, j, n, after=-1, before=10**9):
    return [F('d', lambda e: e.ds_op(f"ds_read_b128 a[{fbuf(n)}:{fbuf(n)+3}], v{V_AK + j} offset:{kt * 4096 + 16384 * par_slot}", f"F{n}"), after, before)]
def vfrag(par_slot, dt, n, after=-1, before=10**9):
    return [F('d', lambda e, h=h: e.ds_op(f"ds_read_b64_tr_b16 a[{fbuf(n) + 2*h}:{fbuf(n) + 2*h + 1}], v{V_AV + dt} offset:{h * 4096 + 16384 * par_slot}", f"F{n}"), after, before) for h in range(2)]

def softmax_fill(par):
    seq = []
    for qt in range(5):
        for kt in range(2):
            s = sreg(par, kt, qt); p = preg(par, qt) + 2 * kt
            seq += [("e", s), ("e", s + 1), ("c", p, s, s + 1), ("e", s + 2), ("e", s + 3), ("c", p + 1, s + 2, s + 3)]
    out = []; pend = None
    for x in seq:
        if x[0] == "c": pend = x
        else:
            out.append(x)
            if pend is not None: out.append(pend); pend = None
    if pend is not None: out.append(("n",)); out.append(pend)
    fl = []
    for x in out:
        if x[0] == "e": fl.append(F('e', txt(f"v_exp_f32 v{x[1]}, v{x[1]}")))
        elif x[0] == "c": fl.append(F('v', txt(f"v_cvt_pk_bf16_f32 v{x[1]}, v{x[2]}, v{x[3]}")))
        else: fl.append(F('s', txt("s_nop 0")))
    return fl

def attn_iter(e, o, i, qk, sm, pv, vwait, dma, pre_next, epi=None, first_pv=False):
    par = i & 1; ks = (i + 1) & 1
    mains = []; rd = []; dm = []
    gstart = {}
    if qk:
        for kt in range(2):
            for j in range(4):
                n = kt * 4 + j
                gstart[n] = len(mains)
                for qt in range(5):
                    d = sreg(par ^ 1, kt, qt)
                    cin = vr(V_BIAS + 4 * qt, 4) if j == 0 else vr(d, 4)
                    mains.append(Main(f"{MFMA} {vr(d, 4)}, {ar(fbuf(n), 4)}, {vr(qf(j, qt), 4)}, {cin}", [f"F{n}"] if qt == 0 else []))
    if pv:
        gstart['l'] = len(mains)
        for qt in range(5):
            mains.append(Main(f"{MFMA} {ar(A_L + 4 * qt, 4)}, {ar(A_ONE, 4)}, {vr(preg(par ^ 1, qt), 4)}, {'0' if first_pv else ar(A_L + 4 * qt, 4)}"))
        for dt in range(8):
            n = 8 + dt
            gstart[n] = len(mains)
            for qt in range(5):
                mains.append(Main(f"{MFMA} {ar(oacc(dt, qt), 4)}, {ar(fbuf(n), 4)}, {vr(preg(par ^ 1, qt), 4)}, {'0' if first_pv else ar(oacc(dt, qt), 4)}", [f"F{n}"] if qt == 0 else []))
    order = [n for n in range(16) if n in gstart]
    ln = len(order)
    for k, n in enumerate(order):
        if qk and n < 3: continue
        after = gstart[order[k - 4]] if k >= 4 else -1
        if k >= ln - 3 and ln >= 6: after = gstart[order[ln - 6]]
        before = gstart[order[k - 1]] if k >= 1 else 0
        if k >= ln - 3 and ln >= 4: before = min(before, gstart[order[ln - 3]])
        rd += kfrag(ks, n >> 2, n & 3, n, after, before) if n < 8 else vfrag(ks, n - 8, n, after, before)
    has_bar = pre_next or vwait is not None
    if has_bar:
        bpos = gstart[order[-2]]
        def bar(e):
            e.ds_all()
            if vwait == 0: e.vm_all()
            elif vwait is not None: e.need_vm([f"K{i+2}", f"V{i}"])
            e("s_barrier")
        mains[bpos].pre = bar
        if par == 0 and qk:
            for j in range(4): rd.append(F('v', txt(f"v_xor_b32 v{V_AK + j}, 0x8000, v{V_AK + j}"), bpos))
        if pre_next:
            for n in range(3): rd += kfrag(ks ^ 1, 0, n, n, bpos, len(mains) - 1)
        if par == 0 and pv:
            for dt in range(8): rd.append(F('v', txt(f"v_xor_b32 v{V_AV + dt}, {hex(VTOG)}, v{V_AV + dt}"), bpos))
    dm += dma_kv(o, dma, -1, i)
    sf = softmax_fill(par) if sm else []
    qs = [rd, dm, sf]
    if epi: qs.append(epi(gstart))
    zip2(e, mains, qs, flush_nop=bool(epi))

def epilogue_fill(o):
    def build(gstart):
        fl = []
        RL = V_E
        W = V_E + 6
        l0 = gstart['l']
        for qt in range(5):
            fl.append(F('v', txt(f"v_accvgpr_read_b32 v{RL + qt}, a{A_L + 4 * qt}"), l0 + 5 + 8))
        for qt in range(5):
            fl.append(F('e', txt(f"v_rcp_f32 v{RL + qt}, v{RL + qt}"), l0 + 5 + 8))
        k = 0
        for jj in range(4):
            ready = gstart[8 + 2 * jj + 1] + 5 + 4
            for qt in range(5):
                w = W + 12 * (k & 1); k += 1
                for tp in range(2):
                    for i in range(4):
                        fl.append(F('v', txt(f"v_accvgpr_read_b32 v{w + 4*tp + i}, a{oacc(2*jj + tp, qt) + i}"), ready))
                for r in range(8):
                    fl.append(F('v', txt(f"v_mul_f32 v{w + r}, v{w + r}, v{RL + qt}"), ready))
                for r in range(4):
                    fl.append(F('v', txt(f"v_cvt_pk_bf16_f32 v{w + 8 + r}, v{w + 2*r}, v{w + 2*r + 1}"), ready))
                off = (jj * 5 + qt) * 1024
                fl.append(F('s', txt(f"s_mov_b32 s{S_T0}, {off}"), ready))
                fl.append(F('l', lambda e, w=w: e.vm_op(f"buffer_store_dwordx4 v[{w+8}:{w+11}], v{V_E + 5}, s[{SRD_O}:{SRD_O+3}], s{S_T0} offen {o.o_flag}", "st"), ready))
        return fl
    return build

WO_A = [131072, 147456, 98304, 81920, 114688]
WO_B = [0, 16384, 32768, 49152, 65536]
def wo_slot(si): return WO_A[si] if si < 5 else WO_B[si - 5] if si < 10 else WO_A[si - 10] if si < 15 else WO_B[0]
V_AWS = 160

def t3_setup(e, o):
    L = V_E + 5
    t0, t1, t2, t3_ = V_E, V_E + 1, V_E + 2, V_E + 3
    e(f"""
    v_lshrrev_b32 v{t0}, 4, v{L}             ; lane
    v_lshrrev_b32 v{t1}, 4, v{t0}            ; g
    v_and_b32 v{t2}, 7, v{t0}
    v_lshlrev_b32 v{t3_}, 1, v{t1}
    v_xor_b32 v{t2}, v{t2}, v{t3_}
    v_lshlrev_b32 v{t2}, 4, v{t2}
    v_lshrrev_b32 v{t3_}, 3, v{t0}
    v_lshl_add_u32 v{V_OW}, v{t3_}, 10, v{t2}
    v_add_u32 v{V_OW+1}, {7168}, v{V_OW}
    v_add_u32 v{V_OW+2}, {2*7168}, v{V_OW}
    v_add_u32 v{V_OW+3}, {3*7168}, v{V_OW}
    v_bfe_u32 v{t2}, v{t0}, 2, 2             ; r'
    v_lshl_add_u32 v{t2}, v{t1}, 2, v{t2}    ; 4g + r'
    v_lshrrev_b32 v{t3_}, 1, v{t2}
    v_and_b32 v{t3_}, 3, v{t3_}
    v_lshlrev_b32 v{t2}, 7, v{t2}
    v_lshl_add_u32 v{t2}, v{t3_}, 5, v{t2}
    v_and_b32 v{t3_}, 3, v{t0}               ; c'
    v_lshl_add_u32 v{t2}, v{t3_}, 3, v{t2}
    s_lshl_b32 s3, s{S_HH}, 13
    v_add_u32 v{V_AW2}, s3, v{t2}
    v_xor_b32 v{V_AW2+1}, 32, v{V_AW2}
    v_xor_b32 v{V_AW2+2}, 64, v{V_AW2}
    v_xor_b32 v{V_AW2+3}, 0x60, v{V_AW2}
    s_mul_i32 s3, s{S_W}, 20480
    v_add_u32 v{V_XA}, s3, v{L}
    s_mov_b32 s{S_WL}, s{S_KV}
    s_lshl_b32 s3, s{S_RH}, 15
    s_lshl_b32 s7, s{S_HH}, 9
    s_add_u32 s3, s3, s7
    s_lshl_b32 s7, s{S_HH}, 17
    s_add_u32 s{S_WA}, s3, s7
    s_xor_b32 s7, s7, 0x20000
    s_add_u32 s{S_WB}, s3, s7
    s_cmp_eq_u32 s{S_BR}, 0
    s_cselect_b32 s60, s98, s100
    s_cselect_b32 s61, s99, s101
    s_sub_u32 s3, s{S_H}, s{S_HH}
    s_lshl_b32 s3, s3, 17                    ; * 128 rows * 1024
    s_add_u32 s{SRD_WO}, s60, s3
    s_addc_u32 s{SRD_WO+1}, s61, 0
    s_mov_b32 s{SRD_WO+2}, 262144
    s_mov_b32 s{SRD_WO+3}, 0x20000
    s_lshl_b32 s3, s{S_BR}, 3
    s_add_u32 s3, s3, s{S_B}
    s_lshl_b32 s3, s3, 4
    s_lshr_b32 s7, s{S_H}, 1
    s_add_u32 s3, s3, s7
    s_lshl_b32 s3, s3, 2
    s_lshl_b32 s7, s{S_RH}, 1
    s_add_u32 s3, s3, s7
    s_add_u32 s3, s3, s{S_HH}
    s_mul_i32 s3, s3, 40960
    s_add_u32 s3, s3, {POFF}
    s_add_u32 s{SRD_P}, s68, s3
    s_addc_u32 s{SRD_P+1}, s69, 0
    s_mov_b32 s{SRD_P+2}, 40960
    s_mov_b32 s{SRD_P+3}, 0x20000
    s_lshl_b32 s3, s{S_HG}, 20
    s_add_u32 s56, s60, s3
    s_addc_u32 s57, s61, 0
    s_mov_b32 s58, 0x100000
    s_mov_b32 s59, 0x20000
    s_lshl_b32 s3, s{S_IDX}, 2
    s_add_u32 s3, s3, s{S_W}
    s_lshl_b32 s3, s3, 13
    v_lshlrev_b32 v{t0}, 3, v{L}             ; lane*128
    v_add_u32 v{t0}, s3, v{t0}
    """)

def dma_wo(o, p, kq, after=-1, before=10**9, pace=0):
    src = S_WA if kq < 2 else S_WB
    fl = [F('s', txt(f"s_add_u32 m0, s{S_WL}, {wo_slot(4 * p + kq)}"), after, before),
          F('s', txt(f"s_add_u32 s{S_T1}, s{src}, {(kq & 1) * 65536 + 128 * p}"), after, before)]
    for t in range(4):
        fl.append(F('l', lambda e, t=t: e.vm_op(f"buffer_load_dwordx4 v{V_OW+t}, s[{SRD_WO}:{SRD_WO+3}], s{S_T1} offen offset:{t*1024} {o.w_flag} lds", f"W{p}_{kq}"), after + pace * t, before))
    return fl

def t3_tail(e, o):
    i = 16; par = 0; ks = 1
    mains = []; rd = []; dm = []; cv = []; st = []
    gstart = {}
    gstart['l'] = 0
    for qt in range(5):
        mains.append(Main(f"{MFMA} {ar(A_L + 4 * qt, 4)}, {ar(A_ONE, 4)}, {vr(preg(1, qt), 4)}, {ar(A_L + 4 * qt, 4)}"))
    for dt in range(8):
        n = 8 + dt
        gstart[n] = len(mains)
        for qt in range(5):
            mains.append(Main(f"{MFMA} {ar(oacc(dt, qt), 4)}, {ar(fbuf(n), 4)}, {vr(preg(1, qt), 4)}, {ar(oacc(dt, qt), 4)}", [f"F{n}"] if qt == 0 else []))
    for k in range(8):
        n = 8 + k
        after = gstart[8 + k - 4] if k >= 4 else -1
        before = gstart[8 + k - 1] if k >= 1 else 0
        rd += vfrag(ks, k, n, after, before)
    NPV = len(mains)
    def a2(p, nt, qt): return A_ACC2[p & 1] + (nt * 5 + qt) * 4
    def bfr(kk, qt): return (kk * 5 + qt) * 4
    S0 = {}
    nfrag = 16
    for p in range(4):
        for kq in range(4):
            S0[(p, kq)] = len(mains)
            for ks2 in range(2):
                kk = 2 * kq + ks2
                for nt in range(4):
                    n = nfrag; nfrag += 1
                    g0 = len(mains)
                    for qt in range(5):
                        cin = "0" if (kq == 0 and ks2 == 0) else ar(a2(p, nt, qt), 4)
                        needs = [f"G{n}"] if qt == 0 else []
                        if p == 0 and kk >= 4 and nt == 0: needs = needs + [f"X{kk}_{qt}"]
                        mains.append(Main(f"{MFMA} {ar(a2(p, nt, qt), 4)}, {ar(fbuf(n), 4)}, {vr(bfr(kk, qt), 4)}, {cin}", needs))
                    gstart[('g', p, kq, ks2, nt)] = (g0, n)
    N = len(mains)
    stages = [(p, kq) for p in range(4) for kq in range(4)]
    def gidx(p, kq, j): return gstart[('g', p, kq, j >> 2, j & 3)]
    BAR = {}
    for si, (p, kq) in enumerate(stages):
        BAR[si] = gidx(p, kq, 5)[0]
    def wfrag(p, kq, j, after, before):
        g0, n = gidx(p, kq, j)
        return [F('d', lambda e, h=h, n=n: e.ds_op(f"ds_read_b64_tr_b16 a[{fbuf(n) + 2*h}:{fbuf(n) + 2*h + 1}], v{V_AWS + 4 * (wo_slot(4 * p + kq) >> 16) + (j & 3)} offset:{(wo_slot(4 * p + kq) & 0xffff) + (j >> 2) * 4096 + h * 2048}", f"G{n}"), after, before) for h in range(2)]
    pv_bar = gstart[8 + 6]
    def bar_first(e):
        e.ds_all()
        e.need_vm("W0_0")
        e("s_barrier")
    mains[pv_bar].pre = bar_first
    rd_pv_last = [f for f in rd]
    for f in rd:
        f.before = min(f.before, pv_bar - 3)
    for si, (p, kq) in enumerate(stages):
        prevbar = pv_bar if si == 0 else BAR[si - 1]
        for j in range(8):
            g0 = gidx(p, kq, j)[0]
            if j < 3:
                after = prevbar; before = S0[(p, kq)] - 1 if j == 0 else gidx(p, kq, j - 1)[0]
                if si == 0 and j == 0: before = NPV - 1
            elif j < 6:
                after = gidx(p, kq, j - 3)[0]; before = gidx(p, kq, j - 1)[0]
            else:
                after = gidx(p, kq, 2)[0] + 2; before = gidx(p, kq, 4)[0] + 3
            rd += wfrag(p, kq, j, after, before)
        def bar(e, si=si):
            if si in ((0, 3, 7, 15) if o.fuse else (0, 3, 7, 11, 15)): stamp(e, o, f"T{si}")
            e.ds_all()
            if si + 1 < 16:
                pn, kn = stages[si + 1]
                e.need_vm(f"W{pn}_{kn}")
            e("s_barrier")
        mains[BAR[si]].pre = bar
    pre = dma_wo(o, 0, 0, -1, 3) + dma_wo(o, 0, 1, -1, 10) + dma_wo(o, 0, 2, -1, 18) + dma_wo(o, 0, 3, -1, 26)
    def st_(si): return stages[si]
    P = o.w_pace
    dm = pre + dma_wo(o, *st_(4), pv_bar, BAR[0], P)
    dm += dma_wo(o, *st_(10), BAR[0], BAR[1], P)
    dm += dma_wo(o, *st_(11), BAR[1], BAR[2], P)
    t = BAR[2]
    for si in (5, 6, 7, 8, 9):
        dm += dma_wo(o, *st_(si), t, BAR[si - 2] if si > 5 else BAR[3], P); t += 4 * P
    dm += dma_wo(o, *st_(12), t, BAR[8], P); t += 4 * P
    dm += dma_wo(o, *st_(13), max(t, BAR[3]), BAR[9], P); t += 4 * P
    dm += dma_wo(o, *st_(14), max(t, BAR[4]), BAR[10], P); t += 4 * P
    dm += dma_wo(o, *st_(15), max(t, BAR[5]), BAR[11], P)
    if o.t3_nodma: dm = pre
    RL = V_E; W = V_E + 6
    l0 = 0
    for qt in range(5): cv.append(F('v', txt(f"v_accvgpr_read_b32 v{RL + qt}, a{A_L + 4 * qt}"), l0 + 5 + 6))
    for qt in range(5): cv.append(F('e', txt(f"v_rcp_f32 v{RL + qt}, v{RL + qt}"), l0 + 5 + 6))
    k = 0
    for jj in range(4):
        ready = gstart[8 + 2 * jj + 1] + 5 + 4
        need = gidx(0, jj >> 1, (jj & 1) * 4)[0]
        if jj == 1: need = gidx(0, 0, 2)[0]
        for qt in range(5):
            w = W + 8 * (k & 1); k += 1
            dl = need + qt - 2 if need + qt - 2 > ready else need
            for tp in range(2):
                for i_ in range(4):
                    cv.append(F('v', txt(f"v_accvgpr_read_b32 v{w + 4*tp + i_}, a{oacc(2*jj + tp, qt) + i_}"), ready, need - 2))
            for r in range(8):
                cv.append(F('v', txt(f"v_mul_f32 v{w + r}, v{w + r}, v{RL + qt}"), ready, need - 2))
            d = bfr(jj, qt)
            for r in range(4):
                cv.append(F('v', txt(f"v_cvt_pk_bf16_f32 v{d + r}, v{w + 2*r}, v{w + 2*r + 1}"), ready, need - 2))
            cv.append(F('d', lambda e, d=d, jj=jj, qt=qt: e.ds_op(f"ds_write_b128 v{V_XA}, v[{d}:{d+3}] offset:{(jj * 5 + qt) * 1024}", "XW"), ready, need - 1))
    xbar = BAR[1]
    cv.append(F('v', txt(f"v_xor_b32 v{V_XA}, {40960}, v{V_XA}") if False else txt(f"v_add_u32 v{V_XA}, s55, v{V_XA}"), xbar, xbar + 2))
    for jj in range(4):
        for qt in range(5):
            d = bfr(4 + jj, qt)
            cv.append(F('d', lambda e, d=d, jj=jj, qt=qt: e.ds_op(f"ds_read_b128 v[{d}:{d+3}], v{V_XA} offset:{(jj * 5 + qt) * 1024}", f"X{4+jj}_{qt}"), xbar + 1, S0[(0, 2)] - 6 if jj < 2 else BAR[2] - 4))
    gd = []
    for qt in range(5):
        a_, b_ = S0[(0, 2)], S0[(1, 0)] - 2
        gd.append(F('v', txt(f"v_med3_f32 v224, v{RL + qt}, s66, v225"), a_, b_))
        gd.append(F('v', txt(f"v_cmp_neq_f32 s[62:63], v224, v{RL + qt}"), a_, b_))
        gd.append(F('s', txt("s_nop 1"), a_, b_))
        gd.append(F('s', txt(f"s_or_b64 s[{S_BAD}:{S_BAD+1}], s[{S_BAD}:{S_BAD+1}], s[62:63]"), a_, b_))
    W2 = V_E + 6
    k = 0
    for p in range(4):
        start = S0[(p + 1, 0)] + 6 if p < 3 else N
        end = S0[(p + 1, 3)] if p < 2 else 10**9
        if p == 2: end = N - 10
        for u in range(2):
            for qt in range(5):
                w = W2 + 12 * (k & 1); k += 1
                for tp in range(2):
                    for i_ in range(4):
                        st.append(F('v', txt(f"v_accvgpr_read_b32 v{w + 4*tp + i_}, a{a2(p, 2*u + tp, qt) + i_}"), start, end))
                for r in range(4):
                    st.append(F('v', txt(f"v_cvt_pk_bf16_f32 v{w + 8 + r}, v{w + 2*r}, v{w + 2*r + 1}"), start, end))
                off = (p * 10 + u * 5 + qt) * 1024
                st.append(F('s', txt(f"s_mov_b32 s{S_T0}, {off}"), start, end))
                if not o.t3_nostore: st.append(F('l', lambda e, w=w: e.vm_op(f"buffer_store_dwordx4 v[{w+8}:{w+11}], v{V_E + 5}, s[{SRD_P}:{SRD_P+3}], s{S_T0} offen {o.p_flag}", "st"), start, end))
    e(f"s_mov_b64 s[{S_BAD}:{S_BAD+1}], 0")
    e(f"s_mov_b32 s66, {hex(R_LO)}")
    e(f"v_mov_b32 v225, {hex(R_HI)}")
    for k_ in range(3):
        for j in range(4):
            e(f"v_add_u32 v{V_AWS + 4 * k_ + j}, {65536 * k_}, v{V_AW2 + j}")
    e(f"s_lshl_b32 s{S_T0}, s{S_HH}, 1")
    e(f"s_sub_u32 s{S_T0}, 1, s{S_T0}")
    e(f"s_mul_i32 s{S_T0}, s{S_T0}, 40960")
    e(f"s_mov_b32 s55, s{S_T0}")
    for f in cv:
        pass
    zip2(e, mains, [rd, dm, cv, gd, st], flush_nop=True)

def max_pass(e, o, name):
    M = 120; L16 = V_E + 5; T = 126
    e.label(f"L_maxpass_{name}")
    e("s_waitcnt vmcnt(0) lgkmcnt(0)")
    for qt in range(5): e(f"v_mov_b32 v{M + qt}, 0xff800000")
    e(f"s_mov_b32 s{S_CNT}, 0")
    e(f"s_lshl_b32 s{S_T1}, s{S_RH}, 12")
    e.label(f"L_maxloop_{name}")
    e("s_barrier")
    e(f"s_mov_b32 m0, s{S_KV}")
    e("s_nop 0")
    for t in range(4):
        e(f"buffer_load_dwordx4 v{V_OK + t}, s[{SRD_K}:{SRD_K+3}], s{S_T1} offen offset:{t * 1024} lds")
    e("s_waitcnt vmcnt(0)")
    e("s_barrier")
    for n in range(8):
        e(f"ds_read_b128 a[{fbuf(n)}:{fbuf(n)+3}], v{V_AK + (n & 3)} offset:{(n >> 2) * 4096}")
    e("s_waitcnt lgkmcnt(0)")
    for kt in range(2):
        for j in range(4):
            for qt in range(5):
                d = sreg(0, kt, qt)
                e(f"{MFMA} {vr(d, 4)}, {ar(fbuf(kt * 4 + j), 4)}, {vr(qf(j, qt), 4)}, {'0' if j == 0 else vr(d, 4)}")
    e("s_nop 7")
    e("s_nop 3")
    for qt in range(5):
        for kt in range(2):
            d = sreg(0, kt, qt)
            e(f"v_max3_f32 v{M + qt}, v{d}, v{d+1}, v{M + qt}")
            e(f"v_max3_f32 v{M + qt}, v{d+2}, v{d+3}, v{M + qt}")
    e(f"s_add_u32 s{S_T1}, s{S_T1}, 8192")
    e(f"s_add_u32 s{S_CNT}, s{S_CNT}, 1")
    e(f"s_cmp_lt_u32 s{S_CNT}, 16")
    e(f"s_cbranch_scc1 L_maxloop_{name}")
    e("s_barrier")
    e(f"s_lshl_b32 s{S_T1}, s{S_RH}, 12")
    e(f"s_mov_b32 m0, s{S_KV}")
    e("s_nop 0")
    for t in range(4):
        e(f"buffer_load_dwordx4 v{V_OK + t}, s[{SRD_K}:{SRD_K+3}], s{S_T1} offen offset:{t * 1024} lds")
    e(f"v_lshrrev_b32 v{T}, 2, v{L16}")
    e(f"v_xor_b32 v{T+1}, 64, v{T}")
    e(f"v_xor_b32 v{T+2}, 0x80, v{T}")
    for x in (1, 2):
        for qt in range(5): e(f"ds_bpermute_b32 v{T + 3 + qt}, v{T + x}, v{M + qt}")
        e("s_waitcnt lgkmcnt(0)")
        for qt in range(5): e(f"v_max_f32 v{M + qt}, v{M + qt}, v{T + 3 + qt}")
    for qt in range(5):
        for r in range(4): e(f"v_sub_f32 v{V_BIAS + 4 * qt + r}, 0, v{M + qt}")
    e("s_waitcnt vmcnt(0)")
    e("s_barrier")
    for n in range(3): run(e, kfrag(0, 0, n, n))
    e(f"s_branch L_maxdone_{name}")

def vote(e, o, name):
    T = V_E
    e(f"s_cmp_lg_u64 s[{S_BAD}:{S_BAD+1}], 0")
    e(f"s_cselect_b32 s3, 1, 0")
    e(f"v_mov_b32 v{T}, s3")
    e(f"s_lshl_b32 s7, s{S_W}, 2")
    e(f"v_mov_b32 v{T+1}, s7")
    e(f"ds_write_b32 v{T+1}, v{T}")
    if o.fuse:
        e("s_load_dwordx4 s[56:59], s[0:1], 80")
        e("s_waitcnt vmcnt(0) lgkmcnt(0)")
    else:
        e("s_waitcnt lgkmcnt(0)")
    e("s_barrier")
    e(f"v_mov_b32 v{T+1}, 0")
    e(f"ds_read_b128 v[{T+2}:{T+5}], v{T+1}")
    e("s_waitcnt lgkmcnt(0)")
    e(f"v_or_b32 v{T+2}, v{T+2}, v{T+3}")
    e(f"v_or3_b32 v{T+2}, v{T+2}, v{T+4}, v{T+5}")
    e("s_nop 0")
    e(f"v_readfirstlane_b32 s3, v{T+2}")
    e(f"s_cmp_eq_u32 s{S_MODE}, 0")
    e(f"s_cselect_b32 s3, s3, 0")
    e(f"s_cmp_eq_u32 s3, 0")
    e(f"s_cbranch_scc1 L_fine_{name}")
    e(f"s_mov_b32 s{S_MODE}, 1")
    e("s_waitcnt vmcnt(0)")
    e("s_barrier")
    e("v_mbcnt_lo_u32_b32 v0, -1, 0")
    e("v_mbcnt_hi_u32_b32 v0, -1, v0")
    e(f"s_lshl_b32 s3, s{S_W}, 6")
    e("v_add_u32 v0, s3, v0")
    e(f"s_branch L_restart_{name}")
    e.label(f"L_fine_{name}")

def fused_reduce(e, o, name):
    G, R, J = 60, 61, 62
    e(f"""
    s_lshl_b32 s{G}, s{S_BR}, 3
    s_add_u32 s{G}, s{G}, s{S_B}             ; group
    s_lshr_b32 s{R}, s{S_H}, 1
    v_mbcnt_lo_u32_b32 v248, -1, 0
    v_mbcnt_hi_u32_b32 v248, -1, v248        ; lane
    s_cmp_eq_u32 s{S_W}, {99 if o.nosync else 0}
    s_cbranch_scc0 L_arrived_{name}
    s_lshl_b32 s3, s{G}, {12 if o.cnt_ws else 4}
    {f"s_add_u32 s3, s3, {220*1024*1024}" if o.cnt_ws else ""}
    {"s_mov_b32 s58, s68" if o.cnt_ws else ""}
    {"s_mov_b32 s59, s69" if o.cnt_ws else ""}
    v_mov_b32 v249, s3
    v_mov_b32 v250, 1
    s_mov_b64 s[64:65], exec
    s_mov_b64 exec, 1
    global_atomic_add v249, v250, s[58:59]
    s_mov_b32 s7, 0
L_poll_{name}:
    global_load_dword v251, v249, s[58:59] sc1
    s_waitcnt vmcnt(0)
    v_readfirstlane_b32 s3, v251
    s_add_u32 s7, s7, 1
    s_cmp_ge_u32 s3, 16
    s_cbranch_scc1 L_polled_{name}
    s_sleep {o.spin_sleep}
    s_cmp_lt_u32 s7, 0x40000
    s_cbranch_scc1 L_poll_{name}
L_polled_{name}:
    s_mov_b64 exec, s[64:65]
L_arrived_{name}:
    s_barrier
    """)
    stamp(e, o, "polled")
    e(f"""
    v_lshlrev_b32 v249, 4, v248              ; lane*16
    s_mul_i32 s3, s{G}, {16 * 163840}
    s_add_u32 s3, s3, {POFF}
    s_add_u32 s8, s68, s3
    s_addc_u32 s9, s69, 0
    s_mov_b32 s10, {16 * 163840}
    s_mov_b32 s11, 0x20000
    s_mul_i32 s{J}, s{R}, 10
    s_add_u32 s{J}, s{J}, s{S_W}
    s_mov_b32 s12, s56
    s_mov_b32 s13, s57
    s_mov_b32 s14, 2621440
    s_mov_b32 s15, 0x20000
    v_and_b32 v250, 15, v248
    v_lshrrev_b32 v251, 4, v248
    v_lshlrev_b32 v250, 11, v250
    v_lshl_add_u32 v250, v251, 3, v250       ; c*2048 + g*8
    """)
    def load1(k, hp):
        r = 64 * k + 4 * hp
        if hp == 0:
            e(f"s_add_u32 s3, s{J}, {4 * k}")
            e(f"s_lshl_b32 s3, s3, 10")
        e.vm_op(f"buffer_load_dwordx4 v[{r}:{r+3}], v249, s[8:11], s3 offen {o.r_flag}", f"R{k}_{hp}")
        if hp < 15: e("s_add_u32 s3, s3, 163840")
    def outaddr(k, dst):
        e(f"""
    s_add_u32 s16, s{J}, {4 * k}
    s_mul_hi_u32 s17, s16, 0x1999999a
    s_mul_i32 s18, s17, 10
    s_sub_u32 s18, s16, s18
    s_cmp_ge_u32 s18, 5
    s_cselect_b32 s19, 1, 0                  ; u
    s_mul_i32 s20, s19, 5
    s_sub_u32 s18, s18, s20                  ; qt
    s_and_b32 s20, s17, 3                    ; p
    s_bfe_u32 s21, s17, 0x10002              ; hh
    s_lshr_b32 s22, s17, 3                   ; rh
    s_mul_i32 s23, s{S_B}, 160
    s_mul_i32 s22, s22, 80
    s_add_u32 s23, s23, s22
    s_lshl_b32 s18, s18, 4
    s_add_u32 s23, s23, s18
    s_lshl_b32 s23, s23, 11
    s_lshl_b32 s22, s{S_BR}, 10
    s_add_u32 s23, s23, s22
    s_lshl_b32 s21, s21, 9
    s_add_u32 s23, s23, s21
    s_lshl_b32 s20, s20, 7
    s_add_u32 s23, s23, s20
    s_lshl_b32 s19, s19, 6
    s_add_u32 s{dst}, s23, s19
    """)
    def run_pieces(np_):
        A = 224; T = 232
        order = [(k, hp) for k in range(np_) for hp in range(16)]
        D = o.r_depth
        e.vm = []; e.vm_waited = set()
        for x in order[:D]: load1(*x)
        for k in range(np_): outaddr(k, 24 + k)
        for n, (k, hp) in enumerate(order):
            e.need_vm(f"R{k}_{hp}")
            if n + D < len(order): load1(*order[n + D])
            for d in range(4):
                r = 64 * k + 4 * hp + d
                if hp == 0:
                    e(f"v_lshlrev_b32 v{A + 2*d}, 16, v{r}")
                    e(f"v_and_b32 v{A + 2*d + 1}, 0xffff0000, v{r}")
                else:
                    e(f"v_lshlrev_b32 v{T + 2*(d & 1)}, 16, v{r}")
                    e(f"v_and_b32 v{T + 2*(d & 1) + 1}, 0xffff0000, v{r}")
                    e(f"v_add_f32 v{A + 2*d}, v{A + 2*d}, v{T + 2*(d & 1)}")
                    e(f"v_add_f32 v{A + 2*d + 1}, v{A + 2*d + 1}, v{T + 2*(d & 1) + 1}")
            if hp == 15:
                o0 = 236 + 4 * (k & 1)
                for d in range(4): e(f"v_cvt_pk_bf16_f32 v{o0 + d}, v{A + 2*d}, v{A + 2*d + 1}")
                e.vm_op(f"buffer_store_dwordx2 v[{o0}:{o0+1}], v250, s[12:15], s{24 + k} offen", f"S{k}")
                e.vm_op(f"buffer_store_dwordx2 v[{o0+2}:{o0+3}], v250, s[12:15], s{24 + k} offen offset:32", f"S{k}")
    if o.r_loop:
        A = 224; T = 232
        e.label(f"L_rloop_{name}")
        e(f"s_lshl_b32 s3, s{J}, 10")
        for hp in range(16):
            e(f"buffer_load_dwordx4 v[{4*hp}:{4*hp+3}], v249, s[8:11], s3 offen {o.r_flag}")
            if hp < 15: e("s_add_u32 s3, s3, 163840")
        outaddr(0, 24)
        for hp in range(16):
            e(f"s_waitcnt vmcnt({15 - hp})")
            for d in range(4):
                r = 4 * hp + d
                if hp == 0:
                    e(f"v_lshlrev_b32 v{A + 2*d}, 16, v{r}")
                    e(f"v_and_b32 v{A + 2*d + 1}, 0xffff0000, v{r}")
                else:
                    e(f"v_lshlrev_b32 v{T + 2*(d & 1)}, 16, v{r}")
                    e(f"v_and_b32 v{T + 2*(d & 1) + 1}, 0xffff0000, v{r}")
                    e(f"v_add_f32 v{A + 2*d}, v{A + 2*d}, v{T + 2*(d & 1)}")
                    e(f"v_add_f32 v{A + 2*d + 1}, v{A + 2*d + 1}, v{T + 2*(d & 1) + 1}")
        for d in range(4): e(f"v_cvt_pk_bf16_f32 v{236 + d}, v{A + 2*d}, v{A + 2*d + 1}")
        e(f"buffer_store_dwordx2 v[236:237], v250, s[12:15], s24 offen")
        e(f"buffer_store_dwordx2 v[238:239], v250, s[12:15], s24 offen offset:32")
        e(f"s_add_u32 s{J}, s{J}, 4")
        e(f"s_mul_i32 s3, s{R}, 10")
        e(f"s_add_u32 s3, s3, 10")
        e(f"s_cmp_lt_u32 s{J}, s3")
        e(f"s_cbranch_scc1 L_rloop_{name}")
        return
    e(f"s_cmp_lt_u32 s{S_W}, 2")
    e(f"s_cbranch_scc0 L_two_{name}")
    run_pieces(3)
    e(f"s_branch L_reduced_{name}")
    e.label(f"L_two_{name}")
    run_pieces(2)
    e.label(f"L_reduced_{name}")

def gen_k1(name, o):
    NSTAMP[0] = 0
    CODE_NAME[0] = name
    e = Em()
    e.lines.append(kernel_head(name))
    prologue(e, o, name)
    qphase(e, o)
    stamp(e, o, "qdone")
    e(f"v_accvgpr_write_b32 a{A_SAVE}, v{V_OV0}")
    e(f"v_accvgpr_write_b32 a{A_SAVE+1}, v{V_OV0+1}")
    e(f"v_accvgpr_write_b32 a{A_SAVE+2}, v{V_T+1}")
    for n in range(3): run(e, kfrag(0, 0, n, n))
    qconvert(e)
    stamp(e, o, "qconv")
    e(f"""
    v_accvgpr_read_b32 v{V_OV}, a{A_SAVE}
    v_accvgpr_read_b32 v{V_OV+1}, a{A_SAVE+1}
    v_accvgpr_read_b32 v{V_E+5}, a{A_SAVE+2}
    s_mov_b32 s{S_KDST}, s{S_KV}             ; K(4) -> slot 0
    s_add_u32 s{S_VDST}, s{S_KV}, {32768 if o.apf else 0}          ; V(4) / V(2)
    s_lshl_b32 s7, s{S_RH}, 12
    s_add_u32 s{S_KOFF}, s7, {4 * 8192}
    s_add_u32 s{S_VOFF}, s7, {(4 if o.apf else 2) * 8192}
    v_lshlrev_b32 v{V_E+5}, 4, v{V_E+5}
    """)
    if o.t3: t3_setup(e, o)
    for r in range(20): e(f"v_mov_b32 v{V_BIAS + r}, 0")
    e(f"s_cmp_eq_u32 s{S_MODE}, 0")
    e(f"s_cbranch_scc0 L_maxpass_{name}")
    e.label(f"L_maxdone_{name}")
    if o.pf_late:
        e("s_waitcnt vmcnt(0)"); e("s_barrier"); e.vm = []
        for n in range(3): run(e, kfrag(0, 0, n, n))
    attn_iter(e, o, -1, True, False, False, 1, '', True)
    if o.apf:
        attn_iter(e, o, 0, True, True, False, 1, 'K', True)
        attn_iter(e, o, 1, True, True, True, 1, 'K', True, first_pv=True)
        attn_iter(e, o, 2, True, True, True, 1, 'KV', True)
    else:
        attn_iter(e, o, 0, True, True, False, 1, 'KV', True)
        attn_iter(e, o, 1, True, True, True, 1, 'KV', True, first_pv=True)
        attn_iter(e, o, 2, True, True, True, 1, 'KV', True)
    stamp(e, o, "iter0_done")
    e(f"s_mov_b32 s{S_CNT}, 0")
    ds0 = list(e.ds)
    e.label(f"L_loop_{name}")
    if o.t3 and o.w_touch >= 0:
        e(f"s_cmp_eq_u32 s{S_CNT}, {o.w_touch}")
        e(f"s_cbranch_scc0 L_nowt_{name}")
        e(f"buffer_load_dword v{V_E + 1}, v{V_E}, s[56:59], 0 offen")
        if o.c_touch >= 2:
            vq = list(e.vm); code_touch(e, V_E + 2, V_E + 3, 1); e.vm = vq
        e.label(f"L_nowt_{name}")
    n0 = len(e.lines)
    attn_iter(e, o, 3, True, True, True, 1, 'KV', True)
    attn_iter(e, o, 4, True, True, True, 1, 'KV', True)
    import copy
    e2 = copy.deepcopy(e); n1 = len(e2.lines)
    attn_iter(e2, o, 5, True, True, True, 1, 'KV', True)
    attn_iter(e2, o, 6, True, True, True, 1, 'KV', True)
    assert e.lines[n0:n1] == e2.lines[n1:], "loop body is not in steady state"
    assert e.ds == ds0, (e.ds, ds0)
    e(f"s_add_u32 s{S_CNT}, s{S_CNT}, 1")
    e(f"s_cmp_lt_u32 s{S_CNT}, 6")
    e(f"s_cbranch_scc1 L_loop_{name}")
    e.ds_all()
    stamp(e, o, "loop_done")
    attn_iter(e, o, 15, False, True, True, 0, '', False)
    if o.t3:
        t3_tail(e, o)
    else:
        attn_iter(e, o, 16, False, False, True, None, '', False, epi=epilogue_fill(o))
    stamp(e, o, "stores_issued")
    vote(e, o, name)
    if o.fuse:
        stamp(e, o, "Tsig")
        fused_reduce(e, o, name)
    if o.stamps: e("s_waitcnt vmcnt(0)")
    stamp(e, o, "end")
    if o.stamps:
        e(f"""
    s_memrealtime s[96:97]
    s_waitcnt lgkmcnt(0)
    s_lshl_b32 s3, s2, 2
    s_add_u32 s3, s3, s{S_W}
    s_lshl_b32 s3, s3, 7
    s_add_u32 s3, s3, {200*1024*1024}
    v_mov_b32 v30, s3
    s_mov_b64 exec, 1
    """)
        for k in range(14):
            e(f"v_mov_b32 v0, s{70 + 2*k}")
            e(f"v_mov_b32 v1, s{71 + 2*k}")
            e(f"global_store_dwordx2 v30, v[0:1], s[68:69] offset:{8*k}")
            e("s_nop 1")
        e("s_waitcnt vmcnt(0)")
        if o.dbg:
            e(f"""
    s_or_b32 s3, s2, s{S_W}
    s_cmp_eq_u32 s3, 0
    s_cbranch_scc0 L_end_{name}
    s_load_dwordx2 s[98:99], s[0:1], 88
    s_waitcnt lgkmcnt(0)
    v_mov_b32 v30, 0
    """)
            for k in range(1, 11):
                e(f"s_sub_u32 s3, s{70 + 2*k}, s70")
                e(f"v_mov_b32 v0, s3")
                e(f"global_store_dword v30, v0, s[98:99] offset:{4*k}")
                e("s_nop 1")
            e("s_sub_u32 s3, s96, s94")
            e("v_mov_b32 v0, s3")
            e("global_store_dword v30, v0, s[98:99] offset:0")
            e("s_waitcnt vmcnt(0)")
    e.label(f"L_end_{name}")
    e("s_endpgm")
    dsq, vmq = list(e.ds), list(e.vm)
    max_pass(e, o, name)
    e.label("CODE_END")
    return e.text() + kernel_desc(name, 512, 256)
```

```python
from common import *
from sched import *
POFF = 32 * 1024 * 1024
class Opt3:
    w4 = False
    r_loop = False
    p_flag = ""
    stamps = False
    dbg = False
def gen_k3w4(name, o):
    import k1
    e = Em()
    e.lines.append(kernel_head(name))
    e(f"""
    s_cmp_ge_u32 s2, 256
    s_cbranch_scc1 L_end_{name}
    s_load_dwordx4 s[56:59], s[0:1], 80
    s_load_dwordx2 s[68:69], s[0:1], 96
    v_lshrrev_b32 v1, 6, v0
    s_nop 0
    v_readfirstlane_b32 s{k1.S_W}, v1
    s_lshr_b32 s3, s2, 4
    s_lshr_b32 s{k1.S_BR}, s3, 3
    s_and_b32 s{k1.S_B}, s3, 7
    s_and_b32 s{k1.S_H}, s2, 15
    s_lshl_b32 s{k1.S_H}, s{k1.S_H}, 1
    """)
    if o.stamps: e("s_memrealtime s[40:41]")
    e("s_waitcnt lgkmcnt(0)")
    oo = k1.Opt(); oo.nosync = True; oo.r_loop = o.r_loop
    k1.fused_reduce(e, oo, name)
    if o.stamps:
        e(f"""
    s_waitcnt vmcnt(0)
    s_memrealtime s[42:43]
    s_waitcnt lgkmcnt(0)
    s_cmp_eq_u32 s{k1.S_W}, 0
    s_cbranch_scc0 L_end_{name}
    v_mov_b32 v0, s40
    v_mov_b32 v1, s41
    v_mov_b32 v2, s42
    v_mov_b32 v3, s43
    s_lshl_b32 s3, s2, 7
    s_add_u32 s3, s3, {201*1024*1024}
    v_mov_b32 v6, s3
    s_mov_b64 exec, 1
    global_store_dwordx4 v6, v[0:3], s[68:69]
    s_waitcnt vmcnt(0)
    """)
    e.label(f"L_end_{name}")
    e("s_endpgm")
    return e.text() + kernel_desc(name, 256, 256, 102)

def gen_k3(name, o):
    if o.w4: return gen_k3w4(name, o)
    e = Em()
    e.lines.append(kernel_head(name))
    e(f"""
    s_cmp_ge_u32 s2, 256
    s_cbranch_scc1 L_end_{name}
    s_load_dwordx2 s[4:5], s[0:1], 80        ; out
    s_load_dwordx2 s[6:7], s[0:1], 96        ; ws
    v_lshrrev_b32 v1, 6, v0
    v_and_b32 v2, 63, v0
    v_readfirstlane_b32 s8, v1               ; wave
    s_lshr_b32 s9, s2, 4                     ; group
    s_and_b32 s10, s2, 15
    s_mul_i32 s10, s10, 10
    s_add_u32 s10, s10, s8                   ; piece j
    v_lshlrev_b32 v3, 4, v2                  ; lane*16
    """)
    if o.stamps: e("s_memrealtime s[40:41]")
    e(f"""
    s_waitcnt lgkmcnt(0)
    s_mul_i32 s11, s9, {16 * 163840}
    s_lshl_b32 s12, s10, 10
    s_add_u32 s11, s11, {POFF}
    s_add_u32 s16, s6, s11
    s_addc_u32 s17, s7, 0
    s_mov_b32 s18, {16 * 163840}
    s_mov_b32 s19, 0x20000
    """)
    for hp in range(16):
        e(f"buffer_load_dwordx4 v[{8 + 4*hp}:{11 + 4*hp}], v3, s[16:19], s12 offen {o.p_flag}")
        if hp < 15: e(f"s_add_u32 s12, s12, 163840")
    e(f"""
    s_mul_hi_u32 s13, s10, 0x1999999a        ; j / 10
    s_mul_i32 s14, s13, 10
    s_sub_u32 s14, s10, s14                  ; u*5 + qt
    s_cmp_ge_u32 s14, 5
    s_cselect_b32 s15, 1, 0                  ; u
    s_mul_i32 s20, s15, 5
    s_sub_u32 s14, s14, s20                  ; qt
    s_and_b32 s20, s13, 3                    ; p
    s_bfe_u32 s21, s13, 0x10002              ; hh
    s_lshr_b32 s22, s13, 3                   ; rh
    s_and_b32 s23, s9, 7                     ; b
    s_lshr_b32 s24, s9, 3                    ; branch
    s_mul_i32 s23, s23, 160
    s_mul_i32 s22, s22, 80
    s_add_u32 s23, s23, s22
    s_lshl_b32 s14, s14, 4
    s_add_u32 s23, s23, s14
    s_lshl_b32 s23, s23, 11
    s_lshl_b32 s24, s24, 10
    s_add_u32 s23, s23, s24
    s_lshl_b32 s21, s21, 9
    s_add_u32 s23, s23, s21
    s_lshl_b32 s20, s20, 7
    s_add_u32 s23, s23, s20
    s_lshl_b32 s15, s15, 6
    s_add_u32 s23, s23, s15
    v_and_b32 v4, 15, v2
    v_lshrrev_b32 v5, 4, v2
    v_lshlrev_b32 v4, 11, v4
    v_lshl_add_u32 v4, v5, 3, v4
    s_mov_b32 s28, s4
    s_mov_b32 s29, s5
    s_mov_b32 s30, 2621440
    s_mov_b32 s31, 0x20000
    """)
    A = 72; T = 80
    for hp in range(16):
        e(f"s_waitcnt vmcnt({15 - hp})")
        for d in range(4):
            r = 8 + 4 * hp + d
            if hp == 0:
                e(f"v_lshlrev_b32 v{A + 2*d}, 16, v{r}")
                e(f"v_and_b32 v{A + 2*d + 1}, 0xffff0000, v{r}")
            else:
                e(f"v_lshlrev_b32 v{T}, 16, v{r}")
                e(f"v_and_b32 v{T+1}, 0xffff0000, v{r}")
                e(f"v_add_f32 v{A + 2*d}, v{A + 2*d}, v{T}")
                e(f"v_add_f32 v{A + 2*d + 1}, v{A + 2*d + 1}, v{T+1}")
    for d in range(4):
        e(f"v_cvt_pk_bf16_f32 v{84 + d}, v{A + 2*d}, v{A + 2*d + 1}")
    e(f"buffer_store_dwordx2 v[84:85], v4, s[28:31], s23 offen")
    e(f"buffer_store_dwordx2 v[86:87], v4, s[28:31], s23 offen offset:32")
    if o.stamps:
        e(f"""
    s_waitcnt vmcnt(0)
    s_memrealtime s[42:43]
    s_waitcnt lgkmcnt(0)
    s_cmp_eq_u32 s8, 0
    s_cbranch_scc0 L_end_{name}
    v_mov_b32 v0, s40
    v_mov_b32 v1, s41
    v_mov_b32 v2, s42
    v_mov_b32 v3, s43
    s_lshl_b32 s3, s2, 7
    s_add_u32 s3, s3, {201*1024*1024}
    v_mov_b32 v6, s3
    s_mov_b64 exec, 1
    global_store_dwordx4 v6, v[0:3], s[6:7]
    s_waitcnt vmcnt(0)
    """)
        if o.dbg:
            e(f"""
    s_cmp_eq_u32 s2, 0
    s_cbranch_scc0 L_end_{name}
    s_load_dwordx2 s[60:61], s[0:1], 88
    s_mov_b64 exec, 0xffff
    v_mbcnt_lo_u32_b32 v8, -1, 0
    v_lshlrev_b32 v9, 3, v8
    v_add_u32 v9, {200*1024*1024}, v9
    global_load_dword v10, v9, s[6:7] sc1
    v_lshlrev_b32 v8, 2, v8
    s_waitcnt vmcnt(0) lgkmcnt(0)
    v_mov_b32 v11, s40
    v_mov_b32 v12, s42
    v_cmp_eq_u32 vcc, 56, v8
    s_nop 1
    v_cndmask_b32 v10, v10, v11, vcc
    v_cmp_eq_u32 vcc, 60, v8
    s_nop 1
    v_cndmask_b32 v10, v10, v12, vcc
    global_store_dword v8, v10, s[60:61]
    s_waitcnt vmcnt(0)
    """)
    e.label(f"L_end_{name}")
    e("s_endpgm")
    e.label("K3_END")
    return e.text() + kernel_desc(name, 96, 96, 64)
```

```python
import sys, os
sys.path.insert(0, os.path.dirname(os.path.abspath(__file__)))
import k1, k2, k3
NAME = "concat_heads__gqa_block_cached__gqa_block_cached__near_ridge"
HEADER = open(os.path.join(os.path.dirname(os.path.abspath(__file__)), "header.txt")).read()
def build(path, o1=None, o2=None, o3=None):
    o1 = o1 or k1.Opt(); o2 = o2 or k2.Opt2(); o3 = o3 or k3.Opt3()
    t = HEADER
    if o1.fuse:
        t += f"; @launch grid=(256,1,1) block=(256,1,1) lds={k1.LDS_BYTES}\n"
        t += '.amdgcn_target "amdgcn-amd-amdhsa--gfx950"\n.text\n'
        t += k1.gen_k1(NAME + "_kernel", o1)
        open(path, "w").write(t)
        return
    t += f"; @launch kernel=attn_kernel grid=(256,1,1) block=(256,1,1) lds={k1.LDS_BYTES}\n"
    if o1.t3:
        t += f"; @launch kernel=reduce_kernel grid=(256,1,1) block=({256 if o3.w4 else 640 // o3.npc},1,1) lds=0\n"
    else:
        t += f"; @launch kernel=oproj_kernel grid=(256,1,1) block=(256,1,1) lds={k2.LDS_BYTES}\n"
    t += '.amdgcn_target "amdgcn-amd-amdhsa--gfx950"\n.text\n'
    t += k1.gen_k1("attn_kernel", o1)
    t += k3.gen_k3("reduce_kernel", o3) if o1.t3 else k2.gen_k2("oproj_kernel", o2)
    open(path, "w").write(t)
if __name__ == "__main__":
    out = sys.argv[1] if len(sys.argv) > 1 else "cdna_kernels/" + NAME + ".s"
    o = {"k1": k1.Opt(), "k2": k2.Opt2(), "k3": k3.Opt3()}
    for a in sys.argv[2:]:
        k, v = a.split("=", 1)
        tgt, key = o[k[:2]], k[3:]
        cur = getattr(tgt, key)
        setattr(tgt, key, (v not in ("0", "False", "")) if isinstance(cur, bool) else type(cur)(v))
    build(out, o["k1"], o["k2"], o["k3"])
```

```python
from common import *
from sched import *

KRING = 0
VRING = 98304
WQ0 = 32768; WQ_HEAD = 8224; WQ_SLOT = 2 * WQ_HEAD
X0 = 82176; X_SLOT = 20480
LDS_BYTES = 163840
VTOG = 0x38000
S_W, S_HH, S_RH = 4, 5, 6
SRD_X, SRD_WQ, SRD_K, SRD_V, SRD_O = 8, 12, 16, 20, 24
S_T0, S_T1 = 32, 33
S_WQL, S_XL, S_XG, S_WQG = 35, 36, 37, 38
S_KDST, S_VDST, S_KOFF, S_VOFF, S_CNT = 40, 41, 42, 43, 44
S_IDX, S_HG, S_B, S_BR, S_H = 45, 46, 47, 48, 49
S_SC = 50
S_KV = 39; S_WQK = 51; S_XK = 34; S_PT = 7
V_Q = 0
V_XB = [0, 20]
V_AW = 40
V_AX = 44
V_OWQ = 46
V_OX = 50
V_T = 56
V_ACC = 80
V_S = [80, 120]
V_P = [160, 180]
V_OV = 200
V_E = 202
V_OV0 = 70
V_AK = 240; V_AV = 244; V_OK = 252
A_O = 0; A_L = 160; A_ONE = 180; A_F = 184
A_SAVE = 216
SRD_WO, SRD_P = 28, 24
S_WA, S_WB, S_WL = 52, 53, 54
POFF = 32 * 1024 * 1024
WRING = 98304
V_OW = 232
V_AW2 = 236
V_XA = 231
A_ACC2 = [0, 80]
V_BIAS = 208
S_MODE = 92
S_BAD = 64
R_LO, R_HI = 0x27800000, 0x4f800000

def acc(dt, qt): return V_ACC + (dt * 5 + qt) * 4
def qf(j, qt): return V_Q + (j * 5 + qt) * 4
def sreg(par, kt, qt): return V_S[par] + (kt * 5 + qt) * 4
def preg(par, qt): return V_P[par] + qt * 4
def oacc(dt, qt): return A_O + (dt * 5 + qt) * 4
def fbuf(n): return A_F + 4 * (n % 8)

class Opt:
    kv_flag = "nt"
    q_flag = ""
    o_flag = ""
    stamps = False
    pre_all = True
    pf_start = 0
    pf_per = 3
    pf_late = False
    pf_steps = ""
    q_nodma = False
    q_nowait = False
    q_nobar = False
    q_nods = False
    rotg = 8
    rot = True
    pace = 4
    apf = True
    stamp_list = ""
    stamp_set = "q"
    fuse = False
    spin_sleep = 1
    nosync = False
    r_depth = 12
    r_loop = False
    r_flag = "sc1"
    cnt_ws = False
    t3 = True
    p_flag = ""
    w_flag = ""
    c_early = 0
    c_touch = 0
    w_pace = 2
    kv_pace = 0
    t3_nostore = False
    t3_nodma = False
    w_touch = -1
    dbg = False

NSTAMP = [0]
def stamp(e, o, tag):
    if not o.stamps: return
    if o.stamp_list:
        if tag not in o.stamp_list.split(","): return
        k = NSTAMP[0]; NSTAMP[0] += 1
        assert k < 11
        e.comment("stamp " + tag)
        e(f"s_memtime s[{70 + 2*k}:{71 + 2*k}]")
        return
    early = tag in ("issued", "bar0", "B3", "B9", "qconv")
    late = tag.startswith("T")
    if (o.stamp_set == "tail" and early) or (o.stamp_set != "tail" and late): return
    if o.fuse and o.stamp_set != "tail" and tag == "stores_issued": pass
    k = NSTAMP[0]; NSTAMP[0] += 1
    assert k < 12
    e.comment("stamp " + tag)
    e(f"s_memtime s[{70 + 2*k}:{71 + 2*k}]")

def prologue(e, o, name):
    e(f"""
    s_cmp_ge_u32 s2, 256
    s_cbranch_scc1 L_end_{name}
    s_mov_b32 s{S_MODE}, 0
    """)
    if o.c_early: code_touch_early(e, o, name)
    e(f"""
L_restart_{name}:
    s_load_dwordx8 s[52:59], s[0:1], 0       ; A_x A_k A_v A_wq
    s_load_dwordx8 s[60:67], s[0:1], 40      ; B_x B_k B_v B_wq
    s_load_dwordx2 s[68:69], s[0:1], 96      ; ws
    s_load_dwordx2 s[98:99], s[0:1], 32      ; A_wo
    s_load_dwordx2 s[100:101], s[0:1], 72    ; B_wo
    v_lshrrev_b32 v{V_T}, 6, v0
    v_and_b32 v{V_T+1}, 63, v0               ; lane
    v_readfirstlane_b32 s{S_W}, v{V_T}
    s_and_b32 s3, s2, 7
    s_lshr_b32 s{S_IDX}, s2, 3
    s_lshr_b32 s{S_BR}, s3, 2
    s_and_b32 s{S_HG}, s3, 3
    s_lshr_b32 s{S_B}, s{S_IDX}, 2
    s_and_b32 s7, s{S_IDX}, 3
    s_lshr_b32 s{S_HH}, s{S_W}, 1
    s_and_b32 s{S_RH}, s{S_W}, 1
    s_lshl_b32 s{S_H}, s{S_HG}, 3
    s_lshl_b32 s7, s7, 1
    s_add_u32 s{S_H}, s{S_H}, s7
    s_add_u32 s{S_H}, s{S_H}, s{S_HH}
    """)
    if o.stamps:
        e("s_memrealtime s[94:95]")
    stamp(e, o, "start")
    L = V_T + 1
    c, g, rp, cp, t0, t1 = V_T + 2, V_T + 3, V_T + 4, V_T + 5, V_T + 6, V_T + 7
    e(f"""
    v_and_b32 v{c}, 15, v{L}
    v_lshrrev_b32 v{g}, 4, v{L}
    v_bfe_u32 v{rp}, v{L}, 2, 2
    v_and_b32 v{cp}, 3, v{L}
    """)
    e(f"""
    v_lshlrev_b32 v{t0}, 2, v{g}
    v_xor_b32 v{t0}, v{t0}, v{c}
    v_lshlrev_b32 v{t0}, 4, v{t0}
    v_lshl_add_u32 v{V_OWQ}, v{g}, 13, v{t0}
    """)
    for u in range(1, 4):
        e(f"v_add_u32 v{V_OWQ+u}, {u * 32768 - wq_imm(u)}, v{V_OWQ}")
    e(f"""
    v_and_b32 v{t0}, 7, v{L}
    v_xor_b32 v{t0}, v{t0}, v{g}
    v_lshlrev_b32 v{t0}, 4, v{t0}
    v_lshrrev_b32 v{t1}, 3, v{L}
    v_lshl_add_u32 v{t0}, v{t1}, 10, v{t0}
    s_and_b32 s3, s{S_W}, 1
    s_lshl_b32 s3, s3, 6
    v_xor_b32 v{t0}, s3, v{t0}
    v_xor_b32 v{t1}, 64, v{t0}
    """)
    for u in range(5):
        src = t0 if u % 2 == 0 else t1
        e(f"v_add_u32 v{V_OX+u}, {u * 8192 - (u & 3) * 1024}, v{src}")
    e(f"""
    v_xor_b32 v{t0}, v{c}, v{g}
    v_lshlrev_b32 v{t0}, 4, v{t0}
    v_lshl_add_u32 v{V_OK}, v{g}, 8, v{t0}
    v_xor_b32 v{V_OK+1}, 64, v{V_OK}
    v_xor_b32 v{V_OK+2}, 0x80, v{V_OK}
    v_xor_b32 v{V_OK+3}, 0xc0, v{V_OK}
    """)
    e(f"""
    v_lshlrev_b32 v{t0}, 1, v{g}
    v_xor_b32 v{t0}, v{t0}, v{c}
    v_lshlrev_b32 v{t0}, 4, v{t0}
    v_lshl_add_u32 v{V_OV0}, v{g}, 8, v{t0}
    v_xor_b32 v{V_OV0+1}, 0x80, v{V_OV0}
    """)
    e(f"""
    s_mul_i32 s3, s{S_HH}, {WQ_HEAD}
    s_add_u32 s3, s3, {WQ0}
    v_mul_u32_u24 v{t0}, 2056, v{g}
    v_lshl_add_u32 v{t0}, v{rp}, 8, v{t0}
    v_lshl_add_u32 v{t0}, v{cp}, 4, v{t0}
    v_add_u32 v{t0}, s3, v{t0}
    s_mul_i32 s7, s{S_RH}, {4 * 1024 + 16}
    s_add_u32 s{S_WQL}, s3, s7
    s_lshl_b32 s{S_WQG}, s{S_RH}, 17
    """)
    for j in range(4):
        e(f"""
    v_xor_b32 v{t1}, {j}, v{rp}
    v_lshl_add_u32 v{V_AW+j}, v{t1}, 6, v{t0}""")
    e(f"""
    s_mul_i32 s3, s{S_RH}, {80*128}
    s_add_u32 s3, s3, {X0}
    v_lshrrev_b32 v{t0}, 1, v{c}
    v_xor_b32 v{t0}, v{t0}, v{g}
    v_lshlrev_b32 v{t0}, 4, v{t0}
    v_lshl_add_u32 v{t0}, v{c}, 7, v{t0}
    v_add_u32 v{V_AX}, s3, v{t0}
    v_xor_b32 v{V_AX+1}, 64, v{V_AX}
    s_mul_i32 s{S_XL}, s{S_W}, 5120
    s_add_u32 s{S_XL}, s{S_XL}, {X0}
    s_mul_i32 s{S_XG}, s{S_W}, 40960
    """)
    e(f"""
    s_lshl_b32 s3, s{S_HH}, 13
    s_lshl_b32 s7, s{S_RH}, 12
    s_add_u32 s{S_KV}, s3, s7
    v_xor_b32 v{t0}, v{g}, v{c}
    v_lshlrev_b32 v{t0}, 4, v{t0}
    v_lshl_add_u32 v{t0}, v{c}, 8, v{t0}
    v_add_u32 v{V_AK}, s3, v{t0}
    v_xor_b32 v{V_AK+1}, 64, v{V_AK}
    v_xor_b32 v{V_AK+2}, 0x80, v{V_AK}
    v_xor_b32 v{V_AK+3}, 0xc0, v{V_AK}
    """)
    e(f"""
    v_lshlrev_b32 v{V_APA}, 4, v{L}
    v_add_u32 v{V_APA}, s{S_KV}, v{V_APA}
    v_add_u32 v{V_APA+1}, {VRING}, v{V_APA}
    """)
    e(f"""
    s_add_u32 s3, s3, 0x20000
    v_lshl_add_u32 v{t0}, v{g}, 2, v{rp}       ; 4g + r'
    v_and_b32 v{t1}, 7, v{t0}                  ; rho7
    v_lshlrev_b32 v{t0}, 8, v{t0}
    v_lshl_add_u32 v{t0}, v{t1}, 5, v{t0}
    v_lshl_add_u32 v{t0}, v{cp}, 3, v{t0}
    v_add_u32 v{V_AV}, s3, v{t0}
    """)
    for dt in range(1, 8):
        e(f"v_xor_b32 v{V_AV+dt}, {32*dt}, v{V_AV}")
    e(f"""
    s_waitcnt lgkmcnt(0)
    s_cmp_eq_u32 s{S_BR}, 0
    s_cselect_b32 s52, s52, s60
    s_cselect_b32 s53, s53, s61
    s_cselect_b32 s54, s54, s62
    s_cselect_b32 s55, s55, s63
    s_cselect_b32 s56, s56, s64
    s_cselect_b32 s57, s57, s65
    s_cselect_b32 s58, s58, s66
    s_cselect_b32 s59, s59, s67
    s_lshl_b32 s3, s{S_H}, 8
    s_add_u32 s{SRD_WQ}, s58, s3
    s_addc_u32 s{SRD_WQ+1}, s59, 0
    s_sub_u32 s{SRD_WQ+2}, 4194304, s3
    s_mov_b32 s{SRD_WQ+3}, 0x20000
    s_mul_i32 s3, s{S_B}, 163840
    s_add_u32 s{SRD_X}, s52, s3
    s_addc_u32 s{SRD_X+1}, s53, 0
    s_mov_b32 s{SRD_X+2}, 163840
    s_mov_b32 s{SRD_X+3}, 0x20000
    """)
    if o.rot and o.rotg > 1:
        G = o.rotg
        e(f"""
    s_and_b32 s3, s{S_IDX}, 3                ; p
    s_lshl_b32 s3, s3, {1 if G == 8 else 0}
    s_add_u32 s3, s3, s{S_B}
    s_and_b32 s3, s3, {G - 1}
    s_mul_i32 s3, s3, {8 // G}
    s_lshl_b32 s{S_WQK}, s3, 7
    s_lshl_b32 s3, s3, 19                    ; 64 rows * 8192
    s_add_u32 s{S_WQG}, s{S_WQG}, s3
    """)
    else:
        e(f"s_mov_b32 s{S_WQK}, 0")

def prologue2(e, o):
    e(f"""
    s_lshl_b32 s3, s{S_B}, 5
    s_add_u32 s3, s3, s{S_H}
    s_lshl_b32 s3, s3, 17
    s_add_u32 s{SRD_K}, s54, s3
    s_addc_u32 s{SRD_K+1}, s55, 0
    s_mov_b32 s{SRD_K+2}, 131072
    s_mov_b32 s{SRD_K+3}, 0x20000
    s_add_u32 s{SRD_V}, s56, s3
    s_addc_u32 s{SRD_V+1}, s57, 0
    s_mov_b32 s{SRD_V+2}, 131072
    s_mov_b32 s{SRD_V+3}, 0x20000
    s_lshl_b32 s3, s{S_BR}, 3
    s_add_u32 s3, s3, s{S_B}
    s_lshl_b32 s3, s3, 1
    s_add_u32 s3, s3, s{S_RH}
    s_lshl_b32 s3, s3, 5
    s_add_u32 s3, s3, s{S_H}
    s_mul_i32 s3, s3, 20480
    s_add_u32 s{SRD_O}, s68, s3
    s_addc_u32 s{SRD_O+1}, s69, 0
    s_mov_b32 s{SRD_O+2}, 20480
    s_mov_b32 s{SRD_O+3}, 0x20000
    s_mov_b32 s{S_SC}, {f32hex(C_SCALE)}
    """)

def wq_imm(u): return u * 1024 + 8 * (u >> 1)

def dma_wq(o, m, after=-1, before=10**9, pace=0):
    fl = [F('s', txt(f"s_add_u32 m0, s{S_WQL}, {(m % 3) * WQ_SLOT}"), after, before)]
    for u in range(4):
        fl.append(F('l', lambda e, u=u: e.vm_op(f"buffer_load_dwordx4 v{V_OWQ+u}, s[{SRD_WQ}:{SRD_WQ+3}], s{S_WQG} offen offset:{wq_imm(u)} {o.q_flag} lds", f"wq{m}"), after + pace * u, before))
    fl.append(F('s', txt(f"s_add_u32 s{S_WQG}, s{S_WQG}, {32 * 8192}"), after, before))
    fl.append(F('s', txt(f"s_and_b32 s{S_WQG}, s{S_WQG}, 0x3fffff"), after, before))
    return fl

def dma_x(o, M, after=-1, before=10**9, pace=0):
    fl = [F('s', txt(f"s_add_u32 m0, s{S_XL}, {(M % 2) * X_SLOT}"), after, before),
          F('s', txt(f"s_add_u32 s{S_T1}, s{S_XG}, s{S_WQK}"), after, before)]
    for u in range(5):
        if u == 4: fl.append(F('s', txt(f"s_add_u32 m0, s{S_XL}, {(M % 2) * X_SLOT + 4096}"), after, before))
        if u == 4: fl.append(F('s', txt("s_nop 0"), after, before))
        fl.append(F('l', lambda e, u=u: e.vm_op(f"buffer_load_dwordx4 v{V_OX+u}, s[{SRD_X}:{SRD_X+3}], s{S_T1} offen offset:{(u & 3) * 1024} {o.q_flag} lds", f"x{M}"), after + pace * u, before))
    fl.append(F('s', txt(f"s_add_u32 s{S_WQK}, s{S_WQK}, 128"), after, before))
    fl.append(F('s', txt(f"s_and_b32 s{S_WQK}, s{S_WQK}, 0x3ff"), after, before))
    return fl

def dma_pref(o, which, s, after=-1, before=10**9, pace=0):
    if which == 'K':
        base = KRING + 16384 * s; srd = SRD_K; vo = lambda t: V_OK + t
    else:
        base = 0x20000 + 16384 * s; srd = SRD_V; vo = lambda t: V_OV0 + (t & 1)
    fl = [F('s', txt(f"s_add_u32 m0, s{S_KV}, {base}"), after, before),
          F('s', txt(f"s_lshl_b32 s34, s{S_RH}, 12"), after, before),
          F('s', txt(f"s_add_u32 s34, s34, {s * 8192}"), after, before)]
    for t in range(4):
        fl.append(F('l', lambda e, t=t: e.vm_op(f"buffer_load_dwordx4 v{vo(t)}, s[{srd}:{srd+3}], s34 offen offset:{t * 1024} {o.kv_flag} lds", f"{which}{s}"), after + pace * t, before))
    return fl

APF = {('K', 2): 0, ('K', 3): 16, ('V', 2): 32, ('V', 3): 48}
def dma_apf(o, which, s, after=-1, before=10**9, pace=0):
    srd = SRD_K if which == 'K' else SRD_V
    vo = (lambda t: V_OK + t) if which == 'K' else (lambda t: V_OV0 + (t & 1))
    fl = [F('s', txt(f"s_lshl_b32 s34, s{S_RH}, 12"), after, before),
          F('s', txt(f"s_add_u32 s34, s34, {s * 8192}"), after, before)]
    for t in range(4):
        a = APF[(which, s)] + 4 * t
        fl.append(F('l', lambda e, t=t, a=a: e.vm_op(f"buffer_load_dwordx4 a[{a}:{a+3}], v{vo(t)}, s[{srd}:{srd+3}], s34 offen offset:{t * 1024} {o.kv_flag}", f"{which}{s}"), after + pace * t, before))
    return fl
V_APA = 72
def apf_copy(after):
    fl = []
    for (which, s), a0 in APF.items():
        for t in range(4):
            a = a0 + 4 * t
            if which == 'K': txt_ = f"ds_write_b128 v{V_APA}, a[{a}:{a+3}] offset:{KRING + 16384 * s + 1024 * t}"
            else: txt_ = f"ds_write_b128 v{V_APA+1}, a[{a}:{a+3}] offset:{16384 * (s - 2) + 1024 * t}"
            fl.append(F('d', lambda e, txt_=txt_: e.ds_op(txt_, "APF"), after))
    return fl

def zero_acc(e):
    e(f"v_mov_b32 v{V_T+8}, 0x3f803f80")
    for r in range(4):
        e(f"v_accvgpr_write_b32 a{A_ONE + r}, v{V_T+8}")

def code_touch_early(e, o, name):
    e("s_getpc_b64 s[66:67]")
    e.label(f"L_pce_{name}")
    e(f"s_sub_u32 s66, s66, L_pce_{name}-{name}")
    e("s_subb_u32 s67, s67, 0")
    if o.c_early == 1:
        e("v_lshlrev_b32 v74, 7, v0")
        e(f"v_min_u32 v75, CODE_END-{name}-4, v74")
        e.vm_op("global_load_dword v76, v75, s[66:67]", "ce")
        e("v_add_u32 v74, 0x8000, v74")
        e(f"v_min_u32 v75, CODE_END-{name}-4, v74")
        e.vm_op("global_load_dword v77, v75, s[66:67]", "ce")
    elif o.c_early == 2:
        e("v_and_b32 v74, 63, v0")
        e("v_lshlrev_b32 v74, 7, v74")
        e.vm_op("global_load_dword v76, v74, s[66:67]", "ce")
        e("s_lshr_b32 s3, s2, 3")
        e("s_lshl_b32 s3, s3, 11")
        e("v_and_b32 v74, 15, v0")
        e("v_lshlrev_b32 v74, 7, v74")
        e("v_add_u32 v74, s3, v74")
        e(f"v_min_u32 v75, CODE_END-{name}-4, v74")
        e.vm_op("global_load_dword v77, v75, s[66:67]", "ce")
    elif o.c_early == 3:
        e("v_lshlrev_b32 v74, 7, v0")
        e(f"v_min_u32 v75, CODE_END-{name}-4, v74")
        e.vm_op("global_load_dword v76, v75, s[66:67]", "ce")
        e("s_lshr_b32 s3, s2, 3")
        e("s_lshl_b32 s3, s3, 9")
        e("s_add_u32 s3, s3, 0x8000")
        e("v_and_b32 v74, 3, v0")
        e("v_lshlrev_b32 v74, 7, v74")
        e("v_add_u32 v74, s3, v74")
        e(f"v_min_u32 v75, CODE_END-{name}-4, v74")
        e.vm_op("global_load_dword v77, v75, s[66:67]", "ce")

def code_touch(e, va, vd, first):
    e("s_getpc_b64 s[66:67]")
    e.label(f"L_pc{first}_{CODE_NAME[0]}")
    e(f"s_sub_u32 s66, s66, L_pc{first}_{CODE_NAME[0]}-{CODE_NAME[0]}")
    e("s_subb_u32 s67, s67, 0")
    e(f"s_lshl_b32 s3, s{S_IDX}, 11")
    e(f"v_mbcnt_lo_u32_b32 v{va}, -1, 0")
    e(f"v_mbcnt_hi_u32_b32 v{va}, -1, v{va}")
    e(f"v_and_b32 v{va}, 15, v{va}")
    e(f"v_lshlrev_b32 v{va}, 7, v{va}")
    e(f"v_add_u32 v{va}, s3, v{va}")
    e(f"v_min_u32 v{va}, CODE_END-{CODE_NAME[0]}-4, v{va}")
    e.vm_op(f"global_load_dword v{vd}, v{va}, s[66:67]", "ctouch")

CODE_NAME = [""]
def run(e, fl):
    for f in fl: f.fn(e)

def qphase(e, o):
    run(e, dma_wq(o, 0) + dma_x(o, 0) + dma_wq(o, 1))
    if o.pre_all: run(e, dma_wq(o, 2) + dma_x(o, 1))
    prologue2(e, o)
    if o.c_touch: code_touch(e, V_T + 9, V_T + 10, 0)
    stamp(e, o, "issued")
    zero_acc(e)
    idx = lambda m, dt, qt: 40 * m + 5 * dt + qt
    def wfrag(m, dt, after=-1, before=10**9):
        j, tp = dt >> 1, dt & 1
        return [F('d', lambda e, n=n: e.ds_op(f"ds_read_b64_tr_b16 a[{fbuf(dt) + 2 * n}:{fbuf(dt) + 2 * n + 1}], v{V_AW + j} offset:{(m % 3) * WQ_SLOT + n * 1024 + 8 * tp}", f"F{m}_{dt}"), after, before) for n in range(2)]
    def xfrag(m, qt, after=-1, before=10**9):
        M, h = m >> 1, m & 1
        b = V_XB[m & 1] + 4 * qt
        return [F('d', lambda e: e.ds_op(f"ds_read_b128 v[{b}:{b+3}], v{V_AX + h} offset:{(M % 2) * X_SLOT + qt * 2048}", f"B{m}_{qt}"), after, before)]
    def barrier(m):
        def fn(e):
            e.ds_all()
            tags = [f"wq{m+1}"]
            if (m + 1) % 2 == 0: tags.append(f"x{(m+1)//2}")
            if m == 15:
                e.vm_all()
            elif not o.q_nowait or m < 0:
                e.need_vm(tags)
            if not o.q_nobar or m in (-1, 15): e("s_barrier")
            if m in (3, 9): stamp(e, o, f"B{m}")
        return fn
    barrier(-1)(e)
    stamp(e, o, "bar0")
    def nextfrags(m, after, before):
        fl = wfrag(m, 0, after, before)
        for q in range(5): fl += xfrag(m, q, after, before)
        return fl + wfrag(m, 1, after, before) + wfrag(m, 2, after, before)
    run(e, nextfrags(0, -1, 0))
    mains = []; rd = []; dm = []
    pref = [('K', 0), ('K', 1), ('V', 0), ('V', 1)]
    if o.apf: pref += [('K', 2), ('K', 3), ('V', 2), ('V', 3)]
    tnext = [0]
    for m in range(16):
        for dt in range(8):
            for qt in range(5):
                cin = "0" if m == 0 else vr(acc(dt, qt), 4)
                needs = []
                if qt == 0: needs.append(f"F{m}_{dt}")
                if dt == 0: needs.append(f"B{m}_{qt}")
                pre = barrier(m) if (dt == 5 and qt == 0) else None
                mains.append(Main(f"{MFMA} {vr(acc(dt, qt), 4)}, {ar(fbuf(dt), 4)}, {vr(V_XB[m & 1] + 4 * qt, 4)}, {cin}", needs, pre))
        for dt in (3, 4, 5):
            rd += wfrag(m, dt, idx(m, dt - 3, 0), idx(m, dt - 1, 0))
        for dt in (6, 7):
            rd += wfrag(m, dt, idx(m, 2, 2), idx(m, 4, 3))
        if m < 15:
            rd += nextfrags(m + 1, idx(m, 5, 0), idx(m, 7, 4))
        a = idx(m, 5, 0); b = idx(m + 1, 5, 0) if m < 15 else 10**9
        if m == 0 and not o.pre_all:
            dm += dma_wq(o, 2, -1, idx(0, 4, 0)) + dma_x(o, 1, -1, idx(0, 4, 4))
        t = max(a, tnext[0])
        if m + 3 < 16 and not o.q_nodma:
            dm += dma_wq(o, m + 3, t, b, o.pace); t += 4 * o.pace
        if m % 2 == 1 and (m - 1) // 2 + 2 < 8 and not o.q_nodma:
            dm += dma_x(o, (m - 1) // 2 + 2, t, idx(m + 2, 4, 0) if m < 14 else 10**9, o.pace); t += 5 * o.pace
        for n_, (w, s) in enumerate(pref):
            when = int(o.pf_steps.split(",")[n_]) if o.pf_steps else min(o.pf_start + n_ * o.pf_per, 15 if o.pf_late else 13)
            if m == when:
                fn_ = dma_pref if s < 2 else dma_apf
                dm += fn_(o, w, s, t, idx(m + 2, 5, 0) if m < 14 else 10**9, o.pace); t += 4 * o.pace
        tnext[0] = t
        if m == 15 and o.apf:
            rd += apf_copy(a)
        if m == 15 and not o.apf:
            for s in (2, 3):
                dm += [F('s', txt(f"s_add_u32 m0, s{S_KV}, {KRING + 16384 * s}"), a),
                       F('s', txt(f"s_lshl_b32 s34, s{S_RH}, 12"), a),
                       F('s', txt(f"s_add_u32 s34, s34, {s * 8192}"), a)]
                for t in range(4):
                    dm.append(F('l', lambda e, t=t, s=s: e.vm_op(f"buffer_load_dwordx4 v{V_OK + t}, s[{SRD_K}:{SRD_K+3}], s34 offen offset:{t * 1024} {o.kv_flag} lds", f"K{s}"), a))
    if o.q_nods: rd = []
    zip2(e, mains, [rd, dm])

def qconvert(e):
    e("s_nop 7")
    for r in range(V_ACC, V_ACC + 160, 2):
        e(f"v_pk_mul_f32 v[{r}:{r+1}], v[{r}:{r+1}], s[{S_SC}:{S_SC+1}] op_sel_hi:[1,0]")
    for j in range(4):
        for qt in range(5):
            for tp in range(2):
                a0 = acc(2 * j + tp, qt); d = qf(j, qt) + 2 * tp
                e(f"v_cvt_pk_bf16_f32 v{d}, v{a0}, v{a0+1}")
                e(f"v_cvt_pk_bf16_f32 v{d+1}, v{a0+2}, v{a0+3}")

def dma_kv(o, which, after0, i):
    fl = []
    P = o.kv_pace
    after = after0
    if 'K' in which:
        fl.append(F('s', txt(f"s_mov_b32 m0, s{S_KDST}"), after))
        fl.append(F('s', txt(f"s_add_u32 s{S_KDST}, s{S_KDST}, 16384"), after))
        for t in range(4):
            fl.append(F('l', lambda e, t=t: e.vm_op(f"buffer_load_dwordx4 v{V_OK + t}, s[{SRD_K}:{SRD_K+3}], s{S_KOFF} offen offset:{t * 1024} {o.kv_flag} lds", f"K{i+4}"), after))
            after += P
        fl.append(F('s', txt(f"s_and_b32 s{S_KDST}, s{S_KDST}, 0xffff"), after0))
        fl.append(F('s', txt(f"s_add_u32 s{S_KOFF}, s{S_KOFF}, 8192"), after0))
    if 'V' in which:
        fl.append(F('s', txt(f"s_add_u32 m0, s{S_VDST}, {VRING}"), after0))
        fl.append(F('s', txt(f"s_add_u32 s{S_VDST}, s{S_VDST}, 16384"), after0))
        for t in range(4):
            fl.append(F('l', lambda e, t=t: e.vm_op(f"buffer_load_dwordx4 v{V_OV + (t & 1)}, s[{SRD_V}:{SRD_V+3}], s{S_VOFF} offen offset:{t * 1024} {o.kv_flag} lds", f"V{i+2}"), after))
            after += P
        fl.append(F('s', txt(f"s_and_b32 s{S_VDST}, s{S_VDST}, 0xffff"), after0))
        fl.append(F('s', txt(f"s_add_u32 s{S_VOFF}, s{S_VOFF}, 8192"), after0))
    return fl

def kfrag(par_slot, kt, j, n, after=-1, before=10**9):
    return [F('d', lambda e: e.ds_op(f"ds_read_b128 a[{fbuf(n)}:{fbuf(n)+3}], v{V_AK + j} offset:{kt * 4096 + 16384 * par_slot}", f"F{n}"), after, before)]
def vfrag(par_slot, dt, n, after=-1, before=10**9):
    return [F('d', lambda e, h=h: e.ds_op(f"ds_read_b64_tr_b16 a[{fbuf(n) + 2*h}:{fbuf(n) + 2*h + 1}], v{V_AV + dt} offset:{h * 4096 + 16384 * par_slot}", f"F{n}"), after, before) for h in range(2)]

def softmax_fill(par):
    seq = []
    for qt in range(5):
        for kt in range(2):
            s = sreg(par, kt, qt); p = preg(par, qt) + 2 * kt
            seq += [("e", s), ("e", s + 1), ("c", p, s, s + 1), ("e", s + 2), ("e", s + 3), ("c", p + 1, s + 2, s + 3)]
    out = []; pend = None
    for x in seq:
        if x[0] == "c": pend = x
        else:
            out.append(x)
            if pend is not None: out.append(pend); pend = None
    if pend is not None: out.append(("n",)); out.append(pend)
    fl = []
    for x in out:
        if x[0] == "e": fl.append(F('e', txt(f"v_exp_f32 v{x[1]}, v{x[1]}")))
        elif x[0] == "c": fl.append(F('v', txt(f"v_cvt_pk_bf16_f32 v{x[1]}, v{x[2]}, v{x[3]}")))
        else: fl.append(F('s', txt("s_nop 0")))
    return fl

def attn_iter(e, o, i, qk, sm, pv, vwait, dma, pre_next, epi=None, first_pv=False):
    par = i & 1; ks = (i + 1) & 1
    mains = []; rd = []; dm = []
    gstart = {}
    if qk:
        for kt in range(2):
            for j in range(4):
                n = kt * 4 + j
                gstart[n] = len(mains)
                for qt in range(5):
                    d = sreg(par ^ 1, kt, qt)
                    cin = vr(V_BIAS + 4 * qt, 4) if j == 0 else vr(d, 4)
                    mains.append(Main(f"{MFMA} {vr(d, 4)}, {ar(fbuf(n), 4)}, {vr(qf(j, qt), 4)}, {cin}", [f"F{n}"] if qt == 0 else []))
    if pv:
        gstart['l'] = len(mains)
        for qt in range(5):
            mains.append(Main(f"{MFMA} {ar(A_L + 4 * qt, 4)}, {ar(A_ONE, 4)}, {vr(preg(par ^ 1, qt), 4)}, {'0' if first_pv else ar(A_L + 4 * qt, 4)}"))
        for dt in range(8):
            n = 8 + dt
            gstart[n] = len(mains)
            for qt in range(5):
                mains.append(Main(f"{MFMA} {ar(oacc(dt, qt), 4)}, {ar(fbuf(n), 4)}, {vr(preg(par ^ 1, qt), 4)}, {'0' if first_pv else ar(oacc(dt, qt), 4)}", [f"F{n}"] if qt == 0 else []))
    order = [n for n in range(16) if n in gstart]
    ln = len(order)
    for k, n in enumerate(order):
        if qk and n < 3: continue
        after = gstart[order[k - 4]] if k >= 4 else -1
        if k >= ln - 3 and ln >= 6: after = gstart[order[ln - 6]]
        before = gstart[order[k - 1]] if k >= 1 else 0
        if k >= ln - 3 and ln >= 4: before = min(before, gstart[order[ln - 3]])
        rd += kfrag(ks, n >> 2, n & 3, n, after, before) if n < 8 else vfrag(ks, n - 8, n, after, before)
    has_bar = pre_next or vwait is not None
    if has_bar:
        bpos = gstart[order[-2]]
        def bar(e):
            e.ds_all()
            if vwait == 0: e.vm_all()
            elif vwait is not None: e.need_vm([f"K{i+2}", f"V{i}"])
            e("s_barrier")
        mains[bpos].pre = bar
        if par == 0 and qk:
            for j in range(4): rd.append(F('v', txt(f"v_xor_b32 v{V_AK + j}, 0x8000, v{V_AK + j}"), bpos))
        if pre_next:
            for n in range(3): rd += kfrag(ks ^ 1, 0, n, n, bpos, len(mains) - 1)
        if par == 0 and pv:
            for dt in range(8): rd.append(F('v', txt(f"v_xor_b32 v{V_AV + dt}, {hex(VTOG)}, v{V_AV + dt}"), bpos))
    dm += dma_kv(o, dma, -1, i)
    sf = softmax_fill(par) if sm else []
    qs = [rd, dm, sf]
    if epi: qs.append(epi(gstart))
    zip2(e, mains, qs, flush_nop=bool(epi))

def epilogue_fill(o):
    def build(gstart):
        fl = []
        RL = V_E
        W = V_E + 6
        l0 = gstart['l']
        for qt in range(5):
            fl.append(F('v', txt(f"v_accvgpr_read_b32 v{RL + qt}, a{A_L + 4 * qt}"), l0 + 5 + 8))
        for qt in range(5):
            fl.append(F('e', txt(f"v_rcp_f32 v{RL + qt}, v{RL + qt}"), l0 + 5 + 8))
        k = 0
        for jj in range(4):
            ready = gstart[8 + 2 * jj + 1] + 5 + 4
            for qt in range(5):
                w = W + 12 * (k & 1); k += 1
                for tp in range(2):
                    for i in range(4):
                        fl.append(F('v', txt(f"v_accvgpr_read_b32 v{w + 4*tp + i}, a{oacc(2*jj + tp, qt) + i}"), ready))
                for r in range(8):
                    fl.append(F('v', txt(f"v_mul_f32 v{w + r}, v{w + r}, v{RL + qt}"), ready))
                for r in range(4):
                    fl.append(F('v', txt(f"v_cvt_pk_bf16_f32 v{w + 8 + r}, v{w + 2*r}, v{w + 2*r + 1}"), ready))
                off = (jj * 5 + qt) * 1024
                fl.append(F('s', txt(f"s_mov_b32 s{S_T0}, {off}"), ready))
                fl.append(F('l', lambda e, w=w: e.vm_op(f"buffer_store_dwordx4 v[{w+8}:{w+11}], v{V_E + 5}, s[{SRD_O}:{SRD_O+3}], s{S_T0} offen {o.o_flag}", "st"), ready))
        return fl
    return build

WO_A = [131072, 147456, 98304, 81920, 114688]
WO_B = [0, 16384, 32768, 49152, 65536]
def wo_slot(si): return WO_A[si] if si < 5 else WO_B[si - 5] if si < 10 else WO_A[si - 10] if si < 15 else WO_B[0]
V_AWS = 160

def t3_setup(e, o):
    L = V_E + 5
    t0, t1, t2, t3_ = V_E, V_E + 1, V_E + 2, V_E + 3
    e(f"""
    v_lshrrev_b32 v{t0}, 4, v{L}             ; lane
    v_lshrrev_b32 v{t1}, 4, v{t0}            ; g
    v_and_b32 v{t2}, 7, v{t0}
    v_lshlrev_b32 v{t3_}, 1, v{t1}
    v_xor_b32 v{t2}, v{t2}, v{t3_}
    v_lshlrev_b32 v{t2}, 4, v{t2}
    v_lshrrev_b32 v{t3_}, 3, v{t0}
    v_lshl_add_u32 v{V_OW}, v{t3_}, 10, v{t2}
    v_add_u32 v{V_OW+1}, {7168}, v{V_OW}
    v_add_u32 v{V_OW+2}, {2*7168}, v{V_OW}
    v_add_u32 v{V_OW+3}, {3*7168}, v{V_OW}
    v_bfe_u32 v{t2}, v{t0}, 2, 2             ; r'
    v_lshl_add_u32 v{t2}, v{t1}, 2, v{t2}    ; 4g + r'
    v_lshrrev_b32 v{t3_}, 1, v{t2}
    v_and_b32 v{t3_}, 3, v{t3_}
    v_lshlrev_b32 v{t2}, 7, v{t2}
    v_lshl_add_u32 v{t2}, v{t3_}, 5, v{t2}
    v_and_b32 v{t3_}, 3, v{t0}               ; c'
    v_lshl_add_u32 v{t2}, v{t3_}, 3, v{t2}
    s_lshl_b32 s3, s{S_HH}, 13
    v_add_u32 v{V_AW2}, s3, v{t2}
    v_xor_b32 v{V_AW2+1}, 32, v{V_AW2}
    v_xor_b32 v{V_AW2+2}, 64, v{V_AW2}
    v_xor_b32 v{V_AW2+3}, 0x60, v{V_AW2}
    s_mul_i32 s3, s{S_W}, 20480
    v_add_u32 v{V_XA}, s3, v{L}
    s_mov_b32 s{S_WL}, s{S_KV}
    s_lshl_b32 s3, s{S_RH}, 15
    s_lshl_b32 s7, s{S_HH}, 9
    s_add_u32 s3, s3, s7
    s_lshl_b32 s7, s{S_HH}, 17
    s_add_u32 s{S_WA}, s3, s7
    s_xor_b32 s7, s7, 0x20000
    s_add_u32 s{S_WB}, s3, s7
    s_cmp_eq_u32 s{S_BR}, 0
    s_cselect_b32 s60, s98, s100
    s_cselect_b32 s61, s99, s101
    s_sub_u32 s3, s{S_H}, s{S_HH}
    s_lshl_b32 s3, s3, 17                    ; * 128 rows * 1024
    s_add_u32 s{SRD_WO}, s60, s3
    s_addc_u32 s{SRD_WO+1}, s61, 0
    s_mov_b32 s{SRD_WO+2}, 262144
    s_mov_b32 s{SRD_WO+3}, 0x20000
    s_lshl_b32 s3, s{S_BR}, 3
    s_add_u32 s3, s3, s{S_B}
    s_lshl_b32 s3, s3, 4
    s_lshr_b32 s7, s{S_H}, 1
    s_add_u32 s3, s3, s7
    s_lshl_b32 s3, s3, 2
    s_lshl_b32 s7, s{S_RH}, 1
    s_add_u32 s3, s3, s7
    s_add_u32 s3, s3, s{S_HH}
    s_mul_i32 s3, s3, 40960
    s_add_u32 s3, s3, {POFF}
    s_add_u32 s{SRD_P}, s68, s3
    s_addc_u32 s{SRD_P+1}, s69, 0
    s_mov_b32 s{SRD_P+2}, 40960
    s_mov_b32 s{SRD_P+3}, 0x20000
    s_lshl_b32 s3, s{S_HG}, 20
    s_add_u32 s56, s60, s3
    s_addc_u32 s57, s61, 0
    s_mov_b32 s58, 0x100000
    s_mov_b32 s59, 0x20000
    s_lshl_b32 s3, s{S_IDX}, 2
    s_add_u32 s3, s3, s{S_W}
    s_lshl_b32 s3, s3, 13
    v_lshlrev_b32 v{t0}, 3, v{L}             ; lane*128
    v_add_u32 v{t0}, s3, v{t0}
    """)

def dma_wo(o, p, kq, after=-1, before=10**9, pace=0):
    src = S_WA if kq < 2 else S_WB
    fl = [F('s', txt(f"s_add_u32 m0, s{S_WL}, {wo_slot(4 * p + kq)}"), after, before),
          F('s', txt(f"s_add_u32 s{S_T1}, s{src}, {(kq & 1) * 65536 + 128 * p}"), after, before)]
    for t in range(4):
        fl.append(F('l', lambda e, t=t: e.vm_op(f"buffer_load_dwordx4 v{V_OW+t}, s[{SRD_WO}:{SRD_WO+3}], s{S_T1} offen offset:{t*1024} {o.w_flag} lds", f"W{p}_{kq}"), after + pace * t, before))
    return fl

def t3_tail(e, o):
    i = 16; par = 0; ks = 1
    mains = []; rd = []; dm = []; cv = []; st = []
    gstart = {}
    gstart['l'] = 0
    for qt in range(5):
        mains.append(Main(f"{MFMA} {ar(A_L + 4 * qt, 4)}, {ar(A_ONE, 4)}, {vr(preg(1, qt), 4)}, {ar(A_L + 4 * qt, 4)}"))
    for dt in range(8):
        n = 8 + dt
        gstart[n] = len(mains)
        for qt in range(5):
            mains.append(Main(f"{MFMA} {ar(oacc(dt, qt), 4)}, {ar(fbuf(n), 4)}, {vr(preg(1, qt), 4)}, {ar(oacc(dt, qt), 4)}", [f"F{n}"] if qt == 0 else []))
    for k in range(8):
        n = 8 + k
        after = gstart[8 + k - 4] if k >= 4 else -1
        before = gstart[8 + k - 1] if k >= 1 else 0
        rd += vfrag(ks, k, n, after, before)
    NPV = len(mains)
    def a2(p, nt, qt): return A_ACC2[p & 1] + (nt * 5 + qt) * 4
    def bfr(kk, qt): return (kk * 5 + qt) * 4
    S0 = {}
    nfrag = 16
    for p in range(4):
        for kq in range(4):
            S0[(p, kq)] = len(mains)
            for ks2 in range(2):
                kk = 2 * kq + ks2
                for nt in range(4):
                    n = nfrag; nfrag += 1
                    g0 = len(mains)
                    for qt in range(5):
                        cin = "0" if (kq == 0 and ks2 == 0) else ar(a2(p, nt, qt), 4)
                        needs = [f"G{n}"] if qt == 0 else []
                        if p == 0 and kk >= 4 and nt == 0: needs = needs + [f"X{kk}_{qt}"]
                        mains.append(Main(f"{MFMA} {ar(a2(p, nt, qt), 4)}, {ar(fbuf(n), 4)}, {vr(bfr(kk, qt), 4)}, {cin}", needs))
                    gstart[('g', p, kq, ks2, nt)] = (g0, n)
    N = len(mains)
    stages = [(p, kq) for p in range(4) for kq in range(4)]
    def gidx(p, kq, j): return gstart[('g', p, kq, j >> 2, j & 3)]
    BAR = {}
    for si, (p, kq) in enumerate(stages):
        BAR[si] = gidx(p, kq, 5)[0]
    def wfrag(p, kq, j, after, before):
        g0, n = gidx(p, kq, j)
        return [F('d', lambda e, h=h, n=n: e.ds_op(f"ds_read_b64_tr_b16 a[{fbuf(n) + 2*h}:{fbuf(n) + 2*h + 1}], v{V_AWS + 4 * (wo_slot(4 * p + kq) >> 16) + (j & 3)} offset:{(wo_slot(4 * p + kq) & 0xffff) + (j >> 2) * 4096 + h * 2048}", f"G{n}"), after, before) for h in range(2)]
    pv_bar = gstart[8 + 6]
    def bar_first(e):
        e.ds_all()
        e.need_vm("W0_0")
        e("s_barrier")
    mains[pv_bar].pre = bar_first
    rd_pv_last = [f for f in rd]
    for f in rd:
        f.before = min(f.before, pv_bar - 3)
    for si, (p, kq) in enumerate(stages):
        prevbar = pv_bar if si == 0 else BAR[si - 1]
        for j in range(8):
            g0 = gidx(p, kq, j)[0]
            if j < 3:
                after = prevbar; before = S0[(p, kq)] - 1 if j == 0 else gidx(p, kq, j - 1)[0]
                if si == 0 and j == 0: before = NPV - 1
            elif j < 6:
                after = gidx(p, kq, j - 3)[0]; before = gidx(p, kq, j - 1)[0]
            else:
                after = gidx(p, kq, 2)[0] + 2; before = gidx(p, kq, 4)[0] + 3
            rd += wfrag(p, kq, j, after, before)
        def bar(e, si=si):
            if si in ((0, 3, 7, 15) if o.fuse else (0, 3, 7, 11, 15)): stamp(e, o, f"T{si}")
            e.ds_all()
            if si + 1 < 16:
                pn, kn = stages[si + 1]
                e.need_vm(f"W{pn}_{kn}")
            e("s_barrier")
        mains[BAR[si]].pre = bar
    pre = dma_wo(o, 0, 0, -1, 3) + dma_wo(o, 0, 1, -1, 10) + dma_wo(o, 0, 2, -1, 18) + dma_wo(o, 0, 3, -1, 26)
    def st_(si): return stages[si]
    P = o.w_pace
    dm = pre + dma_wo(o, *st_(4), pv_bar, BAR[0], P)
    dm += dma_wo(o, *st_(10), BAR[0], BAR[1], P)
    dm += dma_wo(o, *st_(11), BAR[1], BAR[2], P)
    t = BAR[2]
    for si in (5, 6, 7, 8, 9):
        dm += dma_wo(o, *st_(si), t, BAR[si - 2] if si > 5 else BAR[3], P); t += 4 * P
    dm += dma_wo(o, *st_(12), t, BAR[8], P); t += 4 * P
    dm += dma_wo(o, *st_(13), max(t, BAR[3]), BAR[9], P); t += 4 * P
    dm += dma_wo(o, *st_(14), max(t, BAR[4]), BAR[10], P); t += 4 * P
    dm += dma_wo(o, *st_(15), max(t, BAR[5]), BAR[11], P)
    if o.t3_nodma: dm = pre
    RL = V_E; W = V_E + 6
    l0 = 0
    for qt in range(5): cv.append(F('v', txt(f"v_accvgpr_read_b32 v{RL + qt}, a{A_L + 4 * qt}"), l0 + 5 + 6))
    for qt in range(5): cv.append(F('e', txt(f"v_rcp_f32 v{RL + qt}, v{RL + qt}"), l0 + 5 + 6))
    k = 0
    for jj in range(4):
        ready = gstart[8 + 2 * jj + 1] + 5 + 4
        need = gidx(0, jj >> 1, (jj & 1) * 4)[0]
        if jj == 1: need = gidx(0, 0, 2)[0]
        for qt in range(5):
            w = W + 8 * (k & 1); k += 1
            dl = need + qt - 2 if need + qt - 2 > ready else need
            for tp in range(2):
                for i_ in range(4):
                    cv.append(F('v', txt(f"v_accvgpr_read_b32 v{w + 4*tp + i_}, a{oacc(2*jj + tp, qt) + i_}"), ready, need - 2))
            for r in range(8):
                cv.append(F('v', txt(f"v_mul_f32 v{w + r}, v{w + r}, v{RL + qt}"), ready, need - 2))
            d = bfr(jj, qt)
            for r in range(4):
                cv.append(F('v', txt(f"v_cvt_pk_bf16_f32 v{d + r}, v{w + 2*r}, v{w + 2*r + 1}"), ready, need - 2))
            cv.append(F('d', lambda e, d=d, jj=jj, qt=qt: e.ds_op(f"ds_write_b128 v{V_XA}, v[{d}:{d+3}] offset:{(jj * 5 + qt) * 1024}", "XW"), ready, need - 1))
    xbar = BAR[1]
    cv.append(F('v', txt(f"v_xor_b32 v{V_XA}, {40960}, v{V_XA}") if False else txt(f"v_add_u32 v{V_XA}, s55, v{V_XA}"), xbar, xbar + 2))
    for jj in range(4):
        for qt in range(5):
            d = bfr(4 + jj, qt)
            cv.append(F('d', lambda e, d=d, jj=jj, qt=qt: e.ds_op(f"ds_read_b128 v[{d}:{d+3}], v{V_XA} offset:{(jj * 5 + qt) * 1024}", f"X{4+jj}_{qt}"), xbar + 1, S0[(0, 2)] - 6 if jj < 2 else BAR[2] - 4))
    gd = []
    for qt in range(5):
        a_, b_ = S0[(0, 2)], S0[(1, 0)] - 2
        gd.append(F('v', txt(f"v_med3_f32 v224, v{RL + qt}, s66, v225"), a_, b_))
        gd.append(F('v', txt(f"v_cmp_neq_f32 s[62:63], v224, v{RL + qt}"), a_, b_))
        gd.append(F('s', txt("s_nop 1"), a_, b_))
        gd.append(F('s', txt(f"s_or_b64 s[{S_BAD}:{S_BAD+1}], s[{S_BAD}:{S_BAD+1}], s[62:63]"), a_, b_))
    W2 = V_E + 6
    k = 0
    for p in range(4):
        start = S0[(p + 1, 0)] + 6 if p < 3 else N
        end = S0[(p + 1, 3)] if p < 2 else 10**9
        if p == 2: end = N - 10
        for u in range(2):
            for qt in range(5):
                w = W2 + 12 * (k & 1); k += 1
                for tp in range(2):
                    for i_ in range(4):
                        st.append(F('v', txt(f"v_accvgpr_read_b32 v{w + 4*tp + i_}, a{a2(p, 2*u + tp, qt) + i_}"), start, end))
                for r in range(4):
                    st.append(F('v', txt(f"v_cvt_pk_bf16_f32 v{w + 8 + r}, v{w + 2*r}, v{w + 2*r + 1}"), start, end))
                off = (p * 10 + u * 5 + qt) * 1024
                st.append(F('s', txt(f"s_mov_b32 s{S_T0}, {off}"), start, end))
                if not o.t3_nostore: st.append(F('l', lambda e, w=w: e.vm_op(f"buffer_store_dwordx4 v[{w+8}:{w+11}], v{V_E + 5}, s[{SRD_P}:{SRD_P+3}], s{S_T0} offen {o.p_flag}", "st"), start, end))
    e(f"s_mov_b64 s[{S_BAD}:{S_BAD+1}], 0")
    e(f"s_mov_b32 s66, {hex(R_LO)}")
    e(f"v_mov_b32 v225, {hex(R_HI)}")
    for k_ in range(3):
        for j in range(4):
            e(f"v_add_u32 v{V_AWS + 4 * k_ + j}, {65536 * k_}, v{V_AW2 + j}")
    e(f"s_lshl_b32 s{S_T0}, s{S_HH}, 1")
    e(f"s_sub_u32 s{S_T0}, 1, s{S_T0}")
    e(f"s_mul_i32 s{S_T0}, s{S_T0}, 40960")
    e(f"s_mov_b32 s55, s{S_T0}")
    for f in cv:
        pass
    zip2(e, mains, [rd, dm, cv, gd, st], flush_nop=True)

def max_pass(e, o, name):
    M = 120; L16 = V_E + 5; T = 126
    e.label(f"L_maxpass_{name}")
    e("s_waitcnt vmcnt(0) lgkmcnt(0)")
    for qt in range(5): e(f"v_mov_b32 v{M + qt}, 0xff800000")
    e(f"s_mov_b32 s{S_CNT}, 0")
    e(f"s_lshl_b32 s{S_T1}, s{S_RH}, 12")
    e.label(f"L_maxloop_{name}")
    e("s_barrier")
    e(f"s_mov_b32 m0, s{S_KV}")
    e("s_nop 0")
    for t in range(4):
        e(f"buffer_load_dwordx4 v{V_OK + t}, s[{SRD_K}:{SRD_K+3}], s{S_T1} offen offset:{t * 1024} lds")
    e("s_waitcnt vmcnt(0)")
    e("s_barrier")
    for n in range(8):
        e(f"ds_read_b128 a[{fbuf(n)}:{fbuf(n)+3}], v{V_AK + (n & 3)} offset:{(n >> 2) * 4096}")
    e("s_waitcnt lgkmcnt(0)")
    for kt in range(2):
        for j in range(4):
            for qt in range(5):
                d = sreg(0, kt, qt)
                e(f"{MFMA} {vr(d, 4)}, {ar(fbuf(kt * 4 + j), 4)}, {vr(qf(j, qt), 4)}, {'0' if j == 0 else vr(d, 4)}")
    e("s_nop 7")
    e("s_nop 3")
    for qt in range(5):
        for kt in range(2):
            d = sreg(0, kt, qt)
            e(f"v_max3_f32 v{M + qt}, v{d}, v{d+1}, v{M + qt}")
            e(f"v_max3_f32 v{M + qt}, v{d+2}, v{d+3}, v{M + qt}")
    e(f"s_add_u32 s{S_T1}, s{S_T1}, 8192")
    e(f"s_add_u32 s{S_CNT}, s{S_CNT}, 1")
    e(f"s_cmp_lt_u32 s{S_CNT}, 16")
    e(f"s_cbranch_scc1 L_maxloop_{name}")
    e("s_barrier")
    e(f"s_lshl_b32 s{S_T1}, s{S_RH}, 12")
    e(f"s_mov_b32 m0, s{S_KV}")
    e("s_nop 0")
    for t in range(4):
        e(f"buffer_load_dwordx4 v{V_OK + t}, s[{SRD_K}:{SRD_K+3}], s{S_T1} offen offset:{t * 1024} lds")
    e(f"v_lshrrev_b32 v{T}, 2, v{L16}")
    e(f"v_xor_b32 v{T+1}, 64, v{T}")
    e(f"v_xor_b32 v{T+2}, 0x80, v{T}")
    for x in (1, 2):
        for qt in range(5): e(f"ds_bpermute_b32 v{T + 3 + qt}, v{T + x}, v{M + qt}")
        e("s_waitcnt lgkmcnt(0)")
        for qt in range(5): e(f"v_max_f32 v{M + qt}, v{M + qt}, v{T + 3 + qt}")
    for qt in range(5):
        for r in range(4): e(f"v_sub_f32 v{V_BIAS + 4 * qt + r}, 0, v{M + qt}")
    e("s_waitcnt vmcnt(0)")
    e("s_barrier")
    for n in range(3): run(e, kfrag(0, 0, n, n))
    e(f"s_branch L_maxdone_{name}")

def vote(e, o, name):
    T = V_E
    e(f"s_cmp_lg_u64 s[{S_BAD}:{S_BAD+1}], 0")
    e(f"s_cselect_b32 s3, 1, 0")
    e(f"v_mov_b32 v{T}, s3")
    e(f"s_lshl_b32 s7, s{S_W}, 2")
    e(f"v_mov_b32 v{T+1}, s7")
    e(f"ds_write_b32 v{T+1}, v{T}")
    if o.fuse:
        e("s_load_dwordx4 s[56:59], s[0:1], 80")
        e("s_waitcnt vmcnt(0) lgkmcnt(0)")
    else:
        e("s_waitcnt lgkmcnt(0)")
    e("s_barrier")
    e(f"v_mov_b32 v{T+1}, 0")
    e(f"ds_read_b128 v[{T+2}:{T+5}], v{T+1}")
    e("s_waitcnt lgkmcnt(0)")
    e(f"v_or_b32 v{T+2}, v{T+2}, v{T+3}")
    e(f"v_or3_b32 v{T+2}, v{T+2}, v{T+4}, v{T+5}")
    e("s_nop 0")
    e(f"v_readfirstlane_b32 s3, v{T+2}")
    e(f"s_cmp_eq_u32 s{S_MODE}, 0")
    e(f"s_cselect_b32 s3, s3, 0")
    e(f"s_cmp_eq_u32 s3, 0")
    e(f"s_cbranch_scc1 L_fine_{name}")
    e(f"s_mov_b32 s{S_MODE}, 1")
    e("s_waitcnt vmcnt(0)")
    e("s_barrier")
    e("v_mbcnt_lo_u32_b32 v0, -1, 0")
    e("v_mbcnt_hi_u32_b32 v0, -1, v0")
    e(f"s_lshl_b32 s3, s{S_W}, 6")
    e("v_add_u32 v0, s3, v0")
    e(f"s_branch L_restart_{name}")
    e.label(f"L_fine_{name}")

def fused_reduce(e, o, name):
    G, R, J = 60, 61, 62
    e(f"""
    s_lshl_b32 s{G}, s{S_BR}, 3
    s_add_u32 s{G}, s{G}, s{S_B}             ; group
    s_lshr_b32 s{R}, s{S_H}, 1
    v_mbcnt_lo_u32_b32 v248, -1, 0
    v_mbcnt_hi_u32_b32 v248, -1, v248        ; lane
    s_cmp_eq_u32 s{S_W}, {99 if o.nosync else 0}
    s_cbranch_scc0 L_arrived_{name}
    s_lshl_b32 s3, s{G}, {12 if o.cnt_ws else 4}
    {f"s_add_u32 s3, s3, {220*1024*1024}" if o.cnt_ws else ""}
    {"s_mov_b32 s58, s68" if o.cnt_ws else ""}
    {"s_mov_b32 s59, s69" if o.cnt_ws else ""}
    v_mov_b32 v249, s3
    v_mov_b32 v250, 1
    s_mov_b64 s[64:65], exec
    s_mov_b64 exec, 1
    global_atomic_add v249, v250, s[58:59]
    s_mov_b32 s7, 0
L_poll_{name}:
    global_load_dword v251, v249, s[58:59] sc1
    s_waitcnt vmcnt(0)
    v_readfirstlane_b32 s3, v251
    s_add_u32 s7, s7, 1
    s_cmp_ge_u32 s3, 16
    s_cbranch_scc1 L_polled_{name}
    s_sleep {o.spin_sleep}
    s_cmp_lt_u32 s7, 0x40000
    s_cbranch_scc1 L_poll_{name}
L_polled_{name}:
    s_mov_b64 exec, s[64:65]
L_arrived_{name}:
    s_barrier
    """)
    stamp(e, o, "polled")
    e(f"""
    v_lshlrev_b32 v249, 4, v248              ; lane*16
    s_mul_i32 s3, s{G}, {16 * 163840}
    s_add_u32 s3, s3, {POFF}
    s_add_u32 s8, s68, s3
    s_addc_u32 s9, s69, 0
    s_mov_b32 s10, {16 * 163840}
    s_mov_b32 s11, 0x20000
    s_mul_i32 s{J}, s{R}, 10
    s_add_u32 s{J}, s{J}, s{S_W}
    s_mov_b32 s12, s56
    s_mov_b32 s13, s57
    s_mov_b32 s14, 2621440
    s_mov_b32 s15, 0x20000
    v_and_b32 v250, 15, v248
    v_lshrrev_b32 v251, 4, v248
    v_lshlrev_b32 v250, 11, v250
    v_lshl_add_u32 v250, v251, 3, v250       ; c*2048 + g*8
    """)
    def load1(k, hp):
        r = 64 * k + 4 * hp
        if hp == 0:
            e(f"s_add_u32 s3, s{J}, {4 * k}")
            e(f"s_lshl_b32 s3, s3, 10")
        e.vm_op(f"buffer_load_dwordx4 v[{r}:{r+3}], v249, s[8:11], s3 offen {o.r_flag}", f"R{k}_{hp}")
        if hp < 15: e("s_add_u32 s3, s3, 163840")
    def outaddr(k, dst):
        e(f"""
    s_add_u32 s16, s{J}, {4 * k}
    s_mul_hi_u32 s17, s16, 0x1999999a
    s_mul_i32 s18, s17, 10
    s_sub_u32 s18, s16, s18
    s_cmp_ge_u32 s18, 5
    s_cselect_b32 s19, 1, 0                  ; u
    s_mul_i32 s20, s19, 5
    s_sub_u32 s18, s18, s20                  ; qt
    s_and_b32 s20, s17, 3                    ; p
    s_bfe_u32 s21, s17, 0x10002              ; hh
    s_lshr_b32 s22, s17, 3                   ; rh
    s_mul_i32 s23, s{S_B}, 160
    s_mul_i32 s22, s22, 80
    s_add_u32 s23, s23, s22
    s_lshl_b32 s18, s18, 4
    s_add_u32 s23, s23, s18
    s_lshl_b32 s23, s23, 11
    s_lshl_b32 s22, s{S_BR}, 10
    s_add_u32 s23, s23, s22
    s_lshl_b32 s21, s21, 9
    s_add_u32 s23, s23, s21
    s_lshl_b32 s20, s20, 7
    s_add_u32 s23, s23, s20
    s_lshl_b32 s19, s19, 6
    s_add_u32 s{dst}, s23, s19
    """)
    def run_pieces(np_):
        A = 224; T = 232
        order = [(k, hp) for k in range(np_) for hp in range(16)]
        D = o.r_depth
        e.vm = []; e.vm_waited = set()
        for x in order[:D]: load1(*x)
        for k in range(np_): outaddr(k, 24 + k)
        for n, (k, hp) in enumerate(order):
            e.need_vm(f"R{k}_{hp}")
            if n + D < len(order): load1(*order[n + D])
            for d in range(4):
                r = 64 * k + 4 * hp + d
                if hp == 0:
                    e(f"v_lshlrev_b32 v{A + 2*d}, 16, v{r}")
                    e(f"v_and_b32 v{A + 2*d + 1}, 0xffff0000, v{r}")
                else:
                    e(f"v_lshlrev_b32 v{T + 2*(d & 1)}, 16, v{r}")
                    e(f"v_and_b32 v{T + 2*(d & 1) + 1}, 0xffff0000, v{r}")
                    e(f"v_add_f32 v{A + 2*d}, v{A + 2*d}, v{T + 2*(d & 1)}")
                    e(f"v_add_f32 v{A + 2*d + 1}, v{A + 2*d + 1}, v{T + 2*(d & 1) + 1}")
            if hp == 15:
                o0 = 236 + 4 * (k & 1)
                for d in range(4): e(f"v_cvt_pk_bf16_f32 v{o0 + d}, v{A + 2*d}, v{A + 2*d + 1}")
                e.vm_op(f"buffer_store_dwordx2 v[{o0}:{o0+1}], v250, s[12:15], s{24 + k} offen", f"S{k}")
                e.vm_op(f"buffer_store_dwordx2 v[{o0+2}:{o0+3}], v250, s[12:15], s{24 + k} offen offset:32", f"S{k}")
    if o.r_loop:
        A = 224; T = 232
        e.label(f"L_rloop_{name}")
        e(f"s_lshl_b32 s3, s{J}, 10")
        for hp in range(16):
            e(f"buffer_load_dwordx4 v[{4*hp}:{4*hp+3}], v249, s[8:11], s3 offen {o.r_flag}")
            if hp < 15: e("s_add_u32 s3, s3, 163840")
        outaddr(0, 24)
        for hp in range(16):
            e(f"s_waitcnt vmcnt({15 - hp})")
            for d in range(4):
                r = 4 * hp + d
                if hp == 0:
                    e(f"v_lshlrev_b32 v{A + 2*d}, 16, v{r}")
                    e(f"v_and_b32 v{A + 2*d + 1}, 0xffff0000, v{r}")
                else:
                    e(f"v_lshlrev_b32 v{T + 2*(d & 1)}, 16, v{r}")
                    e(f"v_and_b32 v{T + 2*(d & 1) + 1}, 0xffff0000, v{r}")
                    e(f"v_add_f32 v{A + 2*d}, v{A + 2*d}, v{T + 2*(d & 1)}")
                    e(f"v_add_f32 v{A + 2*d + 1}, v{A + 2*d + 1}, v{T + 2*(d & 1) + 1}")
        for d in range(4): e(f"v_cvt_pk_bf16_f32 v{236 + d}, v{A + 2*d}, v{A + 2*d + 1}")
        e(f"buffer_store_dwordx2 v[236:237], v250, s[12:15], s24 offen")
        e(f"buffer_store_dwordx2 v[238:239], v250, s[12:15], s24 offen offset:32")
        e(f"s_add_u32 s{J}, s{J}, 4")
        e(f"s_mul_i32 s3, s{R}, 10")
        e(f"s_add_u32 s3, s3, 10")
        e(f"s_cmp_lt_u32 s{J}, s3")
        e(f"s_cbranch_scc1 L_rloop_{name}")
        return
    e(f"s_cmp_lt_u32 s{S_W}, 2")
    e(f"s_cbranch_scc0 L_two_{name}")
    run_pieces(3)
    e(f"s_branch L_reduced_{name}")
    e.label(f"L_two_{name}")
    run_pieces(2)
    e.label(f"L_reduced_{name}")

def gen_k1(name, o):
    NSTAMP[0] = 0
    CODE_NAME[0] = name
    e = Em()
    e.lines.append(kernel_head(name))
    prologue(e, o, name)
    qphase(e, o)
    stamp(e, o, "qdone")
    e(f"v_accvgpr_write_b32 a{A_SAVE}, v{V_OV0}")
    e(f"v_accvgpr_write_b32 a{A_SAVE+1}, v{V_OV0+1}")
    e(f"v_accvgpr_write_b32 a{A_SAVE+2}, v{V_T+1}")
    for n in range(3): run(e, kfrag(0, 0, n, n))
    qconvert(e)
    stamp(e, o, "qconv")
    e(f"""
    v_accvgpr_read_b32 v{V_OV}, a{A_SAVE}
    v_accvgpr_read_b32 v{V_OV+1}, a{A_SAVE+1}
    v_accvgpr_read_b32 v{V_E+5}, a{A_SAVE+2}
    s_mov_b32 s{S_KDST}, s{S_KV}             ; K(4) -> slot 0
    s_add_u32 s{S_VDST}, s{S_KV}, {32768 if o.apf else 0}          ; V(4) / V(2)
    s_lshl_b32 s7, s{S_RH}, 12
    s_add_u32 s{S_KOFF}, s7, {4 * 8192}
    s_add_u32 s{S_VOFF}, s7, {(4 if o.apf else 2) * 8192}
    v_lshlrev_b32 v{V_E+5}, 4, v{V_E+5}
    """)
    if o.t3: t3_setup(e, o)
    for r in range(20): e(f"v_mov_b32 v{V_BIAS + r}, 0")
    e(f"s_cmp_eq_u32 s{S_MODE}, 0")
    e(f"s_cbranch_scc0 L_maxpass_{name}")
    e.label(f"L_maxdone_{name}")
    if o.pf_late:
        e("s_waitcnt vmcnt(0)"); e("s_barrier"); e.vm = []
        for n in range(3): run(e, kfrag(0, 0, n, n))
    attn_iter(e, o, -1, True, False, False, 1, '', True)
    if o.apf:
        attn_iter(e, o, 0, True, True, False, 1, 'K', True)
        attn_iter(e, o, 1, True, True, True, 1, 'K', True, first_pv=True)
        attn_iter(e, o, 2, True, True, True, 1, 'KV', True)
    else:
        attn_iter(e, o, 0, True, True, False, 1, 'KV', True)
        attn_iter(e, o, 1, True, True, True, 1, 'KV', True, first_pv=True)
        attn_iter(e, o, 2, True, True, True, 1, 'KV', True)
    stamp(e, o, "iter0_done")
    e(f"s_mov_b32 s{S_CNT}, 0")
    ds0 = list(e.ds)
    e.label(f"L_loop_{name}")
    if o.t3 and o.w_touch >= 0:
        e(f"s_cmp_eq_u32 s{S_CNT}, {o.w_touch}")
        e(f"s_cbranch_scc0 L_nowt_{name}")
        e(f"buffer_load_dword v{V_E + 1}, v{V_E}, s[56:59], 0 offen")
        if o.c_touch >= 2:
            vq = list(e.vm); code_touch(e, V_E + 2, V_E + 3, 1); e.vm = vq
        e.label(f"L_nowt_{name}")
    n0 = len(e.lines)
    attn_iter(e, o, 3, True, True, True, 1, 'KV', True)
    attn_iter(e, o, 4, True, True, True, 1, 'KV', True)
    import copy
    e2 = copy.deepcopy(e); n1 = len(e2.lines)
    attn_iter(e2, o, 5, True, True, True, 1, 'KV', True)
    attn_iter(e2, o, 6, True, True, True, 1, 'KV', True)
    assert e.lines[n0:n1] == e2.lines[n1:], "loop body is not in steady state"
    assert e.ds == ds0, (e.ds, ds0)
    e(f"s_add_u32 s{S_CNT}, s{S_CNT}, 1")
    e(f"s_cmp_lt_u32 s{S_CNT}, 6")
    e(f"s_cbranch_scc1 L_loop_{name}")
    e.ds_all()
    stamp(e, o, "loop_done")
    attn_iter(e, o, 15, False, True, True, 0, '', False)
    if o.t3:
        t3_tail(e, o)
    else:
        attn_iter(e, o, 16, False, False, True, None, '', False, epi=epilogue_fill(o))
    stamp(e, o, "stores_issued")
    vote(e, o, name)
    if o.fuse:
        stamp(e, o, "Tsig")
        fused_reduce(e, o, name)
    if o.stamps: e("s_waitcnt vmcnt(0)")
    stamp(e, o, "end")
    if o.stamps:
        e(f"""
    s_memrealtime s[96:97]
    s_waitcnt lgkmcnt(0)
    s_lshl_b32 s3, s2, 2
    s_add_u32 s3, s3, s{S_W}
    s_lshl_b32 s3, s3, 7
    s_add_u32 s3, s3, {200*1024*1024}
    v_mov_b32 v30, s3
    s_mov_b64 exec, 1
    """)
        for k in range(14):
            e(f"v_mov_b32 v0, s{70 + 2*k}")
            e(f"v_mov_b32 v1, s{71 + 2*k}")
            e(f"global_store_dwordx2 v30, v[0:1], s[68:69] offset:{8*k}")
            e("s_nop 1")
        e("s_waitcnt vmcnt(0)")
        if o.dbg:
            e(f"""
    s_or_b32 s3, s2, s{S_W}
    s_cmp_eq_u32 s3, 0
    s_cbranch_scc0 L_end_{name}
    s_load_dwordx2 s[98:99], s[0:1], 88
    s_waitcnt lgkmcnt(0)
    v_mov_b32 v30, 0
    """)
            for k in range(1, 11):
                e(f"s_sub_u32 s3, s{70 + 2*k}, s70")
                e(f"v_mov_b32 v0, s3")
                e(f"global_store_dword v30, v0, s[98:99] offset:{4*k}")
                e("s_nop 1")
            e("s_sub_u32 s3, s96, s94")
            e("v_mov_b32 v0, s3")
            e("global_store_dword v30, v0, s[98:99] offset:0")
            e("s_waitcnt vmcnt(0)")
    e.label(f"L_end_{name}")
    e("s_endpgm")
    dsq, vmq = list(e.ds), list(e.vm)
    max_pass(e, o, name)
    e.label("CODE_END")
    return e.text() + kernel_desc(name, 512, 256)
```

```python
from common import *
from sched import *

KRING = 0
VRING = 98304
WQ0 = 32768; WQ_HEAD = 8224; WQ_SLOT = 2 * WQ_HEAD
X0 = 82176; X_SLOT = 20480
LDS_BYTES = 163840
VTOG = 0x38000
S_W, S_HH, S_RH = 4, 5, 6
SRD_X, SRD_WQ, SRD_K, SRD_V, SRD_O = 8, 12, 16, 20, 24
S_T0, S_T1 = 32, 33
S_WQL, S_XL, S_XG, S_WQG = 35, 36, 37, 38
S_KDST, S_VDST, S_KOFF, S_VOFF, S_CNT = 40, 41, 42, 43, 44
S_IDX, S_HG, S_B, S_BR, S_H = 45, 46, 47, 48, 49
S_SC = 50
S_KV = 39; S_WQK = 51; S_XK = 34; S_PT = 7
V_Q = 0
V_XB = [0, 20]
V_AW = 40
V_AX = 44
V_OWQ = 46
V_OX = 50
V_T = 56
V_ACC = 80
V_S = [80, 120]
V_P = [160, 180]
V_OV = 200
V_E = 202
V_OV0 = 70
V_AK = 240; V_AV = 244; V_OK = 252
A_O = 0; A_L = 160; A_ONE = 180; A_F = 184
A_SAVE = 216
SRD_WO, SRD_P = 28, 24
S_WA, S_WB, S_WL = 52, 53, 54
POFF = 32 * 1024 * 1024
WRING = 98304
V_OW = 232
V_AW2 = 236
V_XA = 231
A_ACC2 = [0, 80]
V_BIAS = 208
S_MODE = 92
S_BAD = 64
R_LO, R_HI = 0x27800000, 0x4f800000

def acc(dt, qt): return V_ACC + (dt * 5 + qt) * 4
def qf(j, qt): return V_Q + (j * 5 + qt) * 4
def sreg(par, kt, qt): return V_S[par] + (kt * 5 + qt) * 4
def preg(par, qt): return V_P[par] + qt * 4
def oacc(dt, qt): return A_O + (dt * 5 + qt) * 4
def fbuf(n): return A_F + 4 * (n % 8)

class Opt:
    kv_flag = "nt"
    q_flag = ""
    o_flag = ""
    stamps = False
    pre_all = True
    pf_start = 0
    pf_per = 3
    pf_late = False
    pf_steps = ""
    q_nodma = False
    q_nowait = False
    q_nobar = False
    q_nods = False
    rotg = 8
    rot = True
    pace = 4
    apf = True
    stamp_list = ""
    stamp_set = "q"
    fuse = False
    spin_sleep = 1
    nosync = False
    r_depth = 12
    r_loop = False
    r_flag = "sc1"
    cnt_ws = False
    t3 = True
    p_flag = ""
    w_flag = ""
    c_k3_at = 3
    c_k3 = 0
    c_early = 0
    c_touch = 0
    w_pace = 2
    kv_pace = 0
    t3_nostore = False
    t3_nodma = False
    w_touch = -1
    dbg = False

NSTAMP = [0]
def stamp(e, o, tag):
    if not o.stamps: return
    if o.stamp_list:
        if tag not in o.stamp_list.split(","): return
        k = NSTAMP[0]; NSTAMP[0] += 1
        assert k < 11
        e.comment("stamp " + tag)
        e(f"s_memtime s[{70 + 2*k}:{71 + 2*k}]")
        return
    early = tag in ("issued", "bar0", "B3", "B9", "qconv")
    late = tag.startswith("T")
    if (o.stamp_set == "tail" and early) or (o.stamp_set != "tail" and late): return
    if o.fuse and o.stamp_set != "tail" and tag == "stores_issued": pass
    k = NSTAMP[0]; NSTAMP[0] += 1
    assert k < 12
    e.comment("stamp " + tag)
    e(f"s_memtime s[{70 + 2*k}:{71 + 2*k}]")

def prologue(e, o, name):
    e(f"""
    s_cmp_ge_u32 s2, 256
    s_cbranch_scc1 L_end_{name}
    s_mov_b32 s{S_MODE}, 0
    """)
    if o.c_early: code_touch_early(e, o, name)
    e(f"""
L_restart_{name}:
    s_load_dwordx8 s[52:59], s[0:1], 0       ; A_x A_k A_v A_wq
    s_load_dwordx8 s[60:67], s[0:1], 40      ; B_x B_k B_v B_wq
    s_load_dwordx2 s[68:69], s[0:1], 96      ; ws
    s_load_dwordx2 s[98:99], s[0:1], 32      ; A_wo
    s_load_dwordx2 s[100:101], s[0:1], 72    ; B_wo
    v_lshrrev_b32 v{V_T}, 6, v0
    v_and_b32 v{V_T+1}, 63, v0               ; lane
    v_readfirstlane_b32 s{S_W}, v{V_T}
    s_and_b32 s3, s2, 7
    s_lshr_b32 s{S_IDX}, s2, 3
    s_lshr_b32 s{S_BR}, s3, 2
    s_and_b32 s{S_HG}, s3, 3
    s_lshr_b32 s{S_B}, s{S_IDX}, 2
    s_and_b32 s7, s{S_IDX}, 3
    s_lshr_b32 s{S_HH}, s{S_W}, 1
    s_and_b32 s{S_RH}, s{S_W}, 1
    s_lshl_b32 s{S_H}, s{S_HG}, 3
    s_lshl_b32 s7, s7, 1
    s_add_u32 s{S_H}, s{S_H}, s7
    s_add_u32 s{S_H}, s{S_H}, s{S_HH}
    """)
    if o.stamps:
        e("s_memrealtime s[94:95]")
    stamp(e, o, "start")
    L = V_T + 1
    c, g, rp, cp, t0, t1 = V_T + 2, V_T + 3, V_T + 4, V_T + 5, V_T + 6, V_T + 7
    e(f"""
    v_and_b32 v{c}, 15, v{L}
    v_lshrrev_b32 v{g}, 4, v{L}
    v_bfe_u32 v{rp}, v{L}, 2, 2
    v_and_b32 v{cp}, 3, v{L}
    """)
    e(f"""
    v_lshlrev_b32 v{t0}, 2, v{g}
    v_xor_b32 v{t0}, v{t0}, v{c}
    v_lshlrev_b32 v{t0}, 4, v{t0}
    v_lshl_add_u32 v{V_OWQ}, v{g}, 13, v{t0}
    """)
    for u in range(1, 4):
        e(f"v_add_u32 v{V_OWQ+u}, {u * 32768 - wq_imm(u)}, v{V_OWQ}")
    e(f"""
    v_and_b32 v{t0}, 7, v{L}
    v_xor_b32 v{t0}, v{t0}, v{g}
    v_lshlrev_b32 v{t0}, 4, v{t0}
    v_lshrrev_b32 v{t1}, 3, v{L}
    v_lshl_add_u32 v{t0}, v{t1}, 10, v{t0}
    s_and_b32 s3, s{S_W}, 1
    s_lshl_b32 s3, s3, 6
    v_xor_b32 v{t0}, s3, v{t0}
    v_xor_b32 v{t1}, 64, v{t0}
    """)
    for u in range(5):
        src = t0 if u % 2 == 0 else t1
        e(f"v_add_u32 v{V_OX+u}, {u * 8192 - (u & 3) * 1024}, v{src}")
    e(f"""
    v_xor_b32 v{t0}, v{c}, v{g}
    v_lshlrev_b32 v{t0}, 4, v{t0}
    v_lshl_add_u32 v{V_OK}, v{g}, 8, v{t0}
    v_xor_b32 v{V_OK+1}, 64, v{V_OK}
    v_xor_b32 v{V_OK+2}, 0x80, v{V_OK}
    v_xor_b32 v{V_OK+3}, 0xc0, v{V_OK}
    """)
    e(f"""
    v_lshlrev_b32 v{t0}, 1, v{g}
    v_xor_b32 v{t0}, v{t0}, v{c}
    v_lshlrev_b32 v{t0}, 4, v{t0}
    v_lshl_add_u32 v{V_OV0}, v{g}, 8, v{t0}
    v_xor_b32 v{V_OV0+1}, 0x80, v{V_OV0}
    """)
    e(f"""
    s_mul_i32 s3, s{S_HH}, {WQ_HEAD}
    s_add_u32 s3, s3, {WQ0}
    v_mul_u32_u24 v{t0}, 2056, v{g}
    v_lshl_add_u32 v{t0}, v{rp}, 8, v{t0}
    v_lshl_add_u32 v{t0}, v{cp}, 4, v{t0}
    v_add_u32 v{t0}, s3, v{t0}
    s_mul_i32 s7, s{S_RH}, {4 * 1024 + 16}
    s_add_u32 s{S_WQL}, s3, s7
    s_lshl_b32 s{S_WQG}, s{S_RH}, 17
    """)
    for j in range(4):
        e(f"""
    v_xor_b32 v{t1}, {j}, v{rp}
    v_lshl_add_u32 v{V_AW+j}, v{t1}, 6, v{t0}""")
    e(f"""
    s_mul_i32 s3, s{S_RH}, {80*128}
    s_add_u32 s3, s3, {X0}
    v_lshrrev_b32 v{t0}, 1, v{c}
    v_xor_b32 v{t0}, v{t0}, v{g}
    v_lshlrev_b32 v{t0}, 4, v{t0}
    v_lshl_add_u32 v{t0}, v{c}, 7, v{t0}
    v_add_u32 v{V_AX}, s3, v{t0}
    v_xor_b32 v{V_AX+1}, 64, v{V_AX}
    s_mul_i32 s{S_XL}, s{S_W}, 5120
    s_add_u32 s{S_XL}, s{S_XL}, {X0}
    s_mul_i32 s{S_XG}, s{S_W}, 40960
    """)
    e(f"""
    s_lshl_b32 s3, s{S_HH}, 13
    s_lshl_b32 s7, s{S_RH}, 12
    s_add_u32 s{S_KV}, s3, s7
    v_xor_b32 v{t0}, v{g}, v{c}
    v_lshlrev_b32 v{t0}, 4, v{t0}
    v_lshl_add_u32 v{t0}, v{c}, 8, v{t0}
    v_add_u32 v{V_AK}, s3, v{t0}
    v_xor_b32 v{V_AK+1}, 64, v{V_AK}
    v_xor_b32 v{V_AK+2}, 0x80, v{V_AK}
    v_xor_b32 v{V_AK+3}, 0xc0, v{V_AK}
    """)
    e(f"""
    v_lshlrev_b32 v{V_APA}, 4, v{L}
    v_add_u32 v{V_APA}, s{S_KV}, v{V_APA}
    v_add_u32 v{V_APA+1}, {VRING}, v{V_APA}
    """)
    e(f"""
    s_add_u32 s3, s3, 0x20000
    v_lshl_add_u32 v{t0}, v{g}, 2, v{rp}       ; 4g + r'
    v_and_b32 v{t1}, 7, v{t0}                  ; rho7
    v_lshlrev_b32 v{t0}, 8, v{t0}
    v_lshl_add_u32 v{t0}, v{t1}, 5, v{t0}
    v_lshl_add_u32 v{t0}, v{cp}, 3, v{t0}
    v_add_u32 v{V_AV}, s3, v{t0}
    """)
    for dt in range(1, 8):
        e(f"v_xor_b32 v{V_AV+dt}, {32*dt}, v{V_AV}")
    e(f"""
    s_waitcnt lgkmcnt(0)
    s_cmp_eq_u32 s{S_BR}, 0
    s_cselect_b32 s52, s52, s60
    s_cselect_b32 s53, s53, s61
    s_cselect_b32 s54, s54, s62
    s_cselect_b32 s55, s55, s63
    s_cselect_b32 s56, s56, s64
    s_cselect_b32 s57, s57, s65
    s_cselect_b32 s58, s58, s66
    s_cselect_b32 s59, s59, s67
    s_lshl_b32 s3, s{S_H}, 8
    s_add_u32 s{SRD_WQ}, s58, s3
    s_addc_u32 s{SRD_WQ+1}, s59, 0
    s_sub_u32 s{SRD_WQ+2}, 4194304, s3
    s_mov_b32 s{SRD_WQ+3}, 0x20000
    s_mul_i32 s3, s{S_B}, 163840
    s_add_u32 s{SRD_X}, s52, s3
    s_addc_u32 s{SRD_X+1}, s53, 0
    s_mov_b32 s{SRD_X+2}, 163840
    s_mov_b32 s{SRD_X+3}, 0x20000
    """)
    if o.rot and o.rotg > 1:
        G = o.rotg
        e(f"""
    s_and_b32 s3, s{S_IDX}, 3                ; p
    s_lshl_b32 s3, s3, {1 if G == 8 else 0}
    s_add_u32 s3, s3, s{S_B}
    s_and_b32 s3, s3, {G - 1}
    s_mul_i32 s3, s3, {8 // G}
    s_lshl_b32 s{S_WQK}, s3, 7
    s_lshl_b32 s3, s3, 19                    ; 64 rows * 8192
    s_add_u32 s{S_WQG}, s{S_WQG}, s3
    """)
    else:
        e(f"s_mov_b32 s{S_WQK}, 0")

def prologue2(e, o):
    e(f"""
    s_lshl_b32 s3, s{S_B}, 5
    s_add_u32 s3, s3, s{S_H}
    s_lshl_b32 s3, s3, 17
    s_add_u32 s{SRD_K}, s54, s3
    s_addc_u32 s{SRD_K+1}, s55, 0
    s_mov_b32 s{SRD_K+2}, 131072
    s_mov_b32 s{SRD_K+3}, 0x20000
    s_add_u32 s{SRD_V}, s56, s3
    s_addc_u32 s{SRD_V+1}, s57, 0
    s_mov_b32 s{SRD_V+2}, 131072
    s_mov_b32 s{SRD_V+3}, 0x20000
    s_lshl_b32 s3, s{S_BR}, 3
    s_add_u32 s3, s3, s{S_B}
    s_lshl_b32 s3, s3, 1
    s_add_u32 s3, s3, s{S_RH}
    s_lshl_b32 s3, s3, 5
    s_add_u32 s3, s3, s{S_H}
    s_mul_i32 s3, s3, 20480
    s_add_u32 s{SRD_O}, s68, s3
    s_addc_u32 s{SRD_O+1}, s69, 0
    s_mov_b32 s{SRD_O+2}, 20480
    s_mov_b32 s{SRD_O+3}, 0x20000
    s_mov_b32 s{S_SC}, {f32hex(C_SCALE)}
    """)

def wq_imm(u): return u * 1024 + 8 * (u >> 1)

def dma_wq(o, m, after=-1, before=10**9, pace=0):
    fl = [F('s', txt(f"s_add_u32 m0, s{S_WQL}, {(m % 3) * WQ_SLOT}"), after, before)]
    for u in range(4):
        fl.append(F('l', lambda e, u=u: e.vm_op(f"buffer_load_dwordx4 v{V_OWQ+u}, s[{SRD_WQ}:{SRD_WQ+3}], s{S_WQG} offen offset:{wq_imm(u)} {o.q_flag} lds", f"wq{m}"), after + pace * u, before))
    fl.append(F('s', txt(f"s_add_u32 s{S_WQG}, s{S_WQG}, {32 * 8192}"), after, before))
    fl.append(F('s', txt(f"s_and_b32 s{S_WQG}, s{S_WQG}, 0x3fffff"), after, before))
    return fl

def dma_x(o, M, after=-1, before=10**9, pace=0):
    fl = [F('s', txt(f"s_add_u32 m0, s{S_XL}, {(M % 2) * X_SLOT}"), after, before),
          F('s', txt(f"s_add_u32 s{S_T1}, s{S_XG}, s{S_WQK}"), after, before)]
    for u in range(5):
        if u == 4: fl.append(F('s', txt(f"s_add_u32 m0, s{S_XL}, {(M % 2) * X_SLOT + 4096}"), after, before))
        if u == 4: fl.append(F('s', txt("s_nop 0"), after, before))
        fl.append(F('l', lambda e, u=u: e.vm_op(f"buffer_load_dwordx4 v{V_OX+u}, s[{SRD_X}:{SRD_X+3}], s{S_T1} offen offset:{(u & 3) * 1024} {o.q_flag} lds", f"x{M}"), after + pace * u, before))
    fl.append(F('s', txt(f"s_add_u32 s{S_WQK}, s{S_WQK}, 128"), after, before))
    fl.append(F('s', txt(f"s_and_b32 s{S_WQK}, s{S_WQK}, 0x3ff"), after, before))
    return fl

def dma_pref(o, which, s, after=-1, before=10**9, pace=0):
    if which == 'K':
        base = KRING + 16384 * s; srd = SRD_K; vo = lambda t: V_OK + t
    else:
        base = 0x20000 + 16384 * s; srd = SRD_V; vo = lambda t: V_OV0 + (t & 1)
    fl = [F('s', txt(f"s_add_u32 m0, s{S_KV}, {base}"), after, before),
          F('s', txt(f"s_lshl_b32 s34, s{S_RH}, 12"), after, before),
          F('s', txt(f"s_add_u32 s34, s34, {s * 8192}"), after, before)]
    for t in range(4):
        fl.append(F('l', lambda e, t=t: e.vm_op(f"buffer_load_dwordx4 v{vo(t)}, s[{srd}:{srd+3}], s34 offen offset:{t * 1024} {o.kv_flag} lds", f"{which}{s}"), after + pace * t, before))
    return fl

APF = {('K', 2): 0, ('K', 3): 16, ('V', 2): 32, ('V', 3): 48}
def dma_apf(o, which, s, after=-1, before=10**9, pace=0):
    srd = SRD_K if which == 'K' else SRD_V
    vo = (lambda t: V_OK + t) if which == 'K' else (lambda t: V_OV0 + (t & 1))
    fl = [F('s', txt(f"s_lshl_b32 s34, s{S_RH}, 12"), after, before),
          F('s', txt(f"s_add_u32 s34, s34, {s * 8192}"), after, before)]
    for t in range(4):
        a = APF[(which, s)] + 4 * t
        fl.append(F('l', lambda e, t=t, a=a: e.vm_op(f"buffer_load_dwordx4 a[{a}:{a+3}], v{vo(t)}, s[{srd}:{srd+3}], s34 offen offset:{t * 1024} {o.kv_flag}", f"{which}{s}"), after + pace * t, before))
    return fl
V_APA = 72
def apf_copy(after):
    fl = []
    for (which, s), a0 in APF.items():
        for t in range(4):
            a = a0 + 4 * t
            if which == 'K': txt_ = f"ds_write_b128 v{V_APA}, a[{a}:{a+3}] offset:{KRING + 16384 * s + 1024 * t}"
            else: txt_ = f"ds_write_b128 v{V_APA+1}, a[{a}:{a+3}] offset:{16384 * (s - 2) + 1024 * t}"
            fl.append(F('d', lambda e, txt_=txt_: e.ds_op(txt_, "APF"), after))
    return fl

def zero_acc(e):
    e(f"v_mov_b32 v{V_T+8}, 0x3f803f80")
    for r in range(4):
        e(f"v_accvgpr_write_b32 a{A_ONE + r}, v{V_T+8}")

def code_touch_early(e, o, name):
    e("s_getpc_b64 s[66:67]")
    e.label(f"L_pce_{name}")
    e(f"s_sub_u32 s66, s66, L_pce_{name}-{name}")
    e("s_subb_u32 s67, s67, 0")
    if o.c_early == 1:
        e("v_lshlrev_b32 v74, 7, v0")
        e(f"v_min_u32 v75, CODE_END-{name}-4, v74")
        e.vm_op("global_load_dword v76, v75, s[66:67]", "ce")
        e("v_add_u32 v74, 0x8000, v74")
        e(f"v_min_u32 v75, CODE_END-{name}-4, v74")
        e.vm_op("global_load_dword v77, v75, s[66:67]", "ce")
    elif o.c_early == 2:
        e("v_and_b32 v74, 63, v0")
        e("v_lshlrev_b32 v74, 7, v74")
        e.vm_op("global_load_dword v76, v74, s[66:67]", "ce")
        e("s_lshr_b32 s3, s2, 3")
        e("s_lshl_b32 s3, s3, 11")
        e("v_and_b32 v74, 15, v0")
        e("v_lshlrev_b32 v74, 7, v74")
        e("v_add_u32 v74, s3, v74")
        e(f"v_min_u32 v75, CODE_END-{name}-4, v74")
        e.vm_op("global_load_dword v77, v75, s[66:67]", "ce")
    elif o.c_early == 3:
        e("v_lshlrev_b32 v74, 7, v0")
        e(f"v_min_u32 v75, CODE_END-{name}-4, v74")
        e.vm_op("global_load_dword v76, v75, s[66:67]", "ce")
        e("s_lshr_b32 s3, s2, 3")
        e("s_lshl_b32 s3, s3, 9")
        e("s_add_u32 s3, s3, 0x8000")
        e("v_and_b32 v74, 3, v0")
        e("v_lshlrev_b32 v74, 7, v74")
        e("v_add_u32 v74, s3, v74")
        e(f"v_min_u32 v75, CODE_END-{name}-4, v74")
        e.vm_op("global_load_dword v77, v75, s[66:67]", "ce")

def code_touch(e, va, vd, first):
    e("s_getpc_b64 s[66:67]")
    e.label(f"L_pc{first}_{CODE_NAME[0]}")
    e(f"s_sub_u32 s66, s66, L_pc{first}_{CODE_NAME[0]}-{CODE_NAME[0]}")
    e("s_subb_u32 s67, s67, 0")
    e(f"s_lshl_b32 s3, s{S_IDX}, 11")
    e(f"v_mbcnt_lo_u32_b32 v{va}, -1, 0")
    e(f"v_mbcnt_hi_u32_b32 v{va}, -1, v{va}")
    e(f"v_and_b32 v{va}, 15, v{va}")
    e(f"v_lshlrev_b32 v{va}, 7, v{va}")
    e(f"v_add_u32 v{va}, s3, v{va}")
    e(f"v_min_u32 v{va}, CODE_END-{CODE_NAME[0]}-4, v{va}")
    e.vm_op(f"global_load_dword v{vd}, v{va}, s[66:67]", "ctouch")

CODE_NAME = [""]
def run(e, fl):
    for f in fl: f.fn(e)

def qphase(e, o):
    run(e, dma_wq(o, 0) + dma_x(o, 0) + dma_wq(o, 1))
    if o.pre_all: run(e, dma_wq(o, 2) + dma_x(o, 1))
    prologue2(e, o)
    if o.c_touch: code_touch(e, V_T + 9, V_T + 10, 0)
    stamp(e, o, "issued")
    zero_acc(e)
    idx = lambda m, dt, qt: 40 * m + 5 * dt + qt
    def wfrag(m, dt, after=-1, before=10**9):
        j, tp = dt >> 1, dt & 1
        return [F('d', lambda e, n=n: e.ds_op(f"ds_read_b64_tr_b16 a[{fbuf(dt) + 2 * n}:{fbuf(dt) + 2 * n + 1}], v{V_AW + j} offset:{(m % 3) * WQ_SLOT + n * 1024 + 8 * tp}", f"F{m}_{dt}"), after, before) for n in range(2)]
    def xfrag(m, qt, after=-1, before=10**9):
        M, h = m >> 1, m & 1
        b = V_XB[m & 1] + 4 * qt
        return [F('d', lambda e: e.ds_op(f"ds_read_b128 v[{b}:{b+3}], v{V_AX + h} offset:{(M % 2) * X_SLOT + qt * 2048}", f"B{m}_{qt}"), after, before)]
    def barrier(m):
        def fn(e):
            e.ds_all()
            tags = [f"wq{m+1}"]
            if (m + 1) % 2 == 0: tags.append(f"x{(m+1)//2}")
            if m == 15:
                e.vm_all()
            elif not o.q_nowait or m < 0:
                e.need_vm(tags)
            if not o.q_nobar or m in (-1, 15): e("s_barrier")
            if m in (3, 9): stamp(e, o, f"B{m}")
        return fn
    barrier(-1)(e)
    stamp(e, o, "bar0")
    def nextfrags(m, after, before):
        fl = wfrag(m, 0, after, before)
        for q in range(5): fl += xfrag(m, q, after, before)
        return fl + wfrag(m, 1, after, before) + wfrag(m, 2, after, before)
    run(e, nextfrags(0, -1, 0))
    mains = []; rd = []; dm = []
    pref = [('K', 0), ('K', 1), ('V', 0), ('V', 1)]
    if o.apf: pref += [('K', 2), ('K', 3), ('V', 2), ('V', 3)]
    tnext = [0]
    for m in range(16):
        for dt in range(8):
            for qt in range(5):
                cin = "0" if m == 0 else vr(acc(dt, qt), 4)
                needs = []
                if qt == 0: needs.append(f"F{m}_{dt}")
                if dt == 0: needs.append(f"B{m}_{qt}")
                pre = barrier(m) if (dt == 5 and qt == 0) else None
                mains.append(Main(f"{MFMA} {vr(acc(dt, qt), 4)}, {ar(fbuf(dt), 4)}, {vr(V_XB[m & 1] + 4 * qt, 4)}, {cin}", needs, pre))
        for dt in (3, 4, 5):
            rd += wfrag(m, dt, idx(m, dt - 3, 0), idx(m, dt - 1, 0))
        for dt in (6, 7):
            rd += wfrag(m, dt, idx(m, 2, 2), idx(m, 4, 3))
        if m < 15:
            rd += nextfrags(m + 1, idx(m, 5, 0), idx(m, 7, 4))
        a = idx(m, 5, 0); b = idx(m + 1, 5, 0) if m < 15 else 10**9
        if m == 0 and not o.pre_all:
            dm += dma_wq(o, 2, -1, idx(0, 4, 0)) + dma_x(o, 1, -1, idx(0, 4, 4))
        t = max(a, tnext[0])
        if m + 3 < 16 and not o.q_nodma:
            dm += dma_wq(o, m + 3, t, b, o.pace); t += 4 * o.pace
        if m % 2 == 1 and (m - 1) // 2 + 2 < 8 and not o.q_nodma:
            dm += dma_x(o, (m - 1) // 2 + 2, t, idx(m + 2, 4, 0) if m < 14 else 10**9, o.pace); t += 5 * o.pace
        for n_, (w, s) in enumerate(pref):
            when = int(o.pf_steps.split(",")[n_]) if o.pf_steps else min(o.pf_start + n_ * o.pf_per, 15 if o.pf_late else 13)
            if m == when:
                fn_ = dma_pref if s < 2 else dma_apf
                dm += fn_(o, w, s, t, idx(m + 2, 5, 0) if m < 14 else 10**9, o.pace); t += 4 * o.pace
        tnext[0] = t
        if m == 15 and o.apf:
            rd += apf_copy(a)
        if m == 15 and not o.apf:
            for s in (2, 3):
                dm += [F('s', txt(f"s_add_u32 m0, s{S_KV}, {KRING + 16384 * s}"), a),
                       F('s', txt(f"s_lshl_b32 s34, s{S_RH}, 12"), a),
                       F('s', txt(f"s_add_u32 s34, s34, {s * 8192}"), a)]
                for t in range(4):
                    dm.append(F('l', lambda e, t=t, s=s: e.vm_op(f"buffer_load_dwordx4 v{V_OK + t}, s[{SRD_K}:{SRD_K+3}], s34 offen offset:{t * 1024} {o.kv_flag} lds", f"K{s}"), a))
    if o.q_nods: rd = []
    zip2(e, mains, [rd, dm])

def qconvert(e):
    e("s_nop 7")
    for r in range(V_ACC, V_ACC + 160, 2):
        e(f"v_pk_mul_f32 v[{r}:{r+1}], v[{r}:{r+1}], s[{S_SC}:{S_SC+1}] op_sel_hi:[1,0]")
    for j in range(4):
        for qt in range(5):
            for tp in range(2):
                a0 = acc(2 * j + tp, qt); d = qf(j, qt) + 2 * tp
                e(f"v_cvt_pk_bf16_f32 v{d}, v{a0}, v{a0+1}")
                e(f"v_cvt_pk_bf16_f32 v{d+1}, v{a0+2}, v{a0+3}")

def dma_kv(o, which, after0, i):
    fl = []
    P = o.kv_pace
    after = after0
    if 'K' in which:
        fl.append(F('s', txt(f"s_mov_b32 m0, s{S_KDST}"), after))
        fl.append(F('s', txt(f"s_add_u32 s{S_KDST}, s{S_KDST}, 16384"), after))
        for t in range(4):
            fl.append(F('l', lambda e, t=t: e.vm_op(f"buffer_load_dwordx4 v{V_OK + t}, s[{SRD_K}:{SRD_K+3}], s{S_KOFF} offen offset:{t * 1024} {o.kv_flag} lds", f"K{i+4}"), after))
            after += P
        fl.append(F('s', txt(f"s_and_b32 s{S_KDST}, s{S_KDST}, 0xffff"), after0))
        fl.append(F('s', txt(f"s_add_u32 s{S_KOFF}, s{S_KOFF}, 8192"), after0))
    if 'V' in which:
        fl.append(F('s', txt(f"s_add_u32 m0, s{S_VDST}, {VRING}"), after0))
        fl.append(F('s', txt(f"s_add_u32 s{S_VDST}, s{S_VDST}, 16384"), after0))
        for t in range(4):
            fl.append(F('l', lambda e, t=t: e.vm_op(f"buffer_load_dwordx4 v{V_OV + (t & 1)}, s[{SRD_V}:{SRD_V+3}], s{S_VOFF} offen offset:{t * 1024} {o.kv_flag} lds", f"V{i+2}"), after))
            after += P
        fl.append(F('s', txt(f"s_and_b32 s{S_VDST}, s{S_VDST}, 0xffff"), after0))
        fl.append(F('s', txt(f"s_add_u32 s{S_VOFF}, s{S_VOFF}, 8192"), after0))
    return fl

def kfrag(par_slot, kt, j, n, after=-1, before=10**9):
    return [F('d', lambda e: e.ds_op(f"ds_read_b128 a[{fbuf(n)}:{fbuf(n)+3}], v{V_AK + j} offset:{kt * 4096 + 16384 * par_slot}", f"F{n}"), after, before)]
def vfrag(par_slot, dt, n, after=-1, before=10**9):
    return [F('d', lambda e, h=h: e.ds_op(f"ds_read_b64_tr_b16 a[{fbuf(n) + 2*h}:{fbuf(n) + 2*h + 1}], v{V_AV + dt} offset:{h * 4096 + 16384 * par_slot}", f"F{n}"), after, before) for h in range(2)]

def softmax_fill(par):
    seq = []
    for qt in range(5):
        for kt in range(2):
            s = sreg(par, kt, qt); p = preg(par, qt) + 2 * kt
            seq += [("e", s), ("e", s + 1), ("c", p, s, s + 1), ("e", s + 2), ("e", s + 3), ("c", p + 1, s + 2, s + 3)]
    out = []; pend = None
    for x in seq:
        if x[0] == "c": pend = x
        else:
            out.append(x)
            if pend is not None: out.append(pend); pend = None
    if pend is not None: out.append(("n",)); out.append(pend)
    fl = []
    for x in out:
        if x[0] == "e": fl.append(F('e', txt(f"v_exp_f32 v{x[1]}, v{x[1]}")))
        elif x[0] == "c": fl.append(F('v', txt(f"v_cvt_pk_bf16_f32 v{x[1]}, v{x[2]}, v{x[3]}")))
        else: fl.append(F('s', txt("s_nop 0")))
    return fl

def attn_iter(e, o, i, qk, sm, pv, vwait, dma, pre_next, epi=None, first_pv=False):
    par = i & 1; ks = (i + 1) & 1
    mains = []; rd = []; dm = []
    gstart = {}
    if qk:
        for kt in range(2):
            for j in range(4):
                n = kt * 4 + j
                gstart[n] = len(mains)
                for qt in range(5):
                    d = sreg(par ^ 1, kt, qt)
                    cin = vr(V_BIAS + 4 * qt, 4) if j == 0 else vr(d, 4)
                    mains.append(Main(f"{MFMA} {vr(d, 4)}, {ar(fbuf(n), 4)}, {vr(qf(j, qt), 4)}, {cin}", [f"F{n}"] if qt == 0 else []))
    if pv:
        gstart['l'] = len(mains)
        for qt in range(5):
            mains.append(Main(f"{MFMA} {ar(A_L + 4 * qt, 4)}, {ar(A_ONE, 4)}, {vr(preg(par ^ 1, qt), 4)}, {'0' if first_pv else ar(A_L + 4 * qt, 4)}"))
        for dt in range(8):
            n = 8 + dt
            gstart[n] = len(mains)
            for qt in range(5):
                mains.append(Main(f"{MFMA} {ar(oacc(dt, qt), 4)}, {ar(fbuf(n), 4)}, {vr(preg(par ^ 1, qt), 4)}, {'0' if first_pv else ar(oacc(dt, qt), 4)}", [f"F{n}"] if qt == 0 else []))
    order = [n for n in range(16) if n in gstart]
    ln = len(order)
    for k, n in enumerate(order):
        if qk and n < 3: continue
        after = gstart[order[k - 4]] if k >= 4 else -1
        if k >= ln - 3 and ln >= 6: after = gstart[order[ln - 6]]
        before = gstart[order[k - 1]] if k >= 1 else 0
        if k >= ln - 3 and ln >= 4: before = min(before, gstart[order[ln - 3]])
        rd += kfrag(ks, n >> 2, n & 3, n, after, before) if n < 8 else vfrag(ks, n - 8, n, after, before)
    has_bar = pre_next or vwait is not None
    if has_bar:
        bpos = gstart[order[-2]]
        def bar(e):
            e.ds_all()
            if vwait == 0: e.vm_all()
            elif vwait is not None: e.need_vm([f"K{i+2}", f"V{i}"])
            e("s_barrier")
        mains[bpos].pre = bar
        if par == 0 and qk:
            for j in range(4): rd.append(F('v', txt(f"v_xor_b32 v{V_AK + j}, 0x8000, v{V_AK + j}"), bpos))
        if pre_next:
            for n in range(3): rd += kfrag(ks ^ 1, 0, n, n, bpos, len(mains) - 1)
        if par == 0 and pv:
            for dt in range(8): rd.append(F('v', txt(f"v_xor_b32 v{V_AV + dt}, {hex(VTOG)}, v{V_AV + dt}"), bpos))
    dm += dma_kv(o, dma, -1, i)
    sf = softmax_fill(par) if sm else []
    qs = [rd, dm, sf]
    if epi: qs.append(epi(gstart))
    zip2(e, mains, qs, flush_nop=bool(epi))

def epilogue_fill(o):
    def build(gstart):
        fl = []
        RL = V_E
        W = V_E + 6
        l0 = gstart['l']
        for qt in range(5):
            fl.append(F('v', txt(f"v_accvgpr_read_b32 v{RL + qt}, a{A_L + 4 * qt}"), l0 + 5 + 8))
        for qt in range(5):
            fl.append(F('e', txt(f"v_rcp_f32 v{RL + qt}, v{RL + qt}"), l0 + 5 + 8))
        k = 0
        for jj in range(4):
            ready = gstart[8 + 2 * jj + 1] + 5 + 4
            for qt in range(5):
                w = W + 12 * (k & 1); k += 1
                for tp in range(2):
                    for i in range(4):
                        fl.append(F('v', txt(f"v_accvgpr_read_b32 v{w + 4*tp + i}, a{oacc(2*jj + tp, qt) + i}"), ready))
                for r in range(8):
                    fl.append(F('v', txt(f"v_mul_f32 v{w + r}, v{w + r}, v{RL + qt}"), ready))
                for r in range(4):
                    fl.append(F('v', txt(f"v_cvt_pk_bf16_f32 v{w + 8 + r}, v{w + 2*r}, v{w + 2*r + 1}"), ready))
                off = (jj * 5 + qt) * 1024
                fl.append(F('s', txt(f"s_mov_b32 s{S_T0}, {off}"), ready))
                fl.append(F('l', lambda e, w=w: e.vm_op(f"buffer_store_dwordx4 v[{w+8}:{w+11}], v{V_E + 5}, s[{SRD_O}:{SRD_O+3}], s{S_T0} offen {o.o_flag}", "st"), ready))
        return fl
    return build

WO_A = [131072, 147456, 98304, 81920, 114688]
WO_B = [0, 16384, 32768, 49152, 65536]
def wo_slot(si): return WO_A[si] if si < 5 else WO_B[si - 5] if si < 10 else WO_A[si - 10] if si < 15 else WO_B[0]
V_AWS = 160

def t3_setup(e, o):
    L = V_E + 5
    t0, t1, t2, t3_ = V_E, V_E + 1, V_E + 2, V_E + 3
    e(f"""
    v_lshrrev_b32 v{t0}, 4, v{L}             ; lane
    v_lshrrev_b32 v{t1}, 4, v{t0}            ; g
    v_and_b32 v{t2}, 7, v{t0}
    v_lshlrev_b32 v{t3_}, 1, v{t1}
    v_xor_b32 v{t2}, v{t2}, v{t3_}
    v_lshlrev_b32 v{t2}, 4, v{t2}
    v_lshrrev_b32 v{t3_}, 3, v{t0}
    v_lshl_add_u32 v{V_OW}, v{t3_}, 10, v{t2}
    v_add_u32 v{V_OW+1}, {7168}, v{V_OW}
    v_add_u32 v{V_OW+2}, {2*7168}, v{V_OW}
    v_add_u32 v{V_OW+3}, {3*7168}, v{V_OW}
    v_bfe_u32 v{t2}, v{t0}, 2, 2             ; r'
    v_lshl_add_u32 v{t2}, v{t1}, 2, v{t2}    ; 4g + r'
    v_lshrrev_b32 v{t3_}, 1, v{t2}
    v_and_b32 v{t3_}, 3, v{t3_}
    v_lshlrev_b32 v{t2}, 7, v{t2}
    v_lshl_add_u32 v{t2}, v{t3_}, 5, v{t2}
    v_and_b32 v{t3_}, 3, v{t0}               ; c'
    v_lshl_add_u32 v{t2}, v{t3_}, 3, v{t2}
    s_lshl_b32 s3, s{S_HH}, 13
    v_add_u32 v{V_AW2}, s3, v{t2}
    v_xor_b32 v{V_AW2+1}, 32, v{V_AW2}
    v_xor_b32 v{V_AW2+2}, 64, v{V_AW2}
    v_xor_b32 v{V_AW2+3}, 0x60, v{V_AW2}
    s_mul_i32 s3, s{S_W}, 20480
    v_add_u32 v{V_XA}, s3, v{L}
    s_mov_b32 s{S_WL}, s{S_KV}
    s_lshl_b32 s3, s{S_RH}, 15
    s_lshl_b32 s7, s{S_HH}, 9
    s_add_u32 s3, s3, s7
    s_lshl_b32 s7, s{S_HH}, 17
    s_add_u32 s{S_WA}, s3, s7
    s_xor_b32 s7, s7, 0x20000
    s_add_u32 s{S_WB}, s3, s7
    s_cmp_eq_u32 s{S_BR}, 0
    s_cselect_b32 s60, s98, s100
    s_cselect_b32 s61, s99, s101
    s_sub_u32 s3, s{S_H}, s{S_HH}
    s_lshl_b32 s3, s3, 17                    ; * 128 rows * 1024
    s_add_u32 s{SRD_WO}, s60, s3
    s_addc_u32 s{SRD_WO+1}, s61, 0
    s_mov_b32 s{SRD_WO+2}, 262144
    s_mov_b32 s{SRD_WO+3}, 0x20000
    s_lshl_b32 s3, s{S_BR}, 3
    s_add_u32 s3, s3, s{S_B}
    s_lshl_b32 s3, s3, 4
    s_lshr_b32 s7, s{S_H}, 1
    s_add_u32 s3, s3, s7
    s_lshl_b32 s3, s3, 2
    s_lshl_b32 s7, s{S_RH}, 1
    s_add_u32 s3, s3, s7
    s_add_u32 s3, s3, s{S_HH}
    s_mul_i32 s3, s3, 40960
    s_add_u32 s3, s3, {POFF}
    s_add_u32 s{SRD_P}, s68, s3
    s_addc_u32 s{SRD_P+1}, s69, 0
    s_mov_b32 s{SRD_P+2}, 40960
    s_mov_b32 s{SRD_P+3}, 0x20000
    s_lshl_b32 s3, s{S_HG}, 20
    s_add_u32 s56, s60, s3
    s_addc_u32 s57, s61, 0
    s_mov_b32 s58, 0x100000
    s_mov_b32 s59, 0x20000
    s_lshl_b32 s3, s{S_IDX}, 2
    s_add_u32 s3, s3, s{S_W}
    s_lshl_b32 s3, s3, 13
    v_lshlrev_b32 v{t0}, 3, v{L}             ; lane*128
    v_add_u32 v{t0}, s3, v{t0}
    """)

def dma_wo(o, p, kq, after=-1, before=10**9, pace=0):
    src = S_WA if kq < 2 else S_WB
    fl = [F('s', txt(f"s_add_u32 m0, s{S_WL}, {wo_slot(4 * p + kq)}"), after, before),
          F('s', txt(f"s_add_u32 s{S_T1}, s{src}, {(kq & 1) * 65536 + 128 * p}"), after, before)]
    for t in range(4):
        fl.append(F('l', lambda e, t=t: e.vm_op(f"buffer_load_dwordx4 v{V_OW+t}, s[{SRD_WO}:{SRD_WO+3}], s{S_T1} offen offset:{t*1024} {o.w_flag} lds", f"W{p}_{kq}"), after + pace * t, before))
    return fl

def t3_tail(e, o):
    i = 16; par = 0; ks = 1
    mains = []; rd = []; dm = []; cv = []; st = []
    gstart = {}
    gstart['l'] = 0
    for qt in range(5):
        mains.append(Main(f"{MFMA} {ar(A_L + 4 * qt, 4)}, {ar(A_ONE, 4)}, {vr(preg(1, qt), 4)}, {ar(A_L + 4 * qt, 4)}"))
    for dt in range(8):
        n = 8 + dt
        gstart[n] = len(mains)
        for qt in range(5):
            mains.append(Main(f"{MFMA} {ar(oacc(dt, qt), 4)}, {ar(fbuf(n), 4)}, {vr(preg(1, qt), 4)}, {ar(oacc(dt, qt), 4)}", [f"F{n}"] if qt == 0 else []))
    for k in range(8):
        n = 8 + k
        after = gstart[8 + k - 4] if k >= 4 else -1
        before = gstart[8 + k - 1] if k >= 1 else 0
        rd += vfrag(ks, k, n, after, before)
    NPV = len(mains)
    def a2(p, nt, qt): return A_ACC2[p & 1] + (nt * 5 + qt) * 4
    def bfr(kk, qt): return (kk * 5 + qt) * 4
    S0 = {}
    nfrag = 16
    for p in range(4):
        for kq in range(4):
            S0[(p, kq)] = len(mains)
            for ks2 in range(2):
                kk = 2 * kq + ks2
                for nt in range(4):
                    n = nfrag; nfrag += 1
                    g0 = len(mains)
                    for qt in range(5):
                        cin = "0" if (kq == 0 and ks2 == 0) else ar(a2(p, nt, qt), 4)
                        needs = [f"G{n}"] if qt == 0 else []
                        if p == 0 and kk >= 4 and nt == 0: needs = needs + [f"X{kk}_{qt}"]
                        mains.append(Main(f"{MFMA} {ar(a2(p, nt, qt), 4)}, {ar(fbuf(n), 4)}, {vr(bfr(kk, qt), 4)}, {cin}", needs))
                    gstart[('g', p, kq, ks2, nt)] = (g0, n)
    N = len(mains)
    stages = [(p, kq) for p in range(4) for kq in range(4)]
    def gidx(p, kq, j): return gstart[('g', p, kq, j >> 2, j & 3)]
    BAR = {}
    for si, (p, kq) in enumerate(stages):
        BAR[si] = gidx(p, kq, 5)[0]
    def wfrag(p, kq, j, after, before):
        g0, n = gidx(p, kq, j)
        return [F('d', lambda e, h=h, n=n: e.ds_op(f"ds_read_b64_tr_b16 a[{fbuf(n) + 2*h}:{fbuf(n) + 2*h + 1}], v{V_AWS + 4 * (wo_slot(4 * p + kq) >> 16) + (j & 3)} offset:{(wo_slot(4 * p + kq) & 0xffff) + (j >> 2) * 4096 + h * 2048}", f"G{n}"), after, before) for h in range(2)]
    pv_bar = gstart[8 + 6]
    def bar_first(e):
        e.ds_all()
        e.need_vm("W0_0")
        e("s_barrier")
    mains[pv_bar].pre = bar_first
    rd_pv_last = [f for f in rd]
    for f in rd:
        f.before = min(f.before, pv_bar - 3)
    for si, (p, kq) in enumerate(stages):
        prevbar = pv_bar if si == 0 else BAR[si - 1]
        for j in range(8):
            g0 = gidx(p, kq, j)[0]
            if j < 3:
                after = prevbar; before = S0[(p, kq)] - 1 if j == 0 else gidx(p, kq, j - 1)[0]
                if si == 0 and j == 0: before = NPV - 1
            elif j < 6:
                after = gidx(p, kq, j - 3)[0]; before = gidx(p, kq, j - 1)[0]
            else:
                after = gidx(p, kq, 2)[0] + 2; before = gidx(p, kq, 4)[0] + 3
            rd += wfrag(p, kq, j, after, before)
        def bar(e, si=si):
            if si == o.c_k3_at and o.c_k3:
                n_ = CODE_NAME[0]
                e("s_getpc_b64 s[60:61]")
                e.label(f"L_pck_{n_}")
                e(f"s_add_u32 s60, s60, reduce_kernel-L_pck_{n_}")
                e("s_addc_u32 s61, s61, 0")
                e(f"v_mbcnt_lo_u32_b32 v178, -1, 0")
                e(f"v_mbcnt_hi_u32_b32 v178, -1, v178")
                e(f"v_lshlrev_b32 v178, 7, v178")
                e(f"v_min_u32 v178, K3_END-reduce_kernel-4, v178")
                e.vm_op(f"global_load_dword v179, v178, s[60:61]", "k3t")
            if si in ((0, 3, 7, 15) if o.fuse else (0, 3, 7, 11, 15)): stamp(e, o, f"T{si}")
            e.ds_all()
            if si + 1 < 16:
                pn, kn = stages[si + 1]
                e.need_vm(f"W{pn}_{kn}")
            e("s_barrier")
        mains[BAR[si]].pre = bar
    pre = dma_wo(o, 0, 0, -1, 3) + dma_wo(o, 0, 1, -1, 10) + dma_wo(o, 0, 2, -1, 18) + dma_wo(o, 0, 3, -1, 26)
    def st_(si): return stages[si]
    P = o.w_pace
    dm = pre + dma_wo(o, *st_(4), pv_bar, BAR[0], P)
    dm += dma_wo(o, *st_(10), BAR[0], BAR[1], P)
    dm += dma_wo(o, *st_(11), BAR[1], BAR[2], P)
    t = BAR[2]
    for si in (5, 6, 7, 8, 9):
        dm += dma_wo(o, *st_(si), t, BAR[si - 2] if si > 5 else BAR[3], P); t += 4 * P
    dm += dma_wo(o, *st_(12), t, BAR[8], P); t += 4 * P
    dm += dma_wo(o, *st_(13), max(t, BAR[3]), BAR[9], P); t += 4 * P
    dm += dma_wo(o, *st_(14), max(t, BAR[4]), BAR[10], P); t += 4 * P
    dm += dma_wo(o, *st_(15), max(t, BAR[5]), BAR[11], P)
    if o.t3_nodma: dm = pre
    RL = V_E; W = V_E + 6
    l0 = 0
    for qt in range(5): cv.append(F('v', txt(f"v_accvgpr_read_b32 v{RL + qt}, a{A_L + 4 * qt}"), l0 + 5 + 6))
    for qt in range(5): cv.append(F('e', txt(f"v_rcp_f32 v{RL + qt}, v{RL + qt}"), l0 + 5 + 6))
    k = 0
    for jj in range(4):
        ready = gstart[8 + 2 * jj + 1] + 5 + 4
        need = gidx(0, jj >> 1, (jj & 1) * 4)[0]
        if jj == 1: need = gidx(0, 0, 2)[0]
        for qt in range(5):
            w = W + 8 * (k & 1); k += 1
            dl = need + qt - 2 if need + qt - 2 > ready else need
            for tp in range(2):
                for i_ in range(4):
                    cv.append(F('v', txt(f"v_accvgpr_read_b32 v{w + 4*tp + i_}, a{oacc(2*jj + tp, qt) + i_}"), ready, need - 2))
            for r in range(8):
                cv.append(F('v', txt(f"v_mul_f32 v{w + r}, v{w + r}, v{RL + qt}"), ready, need - 2))
            d = bfr(jj, qt)
            for r in range(4):
                cv.append(F('v', txt(f"v_cvt_pk_bf16_f32 v{d + r}, v{w + 2*r}, v{w + 2*r + 1}"), ready, need - 2))
            cv.append(F('d', lambda e, d=d, jj=jj, qt=qt: e.ds_op(f"ds_write_b128 v{V_XA}, v[{d}:{d+3}] offset:{(jj * 5 + qt) * 1024}", "XW"), ready, need - 1))
    xbar = BAR[1]
    cv.append(F('v', txt(f"v_xor_b32 v{V_XA}, {40960}, v{V_XA}") if False else txt(f"v_add_u32 v{V_XA}, s55, v{V_XA}"), xbar, xbar + 2))
    for jj in range(4):
        for qt in range(5):
            d = bfr(4 + jj, qt)
            cv.append(F('d', lambda e, d=d, jj=jj, qt=qt: e.ds_op(f"ds_read_b128 v[{d}:{d+3}], v{V_XA} offset:{(jj * 5 + qt) * 1024}", f"X{4+jj}_{qt}"), xbar + 1, S0[(0, 2)] - 6 if jj < 2 else BAR[2] - 4))
    gd = []
    for qt in range(5):
        a_, b_ = S0[(0, 2)], S0[(1, 0)] - 2
        gd.append(F('v', txt(f"v_med3_f32 v224, v{RL + qt}, s66, v225"), a_, b_))
        gd.append(F('v', txt(f"v_cmp_neq_f32 s[62:63], v224, v{RL + qt}"), a_, b_))
        gd.append(F('s', txt("s_nop 1"), a_, b_))
        gd.append(F('s', txt(f"s_or_b64 s[{S_BAD}:{S_BAD+1}], s[{S_BAD}:{S_BAD+1}], s[62:63]"), a_, b_))
    W2 = V_E + 6
    k = 0
    for p in range(4):
        start = S0[(p + 1, 0)] + 6 if p < 3 else N
        end = S0[(p + 1, 3)] if p < 2 else 10**9
        if p == 2: end = N - 10
        for u in range(2):
            for qt in range(5):
                w = W2 + 12 * (k & 1); k += 1
                for tp in range(2):
                    for i_ in range(4):
                        st.append(F('v', txt(f"v_accvgpr_read_b32 v{w + 4*tp + i_}, a{a2(p, 2*u + tp, qt) + i_}"), start, end))
                for r in range(4):
                    st.append(F('v', txt(f"v_cvt_pk_bf16_f32 v{w + 8 + r}, v{w + 2*r}, v{w + 2*r + 1}"), start, end))
                off = (p * 10 + u * 5 + qt) * 1024
                st.append(F('s', txt(f"s_mov_b32 s{S_T0}, {off}"), start, end))
                if not o.t3_nostore: st.append(F('l', lambda e, w=w: e.vm_op(f"buffer_store_dwordx4 v[{w+8}:{w+11}], v{V_E + 5}, s[{SRD_P}:{SRD_P+3}], s{S_T0} offen {o.p_flag}", "st"), start, end))
    e(f"s_mov_b64 s[{S_BAD}:{S_BAD+1}], 0")
    e(f"s_mov_b32 s66, {hex(R_LO)}")
    e(f"v_mov_b32 v225, {hex(R_HI)}")
    for k_ in range(3):
        for j in range(4):
            e(f"v_add_u32 v{V_AWS + 4 * k_ + j}, {65536 * k_}, v{V_AW2 + j}")
    e(f"s_lshl_b32 s{S_T0}, s{S_HH}, 1")
    e(f"s_sub_u32 s{S_T0}, 1, s{S_T0}")
    e(f"s_mul_i32 s{S_T0}, s{S_T0}, 40960")
    e(f"s_mov_b32 s55, s{S_T0}")
    for f in cv:
        pass
    zip2(e, mains, [rd, dm, cv, gd, st], flush_nop=True)

def max_pass(e, o, name):
    M = 120; L16 = V_E + 5; T = 126
    e.label(f"L_maxpass_{name}")
    e("s_waitcnt vmcnt(0) lgkmcnt(0)")
    for qt in range(5): e(f"v_mov_b32 v{M + qt}, 0xff800000")
    e(f"s_mov_b32 s{S_CNT}, 0")
    e(f"s_lshl_b32 s{S_T1}, s{S_RH}, 12")
    e.label(f"L_maxloop_{name}")
    e("s_barrier")
    e(f"s_mov_b32 m0, s{S_KV}")
    e("s_nop 0")
    for t in range(4):
        e(f"buffer_load_dwordx4 v{V_OK + t}, s[{SRD_K}:{SRD_K+3}], s{S_T1} offen offset:{t * 1024} lds")
    e("s_waitcnt vmcnt(0)")
    e("s_barrier")
    for n in range(8):
        e(f"ds_read_b128 a[{fbuf(n)}:{fbuf(n)+3}], v{V_AK + (n & 3)} offset:{(n >> 2) * 4096}")
    e("s_waitcnt lgkmcnt(0)")
    for kt in range(2):
        for j in range(4):
            for qt in range(5):
                d = sreg(0, kt, qt)
                e(f"{MFMA} {vr(d, 4)}, {ar(fbuf(kt * 4 + j), 4)}, {vr(qf(j, qt), 4)}, {'0' if j == 0 else vr(d, 4)}")
    e("s_nop 7")
    e("s_nop 3")
    for qt in range(5):
        for kt in range(2):
            d = sreg(0, kt, qt)
            e(f"v_max3_f32 v{M + qt}, v{d}, v{d+1}, v{M + qt}")
            e(f"v_max3_f32 v{M + qt}, v{d+2}, v{d+3}, v{M + qt}")
    e(f"s_add_u32 s{S_T1}, s{S_T1}, 8192")
    e(f"s_add_u32 s{S_CNT}, s{S_CNT}, 1")
    e(f"s_cmp_lt_u32 s{S_CNT}, 16")
    e(f"s_cbranch_scc1 L_maxloop_{name}")
    e("s_barrier")
    e(f"s_lshl_b32 s{S_T1}, s{S_RH}, 12")
    e(f"s_mov_b32 m0, s{S_KV}")
    e("s_nop 0")
    for t in range(4):
        e(f"buffer_load_dwordx4 v{V_OK + t}, s[{SRD_K}:{SRD_K+3}], s{S_T1} offen offset:{t * 1024} lds")
    e(f"v_lshrrev_b32 v{T}, 2, v{L16}")
    e(f"v_xor_b32 v{T+1}, 64, v{T}")
    e(f"v_xor_b32 v{T+2}, 0x80, v{T}")
    for x in (1, 2):
        for qt in range(5): e(f"ds_bpermute_b32 v{T + 3 + qt}, v{T + x}, v{M + qt}")
        e("s_waitcnt lgkmcnt(0)")
        for qt in range(5): e(f"v_max_f32 v{M + qt}, v{M + qt}, v{T + 3 + qt}")
    for qt in range(5):
        for r in range(4): e(f"v_sub_f32 v{V_BIAS + 4 * qt + r}, 0, v{M + qt}")
    e("s_waitcnt vmcnt(0)")
    e("s_barrier")
    for n in range(3): run(e, kfrag(0, 0, n, n))
    e(f"s_branch L_maxdone_{name}")

def vote(e, o, name):
    T = V_E
    e(f"s_cmp_lg_u64 s[{S_BAD}:{S_BAD+1}], 0")
    e(f"s_cselect_b32 s3, 1, 0")
    e(f"v_mov_b32 v{T}, s3")
    e(f"s_lshl_b32 s7, s{S_W}, 2")
    e(f"v_mov_b32 v{T+1}, s7")
    e(f"ds_write_b32 v{T+1}, v{T}")
    if o.fuse:
        e("s_load_dwordx4 s[56:59], s[0:1], 80")
        e("s_waitcnt vmcnt(0) lgkmcnt(0)")
    else:
        e("s_waitcnt lgkmcnt(0)")
    e("s_barrier")
    e(f"v_mov_b32 v{T+1}, 0")
    e(f"ds_read_b128 v[{T+2}:{T+5}], v{T+1}")
    e("s_waitcnt lgkmcnt(0)")
    e(f"v_or_b32 v{T+2}, v{T+2}, v{T+3}")
    e(f"v_or3_b32 v{T+2}, v{T+2}, v{T+4}, v{T+5}")
    e("s_nop 0")
    e(f"v_readfirstlane_b32 s3, v{T+2}")
    e(f"s_cmp_eq_u32 s{S_MODE}, 0")
    e(f"s_cselect_b32 s3, s3, 0")
    e(f"s_cmp_eq_u32 s3, 0")
    e(f"s_cbranch_scc1 L_fine_{name}")
    e(f"s_mov_b32 s{S_MODE}, 1")
    e("s_waitcnt vmcnt(0)")
    e("s_barrier")
    e("v_mbcnt_lo_u32_b32 v0, -1, 0")
    e("v_mbcnt_hi_u32_b32 v0, -1, v0")
    e(f"s_lshl_b32 s3, s{S_W}, 6")
    e("v_add_u32 v0, s3, v0")
    e(f"s_branch L_restart_{name}")
    e.label(f"L_fine_{name}")

def fused_reduce(e, o, name):
    G, R, J = 60, 61, 62
    e(f"""
    s_lshl_b32 s{G}, s{S_BR}, 3
    s_add_u32 s{G}, s{G}, s{S_B}             ; group
    s_lshr_b32 s{R}, s{S_H}, 1
    v_mbcnt_lo_u32_b32 v248, -1, 0
    v_mbcnt_hi_u32_b32 v248, -1, v248        ; lane
    s_cmp_eq_u32 s{S_W}, {99 if o.nosync else 0}
    s_cbranch_scc0 L_arrived_{name}
    s_lshl_b32 s3, s{G}, {12 if o.cnt_ws else 4}
    {f"s_add_u32 s3, s3, {220*1024*1024}" if o.cnt_ws else ""}
    {"s_mov_b32 s58, s68" if o.cnt_ws else ""}
    {"s_mov_b32 s59, s69" if o.cnt_ws else ""}
    v_mov_b32 v249, s3
    v_mov_b32 v250, 1
    s_mov_b64 s[64:65], exec
    s_mov_b64 exec, 1
    global_atomic_add v249, v250, s[58:59]
    s_mov_b32 s7, 0
L_poll_{name}:
    global_load_dword v251, v249, s[58:59] sc1
    s_waitcnt vmcnt(0)
    v_readfirstlane_b32 s3, v251
    s_add_u32 s7, s7, 1
    s_cmp_ge_u32 s3, 16
    s_cbranch_scc1 L_polled_{name}
    s_sleep {o.spin_sleep}
    s_cmp_lt_u32 s7, 0x40000
    s_cbranch_scc1 L_poll_{name}
L_polled_{name}:
    s_mov_b64 exec, s[64:65]
L_arrived_{name}:
    s_barrier
    """)
    stamp(e, o, "polled")
    e(f"""
    v_lshlrev_b32 v249, 4, v248              ; lane*16
    s_mul_i32 s3, s{G}, {16 * 163840}
    s_add_u32 s3, s3, {POFF}
    s_add_u32 s8, s68, s3
    s_addc_u32 s9, s69, 0
    s_mov_b32 s10, {16 * 163840}
    s_mov_b32 s11, 0x20000
    s_mul_i32 s{J}, s{R}, 10
    s_add_u32 s{J}, s{J}, s{S_W}
    s_mov_b32 s12, s56
    s_mov_b32 s13, s57
    s_mov_b32 s14, 2621440
    s_mov_b32 s15, 0x20000
    v_and_b32 v250, 15, v248
    v_lshrrev_b32 v251, 4, v248
    v_lshlrev_b32 v250, 11, v250
    v_lshl_add_u32 v250, v251, 3, v250       ; c*2048 + g*8
    """)
    def load1(k, hp):
        r = 64 * k + 4 * hp
        if hp == 0:
            e(f"s_add_u32 s3, s{J}, {4 * k}")
            e(f"s_lshl_b32 s3, s3, 10")
        e.vm_op(f"buffer_load_dwordx4 v[{r}:{r+3}], v249, s[8:11], s3 offen {o.r_flag}", f"R{k}_{hp}")
        if hp < 15: e("s_add_u32 s3, s3, 163840")
    def outaddr(k, dst):
        e(f"""
    s_add_u32 s16, s{J}, {4 * k}
    s_mul_hi_u32 s17, s16, 0x1999999a
    s_mul_i32 s18, s17, 10
    s_sub_u32 s18, s16, s18
    s_cmp_ge_u32 s18, 5
    s_cselect_b32 s19, 1, 0                  ; u
    s_mul_i32 s20, s19, 5
    s_sub_u32 s18, s18, s20                  ; qt
    s_and_b32 s20, s17, 3                    ; p
    s_bfe_u32 s21, s17, 0x10002              ; hh
    s_lshr_b32 s22, s17, 3                   ; rh
    s_mul_i32 s23, s{S_B}, 160
    s_mul_i32 s22, s22, 80
    s_add_u32 s23, s23, s22
    s_lshl_b32 s18, s18, 4
    s_add_u32 s23, s23, s18
    s_lshl_b32 s23, s23, 11
    s_lshl_b32 s22, s{S_BR}, 10
    s_add_u32 s23, s23, s22
    s_lshl_b32 s21, s21, 9
    s_add_u32 s23, s23, s21
    s_lshl_b32 s20, s20, 7
    s_add_u32 s23, s23, s20
    s_lshl_b32 s19, s19, 6
    s_add_u32 s{dst}, s23, s19
    """)
    def run_pieces(np_):
        A = 224; T = 232
        order = [(k, hp) for k in range(np_) for hp in range(16)]
        D = o.r_depth
        e.vm = []; e.vm_waited = set()
        for x in order[:D]: load1(*x)
        for k in range(np_): outaddr(k, 24 + k)
        for n, (k, hp) in enumerate(order):
            e.need_vm(f"R{k}_{hp}")
            if n + D < len(order): load1(*order[n + D])
            for d in range(4):
                r = 64 * k + 4 * hp + d
                if hp == 0:
                    e(f"v_lshlrev_b32 v{A + 2*d}, 16, v{r}")
                    e(f"v_and_b32 v{A + 2*d + 1}, 0xffff0000, v{r}")
                else:
                    e(f"v_lshlrev_b32 v{T + 2*(d & 1)}, 16, v{r}")
                    e(f"v_and_b32 v{T + 2*(d & 1) + 1}, 0xffff0000, v{r}")
                    e(f"v_add_f32 v{A + 2*d}, v{A + 2*d}, v{T + 2*(d & 1)}")
                    e(f"v_add_f32 v{A + 2*d + 1}, v{A + 2*d + 1}, v{T + 2*(d & 1) + 1}")
            if hp == 15:
                o0 = 236 + 4 * (k & 1)
                for d in range(4): e(f"v_cvt_pk_bf16_f32 v{o0 + d}, v{A + 2*d}, v{A + 2*d + 1}")
                e.vm_op(f"buffer_store_dwordx2 v[{o0}:{o0+1}], v250, s[12:15], s{24 + k} offen", f"S{k}")
                e.vm_op(f"buffer_store_dwordx2 v[{o0+2}:{o0+3}], v250, s[12:15], s{24 + k} offen offset:32", f"S{k}")
    if o.r_loop:
        A = 224; T = 232
        e.label(f"L_rloop_{name}")
        e(f"s_lshl_b32 s3, s{J}, 10")
        for hp in range(16):
            e(f"buffer_load_dwordx4 v[{4*hp}:{4*hp+3}], v249, s[8:11], s3 offen {o.r_flag}")
            if hp < 15: e("s_add_u32 s3, s3, 163840")
        outaddr(0, 24)
        for hp in range(16):
            e(f"s_waitcnt vmcnt({15 - hp})")
            for d in range(4):
                r = 4 * hp + d
                if hp == 0:
                    e(f"v_lshlrev_b32 v{A + 2*d}, 16, v{r}")
                    e(f"v_and_b32 v{A + 2*d + 1}, 0xffff0000, v{r}")
                else:
                    e(f"v_lshlrev_b32 v{T + 2*(d & 1)}, 16, v{r}")
                    e(f"v_and_b32 v{T + 2*(d & 1) + 1}, 0xffff0000, v{r}")
                    e(f"v_add_f32 v{A + 2*d}, v{A + 2*d}, v{T + 2*(d & 1)}")
                    e(f"v_add_f32 v{A + 2*d + 1}, v{A + 2*d + 1}, v{T + 2*(d & 1) + 1}")
        for d in range(4): e(f"v_cvt_pk_bf16_f32 v{236 + d}, v{A + 2*d}, v{A + 2*d + 1}")
        e(f"buffer_store_dwordx2 v[236:237], v250, s[12:15], s24 offen")
        e(f"buffer_store_dwordx2 v[238:239], v250, s[12:15], s24 offen offset:32")
        e(f"s_add_u32 s{J}, s{J}, 4")
        e(f"s_mul_i32 s3, s{R}, 10")
        e(f"s_add_u32 s3, s3, 10")
        e(f"s_cmp_lt_u32 s{J}, s3")
        e(f"s_cbranch_scc1 L_rloop_{name}")
        return
    e(f"s_cmp_lt_u32 s{S_W}, 2")
    e(f"s_cbranch_scc0 L_two_{name}")
    run_pieces(3)
    e(f"s_branch L_reduced_{name}")
    e.label(f"L_two_{name}")
    run_pieces(2)
    e.label(f"L_reduced_{name}")

def gen_k1(name, o):
    NSTAMP[0] = 0
    CODE_NAME[0] = name
    e = Em()
    e.lines.append(kernel_head(name))
    prologue(e, o, name)
    qphase(e, o)
    stamp(e, o, "qdone")
    e(f"v_accvgpr_write_b32 a{A_SAVE}, v{V_OV0}")
    e(f"v_accvgpr_write_b32 a{A_SAVE+1}, v{V_OV0+1}")
    e(f"v_accvgpr_write_b32 a{A_SAVE+2}, v{V_T+1}")
    for n in range(3): run(e, kfrag(0, 0, n, n))
    qconvert(e)
    stamp(e, o, "qconv")
    e(f"""
    v_accvgpr_read_b32 v{V_OV}, a{A_SAVE}
    v_accvgpr_read_b32 v{V_OV+1}, a{A_SAVE+1}
    v_accvgpr_read_b32 v{V_E+5}, a{A_SAVE+2}
    s_mov_b32 s{S_KDST}, s{S_KV}             ; K(4) -> slot 0
    s_add_u32 s{S_VDST}, s{S_KV}, {32768 if o.apf else 0}          ; V(4) / V(2)
    s_lshl_b32 s7, s{S_RH}, 12
    s_add_u32 s{S_KOFF}, s7, {4 * 8192}
    s_add_u32 s{S_VOFF}, s7, {(4 if o.apf else 2) * 8192}
    v_lshlrev_b32 v{V_E+5}, 4, v{V_E+5}
    """)
    if o.t3: t3_setup(e, o)
    for r in range(20): e(f"v_mov_b32 v{V_BIAS + r}, 0")
    e(f"s_cmp_eq_u32 s{S_MODE}, 0")
    e(f"s_cbranch_scc0 L_maxpass_{name}")
    e.label(f"L_maxdone_{name}")
    if o.pf_late:
        e("s_waitcnt vmcnt(0)"); e("s_barrier"); e.vm = []
        for n in range(3): run(e, kfrag(0, 0, n, n))
    attn_iter(e, o, -1, True, False, False, 1, '', True)
    if o.apf:
        attn_iter(e, o, 0, True, True, False, 1, 'K', True)
        attn_iter(e, o, 1, True, True, True, 1, 'K', True, first_pv=True)
        attn_iter(e, o, 2, True, True, True, 1, 'KV', True)
    else:
        attn_iter(e, o, 0, True, True, False, 1, 'KV', True)
        attn_iter(e, o, 1, True, True, True, 1, 'KV', True, first_pv=True)
        attn_iter(e, o, 2, True, True, True, 1, 'KV', True)
    stamp(e, o, "iter0_done")
    e(f"s_mov_b32 s{S_CNT}, 0")
    ds0 = list(e.ds)
    e.label(f"L_loop_{name}")
    if o.t3 and o.w_touch >= 0:
        e(f"s_cmp_eq_u32 s{S_CNT}, {o.w_touch}")
        e(f"s_cbranch_scc0 L_nowt_{name}")
        e(f"buffer_load_dword v{V_E + 1}, v{V_E}, s[56:59], 0 offen")
        if o.c_touch >= 2:
            vq = list(e.vm); code_touch(e, V_E + 2, V_E + 3, 1); e.vm = vq
        e.label(f"L_nowt_{name}")
    n0 = len(e.lines)
    attn_iter(e, o, 3, True, True, True, 1, 'KV', True)
    attn_iter(e, o, 4, True, True, True, 1, 'KV', True)
    import copy
    e2 = copy.deepcopy(e); n1 = len(e2.lines)
    attn_iter(e2, o, 5, True, True, True, 1, 'KV', True)
    attn_iter(e2, o, 6, True, True, True, 1, 'KV', True)
    assert e.lines[n0:n1] == e2.lines[n1:], "loop body is not in steady state"
    assert e.ds == ds0, (e.ds, ds0)
    e(f"s_add_u32 s{S_CNT}, s{S_CNT}, 1")
    e(f"s_cmp_lt_u32 s{S_CNT}, 6")
    e(f"s_cbranch_scc1 L_loop_{name}")
    e.ds_all()
    stamp(e, o, "loop_done")
    attn_iter(e, o, 15, False, True, True, 0, '', False)
    if o.t3:
        t3_tail(e, o)
    else:
        attn_iter(e, o, 16, False, False, True, None, '', False, epi=epilogue_fill(o))
    stamp(e, o, "stores_issued")
    vote(e, o, name)
    if o.fuse:
        stamp(e, o, "Tsig")
        fused_reduce(e, o, name)
    if o.stamps: e("s_waitcnt vmcnt(0)")
    stamp(e, o, "end")
    if o.stamps:
        e(f"""
    s_memrealtime s[96:97]
    s_waitcnt lgkmcnt(0)
    s_lshl_b32 s3, s2, 2
    s_add_u32 s3, s3, s{S_W}
    s_lshl_b32 s3, s3, 7
    s_add_u32 s3, s3, {200*1024*1024}
    v_mov_b32 v30, s3
    s_mov_b64 exec, 1
    """)
        for k in range(14):
            e(f"v_mov_b32 v0, s{70 + 2*k}")
            e(f"v_mov_b32 v1, s{71 + 2*k}")
            e(f"global_store_dwordx2 v30, v[0:1], s[68:69] offset:{8*k}")
            e("s_nop 1")
        e("s_waitcnt vmcnt(0)")
        if o.dbg:
            e(f"""
    s_or_b32 s3, s2, s{S_W}
    s_cmp_eq_u32 s3, 0
    s_cbranch_scc0 L_end_{name}
    s_load_dwordx2 s[98:99], s[0:1], 88
    s_waitcnt lgkmcnt(0)
    v_mov_b32 v30, 0
    """)
            for k in range(1, 11):
                e(f"s_sub_u32 s3, s{70 + 2*k}, s70")
                e(f"v_mov_b32 v0, s3")
                e(f"global_store_dword v30, v0, s[98:99] offset:{4*k}")
                e("s_nop 1")
            e("s_sub_u32 s3, s96, s94")
            e("v_mov_b32 v0, s3")
            e("global_store_dword v30, v0, s[98:99] offset:0")
            e("s_waitcnt vmcnt(0)")
    e.label(f"L_end_{name}")
    e("s_endpgm")
    dsq, vmq = list(e.ds), list(e.vm)
    max_pass(e, o, name)
    e.label("CODE_END")
    return e.text() + kernel_desc(name, 512, 256)
```

```python
from common import *
from sched import *

KRING = 0
VRING = 98304
WQ0 = 32768; WQ_HEAD = 8224; WQ_SLOT = 2 * WQ_HEAD
X0 = 82176; X_SLOT = 20480
LDS_BYTES = 163840
VTOG = 0x38000
S_W, S_HH, S_RH = 4, 5, 6
SRD_X, SRD_WQ, SRD_K, SRD_V, SRD_O = 8, 12, 16, 20, 24
S_T0, S_T1 = 32, 33
S_WQL, S_XL, S_XG, S_WQG = 35, 36, 37, 38
S_KDST, S_VDST, S_KOFF, S_VOFF, S_CNT = 40, 41, 42, 43, 44
S_IDX, S_HG, S_B, S_BR, S_H = 45, 46, 47, 48, 49
S_SC = 50
S_KV = 39; S_WQK = 51; S_XK = 34; S_PT = 7
V_Q = 0
V_XB = [0, 20]
V_AW = 40
V_AX = 44
V_OWQ = 46
V_OX = 50
V_T = 56
V_ACC = 80
V_S = [80, 120]
V_P = [160, 180]
V_OV = 200
V_E = 202
V_OV0 = 70
V_AK = 240; V_AV = 244; V_OK = 252
A_O = 0; A_L = 160; A_ONE = 180; A_F = 184
A_SAVE = 216
SRD_WO, SRD_P = 28, 24
S_WA, S_WB, S_WL = 52, 53, 54
POFF = 32 * 1024 * 1024
WRING = 98304
V_OW = 232
V_AW2 = 236
V_XA = 231
A_ACC2 = [0, 80]
V_BIAS = 208
S_MODE = 92
S_BAD = 64
R_LO, R_HI = 0x27800000, 0x4f800000

def acc(dt, qt): return V_ACC + (dt * 5 + qt) * 4
def qf(j, qt): return V_Q + (j * 5 + qt) * 4
def sreg(par, kt, qt): return V_S[par] + (kt * 5 + qt) * 4
def preg(par, qt): return V_P[par] + qt * 4
def oacc(dt, qt): return A_O + (dt * 5 + qt) * 4
def fbuf(n): return A_F + 4 * (n % 8)

class Opt:
    kv_flag = "nt"
    q_flag = ""
    o_flag = ""
    stamps = False
    pre_all = True
    pf_start = 0
    pf_per = 3
    pf_late = False
    pf_steps = ""
    q_nodma = False
    q_nowait = False
    q_nobar = False
    q_nods = False
    rotg = 8
    rot = True
    pace = 4
    apf = True
    stamp_list = ""
    stamp_set = "q"
    fuse = False
    spin_sleep = 1
    nosync = False
    r_depth = 12
    r_loop = False
    r_flag = "sc1"
    cnt_ws = False
    t3 = True
    p_flag = ""
    w_flag = ""
    c_k3_at = 3
    c_k3 = 0
    c_early = 0
    c_touch = 0
    acc_hi = True
    vmax = 3
    wo_early = True
    skew = 0
    w_pace = 2
    kv_pace = 0
    t3_nostore = False
    t3_nodma = False
    w_touch = -1
    dbg = False

NSTAMP = [0]
NSK = [0]
def stamp(e, o, tag):
    if not o.stamps: return
    if o.stamp_list:
        if tag not in o.stamp_list.split(","): return
        k = NSTAMP[0]; NSTAMP[0] += 1
        assert k < 11
        e.comment("stamp " + tag)
        e(f"s_memtime s[{70 + 2*k}:{71 + 2*k}]")
        return
    early = tag in ("issued", "bar0", "B3", "B9", "qconv")
    late = tag.startswith("T")
    if (o.stamp_set == "tail" and early) or (o.stamp_set != "tail" and late): return
    if o.fuse and o.stamp_set != "tail" and tag == "stores_issued": pass
    k = NSTAMP[0]; NSTAMP[0] += 1
    assert k < 12
    e.comment("stamp " + tag)
    e(f"s_memtime s[{70 + 2*k}:{71 + 2*k}]")

def prologue(e, o, name):
    e(f"""
    s_cmp_ge_u32 s2, 256
    s_cbranch_scc1 L_end_{name}
    s_mov_b32 s{S_MODE}, 0
    """)
    if o.c_early: code_touch_early(e, o, name)
    e(f"""
L_restart_{name}:
    s_load_dwordx8 s[52:59], s[0:1], 0       ; A_x A_k A_v A_wq
    s_load_dwordx8 s[60:67], s[0:1], 40      ; B_x B_k B_v B_wq
    s_load_dwordx2 s[68:69], s[0:1], 96      ; ws
    s_load_dwordx2 s[98:99], s[0:1], 32      ; A_wo
    s_load_dwordx2 s[100:101], s[0:1], 72    ; B_wo
    v_lshrrev_b32 v{V_T}, 6, v0
    v_and_b32 v{V_T+1}, 63, v0               ; lane
    v_readfirstlane_b32 s{S_W}, v{V_T}
    s_and_b32 s3, s2, 7
    s_lshr_b32 s{S_IDX}, s2, 3
    s_lshr_b32 s{S_BR}, s3, 2
    s_and_b32 s{S_HG}, s3, 3
    s_lshr_b32 s{S_B}, s{S_IDX}, 2
    s_and_b32 s7, s{S_IDX}, 3
    s_lshr_b32 s{S_HH}, s{S_W}, 1
    s_and_b32 s{S_RH}, s{S_W}, 1
    s_lshl_b32 s{S_H}, s{S_HG}, 3
    s_lshl_b32 s7, s7, 1
    s_add_u32 s{S_H}, s{S_H}, s7
    s_add_u32 s{S_H}, s{S_H}, s{S_HH}
    """)
    if o.stamps:
        e("s_memrealtime s[94:95]")
    stamp(e, o, "start")
    L = V_T + 1
    c, g, rp, cp, t0, t1 = V_T + 2, V_T + 3, V_T + 4, V_T + 5, V_T + 6, V_T + 7
    e(f"""
    v_and_b32 v{c}, 15, v{L}
    v_lshrrev_b32 v{g}, 4, v{L}
    v_bfe_u32 v{rp}, v{L}, 2, 2
    v_and_b32 v{cp}, 3, v{L}
    """)
    e(f"""
    v_lshlrev_b32 v{t0}, 2, v{g}
    v_xor_b32 v{t0}, v{t0}, v{c}
    v_lshlrev_b32 v{t0}, 4, v{t0}
    v_lshl_add_u32 v{V_OWQ}, v{g}, 13, v{t0}
    """)
    for u in range(1, 4):
        e(f"v_add_u32 v{V_OWQ+u}, {u * 32768 - wq_imm(u)}, v{V_OWQ}")
    e(f"""
    v_and_b32 v{t0}, 7, v{L}
    v_xor_b32 v{t0}, v{t0}, v{g}
    v_lshlrev_b32 v{t0}, 4, v{t0}
    v_lshrrev_b32 v{t1}, 3, v{L}
    v_lshl_add_u32 v{t0}, v{t1}, 10, v{t0}
    s_and_b32 s3, s{S_W}, 1
    s_lshl_b32 s3, s3, 6
    v_xor_b32 v{t0}, s3, v{t0}
    v_xor_b32 v{t1}, 64, v{t0}
    """)
    for u in range(5):
        src = t0 if u % 2 == 0 else t1
        e(f"v_add_u32 v{V_OX+u}, {u * 8192 - (u & 3) * 1024}, v{src}")
    e(f"""
    v_xor_b32 v{t0}, v{c}, v{g}
    v_lshlrev_b32 v{t0}, 4, v{t0}
    v_lshl_add_u32 v{V_OK}, v{g}, 8, v{t0}
    v_xor_b32 v{V_OK+1}, 64, v{V_OK}
    v_xor_b32 v{V_OK+2}, 0x80, v{V_OK}
    v_xor_b32 v{V_OK+3}, 0xc0, v{V_OK}
    """)
    e(f"""
    v_lshlrev_b32 v{t0}, 1, v{g}
    v_xor_b32 v{t0}, v{t0}, v{c}
    v_lshlrev_b32 v{t0}, 4, v{t0}
    v_lshl_add_u32 v{V_OV0}, v{g}, 8, v{t0}
    v_xor_b32 v{V_OV0+1}, 0x80, v{V_OV0}
    """)
    e(f"""
    s_mul_i32 s3, s{S_HH}, {WQ_HEAD}
    s_add_u32 s3, s3, {WQ0}
    v_mul_u32_u24 v{t0}, 2056, v{g}
    v_lshl_add_u32 v{t0}, v{rp}, 8, v{t0}
    v_lshl_add_u32 v{t0}, v{cp}, 4, v{t0}
    v_add_u32 v{t0}, s3, v{t0}
    s_mul_i32 s7, s{S_RH}, {4 * 1024 + 16}
    s_add_u32 s{S_WQL}, s3, s7
    s_lshl_b32 s{S_WQG}, s{S_RH}, 17
    """)
    for j in range(4):
        e(f"""
    v_xor_b32 v{t1}, {j}, v{rp}
    v_lshl_add_u32 v{V_AW+j}, v{t1}, 6, v{t0}""")
    e(f"""
    s_mul_i32 s3, s{S_RH}, {80*128}
    s_add_u32 s3, s3, {X0}
    v_lshrrev_b32 v{t0}, 1, v{c}
    v_xor_b32 v{t0}, v{t0}, v{g}
    v_lshlrev_b32 v{t0}, 4, v{t0}
    v_lshl_add_u32 v{t0}, v{c}, 7, v{t0}
    v_add_u32 v{V_AX}, s3, v{t0}
    v_xor_b32 v{V_AX+1}, 64, v{V_AX}
    s_mul_i32 s{S_XL}, s{S_W}, 5120
    s_add_u32 s{S_XL}, s{S_XL}, {X0}
    s_mul_i32 s{S_XG}, s{S_W}, 40960
    """)
    e(f"""
    s_lshl_b32 s3, s{S_HH}, 13
    s_lshl_b32 s7, s{S_RH}, 12
    s_add_u32 s{S_KV}, s3, s7
    v_xor_b32 v{t0}, v{g}, v{c}
    v_lshlrev_b32 v{t0}, 4, v{t0}
    v_lshl_add_u32 v{t0}, v{c}, 8, v{t0}
    v_add_u32 v{V_AK}, s3, v{t0}
    v_xor_b32 v{V_AK+1}, 64, v{V_AK}
    v_xor_b32 v{V_AK+2}, 0x80, v{V_AK}
    v_xor_b32 v{V_AK+3}, 0xc0, v{V_AK}
    """)
    e(f"""
    v_lshlrev_b32 v{V_APA}, 4, v{L}
    v_add_u32 v{V_APA}, s{S_KV}, v{V_APA}
    v_add_u32 v{V_APA+1}, {VRING}, v{V_APA}
    """)
    e(f"""
    s_add_u32 s3, s3, 0x20000
    v_lshl_add_u32 v{t0}, v{g}, 2, v{rp}       ; 4g + r'
    v_and_b32 v{t1}, 7, v{t0}                  ; rho7
    v_lshlrev_b32 v{t0}, 8, v{t0}
    v_lshl_add_u32 v{t0}, v{t1}, 5, v{t0}
    v_lshl_add_u32 v{t0}, v{cp}, 3, v{t0}
    v_add_u32 v{V_AV}, s3, v{t0}
    """)
    for dt in range(1, 8):
        e(f"v_xor_b32 v{V_AV+dt}, {32*dt}, v{V_AV}")
    e(f"""
    s_waitcnt lgkmcnt(0)
    s_cmp_eq_u32 s{S_BR}, 0
    s_cselect_b32 s52, s52, s60
    s_cselect_b32 s53, s53, s61
    s_cselect_b32 s54, s54, s62
    s_cselect_b32 s55, s55, s63
    s_cselect_b32 s56, s56, s64
    s_cselect_b32 s57, s57, s65
    s_cselect_b32 s58, s58, s66
    s_cselect_b32 s59, s59, s67
    s_lshl_b32 s3, s{S_H}, 8
    s_add_u32 s{SRD_WQ}, s58, s3
    s_addc_u32 s{SRD_WQ+1}, s59, 0
    s_sub_u32 s{SRD_WQ+2}, 4194304, s3
    s_mov_b32 s{SRD_WQ+3}, 0x20000
    s_mul_i32 s3, s{S_B}, 163840
    s_add_u32 s{SRD_X}, s52, s3
    s_addc_u32 s{SRD_X+1}, s53, 0
    s_mov_b32 s{SRD_X+2}, 163840
    s_mov_b32 s{SRD_X+3}, 0x20000
    """)
    if o.rot and o.rotg > 1:
        G = o.rotg
        e(f"""
    s_and_b32 s3, s{S_IDX}, 3                ; p
    s_lshl_b32 s3, s3, {1 if G == 8 else 0}
    s_add_u32 s3, s3, s{S_B}
    s_and_b32 s3, s3, {G - 1}
    s_mul_i32 s3, s3, {8 // G}
    s_lshl_b32 s{S_WQK}, s3, 7
    s_lshl_b32 s3, s3, 19                    ; 64 rows * 8192
    s_add_u32 s{S_WQG}, s{S_WQG}, s3
    """)
    else:
        e(f"s_mov_b32 s{S_WQK}, 0")

def prologue2(e, o):
    e(f"""
    s_lshl_b32 s3, s{S_B}, 5
    s_add_u32 s3, s3, s{S_H}
    s_lshl_b32 s3, s3, 17
    s_add_u32 s{SRD_K}, s54, s3
    s_addc_u32 s{SRD_K+1}, s55, 0
    s_mov_b32 s{SRD_K+2}, 131072
    s_mov_b32 s{SRD_K+3}, 0x20000
    s_add_u32 s{SRD_V}, s56, s3
    s_addc_u32 s{SRD_V+1}, s57, 0
    s_mov_b32 s{SRD_V+2}, 131072
    s_mov_b32 s{SRD_V+3}, 0x20000
    s_lshl_b32 s3, s{S_BR}, 3
    s_add_u32 s3, s3, s{S_B}
    s_lshl_b32 s3, s3, 1
    s_add_u32 s3, s3, s{S_RH}
    s_lshl_b32 s3, s3, 5
    s_add_u32 s3, s3, s{S_H}
    s_mul_i32 s3, s3, 20480
    s_add_u32 s{SRD_O}, s68, s3
    s_addc_u32 s{SRD_O+1}, s69, 0
    s_mov_b32 s{SRD_O+2}, 20480
    s_mov_b32 s{SRD_O+3}, 0x20000
    s_mov_b32 s{S_SC}, {f32hex(C_SCALE)}
    """)

def wq_imm(u): return u * 1024 + 8 * (u >> 1)

def dma_wq(o, m, after=-1, before=10**9, pace=0):
    fl = [F('s', txt(f"s_add_u32 m0, s{S_WQL}, {(m % 3) * WQ_SLOT}"), after, before)]
    for u in range(4):
        fl.append(F('l', lambda e, u=u: e.vm_op(f"buffer_load_dwordx4 v{V_OWQ+u}, s[{SRD_WQ}:{SRD_WQ+3}], s{S_WQG} offen offset:{wq_imm(u)} {o.q_flag} lds", f"wq{m}"), after + pace * u, before))
    fl.append(F('s', txt(f"s_add_u32 s{S_WQG}, s{S_WQG}, {32 * 8192}"), after, before))
    fl.append(F('s', txt(f"s_and_b32 s{S_WQG}, s{S_WQG}, 0x3fffff"), after, before))
    return fl

def dma_x(o, M, after=-1, before=10**9, pace=0):
    fl = [F('s', txt(f"s_add_u32 m0, s{S_XL}, {(M % 2) * X_SLOT}"), after, before),
          F('s', txt(f"s_add_u32 s{S_T1}, s{S_XG}, s{S_WQK}"), after, before)]
    for u in range(5):
        if u == 4: fl.append(F('s', txt(f"s_add_u32 m0, s{S_XL}, {(M % 2) * X_SLOT + 4096}"), after, before))
        if u == 4: fl.append(F('s', txt("s_nop 0"), after, before))
        fl.append(F('l', lambda e, u=u: e.vm_op(f"buffer_load_dwordx4 v{V_OX+u}, s[{SRD_X}:{SRD_X+3}], s{S_T1} offen offset:{(u & 3) * 1024} {o.q_flag} lds", f"x{M}"), after + pace * u, before))
    fl.append(F('s', txt(f"s_add_u32 s{S_WQK}, s{S_WQK}, 128"), after, before))
    fl.append(F('s', txt(f"s_and_b32 s{S_WQK}, s{S_WQK}, 0x3ff"), after, before))
    return fl

def dma_pref(o, which, s, after=-1, before=10**9, pace=0):
    if which == 'K':
        base = KRING + 16384 * s; srd = SRD_K; vo = lambda t: V_OK + t
    else:
        base = 0x20000 + 16384 * s; srd = SRD_V; vo = lambda t: V_OV0 + (t & 1)
    fl = [F('s', txt(f"s_add_u32 m0, s{S_KV}, {base}"), after, before),
          F('s', txt(f"s_lshl_b32 s34, s{S_RH}, 12"), after, before),
          F('s', txt(f"s_add_u32 s34, s34, {s * 8192}"), after, before)]
    for t in range(4):
        fl.append(F('l', lambda e, t=t: e.vm_op(f"buffer_load_dwordx4 v{vo(t)}, s[{srd}:{srd+3}], s34 offen offset:{t * 1024} {o.kv_flag} lds", f"{which}{s}"), after + pace * t, before))
    return fl

APF = {('K', 2): 0, ('K', 3): 16, ('V', 2): 32, ('V', 3): 48}
def dma_apf(o, which, s, after=-1, before=10**9, pace=0):
    srd = SRD_K if which == 'K' else SRD_V
    vo = (lambda t: V_OK + t) if which == 'K' else (lambda t: V_OV0 + (t & 1))
    fl = [F('s', txt(f"s_lshl_b32 s34, s{S_RH}, 12"), after, before),
          F('s', txt(f"s_add_u32 s34, s34, {s * 8192}"), after, before)]
    for t in range(4):
        a = APF[(which, s)] + 4 * t
        fl.append(F('l', lambda e, t=t, a=a: e.vm_op(f"buffer_load_dwordx4 a[{a}:{a+3}], v{vo(t)}, s[{srd}:{srd+3}], s34 offen offset:{t * 1024} {o.kv_flag}", f"{which}{s}"), after + pace * t, before))
    return fl
V_APA = 72
def apf_copy(after):
    fl = []
    for (which, s), a0 in APF.items():
        for t in range(4):
            a = a0 + 4 * t
            if which == 'K': txt_ = f"ds_write_b128 v{V_APA}, a[{a}:{a+3}] offset:{KRING + 16384 * s + 1024 * t}"
            else: txt_ = f"ds_write_b128 v{V_APA+1}, a[{a}:{a+3}] offset:{16384 * (s - 2) + 1024 * t}"
            fl.append(F('d', lambda e, txt_=txt_: e.ds_op(txt_, "APF"), after))
    return fl

def zero_acc(e):
    e(f"v_mov_b32 v{V_T+8}, 0x3f803f80")
    for r in range(4):
        e(f"v_accvgpr_write_b32 a{A_ONE + r}, v{V_T+8}")

def code_touch_early(e, o, name):
    e("s_getpc_b64 s[66:67]")
    e.label(f"L_pce_{name}")
    e(f"s_sub_u32 s66, s66, L_pce_{name}-{name}")
    e("s_subb_u32 s67, s67, 0")
    if o.c_early == 1:
        e("v_lshlrev_b32 v74, 7, v0")
        e(f"v_min_u32 v75, CODE_END-{name}-4, v74")
        e.vm_op("global_load_dword v76, v75, s[66:67]", "ce")
        e("v_add_u32 v74, 0x8000, v74")
        e(f"v_min_u32 v75, CODE_END-{name}-4, v74")
        e.vm_op("global_load_dword v77, v75, s[66:67]", "ce")
    elif o.c_early == 2:
        e("v_and_b32 v74, 63, v0")
        e("v_lshlrev_b32 v74, 7, v74")
        e.vm_op("global_load_dword v76, v74, s[66:67]", "ce")
        e("s_lshr_b32 s3, s2, 3")
        e("s_lshl_b32 s3, s3, 11")
        e("v_and_b32 v74, 15, v0")
        e("v_lshlrev_b32 v74, 7, v74")
        e("v_add_u32 v74, s3, v74")
        e(f"v_min_u32 v75, CODE_END-{name}-4, v74")
        e.vm_op("global_load_dword v77, v75, s[66:67]", "ce")
    elif o.c_early == 3:
        e("v_lshlrev_b32 v74, 7, v0")
        e(f"v_min_u32 v75, CODE_END-{name}-4, v74")
        e.vm_op("global_load_dword v76, v75, s[66:67]", "ce")
        e("s_lshr_b32 s3, s2, 3")
        e("s_lshl_b32 s3, s3, 9")
        e("s_add_u32 s3, s3, 0x8000")
        e("v_and_b32 v74, 3, v0")
        e("v_lshlrev_b32 v74, 7, v74")
        e("v_add_u32 v74, s3, v74")
        e(f"v_min_u32 v75, CODE_END-{name}-4, v74")
        e.vm_op("global_load_dword v77, v75, s[66:67]", "ce")

def code_touch(e, va, vd, first):
    e("s_getpc_b64 s[66:67]")
    e.label(f"L_pc{first}_{CODE_NAME[0]}")
    e(f"s_sub_u32 s66, s66, L_pc{first}_{CODE_NAME[0]}-{CODE_NAME[0]}")
    e("s_subb_u32 s67, s67, 0")
    e(f"s_lshl_b32 s3, s{S_IDX}, 11")
    e(f"v_mbcnt_lo_u32_b32 v{va}, -1, 0")
    e(f"v_mbcnt_hi_u32_b32 v{va}, -1, v{va}")
    e(f"v_and_b32 v{va}, 15, v{va}")
    e(f"v_lshlrev_b32 v{va}, 7, v{va}")
    e(f"v_add_u32 v{va}, s3, v{va}")
    e(f"v_min_u32 v{va}, CODE_END-{CODE_NAME[0]}-4, v{va}")
    e.vm_op(f"global_load_dword v{vd}, v{va}, s[66:67]", "ctouch")

CODE_NAME = [""]
def run(e, fl):
    for f in fl: f.fn(e)

def qphase(e, o):
    run(e, dma_wq(o, 0) + dma_x(o, 0) + dma_wq(o, 1))
    if o.pre_all: run(e, dma_wq(o, 2) + dma_x(o, 1))
    prologue2(e, o)
    if o.c_touch: code_touch(e, V_T + 9, V_T + 10, 0)
    stamp(e, o, "issued")
    zero_acc(e)
    idx = lambda m, dt, qt: 40 * m + 5 * dt + qt
    def wfrag(m, dt, after=-1, before=10**9):
        j, tp = dt >> 1, dt & 1
        return [F('d', lambda e, n=n: e.ds_op(f"ds_read_b64_tr_b16 a[{fbuf(dt) + 2 * n}:{fbuf(dt) + 2 * n + 1}], v{V_AW + j} offset:{(m % 3) * WQ_SLOT + n * 1024 + 8 * tp}", f"F{m}_{dt}"), after, before) for n in range(2)]
    def xfrag(m, qt, after=-1, before=10**9):
        M, h = m >> 1, m & 1
        b = V_XB[m & 1] + 4 * qt
        return [F('d', lambda e: e.ds_op(f"ds_read_b128 v[{b}:{b+3}], v{V_AX + h} offset:{(M % 2) * X_SLOT + qt * 2048}", f"B{m}_{qt}"), after, before)]
    def barrier(m):
        def fn(e):
            e.ds_all()
            tags = [f"wq{m+1}"]
            if (m + 1) % 2 == 0: tags.append(f"x{(m+1)//2}")
            if m == 15:
                e.vm_all()
            elif not o.q_nowait or m < 0:
                e.need_vm(tags)
            if not o.q_nobar or m in (-1, 15): e("s_barrier")
            if o.skew and -1 <= m < 15:
                n_ = NSK[0]; NSK[0] += 1
                e(f"s_cmp_eq_u32 s{S_W}, 0")
                e(f"s_cbranch_scc1 L_sk{n_}")
                e(f"s_nop {o.skew - 1}")
                e(f"s_cmp_eq_u32 s{S_W}, 1")
                e(f"s_cbranch_scc1 L_sk{n_}")
                e(f"s_nop {o.skew - 1}")
                e(f"s_cmp_eq_u32 s{S_W}, 2")
                e(f"s_cbranch_scc1 L_sk{n_}")
                e(f"s_nop {o.skew - 1}")
                e.label(f"L_sk{n_}")
            stamp(e, o, f"B{m}") if (o.stamp_list or m in (3, 9)) else None
        return fn
    barrier(-1)(e)
    stamp(e, o, "bar0")
    def nextfrags(m, after, before):
        fl = wfrag(m, 0, after, before)
        for q in range(5): fl += xfrag(m, q, after, before)
        return fl + wfrag(m, 1, after, before) + wfrag(m, 2, after, before)
    run(e, nextfrags(0, -1, 0))
    mains = []; rd = []; dm = []
    pref = [('K', 0), ('K', 1), ('V', 0), ('V', 1)]
    if o.apf: pref += [('K', 2), ('K', 3), ('V', 2), ('V', 3)]
    tnext = [0]
    for m in range(16):
        for dt in range(8):
            for qt in range(5):
                cin = "0" if m == 0 else vr(acc(dt, qt), 4)
                needs = []
                if qt == 0: needs.append(f"F{m}_{dt}")
                if dt == 0: needs.append(f"B{m}_{qt}")
                pre = barrier(m) if (dt == 5 and qt == 0) else None
                mains.append(Main(f"{MFMA} {vr(acc(dt, qt), 4)}, {ar(fbuf(dt), 4)}, {vr(V_XB[m & 1] + 4 * qt, 4)}, {cin}", needs, pre))
        for dt in (3, 4, 5):
            rd += wfrag(m, dt, idx(m, dt - 3, 0), idx(m, dt - 1, 0))
        for dt in (6, 7):
            rd += wfrag(m, dt, idx(m, 2, 2), idx(m, 4, 3))
        if m < 15:
            rd += nextfrags(m + 1, idx(m, 5, 0), idx(m, 7, 4))
        a = idx(m, 5, 0); b = idx(m + 1, 5, 0) if m < 15 else 10**9
        if m == 0 and not o.pre_all:
            dm += dma_wq(o, 2, -1, idx(0, 4, 0)) + dma_x(o, 1, -1, idx(0, 4, 4))
        t = max(a, tnext[0])
        if m + 3 < 16 and not o.q_nodma:
            dm += dma_wq(o, m + 3, t, b, o.pace); t += 4 * o.pace
        if m % 2 == 1 and (m - 1) // 2 + 2 < 8 and not o.q_nodma:
            dm += dma_x(o, (m - 1) // 2 + 2, t, idx(m + 2, 4, 0) if m < 14 else 10**9, o.pace); t += 5 * o.pace
        for n_, (w, s) in enumerate(pref):
            when = int(o.pf_steps.split(",")[n_]) if o.pf_steps else min(o.pf_start + n_ * o.pf_per, 15 if o.pf_late else 13)
            if m == when:
                fn_ = dma_pref if s < 2 else dma_apf
                dm += fn_(o, w, s, t, idx(m + 2, 5, 0) if m < 14 else 10**9, o.pace); t += 4 * o.pace
        tnext[0] = t
        if m == 15 and o.apf:
            rd += apf_copy(a)
        if m == 15 and not o.apf:
            for s in (2, 3):
                dm += [F('s', txt(f"s_add_u32 m0, s{S_KV}, {KRING + 16384 * s}"), a),
                       F('s', txt(f"s_lshl_b32 s34, s{S_RH}, 12"), a),
                       F('s', txt(f"s_add_u32 s34, s34, {s * 8192}"), a)]
                for t in range(4):
                    dm.append(F('l', lambda e, t=t, s=s: e.vm_op(f"buffer_load_dwordx4 v{V_OK + t}, s[{SRD_K}:{SRD_K+3}], s34 offen offset:{t * 1024} {o.kv_flag} lds", f"K{s}"), a))
    if o.q_nods: rd = []
    zip2(e, mains, [rd, dm])

def qconvert(e):
    e("s_nop 7")
    for r in range(V_ACC, V_ACC + 160, 2):
        e(f"v_pk_mul_f32 v[{r}:{r+1}], v[{r}:{r+1}], s[{S_SC}:{S_SC+1}] op_sel_hi:[1,0]")
    for j in range(4):
        for qt in range(5):
            for tp in range(2):
                a0 = acc(2 * j + tp, qt); d = qf(j, qt) + 2 * tp
                e(f"v_cvt_pk_bf16_f32 v{d}, v{a0}, v{a0+1}")
                e(f"v_cvt_pk_bf16_f32 v{d+1}, v{a0+2}, v{a0+3}")

def dma_kv(o, which, after0, i):
    fl = []
    P = o.kv_pace
    after = after0
    if 'K' in which:
        fl.append(F('s', txt(f"s_mov_b32 m0, s{S_KDST}"), after))
        fl.append(F('s', txt(f"s_add_u32 s{S_KDST}, s{S_KDST}, 16384"), after))
        for t in range(4):
            fl.append(F('l', lambda e, t=t: e.vm_op(f"buffer_load_dwordx4 v{V_OK + t}, s[{SRD_K}:{SRD_K+3}], s{S_KOFF} offen offset:{t * 1024} {o.kv_flag} lds", f"K{i+4}"), after))
            after += P
        fl.append(F('s', txt(f"s_and_b32 s{S_KDST}, s{S_KDST}, 0xffff"), after0))
        fl.append(F('s', txt(f"s_add_u32 s{S_KOFF}, s{S_KOFF}, 8192"), after0))
    if 'V' in which:
        fl.append(F('s', txt(f"s_add_u32 m0, s{S_VDST}, {VRING}"), after0))
        fl.append(F('s', txt(f"s_add_u32 s{S_VDST}, s{S_VDST}, 16384"), after0))
        for t in range(4):
            fl.append(F('l', lambda e, t=t: e.vm_op(f"buffer_load_dwordx4 v{V_OV + (t & 1)}, s[{SRD_V}:{SRD_V+3}], s{S_VOFF} offen offset:{t * 1024} {o.kv_flag} lds", f"V{i+2}"), after))
            after += P
        fl.append(F('s', txt(f"s_and_b32 s{S_VDST}, s{S_VDST}, 0xffff"), after0))
        fl.append(F('s', txt(f"s_add_u32 s{S_VOFF}, s{S_VOFF}, 8192"), after0))
    return fl

def kfrag(par_slot, kt, j, n, after=-1, before=10**9):
    return [F('d', lambda e: e.ds_op(f"ds_read_b128 a[{fbuf(n)}:{fbuf(n)+3}], v{V_AK + j} offset:{kt * 4096 + 16384 * par_slot}", f"F{n}"), after, before)]
def vfrag(par_slot, dt, n, after=-1, before=10**9):
    return [F('d', lambda e, h=h: e.ds_op(f"ds_read_b64_tr_b16 a[{fbuf(n) + 2*h}:{fbuf(n) + 2*h + 1}], v{V_AV + dt} offset:{h * 4096 + 16384 * par_slot}", f"F{n}"), after, before) for h in range(2)]

def softmax_fill(par):
    seq = []
    for qt in range(5):
        for kt in range(2):
            s = sreg(par, kt, qt); p = preg(par, qt) + 2 * kt
            seq += [("e", s), ("e", s + 1), ("c", p, s, s + 1), ("e", s + 2), ("e", s + 3), ("c", p + 1, s + 2, s + 3)]
    out = []; pend = None
    for x in seq:
        if x[0] == "c": pend = x
        else:
            out.append(x)
            if pend is not None: out.append(pend); pend = None
    if pend is not None: out.append(("n",)); out.append(pend)
    fl = []
    for x in out:
        if x[0] == "e": fl.append(F('e', txt(f"v_exp_f32 v{x[1]}, v{x[1]}")))
        elif x[0] == "c": fl.append(F('v', txt(f"v_cvt_pk_bf16_f32 v{x[1]}, v{x[2]}, v{x[3]}")))
        else: fl.append(F('s', txt("s_nop 0")))
    return fl

def attn_iter(e, o, i, qk, sm, pv, vwait, dma, pre_next, epi=None, first_pv=False, extra_dm=None):
    par = i & 1; ks = (i + 1) & 1
    mains = []; rd = []; dm = []
    gstart = {}
    if qk:
        for kt in range(2):
            for j in range(4):
                n = kt * 4 + j
                gstart[n] = len(mains)
                for qt in range(5):
                    d = sreg(par ^ 1, kt, qt)
                    cin = vr(V_BIAS + 4 * qt, 4) if j == 0 else vr(d, 4)
                    mains.append(Main(f"{MFMA} {vr(d, 4)}, {ar(fbuf(n), 4)}, {vr(qf(j, qt), 4)}, {cin}", [f"F{n}"] if qt == 0 else []))
    if pv:
        gstart['l'] = len(mains)
        for qt in range(5):
            mains.append(Main(f"{MFMA} {ar(A_L + 4 * qt, 4)}, {ar(A_ONE, 4)}, {vr(preg(par ^ 1, qt), 4)}, {'0' if first_pv else ar(A_L + 4 * qt, 4)}"))
        for dt in range(8):
            n = 8 + dt
            gstart[n] = len(mains)
            for qt in range(5):
                mains.append(Main(f"{MFMA} {ar(oacc(dt, qt), 4)}, {ar(fbuf(n), 4)}, {vr(preg(par ^ 1, qt), 4)}, {'0' if first_pv else ar(oacc(dt, qt), 4)}", [f"F{n}"] if qt == 0 else []))
    order = [n for n in range(16) if n in gstart]
    ln = len(order)
    for k, n in enumerate(order):
        if qk and n < 3: continue
        after = gstart[order[k - 4]] if k >= 4 else -1
        if k >= ln - 3 and ln >= 6: after = gstart[order[ln - 6]]
        before = gstart[order[k - 1]] if k >= 1 else 0
        if k >= ln - 3 and ln >= 4: before = min(before, gstart[order[ln - 3]])
        rd += kfrag(ks, n >> 2, n & 3, n, after, before) if n < 8 else vfrag(ks, n - 8, n, after, before)
    has_bar = pre_next or vwait is not None
    if has_bar:
        bpos = gstart[order[-2]]
        def bar(e):
            e.ds_all()
            if vwait == 0:
                if 'OLD' in e.vm: e.need_vm('OLD')
                else: e.vm_all()
            elif vwait is not None: e.need_vm([f"K{i+2}", f"V{i}"])
            e("s_barrier")
        mains[bpos].pre = bar
        if par == 0 and qk:
            for j in range(4): rd.append(F('v', txt(f"v_xor_b32 v{V_AK + j}, 0x8000, v{V_AK + j}"), bpos))
        if pre_next:
            for n in range(3): rd += kfrag(ks ^ 1, 0, n, n, bpos, len(mains) - 1)
        if par == 0 and pv:
            for dt in range(8): rd.append(F('v', txt(f"v_xor_b32 v{V_AV + dt}, {hex(VTOG)}, v{V_AV + dt}"), bpos))
    dm += dma_kv(o, dma, -1, i)
    if extra_dm: dm += extra_dm
    sf = softmax_fill(par) if sm else []
    qs = [rd, dm, sf]
    if epi: qs.append(epi(gstart))
    zip2(e, mains, qs, flush_nop=bool(epi))

def epilogue_fill(o):
    def build(gstart):
        fl = []
        RL = V_E
        W = V_E + 6
        l0 = gstart['l']
        for qt in range(5):
            fl.append(F('v', txt(f"v_accvgpr_read_b32 v{RL + qt}, a{A_L + 4 * qt}"), l0 + 5 + 8))
        for qt in range(5):
            fl.append(F('e', txt(f"v_rcp_f32 v{RL + qt}, v{RL + qt}"), l0 + 5 + 8))
        k = 0
        for jj in range(4):
            ready = gstart[8 + 2 * jj + 1] + 5 + 4
            for qt in range(5):
                w = W + 12 * (k & 1); k += 1
                for tp in range(2):
                    for i in range(4):
                        fl.append(F('v', txt(f"v_accvgpr_read_b32 v{w + 4*tp + i}, a{oacc(2*jj + tp, qt) + i}"), ready))
                for r in range(8):
                    fl.append(F('v', txt(f"v_mul_f32 v{w + r}, v{w + r}, v{RL + qt}"), ready))
                for r in range(4):
                    fl.append(F('v', txt(f"v_cvt_pk_bf16_f32 v{w + 8 + r}, v{w + 2*r}, v{w + 2*r + 1}"), ready))
                off = (jj * 5 + qt) * 1024
                fl.append(F('s', txt(f"s_mov_b32 s{S_T0}, {off}"), ready))
                fl.append(F('l', lambda e, w=w: e.vm_op(f"buffer_store_dwordx4 v[{w+8}:{w+11}], v{V_E + 5}, s[{SRD_O}:{SRD_O+3}], s{S_T0} offen {o.o_flag}", "st"), ready))
        return fl
    return build

WO_A = [131072, 147456, 98304, 81920, 114688]
WO_B = [0, 16384, 32768, 49152, 65536]
def wo_slot(si): return WO_A[si] if si < 5 else WO_B[si - 5] if si < 10 else WO_A[si - 10] if si < 15 else WO_B[0]
V_AWS = 160

def t3_setup(e, o):
    L = V_E + 5
    t0, t1, t2, t3_ = V_E, V_E + 1, V_E + 2, V_E + 3
    e(f"""
    v_lshrrev_b32 v{t0}, 4, v{L}             ; lane
    v_lshrrev_b32 v{t1}, 4, v{t0}            ; g
    v_and_b32 v{t2}, 7, v{t0}
    v_lshlrev_b32 v{t3_}, 1, v{t1}
    v_xor_b32 v{t2}, v{t2}, v{t3_}
    v_lshlrev_b32 v{t2}, 4, v{t2}
    v_lshrrev_b32 v{t3_}, 3, v{t0}
    v_lshl_add_u32 v{V_OW}, v{t3_}, 10, v{t2}
    v_add_u32 v{V_OW+1}, {7168}, v{V_OW}
    v_add_u32 v{V_OW+2}, {2*7168}, v{V_OW}
    v_add_u32 v{V_OW+3}, {3*7168}, v{V_OW}
    v_bfe_u32 v{t2}, v{t0}, 2, 2             ; r'
    v_lshl_add_u32 v{t2}, v{t1}, 2, v{t2}    ; 4g + r'
    v_lshrrev_b32 v{t3_}, 1, v{t2}
    v_and_b32 v{t3_}, 3, v{t3_}
    v_lshlrev_b32 v{t2}, 7, v{t2}
    v_lshl_add_u32 v{t2}, v{t3_}, 5, v{t2}
    v_and_b32 v{t3_}, 3, v{t0}               ; c'
    v_lshl_add_u32 v{t2}, v{t3_}, 3, v{t2}
    s_lshl_b32 s3, s{S_HH}, 13
    v_add_u32 v{V_AW2}, s3, v{t2}
    v_xor_b32 v{V_AW2+1}, 32, v{V_AW2}
    v_xor_b32 v{V_AW2+2}, 64, v{V_AW2}
    v_xor_b32 v{V_AW2+3}, 0x60, v{V_AW2}
    s_mul_i32 s3, s{S_W}, 20480
    v_add_u32 v{V_XA}, s3, v{L}
    s_mov_b32 s{S_WL}, s{S_KV}
    s_lshl_b32 s3, s{S_RH}, 15
    s_lshl_b32 s7, s{S_HH}, 9
    s_add_u32 s3, s3, s7
    s_lshl_b32 s7, s{S_HH}, 17
    s_add_u32 s{S_WA}, s3, s7
    s_xor_b32 s7, s7, 0x20000
    s_add_u32 s{S_WB}, s3, s7
    s_cmp_eq_u32 s{S_BR}, 0
    s_cselect_b32 s60, s98, s100
    s_cselect_b32 s61, s99, s101
    s_sub_u32 s3, s{S_H}, s{S_HH}
    s_lshl_b32 s3, s3, 17                    ; * 128 rows * 1024
    s_add_u32 s{SRD_WO}, s60, s3
    s_addc_u32 s{SRD_WO+1}, s61, 0
    s_mov_b32 s{SRD_WO+2}, 262144
    s_mov_b32 s{SRD_WO+3}, 0x20000
    s_lshl_b32 s3, s{S_BR}, 3
    s_add_u32 s3, s3, s{S_B}
    s_lshl_b32 s3, s3, 4
    s_lshr_b32 s7, s{S_H}, 1
    s_add_u32 s3, s3, s7
    s_lshl_b32 s3, s3, 2
    s_lshl_b32 s7, s{S_RH}, 1
    s_add_u32 s3, s3, s7
    s_add_u32 s3, s3, s{S_HH}
    s_mul_i32 s3, s3, 40960
    s_add_u32 s3, s3, {POFF}
    s_add_u32 s{SRD_P}, s68, s3
    s_addc_u32 s{SRD_P+1}, s69, 0
    s_mov_b32 s{SRD_P+2}, 40960
    s_mov_b32 s{SRD_P+3}, 0x20000
    s_lshl_b32 s3, s{S_HG}, 20
    s_add_u32 s56, s60, s3
    s_addc_u32 s57, s61, 0
    s_mov_b32 s58, 0x100000
    s_mov_b32 s59, 0x20000
    s_lshl_b32 s3, s{S_IDX}, 2
    s_add_u32 s3, s3, s{S_W}
    s_lshl_b32 s3, s3, 13
    v_lshlrev_b32 v{t0}, 3, v{L}             ; lane*128
    v_add_u32 v{t0}, s3, v{t0}
    """)

def dma_wo(o, p, kq, after=-1, before=10**9, pace=0):
    src = S_WA if kq < 2 else S_WB
    fl = [F('s', txt(f"s_add_u32 m0, s{S_WL}, {wo_slot(4 * p + kq)}"), after, before),
          F('s', txt(f"s_add_u32 s{S_T1}, s{src}, {(kq & 1) * 65536 + 128 * p}"), after, before)]
    for t in range(4):
        fl.append(F('l', lambda e, t=t: e.vm_op(f"buffer_load_dwordx4 v{V_OW+t}, s[{SRD_WO}:{SRD_WO+3}], s{S_T1} offen offset:{t*1024} {o.w_flag} lds", f"W{p}_{kq}"), after + pace * t, before))
    return fl

def t3_tail(e, o):
    i = 16; par = 0; ks = 1
    mains = []; rd = []; dm = []; cv = []; st = []; xw = []; xr = []
    gstart = {}
    gstart['l'] = 0
    for qt in range(5):
        mains.append(Main(f"{MFMA} {ar(A_L + 4 * qt, 4)}, {ar(A_ONE, 4)}, {vr(preg(1, qt), 4)}, {ar(A_L + 4 * qt, 4)}"))
    for dt in range(8):
        n = 8 + dt
        gstart[n] = len(mains)
        for qt in range(5):
            mains.append(Main(f"{MFMA} {ar(oacc(dt, qt), 4)}, {ar(fbuf(n), 4)}, {vr(preg(1, qt), 4)}, {ar(oacc(dt, qt), 4)}", [f"F{n}"] if qt == 0 else []))
    for k in range(8):
        n = 8 + k
        after = gstart[8 + k - 4] if k >= 4 else -1
        before = gstart[8 + k - 1] if k >= 1 else 0
        rd += vfrag(ks, k, n, after, before)
    NPV = len(mains)
    def a2(p, nt, qt):
        if (p & 1) == 0 and nt >= 2 and o.acc_hi: return 216 + ((nt - 2) * 5 + qt) * 4
        return A_ACC2[p & 1] + (nt * 5 + qt) * 4
    def bfr(kk, qt): return (kk * 5 + qt) * 4
    S0 = {}
    nfrag = 16
    for p in range(4):
        for kq in range(4):
            S0[(p, kq)] = len(mains)
            for ks2 in range(2):
                kk = 2 * kq + ks2
                for nt in range(4):
                    n = nfrag; nfrag += 1
                    g0 = len(mains)
                    for qt in range(5):
                        cin = "0" if (kq == 0 and ks2 == 0) else ar(a2(p, nt, qt), 4)
                        needs = [f"G{n}"] if qt == 0 else []
                        if p == 0 and kk >= 4 and nt == 0: needs = needs + [f"X{kk}_{qt}"]
                        mains.append(Main(f"{MFMA} {ar(a2(p, nt, qt), 4)}, {ar(fbuf(n), 4)}, {vr(bfr(kk, qt), 4)}, {cin}", needs))
                    gstart[('g', p, kq, ks2, nt)] = (g0, n)
    N = len(mains)
    stages = [(p, kq) for p in range(4) for kq in range(4)]
    def gidx(p, kq, j): return gstart[('g', p, kq, j >> 2, j & 3)]
    BAR = {}
    for si, (p, kq) in enumerate(stages):
        BAR[si] = gidx(p, kq, 5)[0]
    def wfrag(p, kq, j, after, before):
        g0, n = gidx(p, kq, j)
        return [F('d', lambda e, h=h, n=n: e.ds_op(f"ds_read_b64_tr_b16 a[{fbuf(n) + 2*h}:{fbuf(n) + 2*h + 1}], v{V_AWS + 4 * (wo_slot(4 * p + kq) >> 16) + (j & 3)} offset:{(wo_slot(4 * p + kq) & 0xffff) + (j >> 2) * 4096 + h * 2048}", f"G{n}"), after, before) for h in range(2)]
    pv_bar = gstart[8 + 6]
    def bar_first(e):
        e.ds_all()
        e.need_vm("W0_0")
        e("s_barrier")
    mains[pv_bar].pre = bar_first
    rd_pv_last = [f for f in rd]
    for f in rd:
        f.before = min(f.before, pv_bar - 3)
    for si, (p, kq) in enumerate(stages):
        prevbar = pv_bar if si == 0 else BAR[si - 1]
        for j in range(8):
            g0 = gidx(p, kq, j)[0]
            if j < 3:
                after = prevbar; before = S0[(p, kq)] - 1 if j == 0 else gidx(p, kq, j - 1)[0]
                if si == 0 and j == 0: before = NPV - 1
            elif j < 6:
                after = gidx(p, kq, j - 3)[0]; before = gidx(p, kq, j - 1)[0]
            else:
                after = gidx(p, kq, 2)[0] + 2; before = gidx(p, kq, 4)[0] + 3
            rd += wfrag(p, kq, j, after, before)
        def bar(e, si=si):
            if si == o.c_k3_at and o.c_k3:
                n_ = CODE_NAME[0]
                e("s_getpc_b64 s[60:61]")
                e.label(f"L_pck_{n_}")
                e(f"s_add_u32 s60, s60, reduce_kernel-L_pck_{n_}")
                e("s_addc_u32 s61, s61, 0")
                e(f"v_mbcnt_lo_u32_b32 v178, -1, 0")
                e(f"v_mbcnt_hi_u32_b32 v178, -1, v178")
                e(f"v_lshlrev_b32 v178, 7, v178")
                e(f"v_min_u32 v178, K3_END-reduce_kernel-4, v178")
                e.vm_op(f"global_load_dword v179, v178, s[60:61]", "k3t")
            if o.stamp_list or si in ((0, 3, 7, 15) if o.fuse else (0, 3, 7, 11, 15)): stamp(e, o, f"T{si}")
            e.ds_all()
            if si + 1 < 16:
                pn, kn = stages[si + 1]
                e.need_vm(f"W{pn}_{kn}")
            e("s_barrier")
        mains[BAR[si]].pre = bar
    if o.wo_early: pre = dma_wo(o, 0, 2, -1, 24, 3)
    else: pre = dma_wo(o, 0, 0, -1, 3) + dma_wo(o, 0, 1, -1, 10) + dma_wo(o, 0, 2, -1, 18) + dma_wo(o, 0, 3, -1, 26)
    def st_(si): return stages[si]
    P = o.w_pace
    dm = pre + dma_wo(o, *st_(4), pv_bar, BAR[0], P)
    dm += dma_wo(o, *st_(10), BAR[0], BAR[1], P)
    dm += dma_wo(o, *st_(11), BAR[1], BAR[2], P)
    t = BAR[2]
    for si in (5, 6, 7, 8, 9):
        dm += dma_wo(o, *st_(si), t, BAR[si - 2] if si > 5 else BAR[3], P); t += 4 * P
    dm += dma_wo(o, *st_(12), t, BAR[8], P); t += 4 * P
    dm += dma_wo(o, *st_(13), max(t, BAR[3]), BAR[9], P); t += 4 * P
    dm += dma_wo(o, *st_(14), max(t, BAR[4]), BAR[10], P); t += 4 * P
    dm += dma_wo(o, *st_(15), max(t, BAR[5]), BAR[11], P)
    if o.t3_nodma: dm = pre
    RL = V_E; W = V_E + 6
    l0 = 0
    for qt in range(5): cv.append(F('v', txt(f"v_accvgpr_read_b32 v{RL + qt}, a{A_L + 4 * qt}"), l0 + 5 + 6))
    for qt in range(5): cv.append(F('e', txt(f"v_rcp_f32 v{RL + qt}, v{RL + qt}"), l0 + 5 + 6))
    k = 0
    for jj in range(4):
        ready = gstart[8 + 2 * jj + 1] + 5 + 4
        need = gidx(0, jj >> 1, (jj & 1) * 4)[0]
        if jj == 1 and not o.acc_hi: need = gidx(0, 0, 2)[0]
        for qt in range(5):
            w = W + 8 * (k & 1); k += 1
            dl = need + qt - 2 if need + qt - 2 > ready else need
            for tp in range(2):
                for i_ in range(4):
                    cv.append(F('v', txt(f"v_accvgpr_read_b32 v{w + 4*tp + i_}, a{oacc(2*jj + tp, qt) + i_}"), ready, need - 2))
            for r in range(8):
                cv.append(F('v', txt(f"v_mul_f32 v{w + r}, v{w + r}, v{RL + qt}"), ready, need - 2))
            d = bfr(jj, qt)
            for r in range(4):
                cv.append(F('v', txt(f"v_cvt_pk_bf16_f32 v{d + r}, v{w + 2*r}, v{w + 2*r + 1}"), ready, need - 2, mark=(f"of{jj}_{qt}" if r == 3 else None)))
            xw.append(F('d', lambda e, d=d, jj=jj, qt=qt: e.ds_op(f"ds_write_b128 v{V_XA}, v[{d}:{d+3}] offset:{(jj * 5 + qt) * 1024}", "XW"), ready, BAR[1] - 2, dep=f"of{jj}_{qt}"))
    xbar = BAR[1]
    xw.append(F('v', txt(f"v_add_u32 v{V_XA}, s55, v{V_XA}"), xbar, xbar + 2))
    for jj in range(4):
        for qt in range(5):
            d = bfr(4 + jj, qt)
            xw.append(F('d', lambda e, d=d, jj=jj, qt=qt: e.ds_op(f"ds_read_b128 v[{d}:{d+3}], v{V_XA} offset:{(jj * 5 + qt) * 1024}", f"X{4+jj}_{qt}"), xbar + 1, S0[(0, 2)] - 6 if jj < 2 else BAR[2] - 4))
    gd = []
    for qt in range(5):
        a_, b_ = S0[(0, 2)], S0[(1, 0)] - 2
        gd.append(F('v', txt(f"v_med3_f32 v224, v{RL + qt}, s66, v225"), a_, b_))
        gd.append(F('v', txt(f"v_cmp_neq_f32 s[62:63], v224, v{RL + qt}"), a_, b_))
        gd.append(F('s', txt("s_nop 1"), a_, b_))
        gd.append(F('s', txt(f"s_or_b64 s[{S_BAD}:{S_BAD+1}], s[{S_BAD}:{S_BAD+1}], s[62:63]"), a_, b_))
    W2 = V_E + 6
    k = 0
    for p in range(4):
        start = S0[(p + 1, 0)] + 6 if p < 3 else N
        end = S0[(p + 1, 3)] if p < 2 else 10**9
        if p == 2: end = N - 10
        for u in range(2):
            for qt in range(5):
                w = W2 + 12 * (k & 1); k += 1
                for tp in range(2):
                    for i_ in range(4):
                        st.append(F('v', txt(f"v_accvgpr_read_b32 v{w + 4*tp + i_}, a{a2(p, 2*u + tp, qt) + i_}"), start, end))
                for r in range(4):
                    st.append(F('v', txt(f"v_cvt_pk_bf16_f32 v{w + 8 + r}, v{w + 2*r}, v{w + 2*r + 1}"), start, end))
                off = (p * 10 + u * 5 + qt) * 1024
                st.append(F('s', txt(f"s_mov_b32 s{S_T0}, {off}"), start, end))
                if not o.t3_nostore: st.append(F('l', lambda e, w=w: e.vm_op(f"buffer_store_dwordx4 v[{w+8}:{w+11}], v{V_E + 5}, s[{SRD_P}:{SRD_P+3}], s{S_T0} offen {o.p_flag}", "st"), start, end))
    e(f"s_mov_b64 s[{S_BAD}:{S_BAD+1}], 0")
    e(f"s_mov_b32 s66, {hex(R_LO)}")
    e(f"v_mov_b32 v225, {hex(R_HI)}")
    for k_ in range(3):
        for j in range(4):
            e(f"v_add_u32 v{V_AWS + 4 * k_ + j}, {65536 * k_}, v{V_AW2 + j}")
    e(f"s_lshl_b32 s{S_T0}, s{S_HH}, 1")
    e(f"s_sub_u32 s{S_T0}, 1, s{S_T0}")
    e(f"s_mul_i32 s{S_T0}, s{S_T0}, 40960")
    e(f"s_mov_b32 s55, s{S_T0}")
    for f in cv:
        pass
    zip2(e, mains, [rd, dm, cv, xw, gd, st], flush_nop=True, dense=2 if o.vmax > 1 else None, vmax=o.vmax)

def max_pass(e, o, name):
    M = 120; L16 = V_E + 5; T = 126
    e.label(f"L_maxpass_{name}")
    e("s_waitcnt vmcnt(0) lgkmcnt(0)")
    for qt in range(5): e(f"v_mov_b32 v{M + qt}, 0xff800000")
    e(f"s_mov_b32 s{S_CNT}, 0")
    e(f"s_lshl_b32 s{S_T1}, s{S_RH}, 12")
    e.label(f"L_maxloop_{name}")
    e("s_barrier")
    e(f"s_mov_b32 m0, s{S_KV}")
    e("s_nop 0")
    for t in range(4):
        e(f"buffer_load_dwordx4 v{V_OK + t}, s[{SRD_K}:{SRD_K+3}], s{S_T1} offen offset:{t * 1024} lds")
    e("s_waitcnt vmcnt(0)")
    e("s_barrier")
    for n in range(8):
        e(f"ds_read_b128 a[{fbuf(n)}:{fbuf(n)+3}], v{V_AK + (n & 3)} offset:{(n >> 2) * 4096}")
    e("s_waitcnt lgkmcnt(0)")
    for kt in range(2):
        for j in range(4):
            for qt in range(5):
                d = sreg(0, kt, qt)
                e(f"{MFMA} {vr(d, 4)}, {ar(fbuf(kt * 4 + j), 4)}, {vr(qf(j, qt), 4)}, {'0' if j == 0 else vr(d, 4)}")
    e("s_nop 7")
    e("s_nop 3")
    for qt in range(5):
        for kt in range(2):
            d = sreg(0, kt, qt)
            e(f"v_max3_f32 v{M + qt}, v{d}, v{d+1}, v{M + qt}")
            e(f"v_max3_f32 v{M + qt}, v{d+2}, v{d+3}, v{M + qt}")
    e(f"s_add_u32 s{S_T1}, s{S_T1}, 8192")
    e(f"s_add_u32 s{S_CNT}, s{S_CNT}, 1")
    e(f"s_cmp_lt_u32 s{S_CNT}, 16")
    e(f"s_cbranch_scc1 L_maxloop_{name}")
    e("s_barrier")
    e(f"s_lshl_b32 s{S_T1}, s{S_RH}, 12")
    e(f"s_mov_b32 m0, s{S_KV}")
    e("s_nop 0")
    for t in range(4):
        e(f"buffer_load_dwordx4 v{V_OK + t}, s[{SRD_K}:{SRD_K+3}], s{S_T1} offen offset:{t * 1024} lds")
    e(f"v_lshrrev_b32 v{T}, 2, v{L16}")
    e(f"v_xor_b32 v{T+1}, 64, v{T}")
    e(f"v_xor_b32 v{T+2}, 0x80, v{T}")
    for x in (1, 2):
        for qt in range(5): e(f"ds_bpermute_b32 v{T + 3 + qt}, v{T + x}, v{M + qt}")
        e("s_waitcnt lgkmcnt(0)")
        for qt in range(5): e(f"v_max_f32 v{M + qt}, v{M + qt}, v{T + 3 + qt}")
    for qt in range(5):
        for r in range(4): e(f"v_sub_f32 v{V_BIAS + 4 * qt + r}, 0, v{M + qt}")
    e("s_waitcnt vmcnt(0)")
    e("s_barrier")
    for n in range(3): run(e, kfrag(0, 0, n, n))
    e(f"s_branch L_maxdone_{name}")

def vote(e, o, name):
    T = V_E
    e(f"s_cmp_lg_u64 s[{S_BAD}:{S_BAD+1}], 0")
    e(f"s_cselect_b32 s3, 1, 0")
    e(f"v_mov_b32 v{T}, s3")
    e(f"s_lshl_b32 s7, s{S_W}, 2")
    e(f"v_mov_b32 v{T+1}, s7")
    e(f"ds_write_b32 v{T+1}, v{T}")
    if o.fuse:
        e("s_load_dwordx4 s[56:59], s[0:1], 80")
        e("s_waitcnt vmcnt(0) lgkmcnt(0)")
    else:
        e("s_waitcnt lgkmcnt(0)")
    e("s_barrier")
    e(f"v_mov_b32 v{T+1}, 0")
    e(f"ds_read_b128 v[{T+2}:{T+5}], v{T+1}")
    e("s_waitcnt lgkmcnt(0)")
    e(f"v_or_b32 v{T+2}, v{T+2}, v{T+3}")
    e(f"v_or3_b32 v{T+2}, v{T+2}, v{T+4}, v{T+5}")
    e("s_nop 0")
    e(f"v_readfirstlane_b32 s3, v{T+2}")
    e(f"s_cmp_eq_u32 s{S_MODE}, 0")
    e(f"s_cselect_b32 s3, s3, 0")
    e(f"s_cmp_eq_u32 s3, 0")
    e(f"s_cbranch_scc1 L_fine_{name}")
    e(f"s_mov_b32 s{S_MODE}, 1")
    e("s_waitcnt vmcnt(0)")
    e("s_barrier")
    e("v_mbcnt_lo_u32_b32 v0, -1, 0")
    e("v_mbcnt_hi_u32_b32 v0, -1, v0")
    e(f"s_lshl_b32 s3, s{S_W}, 6")
    e("v_add_u32 v0, s3, v0")
    e(f"s_branch L_restart_{name}")
    e.label(f"L_fine_{name}")

def fused_reduce(e, o, name):
    G, R, J = 60, 61, 62
    e(f"""
    s_lshl_b32 s{G}, s{S_BR}, 3
    s_add_u32 s{G}, s{G}, s{S_B}             ; group
    s_lshr_b32 s{R}, s{S_H}, 1
    v_mbcnt_lo_u32_b32 v248, -1, 0
    v_mbcnt_hi_u32_b32 v248, -1, v248        ; lane
    s_cmp_eq_u32 s{S_W}, {99 if o.nosync else 0}
    s_cbranch_scc0 L_arrived_{name}
    s_lshl_b32 s3, s{G}, {12 if o.cnt_ws else 4}
    {f"s_add_u32 s3, s3, {220*1024*1024}" if o.cnt_ws else ""}
    {"s_mov_b32 s58, s68" if o.cnt_ws else ""}
    {"s_mov_b32 s59, s69" if o.cnt_ws else ""}
    v_mov_b32 v249, s3
    v_mov_b32 v250, 1
    s_mov_b64 s[64:65], exec
    s_mov_b64 exec, 1
    global_atomic_add v249, v250, s[58:59]
    s_mov_b32 s7, 0
L_poll_{name}:
    global_load_dword v251, v249, s[58:59] sc1
    s_waitcnt vmcnt(0)
    v_readfirstlane_b32 s3, v251
    s_add_u32 s7, s7, 1
    s_cmp_ge_u32 s3, 16
    s_cbranch_scc1 L_polled_{name}
    s_sleep {o.spin_sleep}
    s_cmp_lt_u32 s7, 0x40000
    s_cbranch_scc1 L_poll_{name}
L_polled_{name}:
    s_mov_b64 exec, s[64:65]
L_arrived_{name}:
    s_barrier
    """)
    stamp(e, o, "polled")
    e(f"""
    v_lshlrev_b32 v249, 4, v248              ; lane*16
    s_mul_i32 s3, s{G}, {16 * 163840}
    s_add_u32 s3, s3, {POFF}
    s_add_u32 s8, s68, s3
    s_addc_u32 s9, s69, 0
    s_mov_b32 s10, {16 * 163840}
    s_mov_b32 s11, 0x20000
    s_mul_i32 s{J}, s{R}, 10
    s_add_u32 s{J}, s{J}, s{S_W}
    s_mov_b32 s12, s56
    s_mov_b32 s13, s57
    s_mov_b32 s14, 2621440
    s_mov_b32 s15, 0x20000
    v_and_b32 v250, 15, v248
    v_lshrrev_b32 v251, 4, v248
    v_lshlrev_b32 v250, 11, v250
    v_lshl_add_u32 v250, v251, 3, v250       ; c*2048 + g*8
    """)
    def load1(k, hp):
        r = 64 * k + 4 * hp
        if hp == 0:
            e(f"s_add_u32 s3, s{J}, {4 * k}")
            e(f"s_lshl_b32 s3, s3, 10")
        e.vm_op(f"buffer_load_dwordx4 v[{r}:{r+3}], v249, s[8:11], s3 offen {o.r_flag}", f"R{k}_{hp}")
        if hp < 15: e("s_add_u32 s3, s3, 163840")
    def outaddr(k, dst):
        e(f"""
    s_add_u32 s16, s{J}, {4 * k}
    s_mul_hi_u32 s17, s16, 0x1999999a
    s_mul_i32 s18, s17, 10
    s_sub_u32 s18, s16, s18
    s_cmp_ge_u32 s18, 5
    s_cselect_b32 s19, 1, 0                  ; u
    s_mul_i32 s20, s19, 5
    s_sub_u32 s18, s18, s20                  ; qt
    s_and_b32 s20, s17, 3                    ; p
    s_bfe_u32 s21, s17, 0x10002              ; hh
    s_lshr_b32 s22, s17, 3                   ; rh
    s_mul_i32 s23, s{S_B}, 160
    s_mul_i32 s22, s22, 80
    s_add_u32 s23, s23, s22
    s_lshl_b32 s18, s18, 4
    s_add_u32 s23, s23, s18
    s_lshl_b32 s23, s23, 11
    s_lshl_b32 s22, s{S_BR}, 10
    s_add_u32 s23, s23, s22
    s_lshl_b32 s21, s21, 9
    s_add_u32 s23, s23, s21
    s_lshl_b32 s20, s20, 7
    s_add_u32 s23, s23, s20
    s_lshl_b32 s19, s19, 6
    s_add_u32 s{dst}, s23, s19
    """)
    def run_pieces(np_):
        A = 224; T = 232
        order = [(k, hp) for k in range(np_) for hp in range(16)]
        D = o.r_depth
        e.vm = []; e.vm_waited = set()
        for x in order[:D]: load1(*x)
        for k in range(np_): outaddr(k, 24 + k)
        for n, (k, hp) in enumerate(order):
            e.need_vm(f"R{k}_{hp}")
            if n + D < len(order): load1(*order[n + D])
            for d in range(4):
                r = 64 * k + 4 * hp + d
                if hp == 0:
                    e(f"v_lshlrev_b32 v{A + 2*d}, 16, v{r}")
                    e(f"v_and_b32 v{A + 2*d + 1}, 0xffff0000, v{r}")
                else:
                    e(f"v_lshlrev_b32 v{T + 2*(d & 1)}, 16, v{r}")
                    e(f"v_and_b32 v{T + 2*(d & 1) + 1}, 0xffff0000, v{r}")
                    e(f"v_add_f32 v{A + 2*d}, v{A + 2*d}, v{T + 2*(d & 1)}")
                    e(f"v_add_f32 v{A + 2*d + 1}, v{A + 2*d + 1}, v{T + 2*(d & 1) + 1}")
            if hp == 15:
                o0 = 236 + 4 * (k & 1)
                for d in range(4): e(f"v_cvt_pk_bf16_f32 v{o0 + d}, v{A + 2*d}, v{A + 2*d + 1}")
                e.vm_op(f"buffer_store_dwordx2 v[{o0}:{o0+1}], v250, s[12:15], s{24 + k} offen", f"S{k}")
                e.vm_op(f"buffer_store_dwordx2 v[{o0+2}:{o0+3}], v250, s[12:15], s{24 + k} offen offset:32", f"S{k}")
    if o.r_loop:
        A = 224; T = 232
        e.label(f"L_rloop_{name}")
        e(f"s_lshl_b32 s3, s{J}, 10")
        for hp in range(16):
            e(f"buffer_load_dwordx4 v[{4*hp}:{4*hp+3}], v249, s[8:11], s3 offen {o.r_flag}")
            if hp < 15: e("s_add_u32 s3, s3, 163840")
        outaddr(0, 24)
        for hp in range(16):
            e(f"s_waitcnt vmcnt({15 - hp})")
            for d in range(4):
                r = 4 * hp + d
                if hp == 0:
                    e(f"v_lshlrev_b32 v{A + 2*d}, 16, v{r}")
                    e(f"v_and_b32 v{A + 2*d + 1}, 0xffff0000, v{r}")
                else:
                    e(f"v_lshlrev_b32 v{T + 2*(d & 1)}, 16, v{r}")
                    e(f"v_and_b32 v{T + 2*(d & 1) + 1}, 0xffff0000, v{r}")
                    e(f"v_add_f32 v{A + 2*d}, v{A + 2*d}, v{T + 2*(d & 1)}")
                    e(f"v_add_f32 v{A + 2*d + 1}, v{A + 2*d + 1}, v{T + 2*(d & 1) + 1}")
        for d in range(4): e(f"v_cvt_pk_bf16_f32 v{236 + d}, v{A + 2*d}, v{A + 2*d + 1}")
        e(f"buffer_store_dwordx2 v[236:237], v250, s[12:15], s24 offen")
        e(f"buffer_store_dwordx2 v[238:239], v250, s[12:15], s24 offen offset:32")
        e(f"s_add_u32 s{J}, s{J}, 4")
        e(f"s_mul_i32 s3, s{R}, 10")
        e(f"s_add_u32 s3, s3, 10")
        e(f"s_cmp_lt_u32 s{J}, s3")
        e(f"s_cbranch_scc1 L_rloop_{name}")
        return
    e(f"s_cmp_lt_u32 s{S_W}, 2")
    e(f"s_cbranch_scc0 L_two_{name}")
    run_pieces(3)
    e(f"s_branch L_reduced_{name}")
    e.label(f"L_two_{name}")
    run_pieces(2)
    e.label(f"L_reduced_{name}")

def gen_k1(name, o):
    NSTAMP[0] = 0
    CODE_NAME[0] = name
    e = Em()
    e.lines.append(kernel_head(name))
    prologue(e, o, name)
    qphase(e, o)
    stamp(e, o, "qdone")
    e(f"v_accvgpr_write_b32 a{A_SAVE}, v{V_OV0}")
    e(f"v_accvgpr_write_b32 a{A_SAVE+1}, v{V_OV0+1}")
    e(f"v_accvgpr_write_b32 a{A_SAVE+2}, v{V_T+1}")
    for n in range(3): run(e, kfrag(0, 0, n, n))
    qconvert(e)
    stamp(e, o, "qconv")
    e(f"""
    v_accvgpr_read_b32 v{V_OV}, a{A_SAVE}
    v_accvgpr_read_b32 v{V_OV+1}, a{A_SAVE+1}
    v_accvgpr_read_b32 v{V_E+5}, a{A_SAVE+2}
    s_mov_b32 s{S_KDST}, s{S_KV}             ; K(4) -> slot 0
    s_add_u32 s{S_VDST}, s{S_KV}, {32768 if o.apf else 0}          ; V(4) / V(2)
    s_lshl_b32 s7, s{S_RH}, 12
    s_add_u32 s{S_KOFF}, s7, {4 * 8192}
    s_add_u32 s{S_VOFF}, s7, {(4 if o.apf else 2) * 8192}
    v_lshlrev_b32 v{V_E+5}, 4, v{V_E+5}
    """)
    if o.t3: t3_setup(e, o)
    for r in range(20): e(f"v_mov_b32 v{V_BIAS + r}, 0")
    e(f"s_cmp_eq_u32 s{S_MODE}, 0")
    e(f"s_cbranch_scc0 L_maxpass_{name}")
    e.label(f"L_maxdone_{name}")
    if o.pf_late:
        e("s_waitcnt vmcnt(0)"); e("s_barrier"); e.vm = []
        for n in range(3): run(e, kfrag(0, 0, n, n))
    attn_iter(e, o, -1, True, False, False, 1, '', True)
    stamp(e, o, "Titm1")
    if o.apf:
        attn_iter(e, o, 0, True, True, False, 1, 'K', True)
        attn_iter(e, o, 1, True, True, True, 1, 'K', True, first_pv=True)
        attn_iter(e, o, 2, True, True, True, 1, 'KV', True)
    else:
        attn_iter(e, o, 0, True, True, False, 1, 'KV', True)
        stamp(e, o, "Tit0")
        attn_iter(e, o, 1, True, True, True, 1, 'KV', True, first_pv=True)
        stamp(e, o, "Tit1")
        attn_iter(e, o, 2, True, True, True, 1, 'KV', True)
    stamp(e, o, "iter0_done")
    e(f"s_mov_b32 s{S_CNT}, 0")
    ds0 = list(e.ds)
    e.label(f"L_loop_{name}")
    if o.t3 and o.w_touch >= 0:
        e(f"s_cmp_eq_u32 s{S_CNT}, {o.w_touch}")
        e(f"s_cbranch_scc0 L_nowt_{name}")
        e(f"buffer_load_dword v{V_E + 1}, v{V_E}, s[56:59], 0 offen")
        if o.c_touch >= 2:
            vq = list(e.vm); code_touch(e, V_E + 2, V_E + 3, 1); e.vm = vq
        e.label(f"L_nowt_{name}")
    n0 = len(e.lines)
    redirect = [F('s', txt(f"s_cmp_eq_u32 s{S_CNT}, 5")), F('s', txt(f"s_sub_u32 s{S_T1}, s{S_KV}, 32768")),
                F('s', txt(f"s_cmp_eq_u32 s{S_CNT}, 5")), F('s', txt(f"s_cselect_b32 s{S_VDST}, s{S_T1}, s{S_VDST}"))]
    attn_iter(e, o, 3, True, True, True, 1, 'KV', True)
    if o.t3 and o.wo_early: run(e, redirect[1:])
    attn_iter(e, o, 4, True, True, True, 1, 'KV', True)
    import copy
    e2 = copy.deepcopy(e); n1 = len(e2.lines)
    attn_iter(e2, o, 5, True, True, True, 1, 'KV', True)
    if o.t3 and o.wo_early: run(e2, redirect[1:])
    attn_iter(e2, o, 6, True, True, True, 1, 'KV', True)
    assert e.lines[n0:n1] == e2.lines[n1:], "loop body is not in steady state"
    assert e.ds == ds0, (e.ds, ds0)
    e(f"s_add_u32 s{S_CNT}, s{S_CNT}, 1")
    e(f"s_cmp_lt_u32 s{S_CNT}, 6")
    e(f"s_cbranch_scc1 L_loop_{name}")
    e.ds_all()
    stamp(e, o, "loop_done")
    xdm = None
    if o.t3 and o.wo_early:
        e.vm = ['OLD']
        xdm = dma_wo(o, 0, 0, 0, 10**9, 3) + dma_wo(o, 0, 1, 12, 10**9, 3) + dma_wo(o, 0, 3, 24, 10**9, 3)
    attn_iter(e, o, 15, False, True, True, 0, '', False, extra_dm=xdm)
    stamp(e, o, "Tit15")
    if o.t3:
        t3_tail(e, o)
    else:
        attn_iter(e, o, 16, False, False, True, None, '', False, epi=epilogue_fill(o))
    stamp(e, o, "stores_issued")
    vote(e, o, name)
    if o.fuse:
        stamp(e, o, "Tsig")
        fused_reduce(e, o, name)
    if o.stamps: e("s_waitcnt vmcnt(0)")
    stamp(e, o, "end")
    if o.stamps:
        e(f"""
    s_memrealtime s[96:97]
    s_waitcnt lgkmcnt(0)
    s_lshl_b32 s3, s2, 2
    s_add_u32 s3, s3, s{S_W}
    s_lshl_b32 s3, s3, 7
    s_add_u32 s3, s3, {200*1024*1024}
    v_mov_b32 v30, s3
    s_mov_b64 exec, 1
    """)
        for k in range(14):
            e(f"v_mov_b32 v0, s{70 + 2*k}")
            e(f"v_mov_b32 v1, s{71 + 2*k}")
            e(f"global_store_dwordx2 v30, v[0:1], s[68:69] offset:{8*k}")
            e("s_nop 1")
        e("s_waitcnt vmcnt(0)")
        if o.dbg:
            e(f"""
    s_or_b32 s3, s2, s{S_W}
    s_cmp_eq_u32 s3, 0
    s_cbranch_scc0 L_end_{name}
    s_load_dwordx2 s[98:99], s[0:1], 88
    s_waitcnt lgkmcnt(0)
    v_mov_b32 v30, 0
    """)
            for k in range(1, 11):
                e(f"s_sub_u32 s3, s{70 + 2*k}, s70")
                e(f"v_mov_b32 v0, s3")
                e(f"global_store_dword v30, v0, s[98:99] offset:{4*k}")
                e("s_nop 1")
            e("s_sub_u32 s3, s96, s94")
            e("v_mov_b32 v0, s3")
            e("global_store_dword v30, v0, s[98:99] offset:0")
            e("s_waitcnt vmcnt(0)")
    e.label(f"L_end_{name}")
    e("s_endpgm")
    dsq, vmq = list(e.ds), list(e.vm)
    max_pass(e, o, name)
    e.label("CODE_END")
    return e.text() + kernel_desc(name, 512, 256)
```

```python
class Em:
    def __init__(self):
        self.lines = []
        self.ds = []
        self.vm = []
        self.fresh = {}; self.relax = set(); self.marks = set()
        self.vm_waited = set()
    def __call__(self, s):
        for l in s.split("\n"):
            l = l.rstrip()
            if l.strip():
                self.lines.append(l if l.startswith(("L", ".", ";")) and (l.rstrip().endswith(":") or l.startswith((".", ";"))) else "    " + l.strip())
    def label(self, name):
        self.lines.append(name + ":")
    def comment(self, s):
        self.lines.append("    ; " + s)
    def ds_op(self, text, tag):
        self(text); self.ds.append(tag)
        self.fresh[tag] = self.fresh.get(tag, 0) + 1
    def check_emitted(self, tag):
        n = self.fresh.get(tag, 0)
        if tag[0] == 'F': want = 2 if ('_' in tag or int(tag[1:]) >= 8) else 1
        elif tag[0] == 'G': want = 2
        else: want = 1
        if tag in self.relax: want = n if n >= 1 else want
        assert n == want, ("fragment reads issued before its consumer", tag, n, want)
        self.fresh[tag] = 0
    def need_ds(self, tags):
        if isinstance(tags, str): tags = [tags]
        last = -1
        for i, t in enumerate(self.ds):
            if t in tags: last = i
        if last < 0: return False
        n = len(self.ds) - 1 - last
        assert n <= 15
        self(f"s_waitcnt lgkmcnt({n})")
        self.ds = self.ds[last + 1:]
        return True
    def ds_all(self):
        self("s_waitcnt lgkmcnt(0)"); self.ds = []
    def vm_op(self, text, tag):
        assert tag not in self.vm_waited, ("vector-memory op issued after the wait that covers it", tag)
        self(text); self.vm.append(tag)
    def need_vm(self, tags):
        if isinstance(tags, str): tags = [tags]
        self.vm_waited.update(tags)
        last = -1
        for i, t in enumerate(self.vm):
            if t in tags: last = i
        if last < 0: return False
        n = len(self.vm) - 1 - last
        assert n <= 63, n
        self(f"s_waitcnt vmcnt({n})")
        self.vm = self.vm[last + 1:]
        return True
    def vm_all(self):
        self("s_waitcnt vmcnt(0)"); self.vm = []
    def text(self):
        return "\n".join(self.lines) + "\n"

class Fill:
    def __init__(self, fn, cost=4, after=-1, before=10**9, name=""):
        self.fn = fn; self.cost = cost; self.after = after; self.before = before; self.name = name

class Main:
    def __init__(self, text, needs=None, pre=None):
        self.text = text; self.needs = needs or []; self.pre = pre

def zipper(em, mains, queues, gap=8, carry_max=16, flush_nop=False):
    qs = [list(q) for q in queues]
    budget = 0
    for idx, m in enumerate(mains):
        for q in qs:
            while q and q[0].before <= idx:
                f = q.pop(0); f.fn(em); budget -= f.cost
        if m.pre:
            n0 = len(em.lines); m.pre(em); budget -= 4 * (len(em.lines) - n0)
        if m.needs:
            if em.need_ds(m.needs): budget -= 4
        em(m.text)
        budget = min(budget + gap, gap + carry_max)
        progress = True
        while progress:
            progress = False
            for q in qs:
                if q and q[0].after <= idx and q[0].cost <= budget:
                    f = q.pop(0); f.fn(em); budget -= f.cost; progress = True
                    break
    if flush_nop and any(qs): em("s_nop 7")
    for q in qs:
        for f in q: f.fn(em)

class F:
    __slots__ = ("kind", "fn0", "after", "before", "dep", "mark")
    def __init__(self, kind, fn, after=-1, before=10**9, dep=None, mark=None):
        self.kind = kind; self.fn0 = fn; self.after = after; self.before = before
        self.dep = dep; self.mark = mark
    def fn(self, em):
        assert self.dep is None or self.dep in em.marks, ("filler emitted before what it depends on", self.dep)
        self.fn0(em)
        if self.mark is not None: em.marks.add(self.mark)

def txt(s):
    return lambda e: e(s)

def zip2(em, mains, queues, flush_nop=False, urgency=3, dense=None, vmax=3):
    qs = [list(q) for q in queues]
    N = len(mains)
    def head(q, idx):
        return q[0] if q and q[0].after <= idx and (q[0].dep is None or q[0].dep in em.marks) else None
    for idx, m in enumerate(mains):
        for q in sorted(qs, key=lambda q_: any(f.dep is not None for f in q_)):
            last = -1
            for k, f in enumerate(q):
                if f.before <= idx: last = k
            for k in range(last + 1):
                f = q.pop(0)
                assert f.after < idx or f.before <= idx and f.after <= idx, ("forced before its earliest slot", idx, f.after, f.before)
                f.fn(em)
        if m.pre: m.pre(em)
        if m.needs:
            for t in m.needs: em.check_emitted(t)
            em.need_ds(m.needs)
        em(m.text)
        nsc = 0
        if idx + 1 < N and mains[idx + 1].needs and not mains[idx + 1].pre:
            if em.need_ds(mains[idx + 1].needs): nsc += 1
        def take_scalars(limit):
            nonlocal nsc
            prog = True
            while prog and nsc < limit:
                prog = False
                for q in qs:
                    h = head(q, idx)
                    if h and h.kind == 's':
                        q.pop(0).fn(em); nsc += 1; prog = True
                        break
        def find(kinds, urgent_only=False):
            for q in qs:
                h = head(q, idx)
                if h and h.kind in kinds and (not urgent_only or h.before <= idx + urgency):
                    return q
            return None
        take_scalars(1)
        qd_urg = find('d', True); ql_urg = find('l', True)
        qe = find('e'); qd = find('d'); qv = find('v'); ql = find('l')
        choice = None
        if qd_urg: choice = 'd'
        elif ql_urg and nsc <= 1: choice = 'l'
        elif qd and qv: choice = 'd'
        elif not qe:
            if qd: choice = 'd'
            elif ql and nsc <= 1: choice = 'l'
            elif qv: choice = 'v'
        elif ql and nsc <= 1: choice = 'l'
        elif nsc <= 1: choice = 'e'
        elif qd: choice = 'd'
        elif qv: choice = 'v'
        if choice == 'e':
            qe.pop(0).fn(em)
        elif choice == 'l':
            ql.pop(0).fn(em)
        elif choice == 'd':
            q = qd_urg or qd
            if nsc == 0: take_scalars(1)
            q.pop(0).fn(em)
            if nsc <= 1:
                qv = find('v')
                if qv: qv.pop(0).fn(em)
        elif choice == 'v':
            take_scalars(2)
            qv = find('v') if False else qv
            if qv and qv[0].kind == 'v' and qv[0].after <= idx: qv.pop(0).fn(em)
        else:
            take_scalars(3)
        if dense is not None and choice in ('v', 'd', None):
            q = qs[dense]
            n_v = 1
            while n_v < vmax and q and q[0].kind == 'v' and q[0].after <= idx:
                dl = None; cnt = 0
                for f in q:
                    cnt += 1
                    if f.before < 10**9 and cnt > (f.before - idx - 1):
                        dl = f.before; break
                    if cnt > 120: break
                if dl is None: break
                q.pop(0).fn(em); n_v += 1
    if flush_nop and any(qs): em("s_nop 7")
    for q in sorted(qs, key=lambda q_: any(f.dep is not None for f in q_)):
        for f in q: f.fn(em)
```

```python
from common import *
from sched import *

KRING = 0
VRING = 98304
WQ0 = 32768; WQ_HEAD = 8224; WQ_SLOT = 2 * WQ_HEAD
X0 = 82176; X_SLOT = 20480
LDS_BYTES = 163840
VTOG = 0x38000
S_W, S_HH, S_RH = 4, 5, 6
SRD_X, SRD_WQ, SRD_K, SRD_V, SRD_O = 8, 12, 16, 20, 24
S_T0, S_T1 = 32, 33
S_WQL, S_XL, S_XG, S_WQG = 35, 36, 37, 38
S_KDST, S_VDST, S_KOFF, S_VOFF, S_CNT = 40, 41, 42, 43, 44
S_IDX, S_HG, S_B, S_BR, S_H = 45, 46, 47, 48, 49
S_SC = 50
S_KV = 39; S_WQK = 51; S_XK = 34; S_PT = 7
V_Q = 0
V_XB = [0, 20]
V_AW = 40
V_AX = 44
V_OWQ = 46
V_OX = 50
V_T = 56
V_ACC = 80
V_S = [80, 120]
V_P = [160, 180]
V_OV = 200
V_E = 202
V_OV0 = 70
V_AK = 240; V_AV = 244; V_OK = 252
A_O = 0; A_L = 160; A_ONE = 180; A_F = 184
A_SAVE = 216
SRD_WO, SRD_P = 28, 24
S_WA, S_WB, S_WL = 52, 53, 54
POFF = 32 * 1024 * 1024
WRING = 98304
V_OW = 232
V_AW2 = 236
V_XA = 231
A_ACC2 = [0, 80]
V_BIAS = 208
S_MODE = 92
S_BAD = 64
R_LO, R_HI = 0x27800000, 0x4f800000

def acc(dt, qt): return V_ACC + (dt * 5 + qt) * 4
def qf(j, qt): return V_Q + (j * 5 + qt) * 4
def sreg(par, kt, qt): return V_S[par] + (kt * 5 + qt) * 4
def preg(par, qt): return V_P[par] + qt * 4
def oacc(dt, qt): return A_O + (dt * 5 + qt) * 4
def fbuf(n): return A_F + 4 * (n % 8)

class Opt:
    kv_flag = "nt"
    q_flag = ""
    o_flag = ""
    stamps = False
    pre_all = True
    pf_start = 0
    pf_per = 3
    pf_late = False
    pf_steps = ""
    q_nodma = False
    q_nowait = False
    q_nobar = False
    q_nods = False
    rotg = 8
    rot = True
    pace = 4
    apf = True
    stamp_list = ""
    stamp_set = "q"
    fuse = False
    spin_sleep = 1
    nosync = False
    r_depth = 12
    r_loop = False
    r_flag = "sc1"
    cnt_ws = False
    t3 = True
    p_flag = ""
    w_flag = ""
    c_k3_at = 3
    c_k3 = 0
    c_early = 0
    c_touch = 0
    acc_hi = True
    vmax = 3
    wo_early = True
    skew = 0
    tlb = 0
    w_pace = 2
    kv_pace = 0
    t3_nostore = False
    t3_nodma = False
    w_touch = -1
    dbg = False

NSTAMP = [0]
NSK = [0]
def stamp(e, o, tag):
    if not o.stamps: return
    if o.stamp_list:
        if tag not in o.stamp_list.split(","): return
        k = NSTAMP[0]; NSTAMP[0] += 1
        assert k < 11
        e.comment("stamp " + tag)
        e(f"s_memtime s[{70 + 2*k}:{71 + 2*k}]")
        return
    early = tag in ("issued", "bar0", "B3", "B9", "qconv")
    late = tag.startswith("T")
    if (o.stamp_set == "tail" and early) or (o.stamp_set != "tail" and late): return
    if o.fuse and o.stamp_set != "tail" and tag == "stores_issued": pass
    k = NSTAMP[0]; NSTAMP[0] += 1
    assert k < 12
    e.comment("stamp " + tag)
    e(f"s_memtime s[{70 + 2*k}:{71 + 2*k}]")

def prologue(e, o, name):
    e(f"""
    s_cmp_ge_u32 s2, 256
    s_cbranch_scc1 L_end_{name}
    s_mov_b32 s{S_MODE}, 0
    """)
    if o.c_early: code_touch_early(e, o, name)
    e(f"""
L_restart_{name}:
    s_load_dwordx8 s[52:59], s[0:1], 0       ; A_x A_k A_v A_wq
    s_load_dwordx8 s[60:67], s[0:1], 40      ; B_x B_k B_v B_wq
    s_load_dwordx2 s[68:69], s[0:1], 96      ; ws
    s_load_dwordx2 s[98:99], s[0:1], 32      ; A_wo
    s_load_dwordx2 s[100:101], s[0:1], 72    ; B_wo
    v_lshrrev_b32 v{V_T}, 6, v0
    v_and_b32 v{V_T+1}, 63, v0               ; lane
    v_readfirstlane_b32 s{S_W}, v{V_T}
    s_and_b32 s3, s2, 7
    s_lshr_b32 s{S_IDX}, s2, 3
    s_lshr_b32 s{S_BR}, s3, 2
    s_and_b32 s{S_HG}, s3, 3
    s_lshr_b32 s{S_B}, s{S_IDX}, 2
    s_and_b32 s7, s{S_IDX}, 3
    s_lshr_b32 s{S_HH}, s{S_W}, 1
    s_and_b32 s{S_RH}, s{S_W}, 1
    s_lshl_b32 s{S_H}, s{S_HG}, 3
    s_lshl_b32 s7, s7, 1
    s_add_u32 s{S_H}, s{S_H}, s7
    s_add_u32 s{S_H}, s{S_H}, s{S_HH}
    """)
    if o.stamps:
        e("s_memrealtime s[94:95]")
    stamp(e, o, "start")
    L = V_T + 1
    c, g, rp, cp, t0, t1 = V_T + 2, V_T + 3, V_T + 4, V_T + 5, V_T + 6, V_T + 7
    e(f"""
    v_and_b32 v{c}, 15, v{L}
    v_lshrrev_b32 v{g}, 4, v{L}
    v_bfe_u32 v{rp}, v{L}, 2, 2
    v_and_b32 v{cp}, 3, v{L}
    """)
    e(f"""
    v_lshlrev_b32 v{t0}, 2, v{g}
    v_xor_b32 v{t0}, v{t0}, v{c}
    v_lshlrev_b32 v{t0}, 4, v{t0}
    v_lshl_add_u32 v{V_OWQ}, v{g}, 13, v{t0}
    """)
    for u in range(1, 4):
        e(f"v_add_u32 v{V_OWQ+u}, {u * 32768 - wq_imm(u)}, v{V_OWQ}")
    e(f"""
    v_and_b32 v{t0}, 7, v{L}
    v_xor_b32 v{t0}, v{t0}, v{g}
    v_lshlrev_b32 v{t0}, 4, v{t0}
    v_lshrrev_b32 v{t1}, 3, v{L}
    v_lshl_add_u32 v{t0}, v{t1}, 10, v{t0}
    s_and_b32 s3, s{S_W}, 1
    s_lshl_b32 s3, s3, 6
    v_xor_b32 v{t0}, s3, v{t0}
    v_xor_b32 v{t1}, 64, v{t0}
    """)
    for u in range(5):
        src = t0 if u % 2 == 0 else t1
        e(f"v_add_u32 v{V_OX+u}, {u * 8192 - (u & 3) * 1024}, v{src}")
    e(f"""
    v_xor_b32 v{t0}, v{c}, v{g}
    v_lshlrev_b32 v{t0}, 4, v{t0}
    v_lshl_add_u32 v{V_OK}, v{g}, 8, v{t0}
    v_xor_b32 v{V_OK+1}, 64, v{V_OK}
    v_xor_b32 v{V_OK+2}, 0x80, v{V_OK}
    v_xor_b32 v{V_OK+3}, 0xc0, v{V_OK}
    """)
    e(f"""
    v_lshlrev_b32 v{t0}, 1, v{g}
    v_xor_b32 v{t0}, v{t0}, v{c}
    v_lshlrev_b32 v{t0}, 4, v{t0}
    v_lshl_add_u32 v{V_OV0}, v{g}, 8, v{t0}
    v_xor_b32 v{V_OV0+1}, 0x80, v{V_OV0}
    """)
    e(f"""
    s_mul_i32 s3, s{S_HH}, {WQ_HEAD}
    s_add_u32 s3, s3, {WQ0}
    v_mul_u32_u24 v{t0}, 2056, v{g}
    v_lshl_add_u32 v{t0}, v{rp}, 8, v{t0}
    v_lshl_add_u32 v{t0}, v{cp}, 4, v{t0}
    v_add_u32 v{t0}, s3, v{t0}
    s_mul_i32 s7, s{S_RH}, {4 * 1024 + 16}
    s_add_u32 s{S_WQL}, s3, s7
    s_lshl_b32 s{S_WQG}, s{S_RH}, 17
    """)
    for j in range(4):
        e(f"""
    v_xor_b32 v{t1}, {j}, v{rp}
    v_lshl_add_u32 v{V_AW+j}, v{t1}, 6, v{t0}""")
    e(f"""
    s_mul_i32 s3, s{S_RH}, {80*128}
    s_add_u32 s3, s3, {X0}
    v_lshrrev_b32 v{t0}, 1, v{c}
    v_xor_b32 v{t0}, v{t0}, v{g}
    v_lshlrev_b32 v{t0}, 4, v{t0}
    v_lshl_add_u32 v{t0}, v{c}, 7, v{t0}
    v_add_u32 v{V_AX}, s3, v{t0}
    v_xor_b32 v{V_AX+1}, 64, v{V_AX}
    s_mul_i32 s{S_XL}, s{S_W}, 5120
    s_add_u32 s{S_XL}, s{S_XL}, {X0}
    s_mul_i32 s{S_XG}, s{S_W}, 40960
    """)
    e(f"""
    s_lshl_b32 s3, s{S_HH}, 13
    s_lshl_b32 s7, s{S_RH}, 12
    s_add_u32 s{S_KV}, s3, s7
    v_xor_b32 v{t0}, v{g}, v{c}
    v_lshlrev_b32 v{t0}, 4, v{t0}
    v_lshl_add_u32 v{t0}, v{c}, 8, v{t0}
    v_add_u32 v{V_AK}, s3, v{t0}
    v_xor_b32 v{V_AK+1}, 64, v{V_AK}
    v_xor_b32 v{V_AK+2}, 0x80, v{V_AK}
    v_xor_b32 v{V_AK+3}, 0xc0, v{V_AK}
    """)
    e(f"""
    v_lshlrev_b32 v{V_APA}, 4, v{L}
    v_add_u32 v{V_APA}, s{S_KV}, v{V_APA}
    v_add_u32 v{V_APA+1}, {VRING}, v{V_APA}
    """)
    e(f"""
    s_add_u32 s3, s3, 0x20000
    v_lshl_add_u32 v{t0}, v{g}, 2, v{rp}       ; 4g + r'
    v_and_b32 v{t1}, 7, v{t0}                  ; rho7
    v_lshlrev_b32 v{t0}, 8, v{t0}
    v_lshl_add_u32 v{t0}, v{t1}, 5, v{t0}
    v_lshl_add_u32 v{t0}, v{cp}, 3, v{t0}
    v_add_u32 v{V_AV}, s3, v{t0}
    """)
    for dt in range(1, 8):
        e(f"v_xor_b32 v{V_AV+dt}, {32*dt}, v{V_AV}")
    e(f"""
    s_waitcnt lgkmcnt(0)
    s_cmp_eq_u32 s{S_BR}, 0
    s_cselect_b32 s52, s52, s60
    s_cselect_b32 s53, s53, s61
    s_cselect_b32 s54, s54, s62
    s_cselect_b32 s55, s55, s63
    s_cselect_b32 s56, s56, s64
    s_cselect_b32 s57, s57, s65
    s_cselect_b32 s58, s58, s66
    s_cselect_b32 s59, s59, s67
    s_lshl_b32 s3, s{S_H}, 8
    s_add_u32 s{SRD_WQ}, s58, s3
    s_addc_u32 s{SRD_WQ+1}, s59, 0
    s_sub_u32 s{SRD_WQ+2}, 4194304, s3
    s_mov_b32 s{SRD_WQ+3}, 0x20000
    s_mul_i32 s3, s{S_B}, 163840
    s_add_u32 s{SRD_X}, s52, s3
    s_addc_u32 s{SRD_X+1}, s53, 0
    s_mov_b32 s{SRD_X+2}, 163840
    s_mov_b32 s{SRD_X+3}, 0x20000
    """)
    if o.rot and o.rotg > 1:
        G = o.rotg
        e(f"""
    s_and_b32 s3, s{S_IDX}, 3                ; p
    s_lshl_b32 s3, s3, {1 if G == 8 else 0}
    s_add_u32 s3, s3, s{S_B}
    s_and_b32 s3, s3, {G - 1}
    s_mul_i32 s3, s3, {8 // G}
    s_lshl_b32 s{S_WQK}, s3, 7
    s_lshl_b32 s3, s3, 19                    ; 64 rows * 8192
    s_add_u32 s{S_WQG}, s{S_WQG}, s3
    """)
    else:
        e(f"s_mov_b32 s{S_WQK}, 0")

def prologue2(e, o):
    e(f"""
    s_lshl_b32 s3, s{S_B}, 5
    s_add_u32 s3, s3, s{S_H}
    s_lshl_b32 s3, s3, 17
    s_add_u32 s{SRD_K}, s54, s3
    s_addc_u32 s{SRD_K+1}, s55, 0
    s_mov_b32 s{SRD_K+2}, 131072
    s_mov_b32 s{SRD_K+3}, 0x20000
    s_add_u32 s{SRD_V}, s56, s3
    s_addc_u32 s{SRD_V+1}, s57, 0
    s_mov_b32 s{SRD_V+2}, 131072
    s_mov_b32 s{SRD_V+3}, 0x20000
    s_lshl_b32 s3, s{S_BR}, 3
    s_add_u32 s3, s3, s{S_B}
    s_lshl_b32 s3, s3, 1
    s_add_u32 s3, s3, s{S_RH}
    s_lshl_b32 s3, s3, 5
    s_add_u32 s3, s3, s{S_H}
    s_mul_i32 s3, s3, 20480
    s_add_u32 s{SRD_O}, s68, s3
    s_addc_u32 s{SRD_O+1}, s69, 0
    s_mov_b32 s{SRD_O+2}, 20480
    s_mov_b32 s{SRD_O+3}, 0x20000
    s_mov_b32 s{S_SC}, {f32hex(C_SCALE)}
    """)

def wq_imm(u): return u * 1024 + 8 * (u >> 1)

def dma_wq(o, m, after=-1, before=10**9, pace=0):
    fl = [F('s', txt(f"s_add_u32 m0, s{S_WQL}, {(m % 3) * WQ_SLOT}"), after, before)]
    for u in range(4):
        fl.append(F('l', lambda e, u=u: e.vm_op(f"buffer_load_dwordx4 v{V_OWQ+u}, s[{SRD_WQ}:{SRD_WQ+3}], s{S_WQG} offen offset:{wq_imm(u)} {o.q_flag} lds", f"wq{m}"), after + pace * u, before))
    fl.append(F('s', txt(f"s_add_u32 s{S_WQG}, s{S_WQG}, {32 * 8192}"), after, before))
    fl.append(F('s', txt(f"s_and_b32 s{S_WQG}, s{S_WQG}, 0x3fffff"), after, before))
    return fl

def dma_x(o, M, after=-1, before=10**9, pace=0):
    fl = [F('s', txt(f"s_add_u32 m0, s{S_XL}, {(M % 2) * X_SLOT}"), after, before),
          F('s', txt(f"s_add_u32 s{S_T1}, s{S_XG}, s{S_WQK}"), after, before)]
    for u in range(5):
        if u == 4: fl.append(F('s', txt(f"s_add_u32 m0, s{S_XL}, {(M % 2) * X_SLOT + 4096}"), after, before))
        if u == 4: fl.append(F('s', txt("s_nop 0"), after, before))
        fl.append(F('l', lambda e, u=u: e.vm_op(f"buffer_load_dwordx4 v{V_OX+u}, s[{SRD_X}:{SRD_X+3}], s{S_T1} offen offset:{(u & 3) * 1024} {o.q_flag} lds", f"x{M}"), after + pace * u, before))
    fl.append(F('s', txt(f"s_add_u32 s{S_WQK}, s{S_WQK}, 128"), after, before))
    fl.append(F('s', txt(f"s_and_b32 s{S_WQK}, s{S_WQK}, 0x3ff"), after, before))
    return fl

def dma_pref(o, which, s, after=-1, before=10**9, pace=0):
    if which == 'K':
        base = KRING + 16384 * s; srd = SRD_K; vo = lambda t: V_OK + t
    else:
        base = 0x20000 + 16384 * s; srd = SRD_V; vo = lambda t: V_OV0 + (t & 1)
    fl = [F('s', txt(f"s_add_u32 m0, s{S_KV}, {base}"), after, before),
          F('s', txt(f"s_lshl_b32 s34, s{S_RH}, 12"), after, before),
          F('s', txt(f"s_add_u32 s34, s34, {s * 8192}"), after, before)]
    for t in range(4):
        fl.append(F('l', lambda e, t=t: e.vm_op(f"buffer_load_dwordx4 v{vo(t)}, s[{srd}:{srd+3}], s34 offen offset:{t * 1024} {o.kv_flag} lds", f"{which}{s}"), after + pace * t, before))
    return fl

APF = {('K', 2): 0, ('K', 3): 16, ('V', 2): 32, ('V', 3): 48}
def dma_apf(o, which, s, after=-1, before=10**9, pace=0):
    srd = SRD_K if which == 'K' else SRD_V
    vo = (lambda t: V_OK + t) if which == 'K' else (lambda t: V_OV0 + (t & 1))
    fl = [F('s', txt(f"s_lshl_b32 s34, s{S_RH}, 12"), after, before),
          F('s', txt(f"s_add_u32 s34, s34, {s * 8192}"), after, before)]
    for t in range(4):
        a = APF[(which, s)] + 4 * t
        fl.append(F('l', lambda e, t=t, a=a: e.vm_op(f"buffer_load_dwordx4 a[{a}:{a+3}], v{vo(t)}, s[{srd}:{srd+3}], s34 offen offset:{t * 1024} {o.kv_flag}", f"{which}{s}"), after + pace * t, before))
    return fl
V_APA = 72
def apf_copy(after):
    fl = []
    for (which, s), a0 in APF.items():
        for t in range(4):
            a = a0 + 4 * t
            if which == 'K': txt_ = f"ds_write_b128 v{V_APA}, a[{a}:{a+3}] offset:{KRING + 16384 * s + 1024 * t}"
            else: txt_ = f"ds_write_b128 v{V_APA+1}, a[{a}:{a+3}] offset:{16384 * (s - 2) + 1024 * t}"
            fl.append(F('d', lambda e, txt_=txt_: e.ds_op(txt_, "APF"), after))
    return fl

def zero_acc(e):
    e(f"v_mov_b32 v{V_T+8}, 0x3f803f80")
    for r in range(4):
        e(f"v_accvgpr_write_b32 a{A_ONE + r}, v{V_T+8}")

def code_touch_early(e, o, name):
    e("s_getpc_b64 s[66:67]")
    e.label(f"L_pce_{name}")
    e(f"s_sub_u32 s66, s66, L_pce_{name}-{name}")
    e("s_subb_u32 s67, s67, 0")
    if o.c_early == 1:
        e("v_lshlrev_b32 v74, 7, v0")
        e(f"v_min_u32 v75, CODE_END-{name}-4, v74")
        e.vm_op("global_load_dword v76, v75, s[66:67]", "ce")
        e("v_add_u32 v74, 0x8000, v74")
        e(f"v_min_u32 v75, CODE_END-{name}-4, v74")
        e.vm_op("global_load_dword v77, v75, s[66:67]", "ce")
    elif o.c_early == 2:
        e("v_and_b32 v74, 63, v0")
        e("v_lshlrev_b32 v74, 7, v74")
        e.vm_op("global_load_dword v76, v74, s[66:67]", "ce")
        e("s_lshr_b32 s3, s2, 3")
        e("s_lshl_b32 s3, s3, 11")
        e("v_and_b32 v74, 15, v0")
        e("v_lshlrev_b32 v74, 7, v74")
        e("v_add_u32 v74, s3, v74")
        e(f"v_min_u32 v75, CODE_END-{name}-4, v74")
        e.vm_op("global_load_dword v77, v75, s[66:67]", "ce")
    elif o.c_early == 3:
        e("v_lshlrev_b32 v74, 7, v0")
        e(f"v_min_u32 v75, CODE_END-{name}-4, v74")
        e.vm_op("global_load_dword v76, v75, s[66:67]", "ce")
        e("s_lshr_b32 s3, s2, 3")
        e("s_lshl_b32 s3, s3, 9")
        e("s_add_u32 s3, s3, 0x8000")
        e("v_and_b32 v74, 3, v0")
        e("v_lshlrev_b32 v74, 7, v74")
        e("v_add_u32 v74, s3, v74")
        e(f"v_min_u32 v75, CODE_END-{name}-4, v74")
        e.vm_op("global_load_dword v77, v75, s[66:67]", "ce")

def code_touch(e, va, vd, first):
    e("s_getpc_b64 s[66:67]")
    e.label(f"L_pc{first}_{CODE_NAME[0]}")
    e(f"s_sub_u32 s66, s66, L_pc{first}_{CODE_NAME[0]}-{CODE_NAME[0]}")
    e("s_subb_u32 s67, s67, 0")
    e(f"s_lshl_b32 s3, s{S_IDX}, 11")
    e(f"v_mbcnt_lo_u32_b32 v{va}, -1, 0")
    e(f"v_mbcnt_hi_u32_b32 v{va}, -1, v{va}")
    e(f"v_and_b32 v{va}, 15, v{va}")
    e(f"v_lshlrev_b32 v{va}, 7, v{va}")
    e(f"v_add_u32 v{va}, s3, v{va}")
    e(f"v_min_u32 v{va}, CODE_END-{CODE_NAME[0]}-4, v{va}")
    e.vm_op(f"global_load_dword v{vd}, v{va}, s[66:67]", "ctouch")

CODE_NAME = [""]
def run(e, fl):
    for f in fl: f.fn(e)

def qphase(e, o):
    run(e, dma_wq(o, 0) + dma_x(o, 0) + dma_wq(o, 1))
    if o.pre_all: run(e, dma_wq(o, 2) + dma_x(o, 1))
    prologue2(e, o)
    if o.c_touch: code_touch(e, V_T + 9, V_T + 10, 0)
    if o.tlb:
        e(f"""
    s_lshl_b32 s3, s{S_BR}, 3
    s_add_u32 s3, s3, s{S_B}
    s_lshl_b32 s3, s3, 4
    s_lshr_b32 s7, s{S_H}, 1
    s_add_u32 s3, s3, s7
    s_mul_i32 s3, s3, 163840
    s_add_u32 s3, s3, {POFF}
    s_add_u32 s28, s68, s3
    s_addc_u32 s29, s69, 0
    s_mov_b32 s30, 163840
    s_mov_b32 s31, 0x20000
    v_mov_b32 v78, 0
    """)
        if o.tlb & 1: e.vm_op(f"buffer_load_dword v79, v78, s[28:31], 0 offen", "tlb")
        if o.tlb & 2:
            e.vm_op(f"buffer_load_dword v79, v78, s[{SRD_K}:{SRD_K+3}], 0 offen", "tlb")
            e.vm_op(f"buffer_load_dword v79, v78, s[{SRD_V}:{SRD_V+3}], 0 offen", "tlb")
    stamp(e, o, "issued")
    zero_acc(e)
    idx = lambda m, dt, qt: 40 * m + 5 * dt + qt
    def wfrag(m, dt, after=-1, before=10**9):
        j, tp = dt >> 1, dt & 1
        return [F('d', lambda e, n=n: e.ds_op(f"ds_read_b64_tr_b16 a[{fbuf(dt) + 2 * n}:{fbuf(dt) + 2 * n + 1}], v{V_AW + j} offset:{(m % 3) * WQ_SLOT + n * 1024 + 8 * tp}", f"F{m}_{dt}"), after, before) for n in range(2)]
    def xfrag(m, qt, after=-1, before=10**9):
        M, h = m >> 1, m & 1
        b = V_XB[m & 1] + 4 * qt
        return [F('d', lambda e: e.ds_op(f"ds_read_b128 v[{b}:{b+3}], v{V_AX + h} offset:{(M % 2) * X_SLOT + qt * 2048}", f"B{m}_{qt}"), after, before)]
    def barrier(m):
        def fn(e):
            e.ds_all()
            tags = [f"wq{m+1}"]
            if (m + 1) % 2 == 0: tags.append(f"x{(m+1)//2}")
            if m == 15:
                e.vm_all()
            elif not o.q_nowait or m < 0:
                e.need_vm(tags)
            if not o.q_nobar or m in (-1, 15): e("s_barrier")
            if o.skew and -1 <= m < 15:
                n_ = NSK[0]; NSK[0] += 1
                e(f"s_cmp_eq_u32 s{S_W}, 0")
                e(f"s_cbranch_scc1 L_sk{n_}")
                e(f"s_nop {o.skew - 1}")
                e(f"s_cmp_eq_u32 s{S_W}, 1")
                e(f"s_cbranch_scc1 L_sk{n_}")
                e(f"s_nop {o.skew - 1}")
                e(f"s_cmp_eq_u32 s{S_W}, 2")
                e(f"s_cbranch_scc1 L_sk{n_}")
                e(f"s_nop {o.skew - 1}")
                e.label(f"L_sk{n_}")
            stamp(e, o, f"B{m}") if (o.stamp_list or m in (3, 9)) else None
        return fn
    barrier(-1)(e)
    stamp(e, o, "bar0")
    def nextfrags(m, after, before):
        fl = wfrag(m, 0, after, before)
        for q in range(5): fl += xfrag(m, q, after, before)
        return fl + wfrag(m, 1, after, before) + wfrag(m, 2, after, before)
    run(e, nextfrags(0, -1, 0))
    mains = []; rd = []; dm = []
    pref = [('K', 0), ('K', 1), ('V', 0), ('V', 1)]
    if o.apf: pref += [('K', 2), ('K', 3), ('V', 2), ('V', 3)]
    tnext = [0]
    for m in range(16):
        for dt in range(8):
            for qt in range(5):
                cin = "0" if m == 0 else vr(acc(dt, qt), 4)
                needs = []
                if qt == 0: needs.append(f"F{m}_{dt}")
                if dt == 0: needs.append(f"B{m}_{qt}")
                pre = barrier(m) if (dt == 5 and qt == 0) else None
                mains.append(Main(f"{MFMA} {vr(acc(dt, qt), 4)}, {ar(fbuf(dt), 4)}, {vr(V_XB[m & 1] + 4 * qt, 4)}, {cin}", needs, pre))
        for dt in (3, 4, 5):
            rd += wfrag(m, dt, idx(m, dt - 3, 0), idx(m, dt - 1, 0))
        for dt in (6, 7):
            rd += wfrag(m, dt, idx(m, 2, 2), idx(m, 4, 3))
        if m < 15:
            rd += nextfrags(m + 1, idx(m, 5, 0), idx(m, 7, 4))
        a = idx(m, 5, 0); b = idx(m + 1, 5, 0) if m < 15 else 10**9
        if m == 0 and not o.pre_all:
            dm += dma_wq(o, 2, -1, idx(0, 4, 0)) + dma_x(o, 1, -1, idx(0, 4, 4))
        t = max(a, tnext[0])
        if m + 3 < 16 and not o.q_nodma:
            dm += dma_wq(o, m + 3, t, b, o.pace); t += 4 * o.pace
        if m % 2 == 1 and (m - 1) // 2 + 2 < 8 and not o.q_nodma:
            dm += dma_x(o, (m - 1) // 2 + 2, t, idx(m + 2, 4, 0) if m < 14 else 10**9, o.pace); t += 5 * o.pace
        for n_, (w, s) in enumerate(pref):
            when = int(o.pf_steps.split(",")[n_]) if o.pf_steps else min(o.pf_start + n_ * o.pf_per, 15 if o.pf_late else 13)
            if m == when:
                fn_ = dma_pref if s < 2 else dma_apf
                dm += fn_(o, w, s, t, idx(m + 2, 5, 0) if m < 14 else 10**9, o.pace); t += 4 * o.pace
        tnext[0] = t
        if m == 15 and o.apf:
            rd += apf_copy(a)
        if m == 15 and not o.apf:
            for s in (2, 3):
                dm += [F('s', txt(f"s_add_u32 m0, s{S_KV}, {KRING + 16384 * s}"), a),
                       F('s', txt(f"s_lshl_b32 s34, s{S_RH}, 12"), a),
                       F('s', txt(f"s_add_u32 s34, s34, {s * 8192}"), a)]
                for t in range(4):
                    dm.append(F('l', lambda e, t=t, s=s: e.vm_op(f"buffer_load_dwordx4 v{V_OK + t}, s[{SRD_K}:{SRD_K+3}], s34 offen offset:{t * 1024} {o.kv_flag} lds", f"K{s}"), a))
    if o.q_nods: rd = []
    zip2(e, mains, [rd, dm])

def qconvert(e):
    e("s_nop 7")
    for r in range(V_ACC, V_ACC + 160, 2):
        e(f"v_pk_mul_f32 v[{r}:{r+1}], v[{r}:{r+1}], s[{S_SC}:{S_SC+1}] op_sel_hi:[1,0]")
    for j in range(4):
        for qt in range(5):
            for tp in range(2):
                a0 = acc(2 * j + tp, qt); d = qf(j, qt) + 2 * tp
                e(f"v_cvt_pk_bf16_f32 v{d}, v{a0}, v{a0+1}")
                e(f"v_cvt_pk_bf16_f32 v{d+1}, v{a0+2}, v{a0+3}")

def dma_kv(o, which, after0, i):
    fl = []
    P = o.kv_pace
    after = after0
    if 'K' in which:
        fl.append(F('s', txt(f"s_mov_b32 m0, s{S_KDST}"), after))
        fl.append(F('s', txt(f"s_add_u32 s{S_KDST}, s{S_KDST}, 16384"), after))
        for t in range(4):
            fl.append(F('l', lambda e, t=t: e.vm_op(f"buffer_load_dwordx4 v{V_OK + t}, s[{SRD_K}:{SRD_K+3}], s{S_KOFF} offen offset:{t * 1024} {o.kv_flag} lds", f"K{i+4}"), after))
            after += P
        fl.append(F('s', txt(f"s_and_b32 s{S_KDST}, s{S_KDST}, 0xffff"), after0))
        fl.append(F('s', txt(f"s_add_u32 s{S_KOFF}, s{S_KOFF}, 8192"), after0))
    if 'V' in which:
        fl.append(F('s', txt(f"s_add_u32 m0, s{S_VDST}, {VRING}"), after0))
        fl.append(F('s', txt(f"s_add_u32 s{S_VDST}, s{S_VDST}, 16384"), after0))
        for t in range(4):
            fl.append(F('l', lambda e, t=t: e.vm_op(f"buffer_load_dwordx4 v{V_OV + (t & 1)}, s[{SRD_V}:{SRD_V+3}], s{S_VOFF} offen offset:{t * 1024} {o.kv_flag} lds", f"V{i+2}"), after))
            after += P
        fl.append(F('s', txt(f"s_and_b32 s{S_VDST}, s{S_VDST}, 0xffff"), after0))
        fl.append(F('s', txt(f"s_add_u32 s{S_VOFF}, s{S_VOFF}, 8192"), after0))
    return fl

def kfrag(par_slot, kt, j, n, after=-1, before=10**9):
    return [F('d', lambda e: e.ds_op(f"ds_read_b128 a[{fbuf(n)}:{fbuf(n)+3}], v{V_AK + j} offset:{kt * 4096 + 16384 * par_slot}", f"F{n}"), after, before)]
def vfrag(par_slot, dt, n, after=-1, before=10**9):
    return [F('d', lambda e, h=h: e.ds_op(f"ds_read_b64_tr_b16 a[{fbuf(n) + 2*h}:{fbuf(n) + 2*h + 1}], v{V_AV + dt} offset:{h * 4096 + 16384 * par_slot}", f"F{n}"), after, before) for h in range(2)]

def softmax_fill(par):
    seq = []
    for qt in range(5):
        for kt in range(2):
            s = sreg(par, kt, qt); p = preg(par, qt) + 2 * kt
            seq += [("e", s), ("e", s + 1), ("c", p, s, s + 1), ("e", s + 2), ("e", s + 3), ("c", p + 1, s + 2, s + 3)]
    out = []; pend = None
    for x in seq:
        if x[0] == "c": pend = x
        else:
            out.append(x)
            if pend is not None: out.append(pend); pend = None
    if pend is not None: out.append(("n",)); out.append(pend)
    fl = []
    for x in out:
        if x[0] == "e": fl.append(F('e', txt(f"v_exp_f32 v{x[1]}, v{x[1]}")))
        elif x[0] == "c": fl.append(F('v', txt(f"v_cvt_pk_bf16_f32 v{x[1]}, v{x[2]}, v{x[3]}")))
        else: fl.append(F('s', txt("s_nop 0")))
    return fl

def attn_iter(e, o, i, qk, sm, pv, vwait, dma, pre_next, epi=None, first_pv=False, extra_dm=None):
    par = i & 1; ks = (i + 1) & 1
    mains = []; rd = []; dm = []
    gstart = {}
    if qk:
        for kt in range(2):
            for j in range(4):
                n = kt * 4 + j
                gstart[n] = len(mains)
                for qt in range(5):
                    d = sreg(par ^ 1, kt, qt)
                    cin = vr(V_BIAS + 4 * qt, 4) if j == 0 else vr(d, 4)
                    mains.append(Main(f"{MFMA} {vr(d, 4)}, {ar(fbuf(n), 4)}, {vr(qf(j, qt), 4)}, {cin}", [f"F{n}"] if qt == 0 else []))
    if pv:
        gstart['l'] = len(mains)
        for qt in range(5):
            mains.append(Main(f"{MFMA} {ar(A_L + 4 * qt, 4)}, {ar(A_ONE, 4)}, {vr(preg(par ^ 1, qt), 4)}, {'0' if first_pv else ar(A_L + 4 * qt, 4)}"))
        for dt in range(8):
            n = 8 + dt
            gstart[n] = len(mains)
            for qt in range(5):
                mains.append(Main(f"{MFMA} {ar(oacc(dt, qt), 4)}, {ar(fbuf(n), 4)}, {vr(preg(par ^ 1, qt), 4)}, {'0' if first_pv else ar(oacc(dt, qt), 4)}", [f"F{n}"] if qt == 0 else []))
    order = [n for n in range(16) if n in gstart]
    ln = len(order)
    for k, n in enumerate(order):
        if qk and n < 3: continue
        after = gstart[order[k - 4]] if k >= 4 else -1
        if k >= ln - 3 and ln >= 6: after = gstart[order[ln - 6]]
        before = gstart[order[k - 1]] if k >= 1 else 0
        if k >= ln - 3 and ln >= 4: before = min(before, gstart[order[ln - 3]])
        rd += kfrag(ks, n >> 2, n & 3, n, after, before) if n < 8 else vfrag(ks, n - 8, n, after, before)
    has_bar = pre_next or vwait is not None
    if has_bar:
        bpos = gstart[order[-2]]
        def bar(e):
            e.ds_all()
            if vwait == 0:
                if 'OLD' in e.vm: e.need_vm('OLD')
                else: e.vm_all()
            elif vwait is not None: e.need_vm([f"K{i+2}", f"V{i}"])
            e("s_barrier")
        mains[bpos].pre = bar
        if par == 0 and qk:
            for j in range(4): rd.append(F('v', txt(f"v_xor_b32 v{V_AK + j}, 0x8000, v{V_AK + j}"), bpos))
        if pre_next:
            for n in range(3): rd += kfrag(ks ^ 1, 0, n, n, bpos, len(mains) - 1)
        if par == 0 and pv:
            for dt in range(8): rd.append(F('v', txt(f"v_xor_b32 v{V_AV + dt}, {hex(VTOG)}, v{V_AV + dt}"), bpos))
    dm += dma_kv(o, dma, -1, i)
    if extra_dm: dm += extra_dm
    sf = softmax_fill(par) if sm else []
    qs = [rd, dm, sf]
    if epi: qs.append(epi(gstart))
    zip2(e, mains, qs, flush_nop=bool(epi))

def epilogue_fill(o):
    def build(gstart):
        fl = []
        RL = V_E
        W = V_E + 6
        l0 = gstart['l']
        for qt in range(5):
            fl.append(F('v', txt(f"v_accvgpr_read_b32 v{RL + qt}, a{A_L + 4 * qt}"), l0 + 5 + 8))
        for qt in range(5):
            fl.append(F('e', txt(f"v_rcp_f32 v{RL + qt}, v{RL + qt}"), l0 + 5 + 8))
        k = 0
        for jj in range(4):
            ready = gstart[8 + 2 * jj + 1] + 5 + 4
            for qt in range(5):
                w = W + 12 * (k & 1); k += 1
                for tp in range(2):
                    for i in range(4):
                        fl.append(F('v', txt(f"v_accvgpr_read_b32 v{w + 4*tp + i}, a{oacc(2*jj + tp, qt) + i}"), ready))
                for r in range(8):
                    fl.append(F('v', txt(f"v_mul_f32 v{w + r}, v{w + r}, v{RL + qt}"), ready))
                for r in range(4):
                    fl.append(F('v', txt(f"v_cvt_pk_bf16_f32 v{w + 8 + r}, v{w + 2*r}, v{w + 2*r + 1}"), ready))
                off = (jj * 5 + qt) * 1024
                fl.append(F('s', txt(f"s_mov_b32 s{S_T0}, {off}"), ready))
                fl.append(F('l', lambda e, w=w: e.vm_op(f"buffer_store_dwordx4 v[{w+8}:{w+11}], v{V_E + 5}, s[{SRD_O}:{SRD_O+3}], s{S_T0} offen {o.o_flag}", "st"), ready))
        return fl
    return build

WO_A = [131072, 147456, 98304, 81920, 114688]
WO_B = [0, 16384, 32768, 49152, 65536]
def wo_slot(si): return WO_A[si] if si < 5 else WO_B[si - 5] if si < 10 else WO_A[si - 10] if si < 15 else WO_B[0]
V_AWS = 160

def t3_setup(e, o):
    L = V_E + 5
    t0, t1, t2, t3_ = V_E, V_E + 1, V_E + 2, V_E + 3
    e(f"""
    v_lshrrev_b32 v{t0}, 4, v{L}             ; lane
    v_lshrrev_b32 v{t1}, 4, v{t0}            ; g
    v_and_b32 v{t2}, 7, v{t0}
    v_lshlrev_b32 v{t3_}, 1, v{t1}
    v_xor_b32 v{t2}, v{t2}, v{t3_}
    v_lshlrev_b32 v{t2}, 4, v{t2}
    v_lshrrev_b32 v{t3_}, 3, v{t0}
    v_lshl_add_u32 v{V_OW}, v{t3_}, 10, v{t2}
    v_add_u32 v{V_OW+1}, {7168}, v{V_OW}
    v_add_u32 v{V_OW+2}, {2*7168}, v{V_OW}
    v_add_u32 v{V_OW+3}, {3*7168}, v{V_OW}
    v_bfe_u32 v{t2}, v{t0}, 2, 2             ; r'
    v_lshl_add_u32 v{t2}, v{t1}, 2, v{t2}    ; 4g + r'
    v_lshrrev_b32 v{t3_}, 1, v{t2}
    v_and_b32 v{t3_}, 3, v{t3_}
    v_lshlrev_b32 v{t2}, 7, v{t2}
    v_lshl_add_u32 v{t2}, v{t3_}, 5, v{t2}
    v_and_b32 v{t3_}, 3, v{t0}               ; c'
    v_lshl_add_u32 v{t2}, v{t3_}, 3, v{t2}
    s_lshl_b32 s3, s{S_HH}, 13
    v_add_u32 v{V_AW2}, s3, v{t2}
    v_xor_b32 v{V_AW2+1}, 32, v{V_AW2}
    v_xor_b32 v{V_AW2+2}, 64, v{V_AW2}
    v_xor_b32 v{V_AW2+3}, 0x60, v{V_AW2}
    s_mul_i32 s3, s{S_W}, 20480
    v_add_u32 v{V_XA}, s3, v{L}
    s_mov_b32 s{S_WL}, s{S_KV}
    s_lshl_b32 s3, s{S_RH}, 15
    s_lshl_b32 s7, s{S_HH}, 9
    s_add_u32 s3, s3, s7
    s_lshl_b32 s7, s{S_HH}, 17
    s_add_u32 s{S_WA}, s3, s7
    s_xor_b32 s7, s7, 0x20000
    s_add_u32 s{S_WB}, s3, s7
    s_cmp_eq_u32 s{S_BR}, 0
    s_cselect_b32 s60, s98, s100
    s_cselect_b32 s61, s99, s101
    s_sub_u32 s3, s{S_H}, s{S_HH}
    s_lshl_b32 s3, s3, 17                    ; * 128 rows * 1024
    s_add_u32 s{SRD_WO}, s60, s3
    s_addc_u32 s{SRD_WO+1}, s61, 0
    s_mov_b32 s{SRD_WO+2}, 262144
    s_mov_b32 s{SRD_WO+3}, 0x20000
    s_lshl_b32 s3, s{S_BR}, 3
    s_add_u32 s3, s3, s{S_B}
    s_lshl_b32 s3, s3, 4
    s_lshr_b32 s7, s{S_H}, 1
    s_add_u32 s3, s3, s7
    s_lshl_b32 s3, s3, 2
    s_lshl_b32 s7, s{S_RH}, 1
    s_add_u32 s3, s3, s7
    s_add_u32 s3, s3, s{S_HH}
    s_mul_i32 s3, s3, 40960
    s_add_u32 s3, s3, {POFF}
    s_add_u32 s{SRD_P}, s68, s3
    s_addc_u32 s{SRD_P+1}, s69, 0
    s_mov_b32 s{SRD_P+2}, 40960
    s_mov_b32 s{SRD_P+3}, 0x20000
    s_lshl_b32 s3, s{S_HG}, 20
    s_add_u32 s56, s60, s3
    s_addc_u32 s57, s61, 0
    s_mov_b32 s58, 0x100000
    s_mov_b32 s59, 0x20000
    s_lshl_b32 s3, s{S_IDX}, 2
    s_add_u32 s3, s3, s{S_W}
    s_lshl_b32 s3, s3, 13
    v_lshlrev_b32 v{t0}, 3, v{L}             ; lane*128
    v_add_u32 v{t0}, s3, v{t0}
    """)

def dma_wo(o, p, kq, after=-1, before=10**9, pace=0):
    src = S_WA if kq < 2 else S_WB
    fl = [F('s', txt(f"s_add_u32 m0, s{S_WL}, {wo_slot(4 * p + kq)}"), after, before),
          F('s', txt(f"s_add_u32 s{S_T1}, s{src}, {(kq & 1) * 65536 + 128 * p}"), after, before)]
    for t in range(4):
        fl.append(F('l', lambda e, t=t: e.vm_op(f"buffer_load_dwordx4 v{V_OW+t}, s[{SRD_WO}:{SRD_WO+3}], s{S_T1} offen offset:{t*1024} {o.w_flag} lds", f"W{p}_{kq}"), after + pace * t, before))
    return fl

def t3_tail(e, o):
    i = 16; par = 0; ks = 1
    mains = []; rd = []; dm = []; cv = []; st = []; xw = []; xr = []
    gstart = {}
    gstart['l'] = 0
    for qt in range(5):
        mains.append(Main(f"{MFMA} {ar(A_L + 4 * qt, 4)}, {ar(A_ONE, 4)}, {vr(preg(1, qt), 4)}, {ar(A_L + 4 * qt, 4)}"))
    for dt in range(8):
        n = 8 + dt
        gstart[n] = len(mains)
        for qt in range(5):
            mains.append(Main(f"{MFMA} {ar(oacc(dt, qt), 4)}, {ar(fbuf(n), 4)}, {vr(preg(1, qt), 4)}, {ar(oacc(dt, qt), 4)}", [f"F{n}"] if qt == 0 else []))
    for k in range(8):
        n = 8 + k
        after = gstart[8 + k - 4] if k >= 4 else -1
        before = gstart[8 + k - 1] if k >= 1 else 0
        rd += vfrag(ks, k, n, after, before)
    NPV = len(mains)
    def a2(p, nt, qt):
        if (p & 1) == 0 and nt >= 2 and o.acc_hi: return 216 + ((nt - 2) * 5 + qt) * 4
        return A_ACC2[p & 1] + (nt * 5 + qt) * 4
    def bfr(kk, qt): return (kk * 5 + qt) * 4
    S0 = {}
    nfrag = 16
    for p in range(4):
        for kq in range(4):
            S0[(p, kq)] = len(mains)
            for ks2 in range(2):
                kk = 2 * kq + ks2
                for nt in range(4):
                    n = nfrag; nfrag += 1
                    g0 = len(mains)
                    for qt in range(5):
                        cin = "0" if (kq == 0 and ks2 == 0) else ar(a2(p, nt, qt), 4)
                        needs = [f"G{n}"] if qt == 0 else []
                        if p == 0 and kk >= 4 and nt == 0: needs = needs + [f"X{kk}_{qt}"]
                        mains.append(Main(f"{MFMA} {ar(a2(p, nt, qt), 4)}, {ar(fbuf(n), 4)}, {vr(bfr(kk, qt), 4)}, {cin}", needs))
                    gstart[('g', p, kq, ks2, nt)] = (g0, n)
    N = len(mains)
    stages = [(p, kq) for p in range(4) for kq in range(4)]
    def gidx(p, kq, j): return gstart[('g', p, kq, j >> 2, j & 3)]
    BAR = {}
    for si, (p, kq) in enumerate(stages):
        BAR[si] = gidx(p, kq, 5)[0]
    def wfrag(p, kq, j, after, before):
        g0, n = gidx(p, kq, j)
        return [F('d', lambda e, h=h, n=n: e.ds_op(f"ds_read_b64_tr_b16 a[{fbuf(n) + 2*h}:{fbuf(n) + 2*h + 1}], v{V_AWS + 4 * (wo_slot(4 * p + kq) >> 16) + (j & 3)} offset:{(wo_slot(4 * p + kq) & 0xffff) + (j >> 2) * 4096 + h * 2048}", f"G{n}"), after, before) for h in range(2)]
    pv_bar = gstart[8 + 6]
    def bar_first(e):
        e.ds_all()
        e.need_vm("W0_0")
        e("s_barrier")
    mains[pv_bar].pre = bar_first
    rd_pv_last = [f for f in rd]
    for f in rd:
        f.before = min(f.before, pv_bar - 3)
    for si, (p, kq) in enumerate(stages):
        prevbar = pv_bar if si == 0 else BAR[si - 1]
        for j in range(8):
            g0 = gidx(p, kq, j)[0]
            if j < 3:
                after = prevbar; before = S0[(p, kq)] - 1 if j == 0 else gidx(p, kq, j - 1)[0]
                if si == 0 and j == 0: before = NPV - 1
            elif j < 6:
                after = gidx(p, kq, j - 3)[0]; before = gidx(p, kq, j - 1)[0]
            else:
                after = gidx(p, kq, 2)[0] + 2; before = gidx(p, kq, 4)[0] + 3
            rd += wfrag(p, kq, j, after, before)
        def bar(e, si=si):
            if si == o.c_k3_at and o.c_k3:
                n_ = CODE_NAME[0]
                e("s_getpc_b64 s[60:61]")
                e.label(f"L_pck_{n_}")
                e(f"s_add_u32 s60, s60, reduce_kernel-L_pck_{n_}")
                e("s_addc_u32 s61, s61, 0")
                e(f"v_mbcnt_lo_u32_b32 v178, -1, 0")
                e(f"v_mbcnt_hi_u32_b32 v178, -1, v178")
                e(f"v_lshlrev_b32 v178, 7, v178")
                e(f"v_min_u32 v178, K3_END-reduce_kernel-4, v178")
                e.vm_op(f"global_load_dword v179, v178, s[60:61]", "k3t")
            if o.stamp_list or si in ((0, 3, 7, 15) if o.fuse else (0, 3, 7, 11, 15)): stamp(e, o, f"T{si}")
            e.ds_all()
            if si + 1 < 16:
                pn, kn = stages[si + 1]
                e.need_vm(f"W{pn}_{kn}")
            e("s_barrier")
        mains[BAR[si]].pre = bar
    if o.wo_early: pre = dma_wo(o, 0, 2, -1, 24, 3)
    else: pre = dma_wo(o, 0, 0, -1, 3) + dma_wo(o, 0, 1, -1, 10) + dma_wo(o, 0, 2, -1, 18) + dma_wo(o, 0, 3, -1, 26)
    def st_(si): return stages[si]
    P = o.w_pace
    dm = pre + dma_wo(o, *st_(4), pv_bar, BAR[0], P)
    dm += dma_wo(o, *st_(10), BAR[0], BAR[1], P)
    dm += dma_wo(o, *st_(11), BAR[1], BAR[2], P)
    t = BAR[2]
    for si in (5, 6, 7, 8, 9):
        dm += dma_wo(o, *st_(si), t, BAR[si - 2] if si > 5 else BAR[3], P); t += 4 * P
    dm += dma_wo(o, *st_(12), t, BAR[8], P); t += 4 * P
    dm += dma_wo(o, *st_(13), max(t, BAR[3]), BAR[9], P); t += 4 * P
    dm += dma_wo(o, *st_(14), max(t, BAR[4]), BAR[10], P); t += 4 * P
    dm += dma_wo(o, *st_(15), max(t, BAR[5]), BAR[11], P)
    if o.t3_nodma: dm = pre
    RL = V_E; W = V_E + 6
    l0 = 0
    for qt in range(5): cv.append(F('v', txt(f"v_accvgpr_read_b32 v{RL + qt}, a{A_L + 4 * qt}"), l0 + 5 + 6))
    for qt in range(5): cv.append(F('e', txt(f"v_rcp_f32 v{RL + qt}, v{RL + qt}"), l0 + 5 + 6))
    k = 0
    for jj in range(4):
        ready = gstart[8 + 2 * jj + 1] + 5 + 4
        need = gidx(0, jj >> 1, (jj & 1) * 4)[0]
        if jj == 1 and not o.acc_hi: need = gidx(0, 0, 2)[0]
        for qt in range(5):
            w = W + 8 * (k & 1); k += 1
            dl = need + qt - 2 if need + qt - 2 > ready else need
            for tp in range(2):
                for i_ in range(4):
                    cv.append(F('v', txt(f"v_accvgpr_read_b32 v{w + 4*tp + i_}, a{oacc(2*jj + tp, qt) + i_}"), ready, need - 2))
            for r in range(8):
                cv.append(F('v', txt(f"v_mul_f32 v{w + r}, v{w + r}, v{RL + qt}"), ready, need - 2))
            d = bfr(jj, qt)
            for r in range(4):
                cv.append(F('v', txt(f"v_cvt_pk_bf16_f32 v{d + r}, v{w + 2*r}, v{w + 2*r + 1}"), ready, need - 2, mark=(f"of{jj}_{qt}" if r == 3 else None)))
            xw.append(F('d', lambda e, d=d, jj=jj, qt=qt: e.ds_op(f"ds_write_b128 v{V_XA}, v[{d}:{d+3}] offset:{(jj * 5 + qt) * 1024}", "XW"), ready, BAR[1] - 2, dep=f"of{jj}_{qt}"))
    xbar = BAR[1]
    xw.append(F('v', txt(f"v_add_u32 v{V_XA}, s55, v{V_XA}"), xbar, xbar + 2))
    for jj in range(4):
        for qt in range(5):
            d = bfr(4 + jj, qt)
            xw.append(F('d', lambda e, d=d, jj=jj, qt=qt: e.ds_op(f"ds_read_b128 v[{d}:{d+3}], v{V_XA} offset:{(jj * 5 + qt) * 1024}", f"X{4+jj}_{qt}"), xbar + 1, S0[(0, 2)] - 6 if jj < 2 else BAR[2] - 4))
    gd = []
    for qt in range(5):
        a_, b_ = S0[(0, 2)], S0[(1, 0)] - 2
        gd.append(F('v', txt(f"v_med3_f32 v224, v{RL + qt}, s66, v225"), a_, b_))
        gd.append(F('v', txt(f"v_cmp_neq_f32 s[62:63], v224, v{RL + qt}"), a_, b_))
        gd.append(F('s', txt("s_nop 1"), a_, b_))
        gd.append(F('s', txt(f"s_or_b64 s[{S_BAD}:{S_BAD+1}], s[{S_BAD}:{S_BAD+1}], s[62:63]"), a_, b_))
    W2 = V_E + 6
    k = 0
    for p in range(4):
        start = S0[(p + 1, 0)] + 6 if p < 3 else N
        end = S0[(p + 1, 3)] if p < 2 else 10**9
        if p == 2: end = N - 10
        for u in range(2):
            for qt in range(5):
                w = W2 + 12 * (k & 1); k += 1
                for tp in range(2):
                    for i_ in range(4):
                        st.append(F('v', txt(f"v_accvgpr_read_b32 v{w + 4*tp + i_}, a{a2(p, 2*u + tp, qt) + i_}"), start, end))
                for r in range(4):
                    st.append(F('v', txt(f"v_cvt_pk_bf16_f32 v{w + 8 + r}, v{w + 2*r}, v{w + 2*r + 1}"), start, end))
                off = (p * 10 + u * 5 + qt) * 1024
                st.append(F('s', txt(f"s_mov_b32 s{S_T0}, {off}"), start, end))
                if not o.t3_nostore: st.append(F('l', lambda e, w=w: e.vm_op(f"buffer_store_dwordx4 v[{w+8}:{w+11}], v{V_E + 5}, s[{SRD_P}:{SRD_P+3}], s{S_T0} offen {o.p_flag}", "st"), start, end))
    e(f"s_mov_b64 s[{S_BAD}:{S_BAD+1}], 0")
    e(f"s_mov_b32 s66, {hex(R_LO)}")
    e(f"v_mov_b32 v225, {hex(R_HI)}")
    for k_ in range(3):
        for j in range(4):
            e(f"v_add_u32 v{V_AWS + 4 * k_ + j}, {65536 * k_}, v{V_AW2 + j}")
    e(f"s_lshl_b32 s{S_T0}, s{S_HH}, 1")
    e(f"s_sub_u32 s{S_T0}, 1, s{S_T0}")
    e(f"s_mul_i32 s{S_T0}, s{S_T0}, 40960")
    e(f"s_mov_b32 s55, s{S_T0}")
    for f in cv:
        pass
    zip2(e, mains, [rd, dm, cv, xw, gd, st], flush_nop=True, dense=2 if o.vmax > 1 else None, vmax=o.vmax)

def max_pass(e, o, name):
    M = 120; L16 = V_E + 5; T = 126
    e.label(f"L_maxpass_{name}")
    e("s_waitcnt vmcnt(0) lgkmcnt(0)")
    for qt in range(5): e(f"v_mov_b32 v{M + qt}, 0xff800000")
    e(f"s_mov_b32 s{S_CNT}, 0")
    e(f"s_lshl_b32 s{S_T1}, s{S_RH}, 12")
    e.label(f"L_maxloop_{name}")
    e("s_barrier")
    e(f"s_mov_b32 m0, s{S_KV}")
    e("s_nop 0")
    for t in range(4):
        e(f"buffer_load_dwordx4 v{V_OK + t}, s[{SRD_K}:{SRD_K+3}], s{S_T1} offen offset:{t * 1024} lds")
    e("s_waitcnt vmcnt(0)")
    e("s_barrier")
    for n in range(8):
        e(f"ds_read_b128 a[{fbuf(n)}:{fbuf(n)+3}], v{V_AK + (n & 3)} offset:{(n >> 2) * 4096}")
    e("s_waitcnt lgkmcnt(0)")
    for kt in range(2):
        for j in range(4):
            for qt in range(5):
                d = sreg(0, kt, qt)
                e(f"{MFMA} {vr(d, 4)}, {ar(fbuf(kt * 4 + j), 4)}, {vr(qf(j, qt), 4)}, {'0' if j == 0 else vr(d, 4)}")
    e("s_nop 7")
    e("s_nop 3")
    for qt in range(5):
        for kt in range(2):
            d = sreg(0, kt, qt)
            e(f"v_max3_f32 v{M + qt}, v{d}, v{d+1}, v{M + qt}")
            e(f"v_max3_f32 v{M + qt}, v{d+2}, v{d+3}, v{M + qt}")
    e(f"s_add_u32 s{S_T1}, s{S_T1}, 8192")
    e(f"s_add_u32 s{S_CNT}, s{S_CNT}, 1")
    e(f"s_cmp_lt_u32 s{S_CNT}, 16")
    e(f"s_cbranch_scc1 L_maxloop_{name}")
    e("s_barrier")
    e(f"s_lshl_b32 s{S_T1}, s{S_RH}, 12")
    e(f"s_mov_b32 m0, s{S_KV}")
    e("s_nop 0")
    for t in range(4):
        e(f"buffer_load_dwordx4 v{V_OK + t}, s[{SRD_K}:{SRD_K+3}], s{S_T1} offen offset:{t * 1024} lds")
    e(f"v_lshrrev_b32 v{T}, 2, v{L16}")
    e(f"v_xor_b32 v{T+1}, 64, v{T}")
    e(f"v_xor_b32 v{T+2}, 0x80, v{T}")
    for x in (1, 2):
        for qt in range(5): e(f"ds_bpermute_b32 v{T + 3 + qt}, v{T + x}, v{M + qt}")
        e("s_waitcnt lgkmcnt(0)")
        for qt in range(5): e(f"v_max_f32 v{M + qt}, v{M + qt}, v{T + 3 + qt}")
    for qt in range(5):
        for r in range(4): e(f"v_sub_f32 v{V_BIAS + 4 * qt + r}, 0, v{M + qt}")
    e("s_waitcnt vmcnt(0)")
    e("s_barrier")
    for n in range(3): run(e, kfrag(0, 0, n, n))
    e(f"s_branch L_maxdone_{name}")

def vote(e, o, name):
    T = V_E
    e(f"s_cmp_lg_u64 s[{S_BAD}:{S_BAD+1}], 0")
    e(f"s_cselect_b32 s3, 1, 0")
    e(f"v_mov_b32 v{T}, s3")
    e(f"s_lshl_b32 s7, s{S_W}, 2")
    e(f"v_mov_b32 v{T+1}, s7")
    e(f"ds_write_b32 v{T+1}, v{T}")
    if o.fuse:
        e("s_load_dwordx4 s[56:59], s[0:1], 80")
        e("s_waitcnt vmcnt(0) lgkmcnt(0)")
    else:
        e("s_waitcnt lgkmcnt(0)")
    e("s_barrier")
    e(f"v_mov_b32 v{T+1}, 0")
    e(f"ds_read_b128 v[{T+2}:{T+5}], v{T+1}")
    e("s_waitcnt lgkmcnt(0)")
    e(f"v_or_b32 v{T+2}, v{T+2}, v{T+3}")
    e(f"v_or3_b32 v{T+2}, v{T+2}, v{T+4}, v{T+5}")
    e("s_nop 0")
    e(f"v_readfirstlane_b32 s3, v{T+2}")
    e(f"s_cmp_eq_u32 s{S_MODE}, 0")
    e(f"s_cselect_b32 s3, s3, 0")
    e(f"s_cmp_eq_u32 s3, 0")
    e(f"s_cbranch_scc1 L_fine_{name}")
    e(f"s_mov_b32 s{S_MODE}, 1")
    e("s_waitcnt vmcnt(0)")
    e("s_barrier")
    e("v_mbcnt_lo_u32_b32 v0, -1, 0")
    e("v_mbcnt_hi_u32_b32 v0, -1, v0")
    e(f"s_lshl_b32 s3, s{S_W}, 6")
    e("v_add_u32 v0, s3, v0")
    e(f"s_branch L_restart_{name}")
    e.label(f"L_fine_{name}")

def fused_reduce(e, o, name):
    G, R, J = 60, 61, 62
    e(f"""
    s_lshl_b32 s{G}, s{S_BR}, 3
    s_add_u32 s{G}, s{G}, s{S_B}             ; group
    s_lshr_b32 s{R}, s{S_H}, 1
    v_mbcnt_lo_u32_b32 v248, -1, 0
    v_mbcnt_hi_u32_b32 v248, -1, v248        ; lane
    s_cmp_eq_u32 s{S_W}, {99 if o.nosync else 0}
    s_cbranch_scc0 L_arrived_{name}
    s_lshl_b32 s3, s{G}, {12 if o.cnt_ws else 4}
    {f"s_add_u32 s3, s3, {220*1024*1024}" if o.cnt_ws else ""}
    {"s_mov_b32 s58, s68" if o.cnt_ws else ""}
    {"s_mov_b32 s59, s69" if o.cnt_ws else ""}
    v_mov_b32 v249, s3
    v_mov_b32 v250, 1
    s_mov_b64 s[64:65], exec
    s_mov_b64 exec, 1
    global_atomic_add v249, v250, s[58:59]
    s_mov_b32 s7, 0
L_poll_{name}:
    global_load_dword v251, v249, s[58:59] sc1
    s_waitcnt vmcnt(0)
    v_readfirstlane_b32 s3, v251
    s_add_u32 s7, s7, 1
    s_cmp_ge_u32 s3, 16
    s_cbranch_scc1 L_polled_{name}
    s_sleep {o.spin_sleep}
    s_cmp_lt_u32 s7, 0x40000
    s_cbranch_scc1 L_poll_{name}
L_polled_{name}:
    s_mov_b64 exec, s[64:65]
L_arrived_{name}:
    s_barrier
    """)
    stamp(e, o, "polled")
    e(f"""
    v_lshlrev_b32 v249, 4, v248              ; lane*16
    s_mul_i32 s3, s{G}, {16 * 163840}
    s_add_u32 s3, s3, {POFF}
    s_add_u32 s8, s68, s3
    s_addc_u32 s9, s69, 0
    s_mov_b32 s10, {16 * 163840}
    s_mov_b32 s11, 0x20000
    s_mul_i32 s{J}, s{R}, 10
    s_add_u32 s{J}, s{J}, s{S_W}
    s_mov_b32 s12, s56
    s_mov_b32 s13, s57
    s_mov_b32 s14, 2621440
    s_mov_b32 s15, 0x20000
    v_and_b32 v250, 15, v248
    v_lshrrev_b32 v251, 4, v248
    v_lshlrev_b32 v250, 11, v250
    v_lshl_add_u32 v250, v251, 3, v250       ; c*2048 + g*8
    """)
    def load1(k, hp):
        r = 64 * k + 4 * hp
        if hp == 0:
            e(f"s_add_u32 s3, s{J}, {4 * k}")
            e(f"s_lshl_b32 s3, s3, 10")
        e.vm_op(f"buffer_load_dwordx4 v[{r}:{r+3}], v249, s[8:11], s3 offen {o.r_flag}", f"R{k}_{hp}")
        if hp < 15: e("s_add_u32 s3, s3, 163840")
    def outaddr(k, dst):
        e(f"""
    s_add_u32 s16, s{J}, {4 * k}
    s_mul_hi_u32 s17, s16, 0x1999999a
    s_mul_i32 s18, s17, 10
    s_sub_u32 s18, s16, s18
    s_cmp_ge_u32 s18, 5
    s_cselect_b32 s19, 1, 0                  ; u
    s_mul_i32 s20, s19, 5
    s_sub_u32 s18, s18, s20                  ; qt
    s_and_b32 s20, s17, 3                    ; p
    s_bfe_u32 s21, s17, 0x10002              ; hh
    s_lshr_b32 s22, s17, 3                   ; rh
    s_mul_i32 s23, s{S_B}, 160
    s_mul_i32 s22, s22, 80
    s_add_u32 s23, s23, s22
    s_lshl_b32 s18, s18, 4
    s_add_u32 s23, s23, s18
    s_lshl_b32 s23, s23, 11
    s_lshl_b32 s22, s{S_BR}, 10
    s_add_u32 s23, s23, s22
    s_lshl_b32 s21, s21, 9
    s_add_u32 s23, s23, s21
    s_lshl_b32 s20, s20, 7
    s_add_u32 s23, s23, s20
    s_lshl_b32 s19, s19, 6
    s_add_u32 s{dst}, s23, s19
    """)
    def run_pieces(np_):
        A = 224; T = 232
        order = [(k, hp) for k in range(np_) for hp in range(16)]
        D = o.r_depth
        e.vm = []; e.vm_waited = set()
        for x in order[:D]: load1(*x)
        for k in range(np_): outaddr(k, 24 + k)
        for n, (k, hp) in enumerate(order):
            e.need_vm(f"R{k}_{hp}")
            if n + D < len(order): load1(*order[n + D])
            for d in range(4):
                r = 64 * k + 4 * hp + d
                if hp == 0:
                    e(f"v_lshlrev_b32 v{A + 2*d}, 16, v{r}")
                    e(f"v_and_b32 v{A + 2*d + 1}, 0xffff0000, v{r}")
                else:
                    e(f"v_lshlrev_b32 v{T + 2*(d & 1)}, 16, v{r}")
                    e(f"v_and_b32 v{T + 2*(d & 1) + 1}, 0xffff0000, v{r}")
                    e(f"v_add_f32 v{A + 2*d}, v{A + 2*d}, v{T + 2*(d & 1)}")
                    e(f"v_add_f32 v{A + 2*d + 1}, v{A + 2*d + 1}, v{T + 2*(d & 1) + 1}")
            if hp == 15:
                o0 = 236 + 4 * (k & 1)
                for d in range(4): e(f"v_cvt_pk_bf16_f32 v{o0 + d}, v{A + 2*d}, v{A + 2*d + 1}")
                e.vm_op(f"buffer_store_dwordx2 v[{o0}:{o0+1}], v250, s[12:15], s{24 + k} offen", f"S{k}")
                e.vm_op(f"buffer_store_dwordx2 v[{o0+2}:{o0+3}], v250, s[12:15], s{24 + k} offen offset:32", f"S{k}")
    if o.r_loop:
        A = 224; T = 232
        e.label(f"L_rloop_{name}")
        e(f"s_lshl_b32 s3, s{J}, 10")
        for hp in range(16):
            e(f"buffer_load_dwordx4 v[{4*hp}:{4*hp+3}], v249, s[8:11], s3 offen {o.r_flag}")
            if hp < 15: e("s_add_u32 s3, s3, 163840")
        outaddr(0, 24)
        for hp in range(16):
            e(f"s_waitcnt vmcnt({15 - hp})")
            for d in range(4):
                r = 4 * hp + d
                if hp == 0:
                    e(f"v_lshlrev_b32 v{A + 2*d}, 16, v{r}")
                    e(f"v_and_b32 v{A + 2*d + 1}, 0xffff0000, v{r}")
                else:
                    e(f"v_lshlrev_b32 v{T + 2*(d & 1)}, 16, v{r}")
                    e(f"v_and_b32 v{T + 2*(d & 1) + 1}, 0xffff0000, v{r}")
                    e(f"v_add_f32 v{A + 2*d}, v{A + 2*d}, v{T + 2*(d & 1)}")
                    e(f"v_add_f32 v{A + 2*d + 1}, v{A + 2*d + 1}, v{T + 2*(d & 1) + 1}")
        for d in range(4): e(f"v_cvt_pk_bf16_f32 v{236 + d}, v{A + 2*d}, v{A + 2*d + 1}")
        e(f"buffer_store_dwordx2 v[236:237], v250, s[12:15], s24 offen")
        e(f"buffer_store_dwordx2 v[238:239], v250, s[12:15], s24 offen offset:32")
        e(f"s_add_u32 s{J}, s{J}, 4")
        e(f"s_mul_i32 s3, s{R}, 10")
        e(f"s_add_u32 s3, s3, 10")
        e(f"s_cmp_lt_u32 s{J}, s3")
        e(f"s_cbranch_scc1 L_rloop_{name}")
        return
    e(f"s_cmp_lt_u32 s{S_W}, 2")
    e(f"s_cbranch_scc0 L_two_{name}")
    run_pieces(3)
    e(f"s_branch L_reduced_{name}")
    e.label(f"L_two_{name}")
    run_pieces(2)
    e.label(f"L_reduced_{name}")

def gen_k1(name, o):
    NSTAMP[0] = 0
    CODE_NAME[0] = name
    e = Em()
    e.lines.append(kernel_head(name))
    prologue(e, o, name)
    qphase(e, o)
    stamp(e, o, "qdone")
    e(f"v_accvgpr_write_b32 a{A_SAVE}, v{V_OV0}")
    e(f"v_accvgpr_write_b32 a{A_SAVE+1}, v{V_OV0+1}")
    e(f"v_accvgpr_write_b32 a{A_SAVE+2}, v{V_T+1}")
    for n in range(3): run(e, kfrag(0, 0, n, n))
    qconvert(e)
    stamp(e, o, "qconv")
    e(f"""
    v_accvgpr_read_b32 v{V_OV}, a{A_SAVE}
    v_accvgpr_read_b32 v{V_OV+1}, a{A_SAVE+1}
    v_accvgpr_read_b32 v{V_E+5}, a{A_SAVE+2}
    s_mov_b32 s{S_KDST}, s{S_KV}             ; K(4) -> slot 0
    s_add_u32 s{S_VDST}, s{S_KV}, {32768 if o.apf else 0}          ; V(4) / V(2)
    s_lshl_b32 s7, s{S_RH}, 12
    s_add_u32 s{S_KOFF}, s7, {4 * 8192}
    s_add_u32 s{S_VOFF}, s7, {(4 if o.apf else 2) * 8192}
    v_lshlrev_b32 v{V_E+5}, 4, v{V_E+5}
    """)
    if o.t3: t3_setup(e, o)
    for r in range(20): e(f"v_mov_b32 v{V_BIAS + r}, 0")
    e(f"s_cmp_eq_u32 s{S_MODE}, 0")
    e(f"s_cbranch_scc0 L_maxpass_{name}")
    e.label(f"L_maxdone_{name}")
    if o.pf_late:
        e("s_waitcnt vmcnt(0)"); e("s_barrier"); e.vm = []
        for n in range(3): run(e, kfrag(0, 0, n, n))
    attn_iter(e, o, -1, True, False, False, 1, '', True)
    stamp(e, o, "Titm1")
    if o.apf:
        attn_iter(e, o, 0, True, True, False, 1, 'K', True)
        attn_iter(e, o, 1, True, True, True, 1, 'K', True, first_pv=True)
        attn_iter(e, o, 2, True, True, True, 1, 'KV', True)
    else:
        attn_iter(e, o, 0, True, True, False, 1, 'KV', True)
        stamp(e, o, "Tit0")
        attn_iter(e, o, 1, True, True, True, 1, 'KV', True, first_pv=True)
        stamp(e, o, "Tit1")
        attn_iter(e, o, 2, True, True, True, 1, 'KV', True)
    stamp(e, o, "iter0_done")
    e(f"s_mov_b32 s{S_CNT}, 0")
    ds0 = list(e.ds)
    e.label(f"L_loop_{name}")
    if o.t3 and o.w_touch >= 0:
        e(f"s_cmp_eq_u32 s{S_CNT}, {o.w_touch}")
        e(f"s_cbranch_scc0 L_nowt_{name}")
        e(f"buffer_load_dword v{V_E + 1}, v{V_E}, s[56:59], 0 offen")
        if o.c_touch >= 2:
            vq = list(e.vm); code_touch(e, V_E + 2, V_E + 3, 1); e.vm = vq
        e.label(f"L_nowt_{name}")
    n0 = len(e.lines)
    redirect = [F('s', txt(f"s_cmp_eq_u32 s{S_CNT}, 5")), F('s', txt(f"s_sub_u32 s{S_T1}, s{S_KV}, 32768")),
                F('s', txt(f"s_cmp_eq_u32 s{S_CNT}, 5")), F('s', txt(f"s_cselect_b32 s{S_VDST}, s{S_T1}, s{S_VDST}"))]
    attn_iter(e, o, 3, True, True, True, 1, 'KV', True)
    if o.t3 and o.wo_early: run(e, redirect[1:])
    attn_iter(e, o, 4, True, True, True, 1, 'KV', True)
    import copy
    e2 = copy.deepcopy(e); n1 = len(e2.lines)
    attn_iter(e2, o, 5, True, True, True, 1, 'KV', True)
    if o.t3 and o.wo_early: run(e2, redirect[1:])
    attn_iter(e2, o, 6, True, True, True, 1, 'KV', True)
    assert e.lines[n0:n1] == e2.lines[n1:], "loop body is not in steady state"
    assert e.ds == ds0, (e.ds, ds0)
    e(f"s_add_u32 s{S_CNT}, s{S_CNT}, 1")
    e(f"s_cmp_lt_u32 s{S_CNT}, 6")
    e(f"s_cbranch_scc1 L_loop_{name}")
    e.ds_all()
    stamp(e, o, "loop_done")
    xdm = None
    if o.t3 and o.wo_early:
        e.vm = ['OLD']
        xdm = dma_wo(o, 0, 0, 0, 10**9, 3) + dma_wo(o, 0, 1, 12, 10**9, 3) + dma_wo(o, 0, 3, 24, 10**9, 3)
    attn_iter(e, o, 15, False, True, True, 0, '', False, extra_dm=xdm)
    stamp(e, o, "Tit15")
    if o.t3:
        t3_tail(e, o)
    else:
        attn_iter(e, o, 16, False, False, True, None, '', False, epi=epilogue_fill(o))
    stamp(e, o, "stores_issued")
    vote(e, o, name)
    if o.fuse:
        stamp(e, o, "Tsig")
        fused_reduce(e, o, name)
    if o.stamps: e("s_waitcnt vmcnt(0)")
    stamp(e, o, "end")
    if o.stamps:
        e(f"""
    s_memrealtime s[96:97]
    s_waitcnt lgkmcnt(0)
    s_lshl_b32 s3, s2, 2
    s_add_u32 s3, s3, s{S_W}
    s_lshl_b32 s3, s3, 7
    s_add_u32 s3, s3, {200*1024*1024}
    v_mov_b32 v30, s3
    s_mov_b64 exec, 1
    """)
        for k in range(14):
            e(f"v_mov_b32 v0, s{70 + 2*k}")
            e(f"v_mov_b32 v1, s{71 + 2*k}")
            e(f"global_store_dwordx2 v30, v[0:1], s[68:69] offset:{8*k}")
            e("s_nop 1")
        e("s_waitcnt vmcnt(0)")
        if o.dbg:
            e(f"""
    s_or_b32 s3, s2, s{S_W}
    s_cmp_eq_u32 s3, 0
    s_cbranch_scc0 L_end_{name}
    s_load_dwordx2 s[98:99], s[0:1], 88
    s_waitcnt lgkmcnt(0)
    v_mov_b32 v30, 0
    """)
            for k in range(1, 11):
                e(f"s_sub_u32 s3, s{70 + 2*k}, s70")
                e(f"v_mov_b32 v0, s3")
                e(f"global_store_dword v30, v0, s[98:99] offset:{4*k}")
                e("s_nop 1")
            e("s_sub_u32 s3, s96, s94")
            e("v_mov_b32 v0, s3")
            e("global_store_dword v30, v0, s[98:99] offset:0")
            e("s_waitcnt vmcnt(0)")
    e.label(f"L_end_{name}")
    e("s_endpgm")
    dsq, vmq = list(e.ds), list(e.vm)
    max_pass(e, o, name)
    e.label("CODE_END")
    return e.text() + kernel_desc(name, 512, 256)
```

```python
from common import *
from sched import *
POFF = 32 * 1024 * 1024
class Opt3:
    c_early = False
    w4 = False
    r_loop = False
    p_flag = ""
    stamps = False
    dbg = False
def gen_k3w4(name, o):
    import k1
    e = Em()
    e.lines.append(kernel_head(name))
    e(f"""
    s_cmp_ge_u32 s2, 256
    s_cbranch_scc1 L_end_{name}
    s_load_dwordx4 s[56:59], s[0:1], 80
    s_load_dwordx2 s[68:69], s[0:1], 96
    v_lshrrev_b32 v1, 6, v0
    s_nop 0
    v_readfirstlane_b32 s{k1.S_W}, v1
    s_lshr_b32 s3, s2, 4
    s_lshr_b32 s{k1.S_BR}, s3, 3
    s_and_b32 s{k1.S_B}, s3, 7
    s_and_b32 s{k1.S_H}, s2, 15
    s_lshl_b32 s{k1.S_H}, s{k1.S_H}, 1
    """)
    if o.stamps: e("s_memrealtime s[40:41]")
    e("s_waitcnt lgkmcnt(0)")
    oo = k1.Opt(); oo.nosync = True; oo.r_loop = o.r_loop
    k1.fused_reduce(e, oo, name)
    if o.stamps:
        e(f"""
    s_waitcnt vmcnt(0)
    s_memrealtime s[42:43]
    s_waitcnt lgkmcnt(0)
    s_cmp_eq_u32 s{k1.S_W}, 0
    s_cbranch_scc0 L_end_{name}
    v_mov_b32 v0, s40
    v_mov_b32 v1, s41
    v_mov_b32 v2, s42
    v_mov_b32 v3, s43
    s_lshl_b32 s3, s2, 7
    s_add_u32 s3, s3, {201*1024*1024}
    v_mov_b32 v6, s3
    s_mov_b64 exec, 1
    global_store_dwordx4 v6, v[0:3], s[68:69]
    s_waitcnt vmcnt(0)
    """)
    e.label(f"L_end_{name}")
    e("s_endpgm")
    return e.text() + kernel_desc(name, 256, 256, 102)

def gen_k3(name, o):
    if o.w4: return gen_k3w4(name, o)
    e = Em()
    e.lines.append(kernel_head(name))
    e(f"""
    s_cmp_ge_u32 s2, 256
    s_cbranch_scc1 L_end_{name}
    s_load_dwordx2 s[4:5], s[0:1], 80        ; out
    s_load_dwordx2 s[6:7], s[0:1], 96        ; ws
    """)
    if o.c_early:
        e(f"""
    s_getpc_b64 s[34:35]
L_pc_{name}:
    s_sub_u32 s34, s34, L_pc_{name}-{name}
    s_subb_u32 s35, s35, 0
    v_and_b32 v88, 63, v0
    v_lshlrev_b32 v88, 7, v88
    v_min_u32 v88, K3_END-{name}-4, v88
    global_load_dword v89, v88, s[34:35]
    """)
    e(f"""
    v_lshrrev_b32 v1, 6, v0
    v_and_b32 v2, 63, v0
    v_readfirstlane_b32 s8, v1               ; wave
    s_lshr_b32 s9, s2, 4                     ; group
    s_and_b32 s10, s2, 15
    s_mul_i32 s10, s10, 10
    s_add_u32 s10, s10, s8                   ; piece j
    v_lshlrev_b32 v3, 4, v2                  ; lane*16
    """)
    if o.stamps: e("s_memrealtime s[40:41]")
    e(f"""
    s_waitcnt lgkmcnt(0)
    s_mul_i32 s11, s9, {16 * 163840}
    s_lshl_b32 s12, s10, 10
    s_add_u32 s11, s11, {POFF}
    s_add_u32 s16, s6, s11
    s_addc_u32 s17, s7, 0
    s_mov_b32 s18, {16 * 163840}
    s_mov_b32 s19, 0x20000
    """)
    for hp in range(16):
        e(f"buffer_load_dwordx4 v[{8 + 4*hp}:{11 + 4*hp}], v3, s[16:19], s12 offen {o.p_flag}")
        if hp < 15: e(f"s_add_u32 s12, s12, 163840")
    e(f"""
    s_mul_hi_u32 s13, s10, 0x1999999a        ; j / 10
    s_mul_i32 s14, s13, 10
    s_sub_u32 s14, s10, s14                  ; u*5 + qt
    s_cmp_ge_u32 s14, 5
    s_cselect_b32 s15, 1, 0                  ; u
    s_mul_i32 s20, s15, 5
    s_sub_u32 s14, s14, s20                  ; qt
    s_and_b32 s20, s13, 3                    ; p
    s_bfe_u32 s21, s13, 0x10002              ; hh
    s_lshr_b32 s22, s13, 3                   ; rh
    s_and_b32 s23, s9, 7                     ; b
    s_lshr_b32 s24, s9, 3                    ; branch
    s_mul_i32 s23, s23, 160
    s_mul_i32 s22, s22, 80
    s_add_u32 s23, s23, s22
    s_lshl_b32 s14, s14, 4
    s_add_u32 s23, s23, s14
    s_lshl_b32 s23, s23, 11
    s_lshl_b32 s24, s24, 10
    s_add_u32 s23, s23, s24
    s_lshl_b32 s21, s21, 9
    s_add_u32 s23, s23, s21
    s_lshl_b32 s20, s20, 7
    s_add_u32 s23, s23, s20
    s_lshl_b32 s15, s15, 6
    s_add_u32 s23, s23, s15
    v_and_b32 v4, 15, v2
    v_lshrrev_b32 v5, 4, v2
    v_lshlrev_b32 v4, 11, v4
    v_lshl_add_u32 v4, v5, 3, v4
    s_mov_b32 s28, s4
    s_mov_b32 s29, s5
    s_mov_b32 s30, 2621440
    s_mov_b32 s31, 0x20000
    """)
    A = 72; T = 80
    for hp in range(16):
        e(f"s_waitcnt vmcnt({15 - hp})")
        for d in range(4):
            r = 8 + 4 * hp + d
            if hp == 0:
                e(f"v_lshlrev_b32 v{A + 2*d}, 16, v{r}")
                e(f"v_and_b32 v{A + 2*d + 1}, 0xffff0000, v{r}")
            else:
                e(f"v_lshlrev_b32 v{T}, 16, v{r}")
                e(f"v_and_b32 v{T+1}, 0xffff0000, v{r}")
                e(f"v_add_f32 v{A + 2*d}, v{A + 2*d}, v{T}")
                e(f"v_add_f32 v{A + 2*d + 1}, v{A + 2*d + 1}, v{T+1}")
    for d in range(4):
        e(f"v_cvt_pk_bf16_f32 v{84 + d}, v{A + 2*d}, v{A + 2*d + 1}")
    e(f"buffer_store_dwordx2 v[84:85], v4, s[28:31], s23 offen")
    e(f"buffer_store_dwordx2 v[86:87], v4, s[28:31], s23 offen offset:32")
    if o.stamps:
        e(f"""
    s_waitcnt vmcnt(0)
    s_memrealtime s[42:43]
    s_waitcnt lgkmcnt(0)
    s_cmp_eq_u32 s8, 0
    s_cbranch_scc0 L_end_{name}
    v_mov_b32 v0, s40
    v_mov_b32 v1, s41
    v_mov_b32 v2, s42
    v_mov_b32 v3, s43
    s_lshl_b32 s3, s2, 7
    s_add_u32 s3, s3, {201*1024*1024}
    v_mov_b32 v6, s3
    s_mov_b64 exec, 1
    global_store_dwordx4 v6, v[0:3], s[6:7]
    s_waitcnt vmcnt(0)
    """)
        if o.dbg:
            e(f"""
    s_cmp_eq_u32 s2, 0
    s_cbranch_scc0 L_end_{name}
    s_load_dwordx2 s[60:61], s[0:1], 88
    s_mov_b64 exec, 0xffff
    v_mbcnt_lo_u32_b32 v8, -1, 0
    v_lshlrev_b32 v9, 3, v8
    v_add_u32 v9, {200*1024*1024}, v9
    global_load_dword v10, v9, s[6:7] sc1
    v_lshlrev_b32 v8, 2, v8
    s_waitcnt vmcnt(0) lgkmcnt(0)
    v_mov_b32 v11, s40
    v_mov_b32 v12, s42
    v_cmp_eq_u32 vcc, 56, v8
    s_nop 1
    v_cndmask_b32 v10, v10, v11, vcc
    v_cmp_eq_u32 vcc, 60, v8
    s_nop 1
    v_cndmask_b32 v10, v10, v12, vcc
    global_store_dword v8, v10, s[60:61]
    s_waitcnt vmcnt(0)
    """)
    e.label(f"L_end_{name}")
    e("s_endpgm")
    e.label("K3_END")
    return e.text() + kernel_desc(name, 96, 96, 64)
```

```python
from common import *
from sched import *

KRING = 0
VRING = 98304
WQ0 = 32768; WQ_HEAD = 8224; WQ_SLOT = 2 * WQ_HEAD
X0 = 82176; X_SLOT = 20480
LDS_BYTES = 163840
VTOG = 0x38000
S_W, S_HH, S_RH = 4, 5, 6
SRD_X, SRD_WQ, SRD_K, SRD_V, SRD_O = 8, 12, 16, 20, 24
S_T0, S_T1 = 32, 33
S_WQL, S_XL, S_XG, S_WQG = 35, 36, 37, 38
S_KDST, S_VDST, S_KOFF, S_VOFF, S_CNT = 40, 41, 42, 43, 44
S_IDX, S_HG, S_B, S_BR, S_H = 45, 46, 47, 48, 49
S_SC = 50
S_KV = 39; S_WQK = 51; S_XK = 34; S_PT = 7
V_Q = 0
V_XB = [0, 20]
V_AW = 40
V_AX = 44
V_OWQ = 46
V_OX = 50
V_T = 56
V_ACC = 80
V_S = [80, 120]
V_P = [160, 180]
V_OV = 200
V_E = 202
V_OV0 = 70
V_AK = 240; V_AV = 244; V_OK = 252
A_O = 0; A_L = 160; A_ONE = 180; A_F = 184
A_SAVE = 216
SRD_WO, SRD_P = 28, 24
S_WA, S_WB, S_WL = 52, 53, 54
POFF = 32 * 1024 * 1024
WRING = 98304
V_OW = 232
V_AW2 = 236
V_XA = 231
A_ACC2 = [0, 80]
V_BIAS = 208
S_MODE = 92
S_BAD = 64
R_LO, R_HI = 0x27800000, 0x4f800000

def acc(dt, qt): return V_ACC + (dt * 5 + qt) * 4
def qf(j, qt): return V_Q + (j * 5 + qt) * 4
def sreg(par, kt, qt): return V_S[par] + (kt * 5 + qt) * 4
def preg(par, qt): return V_P[par] + qt * 4
def oacc(dt, qt): return A_O + (dt * 5 + qt) * 4
def fbuf(n): return A_F + 4 * (n % 8)

class Opt:
    kv_flag = "nt"
    q_flag = ""
    o_flag = ""
    stamps = False
    pre_all = True
    pf_start = 0
    pf_per = 3
    pf_late = False
    pf_steps = ""
    q_nodma = False
    q_nowait = False
    q_nobar = False
    q_nods = False
    q_nowq = False
    q_nox = False
    rotg = 8
    rot = True
    pace = 4
    apf = True
    stamp_list = ""
    stamp_set = "q"
    fuse = False
    spin_sleep = 1
    nosync = False
    r_depth = 12
    r_loop = False
    r_flag = "sc1"
    cnt_ws = False
    t3 = True
    p_flag = ""
    w_flag = ""
    c_k3_at = 3
    c_k3 = 0
    c_early = 0
    c_touch = 0
    acc_hi = True
    vmax = 3
    wo_early = True
    skew = 0
    tlb = 0
    q_ahead = False
    q_lfirst = False
    q_urg = 3
    q_lgap = 0
    t_lgap = 0
    w_pace = 2
    kv_pace = 0
    t3_nostore = False
    t3_nodma = False
    w_touch = -1
    dbg = False

NSTAMP = [0]
NSK = [0]
def stamp(e, o, tag):
    if not o.stamps: return
    if o.stamp_list:
        if tag not in o.stamp_list.split(","): return
        k = NSTAMP[0]; NSTAMP[0] += 1
        assert k < 11
        e.comment("stamp " + tag)
        e(f"s_memtime s[{70 + 2*k}:{71 + 2*k}]")
        return
    early = tag in ("issued", "bar0", "B3", "B9", "qconv")
    late = tag.startswith("T")
    if (o.stamp_set == "tail" and early) or (o.stamp_set != "tail" and late): return
    if o.fuse and o.stamp_set != "tail" and tag == "stores_issued": pass
    k = NSTAMP[0]; NSTAMP[0] += 1
    assert k < 12
    e.comment("stamp " + tag)
    e(f"s_memtime s[{70 + 2*k}:{71 + 2*k}]")

def prologue(e, o, name):
    e(f"""
    s_cmp_ge_u32 s2, 256
    s_cbranch_scc1 L_end_{name}
    s_mov_b32 s{S_MODE}, 0
    """)
    if o.c_early: code_touch_early(e, o, name)
    e(f"""
L_restart_{name}:
    s_load_dwordx8 s[52:59], s[0:1], 0       ; A_x A_k A_v A_wq
    s_load_dwordx8 s[60:67], s[0:1], 40      ; B_x B_k B_v B_wq
    s_load_dwordx2 s[68:69], s[0:1], 96      ; ws
    s_load_dwordx2 s[98:99], s[0:1], 32      ; A_wo
    s_load_dwordx2 s[100:101], s[0:1], 72    ; B_wo
    v_lshrrev_b32 v{V_T}, 6, v0
    v_and_b32 v{V_T+1}, 63, v0               ; lane
    v_readfirstlane_b32 s{S_W}, v{V_T}
    s_and_b32 s3, s2, 7
    s_lshr_b32 s{S_IDX}, s2, 3
    s_lshr_b32 s{S_BR}, s3, 2
    s_and_b32 s{S_HG}, s3, 3
    s_lshr_b32 s{S_B}, s{S_IDX}, 2
    s_and_b32 s7, s{S_IDX}, 3
    s_lshr_b32 s{S_HH}, s{S_W}, 1
    s_and_b32 s{S_RH}, s{S_W}, 1
    s_lshl_b32 s{S_H}, s{S_HG}, 3
    s_lshl_b32 s7, s7, 1
    s_add_u32 s{S_H}, s{S_H}, s7
    s_add_u32 s{S_H}, s{S_H}, s{S_HH}
    """)
    if o.stamps:
        e("s_memrealtime s[94:95]")
    stamp(e, o, "start")
    L = V_T + 1
    c, g, rp, cp, t0, t1 = V_T + 2, V_T + 3, V_T + 4, V_T + 5, V_T + 6, V_T + 7
    e(f"""
    v_and_b32 v{c}, 15, v{L}
    v_lshrrev_b32 v{g}, 4, v{L}
    v_bfe_u32 v{rp}, v{L}, 2, 2
    v_and_b32 v{cp}, 3, v{L}
    """)
    e(f"""
    v_lshlrev_b32 v{t0}, 2, v{g}
    v_xor_b32 v{t0}, v{t0}, v{c}
    v_lshlrev_b32 v{t0}, 4, v{t0}
    v_lshl_add_u32 v{V_OWQ}, v{g}, 13, v{t0}
    """)
    for u in range(1, 4):
        e(f"v_add_u32 v{V_OWQ+u}, {u * 32768 - wq_imm(u)}, v{V_OWQ}")
    e(f"""
    v_and_b32 v{t0}, 7, v{L}
    v_xor_b32 v{t0}, v{t0}, v{g}
    v_lshlrev_b32 v{t0}, 4, v{t0}
    v_lshrrev_b32 v{t1}, 3, v{L}
    v_lshl_add_u32 v{t0}, v{t1}, 10, v{t0}
    s_and_b32 s3, s{S_W}, 1
    s_lshl_b32 s3, s3, 6
    v_xor_b32 v{t0}, s3, v{t0}
    v_xor_b32 v{t1}, 64, v{t0}
    """)
    for u in range(5):
        src = t0 if u % 2 == 0 else t1
        e(f"v_add_u32 v{V_OX+u}, {u * 8192 - (u & 3) * 1024}, v{src}")
    e(f"""
    v_xor_b32 v{t0}, v{c}, v{g}
    v_lshlrev_b32 v{t0}, 4, v{t0}
    v_lshl_add_u32 v{V_OK}, v{g}, 8, v{t0}
    v_xor_b32 v{V_OK+1}, 64, v{V_OK}
    v_xor_b32 v{V_OK+2}, 0x80, v{V_OK}
    v_xor_b32 v{V_OK+3}, 0xc0, v{V_OK}
    """)
    e(f"""
    v_lshlrev_b32 v{t0}, 1, v{g}
    v_xor_b32 v{t0}, v{t0}, v{c}
    v_lshlrev_b32 v{t0}, 4, v{t0}
    v_lshl_add_u32 v{V_OV0}, v{g}, 8, v{t0}
    v_xor_b32 v{V_OV0+1}, 0x80, v{V_OV0}
    """)
    e(f"""
    s_mul_i32 s3, s{S_HH}, {WQ_HEAD}
    s_add_u32 s3, s3, {WQ0}
    v_mul_u32_u24 v{t0}, 2056, v{g}
    v_lshl_add_u32 v{t0}, v{rp}, 8, v{t0}
    v_lshl_add_u32 v{t0}, v{cp}, 4, v{t0}
    v_add_u32 v{t0}, s3, v{t0}
    s_mul_i32 s7, s{S_RH}, {4 * 1024 + 16}
    s_add_u32 s{S_WQL}, s3, s7
    s_lshl_b32 s{S_WQG}, s{S_RH}, 17
    """)
    for j in range(4):
        e(f"""
    v_xor_b32 v{t1}, {j}, v{rp}
    v_lshl_add_u32 v{V_AW+j}, v{t1}, 6, v{t0}""")
    e(f"""
    s_mul_i32 s3, s{S_RH}, {80*128}
    s_add_u32 s3, s3, {X0}
    v_lshrrev_b32 v{t0}, 1, v{c}
    v_xor_b32 v{t0}, v{t0}, v{g}
    v_lshlrev_b32 v{t0}, 4, v{t0}
    v_lshl_add_u32 v{t0}, v{c}, 7, v{t0}
    v_add_u32 v{V_AX}, s3, v{t0}
    v_xor_b32 v{V_AX+1}, 64, v{V_AX}
    s_mul_i32 s{S_XL}, s{S_W}, 5120
    s_add_u32 s{S_XL}, s{S_XL}, {X0}
    s_mul_i32 s{S_XG}, s{S_W}, 40960
    """)
    e(f"""
    s_lshl_b32 s3, s{S_HH}, 13
    s_lshl_b32 s7, s{S_RH}, 12
    s_add_u32 s{S_KV}, s3, s7
    v_xor_b32 v{t0}, v{g}, v{c}
    v_lshlrev_b32 v{t0}, 4, v{t0}
    v_lshl_add_u32 v{t0}, v{c}, 8, v{t0}
    v_add_u32 v{V_AK}, s3, v{t0}
    v_xor_b32 v{V_AK+1}, 64, v{V_AK}
    v_xor_b32 v{V_AK+2}, 0x80, v{V_AK}
    v_xor_b32 v{V_AK+3}, 0xc0, v{V_AK}
    """)
    e(f"""
    v_lshlrev_b32 v{V_APA}, 4, v{L}
    v_add_u32 v{V_APA}, s{S_KV}, v{V_APA}
    v_add_u32 v{V_APA+1}, {VRING}, v{V_APA}
    """)
    e(f"""
    s_add_u32 s3, s3, 0x20000
    v_lshl_add_u32 v{t0}, v{g}, 2, v{rp}       ; 4g + r'
    v_and_b32 v{t1}, 7, v{t0}                  ; rho7
    v_lshlrev_b32 v{t0}, 8, v{t0}
    v_lshl_add_u32 v{t0}, v{t1}, 5, v{t0}
    v_lshl_add_u32 v{t0}, v{cp}, 3, v{t0}
    v_add_u32 v{V_AV}, s3, v{t0}
    """)
    for dt in range(1, 8):
        e(f"v_xor_b32 v{V_AV+dt}, {32*dt}, v{V_AV}")
    e(f"""
    s_waitcnt lgkmcnt(0)
    s_cmp_eq_u32 s{S_BR}, 0
    s_cselect_b32 s52, s52, s60
    s_cselect_b32 s53, s53, s61
    s_cselect_b32 s54, s54, s62
    s_cselect_b32 s55, s55, s63
    s_cselect_b32 s56, s56, s64
    s_cselect_b32 s57, s57, s65
    s_cselect_b32 s58, s58, s66
    s_cselect_b32 s59, s59, s67
    s_lshl_b32 s3, s{S_H}, 8
    s_add_u32 s{SRD_WQ}, s58, s3
    s_addc_u32 s{SRD_WQ+1}, s59, 0
    s_sub_u32 s{SRD_WQ+2}, 4194304, s3
    s_mov_b32 s{SRD_WQ+3}, 0x20000
    s_mul_i32 s3, s{S_B}, 163840
    s_add_u32 s{SRD_X}, s52, s3
    s_addc_u32 s{SRD_X+1}, s53, 0
    s_mov_b32 s{SRD_X+2}, 163840
    s_mov_b32 s{SRD_X+3}, 0x20000
    """)
    if o.rot and o.rotg > 1:
        G = o.rotg
        e(f"""
    s_and_b32 s3, s{S_IDX}, 3                ; p
    s_lshl_b32 s3, s3, {1 if G == 8 else 0}
    s_add_u32 s3, s3, s{S_B}
    s_and_b32 s3, s3, {G - 1}
    s_mul_i32 s3, s3, {8 // G}
    s_lshl_b32 s{S_WQK}, s3, 7
    s_lshl_b32 s3, s3, 19                    ; 64 rows * 8192
    s_add_u32 s{S_WQG}, s{S_WQG}, s3
    """)
    else:
        e(f"s_mov_b32 s{S_WQK}, 0")

def prologue2(e, o):
    e(f"""
    s_lshl_b32 s3, s{S_B}, 5
    s_add_u32 s3, s3, s{S_H}
    s_lshl_b32 s3, s3, 17
    s_add_u32 s{SRD_K}, s54, s3
    s_addc_u32 s{SRD_K+1}, s55, 0
    s_mov_b32 s{SRD_K+2}, 131072
    s_mov_b32 s{SRD_K+3}, 0x20000
    s_add_u32 s{SRD_V}, s56, s3
    s_addc_u32 s{SRD_V+1}, s57, 0
    s_mov_b32 s{SRD_V+2}, 131072
    s_mov_b32 s{SRD_V+3}, 0x20000
    s_lshl_b32 s3, s{S_BR}, 3
    s_add_u32 s3, s3, s{S_B}
    s_lshl_b32 s3, s3, 1
    s_add_u32 s3, s3, s{S_RH}
    s_lshl_b32 s3, s3, 5
    s_add_u32 s3, s3, s{S_H}
    s_mul_i32 s3, s3, 20480
    s_add_u32 s{SRD_O}, s68, s3
    s_addc_u32 s{SRD_O+1}, s69, 0
    s_mov_b32 s{SRD_O+2}, 20480
    s_mov_b32 s{SRD_O+3}, 0x20000
    s_mov_b32 s{S_SC}, {f32hex(C_SCALE)}
    """)

def wq_imm(u): return u * 1024 + 8 * (u >> 1)

def dma_wq(o, m, after=-1, before=10**9, pace=0):
    fl = [F('s', txt(f"s_add_u32 m0, s{S_WQL}, {(m % 3) * WQ_SLOT}"), after, before)]
    for u in range(4):
        fl.append(F('l', lambda e, u=u: e.vm_op(f"buffer_load_dwordx4 v{V_OWQ+u}, s[{SRD_WQ}:{SRD_WQ+3}], s{S_WQG} offen offset:{wq_imm(u)} {o.q_flag} lds", f"wq{m}"), after + pace * u, before))
    fl.append(F('s', txt(f"s_add_u32 s{S_WQG}, s{S_WQG}, {32 * 8192}"), after, before))
    fl.append(F('s', txt(f"s_and_b32 s{S_WQG}, s{S_WQG}, 0x3fffff"), after, before))
    return fl

def dma_x(o, M, after=-1, before=10**9, pace=0):
    fl = [F('s', txt(f"s_add_u32 m0, s{S_XL}, {(M % 2) * X_SLOT}"), after, before),
          F('s', txt(f"s_add_u32 s{S_T1}, s{S_XG}, s{S_WQK}"), after, before)]
    for u in range(5):
        if u == 4: fl.append(F('s', txt(f"s_add_u32 m0, s{S_XL}, {(M % 2) * X_SLOT + 4096}"), after, before))
        if u == 4: fl.append(F('s', txt("s_nop 0"), after, before))
        fl.append(F('l', lambda e, u=u: e.vm_op(f"buffer_load_dwordx4 v{V_OX+u}, s[{SRD_X}:{SRD_X+3}], s{S_T1} offen offset:{(u & 3) * 1024} {o.q_flag} lds", f"x{M}"), after + pace * u, before))
    fl.append(F('s', txt(f"s_add_u32 s{S_WQK}, s{S_WQK}, 128"), after, before))
    fl.append(F('s', txt(f"s_and_b32 s{S_WQK}, s{S_WQK}, 0x3ff"), after, before))
    return fl

def dma_pref(o, which, s, after=-1, before=10**9, pace=0):
    if which == 'K':
        base = KRING + 16384 * s; srd = SRD_K; vo = lambda t: V_OK + t
    else:
        base = 0x20000 + 16384 * s; srd = SRD_V; vo = lambda t: V_OV0 + (t & 1)
    fl = [F('s', txt(f"s_add_u32 m0, s{S_KV}, {base}"), after, before),
          F('s', txt(f"s_lshl_b32 s34, s{S_RH}, 12"), after, before),
          F('s', txt(f"s_add_u32 s34, s34, {s * 8192}"), after, before)]
    for t in range(4):
        fl.append(F('l', lambda e, t=t: e.vm_op(f"buffer_load_dwordx4 v{vo(t)}, s[{srd}:{srd+3}], s34 offen offset:{t * 1024} {o.kv_flag} lds", f"{which}{s}"), after + pace * t, before))
    return fl

APF = {('K', 2): 0, ('K', 3): 16, ('V', 2): 32, ('V', 3): 48}
def dma_apf(o, which, s, after=-1, before=10**9, pace=0):
    srd = SRD_K if which == 'K' else SRD_V
    vo = (lambda t: V_OK + t) if which == 'K' else (lambda t: V_OV0 + (t & 1))
    fl = [F('s', txt(f"s_lshl_b32 s34, s{S_RH}, 12"), after, before),
          F('s', txt(f"s_add_u32 s34, s34, {s * 8192}"), after, before)]
    for t in range(4):
        a = APF[(which, s)] + 4 * t
        fl.append(F('l', lambda e, t=t, a=a: e.vm_op(f"buffer_load_dwordx4 a[{a}:{a+3}], v{vo(t)}, s[{srd}:{srd+3}], s34 offen offset:{t * 1024} {o.kv_flag}", f"{which}{s}"), after + pace * t, before))
    return fl
V_APA = 72
def apf_copy(after):
    fl = []
    for (which, s), a0 in APF.items():
        for t in range(4):
            a = a0 + 4 * t
            if which == 'K': txt_ = f"ds_write_b128 v{V_APA}, a[{a}:{a+3}] offset:{KRING + 16384 * s + 1024 * t}"
            else: txt_ = f"ds_write_b128 v{V_APA+1}, a[{a}:{a+3}] offset:{16384 * (s - 2) + 1024 * t}"
            fl.append(F('d', lambda e, txt_=txt_: e.ds_op(txt_, "APF"), after))
    return fl

def zero_acc(e):
    e(f"v_mov_b32 v{V_T+8}, 0x3f803f80")
    for r in range(4):
        e(f"v_accvgpr_write_b32 a{A_ONE + r}, v{V_T+8}")

def code_touch_early(e, o, name):
    e("s_getpc_b64 s[66:67]")
    e.label(f"L_pce_{name}")
    e(f"s_sub_u32 s66, s66, L_pce_{name}-{name}")
    e("s_subb_u32 s67, s67, 0")
    if o.c_early == 1:
        e("v_lshlrev_b32 v74, 7, v0")
        e(f"v_min_u32 v75, CODE_END-{name}-4, v74")
        e.vm_op("global_load_dword v76, v75, s[66:67]", "ce")
        e("v_add_u32 v74, 0x8000, v74")
        e(f"v_min_u32 v75, CODE_END-{name}-4, v74")
        e.vm_op("global_load_dword v77, v75, s[66:67]", "ce")
    elif o.c_early == 2:
        e("v_and_b32 v74, 63, v0")
        e("v_lshlrev_b32 v74, 7, v74")
        e.vm_op("global_load_dword v76, v74, s[66:67]", "ce")
        e("s_lshr_b32 s3, s2, 3")
        e("s_lshl_b32 s3, s3, 11")
        e("v_and_b32 v74, 15, v0")
        e("v_lshlrev_b32 v74, 7, v74")
        e("v_add_u32 v74, s3, v74")
        e(f"v_min_u32 v75, CODE_END-{name}-4, v74")
        e.vm_op("global_load_dword v77, v75, s[66:67]", "ce")
    elif o.c_early == 3:
        e("v_lshlrev_b32 v74, 7, v0")
        e(f"v_min_u32 v75, CODE_END-{name}-4, v74")
        e.vm_op("global_load_dword v76, v75, s[66:67]", "ce")
        e("s_lshr_b32 s3, s2, 3")
        e("s_lshl_b32 s3, s3, 9")
        e("s_add_u32 s3, s3, 0x8000")
        e("v_and_b32 v74, 3, v0")
        e("v_lshlrev_b32 v74, 7, v74")
        e("v_add_u32 v74, s3, v74")
        e(f"v_min_u32 v75, CODE_END-{name}-4, v74")
        e.vm_op("global_load_dword v77, v75, s[66:67]", "ce")

def code_touch(e, va, vd, first):
    e("s_getpc_b64 s[66:67]")
    e.label(f"L_pc{first}_{CODE_NAME[0]}")
    e(f"s_sub_u32 s66, s66, L_pc{first}_{CODE_NAME[0]}-{CODE_NAME[0]}")
    e("s_subb_u32 s67, s67, 0")
    e(f"s_lshl_b32 s3, s{S_IDX}, 11")
    e(f"v_mbcnt_lo_u32_b32 v{va}, -1, 0")
    e(f"v_mbcnt_hi_u32_b32 v{va}, -1, v{va}")
    e(f"v_and_b32 v{va}, 15, v{va}")
    e(f"v_lshlrev_b32 v{va}, 7, v{va}")
    e(f"v_add_u32 v{va}, s3, v{va}")
    e(f"v_min_u32 v{va}, CODE_END-{CODE_NAME[0]}-4, v{va}")
    e.vm_op(f"global_load_dword v{vd}, v{va}, s[66:67]", "ctouch")

CODE_NAME = [""]
def run(e, fl):
    for f in fl: f.fn(e)

def qphase(e, o):
    run(e, dma_wq(o, 0) + dma_x(o, 0) + dma_wq(o, 1))
    if o.pre_all: run(e, dma_wq(o, 2) + dma_x(o, 1))
    prologue2(e, o)
    if o.c_touch: code_touch(e, V_T + 9, V_T + 10, 0)
    if o.tlb:
        e(f"""
    s_lshl_b32 s3, s{S_BR}, 3
    s_add_u32 s3, s3, s{S_B}
    s_lshl_b32 s3, s3, 4
    s_lshr_b32 s7, s{S_H}, 1
    s_add_u32 s3, s3, s7
    s_mul_i32 s3, s3, 163840
    s_add_u32 s3, s3, {POFF}
    s_add_u32 s28, s68, s3
    s_addc_u32 s29, s69, 0
    s_mov_b32 s30, 163840
    s_mov_b32 s31, 0x20000
    v_mov_b32 v78, 0
    """)
        if o.tlb & 1: e.vm_op(f"buffer_load_dword v79, v78, s[28:31], 0 offen", "tlb")
        if o.tlb & 2:
            e.vm_op(f"buffer_load_dword v79, v78, s[{SRD_K}:{SRD_K+3}], 0 offen", "tlb")
            e.vm_op(f"buffer_load_dword v79, v78, s[{SRD_V}:{SRD_V+3}], 0 offen", "tlb")
    stamp(e, o, "issued")
    zero_acc(e)
    idx = lambda m, dt, qt: 40 * m + 5 * dt + qt
    def wfrag(m, dt, after=-1, before=10**9):
        j, tp = dt >> 1, dt & 1
        return [F('d', lambda e, n=n: e.ds_op(f"ds_read_b64_tr_b16 a[{fbuf(dt) + 2 * n}:{fbuf(dt) + 2 * n + 1}], v{V_AW + j} offset:{(m % 3) * WQ_SLOT + n * 1024 + 8 * tp}", f"F{m}_{dt}"), after, before) for n in range(2)]
    def xfrag(m, qt, after=-1, before=10**9):
        M, h = m >> 1, m & 1
        b = V_XB[m & 1] + 4 * qt
        return [F('d', lambda e: e.ds_op(f"ds_read_b128 v[{b}:{b+3}], v{V_AX + h} offset:{(M % 2) * X_SLOT + qt * 2048}", f"B{m}_{qt}"), after, before)]
    def barrier(m):
        def fn(e):
            e.ds_all()
            tags = [f"wq{m+1}"]
            if (m + 1) % 2 == 0: tags.append(f"x{(m+1)//2}")
            if m == 15:
                e.vm_all()
            elif not o.q_nowait or m < 0:
                e.need_vm(tags)
            if not o.q_nobar or m in (-1, 15): e("s_barrier")
            if o.skew and -1 <= m < 15:
                n_ = NSK[0]; NSK[0] += 1
                e(f"s_cmp_eq_u32 s{S_W}, 0")
                e(f"s_cbranch_scc1 L_sk{n_}")
                e(f"s_nop {o.skew - 1}")
                e(f"s_cmp_eq_u32 s{S_W}, 1")
                e(f"s_cbranch_scc1 L_sk{n_}")
                e(f"s_nop {o.skew - 1}")
                e(f"s_cmp_eq_u32 s{S_W}, 2")
                e(f"s_cbranch_scc1 L_sk{n_}")
                e(f"s_nop {o.skew - 1}")
                e.label(f"L_sk{n_}")
            stamp(e, o, f"B{m}") if (o.stamp_list or m in (3, 9)) else None
        return fn
    barrier(-1)(e)
    stamp(e, o, "bar0")
    def nextfrags(m, after, before):
        fl = wfrag(m, 0, after, before)
        for q in range(5): fl += xfrag(m, q, after, before)
        return fl + wfrag(m, 1, after, before) + wfrag(m, 2, after, before)
    run(e, nextfrags(0, -1, 0))
    mains = []; rd = []; dm = []
    pref = [('K', 0), ('K', 1), ('V', 0), ('V', 1)]
    if o.apf: pref += [('K', 2), ('K', 3), ('V', 2), ('V', 3)]
    tnext = [0]
    for m in range(16):
        for dt in range(8):
            for qt in range(5):
                cin = "0" if m == 0 else vr(acc(dt, qt), 4)
                needs = []
                if qt == 0: needs.append(f"F{m}_{dt}")
                if dt == 0: needs.append(f"B{m}_{qt}")
                pre = barrier(m) if (dt == 5 and qt == 0) else None
                mains.append(Main(f"{MFMA} {vr(acc(dt, qt), 4)}, {ar(fbuf(dt), 4)}, {vr(V_XB[m & 1] + 4 * qt, 4)}, {cin}", needs, pre))
        if o.q_ahead:
            if m == 0:
                for dt in (3, 4, 5, 6, 7): rd += wfrag(0, dt, -1, idx(0, min(dt - 1, 4), 0))
            if m < 15:
                a_ = idx(m, 5, 0)
                rd += nextfrags(m + 1, a_, idx(m, 7, 4))
                for dt in (3, 4): rd += wfrag(m + 1, dt, a_, idx(m + 1, dt - 2, 0))
                for dt in (5, 6, 7): rd += wfrag(m + 1, dt, idx(m, dt, 4), idx(m + 1, min(dt - 2, 4), 0))
        else:
            for dt in (3, 4, 5):
                rd += wfrag(m, dt, idx(m, dt - 3, 0), idx(m, dt - 1, 0))
            for dt in (6, 7):
                rd += wfrag(m, dt, idx(m, 2, 2), idx(m, 4, 3))
            if m < 15:
                rd += nextfrags(m + 1, idx(m, 5, 0), idx(m, 7, 4))
        a = idx(m, 5, 0); b = idx(m + 1, 5, 0) if m < 15 else 10**9
        if m == 0 and not o.pre_all:
            dm += dma_wq(o, 2, -1, idx(0, 4, 0)) + dma_x(o, 1, -1, idx(0, 4, 4))
        t = max(a, tnext[0])
        if m + 3 < 16 and not o.q_nodma and not o.q_nowq:
            dm += dma_wq(o, m + 3, t, b, o.pace); t += 4 * o.pace
        if m % 2 == 1 and (m - 1) // 2 + 2 < 8 and not o.q_nodma and not o.q_nox:
            dm += dma_x(o, (m - 1) // 2 + 2, t, idx(m + 2, 4, 0) if m < 14 else 10**9, o.pace); t += 5 * o.pace
        for n_, (w, s) in enumerate(pref):
            when = int(o.pf_steps.split(",")[n_]) if o.pf_steps else min(o.pf_start + n_ * o.pf_per, 15 if o.pf_late else 13)
            if m == when:
                fn_ = dma_pref if s < 2 else dma_apf
                dm += fn_(o, w, s, t, idx(m + 2, 5, 0) if m < 14 else 10**9, o.pace); t += 4 * o.pace
        tnext[0] = t
        if m == 15 and o.apf:
            rd += apf_copy(a)
        if m == 15 and not o.apf:
            for s in (2, 3):
                dm += [F('s', txt(f"s_add_u32 m0, s{S_KV}, {KRING + 16384 * s}"), a),
                       F('s', txt(f"s_lshl_b32 s34, s{S_RH}, 12"), a),
                       F('s', txt(f"s_add_u32 s34, s34, {s * 8192}"), a)]
                for t in range(4):
                    dm.append(F('l', lambda e, t=t, s=s: e.vm_op(f"buffer_load_dwordx4 v{V_OK + t}, s[{SRD_K}:{SRD_K+3}], s34 offen offset:{t * 1024} {o.kv_flag} lds", f"K{s}"), a))
    if o.q_nods: rd = []
    zip2(e, mains, [rd, dm], lgap=o.q_lgap, lfirst=o.q_lfirst, urgency=o.q_urg)

def qconvert(e):
    e("s_nop 7")
    for r in range(V_ACC, V_ACC + 160, 2):
        e(f"v_pk_mul_f32 v[{r}:{r+1}], v[{r}:{r+1}], s[{S_SC}:{S_SC+1}] op_sel_hi:[1,0]")
    for j in range(4):
        for qt in range(5):
            for tp in range(2):
                a0 = acc(2 * j + tp, qt); d = qf(j, qt) + 2 * tp
                e(f"v_cvt_pk_bf16_f32 v{d}, v{a0}, v{a0+1}")
                e(f"v_cvt_pk_bf16_f32 v{d+1}, v{a0+2}, v{a0+3}")

def dma_kv(o, which, after0, i):
    fl = []
    P = o.kv_pace
    after = after0
    if 'K' in which:
        fl.append(F('s', txt(f"s_mov_b32 m0, s{S_KDST}"), after))
        fl.append(F('s', txt(f"s_add_u32 s{S_KDST}, s{S_KDST}, 16384"), after))
        for t in range(4):
            fl.append(F('l', lambda e, t=t: e.vm_op(f"buffer_load_dwordx4 v{V_OK + t}, s[{SRD_K}:{SRD_K+3}], s{S_KOFF} offen offset:{t * 1024} {o.kv_flag} lds", f"K{i+4}"), after))
            after += P
        fl.append(F('s', txt(f"s_and_b32 s{S_KDST}, s{S_KDST}, 0xffff"), after0))
        fl.append(F('s', txt(f"s_add_u32 s{S_KOFF}, s{S_KOFF}, 8192"), after0))
    if 'V' in which:
        fl.append(F('s', txt(f"s_add_u32 m0, s{S_VDST}, {VRING}"), after0))
        fl.append(F('s', txt(f"s_add_u32 s{S_VDST}, s{S_VDST}, 16384"), after0))
        for t in range(4):
            fl.append(F('l', lambda e, t=t: e.vm_op(f"buffer_load_dwordx4 v{V_OV + (t & 1)}, s[{SRD_V}:{SRD_V+3}], s{S_VOFF} offen offset:{t * 1024} {o.kv_flag} lds", f"V{i+2}"), after))
            after += P
        fl.append(F('s', txt(f"s_and_b32 s{S_VDST}, s{S_VDST}, 0xffff"), after0))
        fl.append(F('s', txt(f"s_add_u32 s{S_VOFF}, s{S_VOFF}, 8192"), after0))
    return fl

def kfrag(par_slot, kt, j, n, after=-1, before=10**9):
    return [F('d', lambda e: e.ds_op(f"ds_read_b128 a[{fbuf(n)}:{fbuf(n)+3}], v{V_AK + j} offset:{kt * 4096 + 16384 * par_slot}", f"F{n}"), after, before)]
def vfrag(par_slot, dt, n, after=-1, before=10**9):
    return [F('d', lambda e, h=h: e.ds_op(f"ds_read_b64_tr_b16 a[{fbuf(n) + 2*h}:{fbuf(n) + 2*h + 1}], v{V_AV + dt} offset:{h * 4096 + 16384 * par_slot}", f"F{n}"), after, before) for h in range(2)]

def softmax_fill(par):
    seq = []
    for qt in range(5):
        for kt in range(2):
            s = sreg(par, kt, qt); p = preg(par, qt) + 2 * kt
            seq += [("e", s), ("e", s + 1), ("c", p, s, s + 1), ("e", s + 2), ("e", s + 3), ("c", p + 1, s + 2, s + 3)]
    out = []; pend = None
    for x in seq:
        if x[0] == "c": pend = x
        else:
            out.append(x)
            if pend is not None: out.append(pend); pend = None
    if pend is not None: out.append(("n",)); out.append(pend)
    fl = []
    for x in out:
        if x[0] == "e": fl.append(F('e', txt(f"v_exp_f32 v{x[1]}, v{x[1]}")))
        elif x[0] == "c": fl.append(F('v', txt(f"v_cvt_pk_bf16_f32 v{x[1]}, v{x[2]}, v{x[3]}")))
        else: fl.append(F('s', txt("s_nop 0")))
    return fl

def attn_iter(e, o, i, qk, sm, pv, vwait, dma, pre_next, epi=None, first_pv=False, extra_dm=None):
    par = i & 1; ks = (i + 1) & 1
    mains = []; rd = []; dm = []
    gstart = {}
    if qk:
        for kt in range(2):
            for j in range(4):
                n = kt * 4 + j
                gstart[n] = len(mains)
                for qt in range(5):
                    d = sreg(par ^ 1, kt, qt)
                    cin = vr(V_BIAS + 4 * qt, 4) if j == 0 else vr(d, 4)
                    mains.append(Main(f"{MFMA} {vr(d, 4)}, {ar(fbuf(n), 4)}, {vr(qf(j, qt), 4)}, {cin}", [f"F{n}"] if qt == 0 else []))
    if pv:
        gstart['l'] = len(mains)
        for qt in range(5):
            mains.append(Main(f"{MFMA} {ar(A_L + 4 * qt, 4)}, {ar(A_ONE, 4)}, {vr(preg(par ^ 1, qt), 4)}, {'0' if first_pv else ar(A_L + 4 * qt, 4)}"))
        for dt in range(8):
            n = 8 + dt
            gstart[n] = len(mains)
            for qt in range(5):
                mains.append(Main(f"{MFMA} {ar(oacc(dt, qt), 4)}, {ar(fbuf(n), 4)}, {vr(preg(par ^ 1, qt), 4)}, {'0' if first_pv else ar(oacc(dt, qt), 4)}", [f"F{n}"] if qt == 0 else []))
    order = [n for n in range(16) if n in gstart]
    ln = len(order)
    for k, n in enumerate(order):
        if qk and n < 3: continue
        after = gstart[order[k - 4]] if k >= 4 else -1
        if k >= ln - 3 and ln >= 6: after = gstart[order[ln - 6]]
        before = gstart[order[k - 1]] if k >= 1 else 0
        if k >= ln - 3 and ln >= 4: before = min(before, gstart[order[ln - 3]])
        rd += kfrag(ks, n >> 2, n & 3, n, after, before) if n < 8 else vfrag(ks, n - 8, n, after, before)
    has_bar = pre_next or vwait is not None
    if has_bar:
        bpos = gstart[order[-2]]
        def bar(e):
            e.ds_all()
            if vwait == 0:
                if 'OLD' in e.vm: e.need_vm('OLD')
                else: e.vm_all()
            elif vwait is not None: e.need_vm([f"K{i+2}", f"V{i}"])
            e("s_barrier")
        mains[bpos].pre = bar
        if par == 0 and qk:
            for j in range(4): rd.append(F('v', txt(f"v_xor_b32 v{V_AK + j}, 0x8000, v{V_AK + j}"), bpos))
        if pre_next:
            for n in range(3): rd += kfrag(ks ^ 1, 0, n, n, bpos, len(mains) - 1)
        if par == 0 and pv:
            for dt in range(8): rd.append(F('v', txt(f"v_xor_b32 v{V_AV + dt}, {hex(VTOG)}, v{V_AV + dt}"), bpos))
    dm += dma_kv(o, dma, -1, i)
    if extra_dm: dm += extra_dm
    sf = softmax_fill(par) if sm else []
    qs = [rd, dm, sf]
    if epi: qs.append(epi(gstart))
    zip2(e, mains, qs, flush_nop=bool(epi))

def epilogue_fill(o):
    def build(gstart):
        fl = []
        RL = V_E
        W = V_E + 6
        l0 = gstart['l']
        for qt in range(5):
            fl.append(F('v', txt(f"v_accvgpr_read_b32 v{RL + qt}, a{A_L + 4 * qt}"), l0 + 5 + 8))
        for qt in range(5):
            fl.append(F('e', txt(f"v_rcp_f32 v{RL + qt}, v{RL + qt}"), l0 + 5 + 8))
        k = 0
        for jj in range(4):
            ready = gstart[8 + 2 * jj + 1] + 5 + 4
            for qt in range(5):
                w = W + 12 * (k & 1); k += 1
                for tp in range(2):
                    for i in range(4):
                        fl.append(F('v', txt(f"v_accvgpr_read_b32 v{w + 4*tp + i}, a{oacc(2*jj + tp, qt) + i}"), ready))
                for r in range(8):
                    fl.append(F('v', txt(f"v_mul_f32 v{w + r}, v{w + r}, v{RL + qt}"), ready))
                for r in range(4):
                    fl.append(F('v', txt(f"v_cvt_pk_bf16_f32 v{w + 8 + r}, v{w + 2*r}, v{w + 2*r + 1}"), ready))
                off = (jj * 5 + qt) * 1024
                fl.append(F('s', txt(f"s_mov_b32 s{S_T0}, {off}"), ready))
                fl.append(F('l', lambda e, w=w: e.vm_op(f"buffer_store_dwordx4 v[{w+8}:{w+11}], v{V_E + 5}, s[{SRD_O}:{SRD_O+3}], s{S_T0} offen {o.o_flag}", "st"), ready))
        return fl
    return build

WO_A = [131072, 147456, 98304, 81920, 114688]
WO_B = [0, 16384, 32768, 49152, 65536]
def wo_slot(si): return WO_A[si] if si < 5 else WO_B[si - 5] if si < 10 else WO_A[si - 10] if si < 15 else WO_B[0]
V_AWS = 160

def t3_setup(e, o):
    L = V_E + 5
    t0, t1, t2, t3_ = V_E, V_E + 1, V_E + 2, V_E + 3
    e(f"""
    v_lshrrev_b32 v{t0}, 4, v{L}             ; lane
    v_lshrrev_b32 v{t1}, 4, v{t0}            ; g
    v_and_b32 v{t2}, 7, v{t0}
    v_lshlrev_b32 v{t3_}, 1, v{t1}
    v_xor_b32 v{t2}, v{t2}, v{t3_}
    v_lshlrev_b32 v{t2}, 4, v{t2}
    v_lshrrev_b32 v{t3_}, 3, v{t0}
    v_lshl_add_u32 v{V_OW}, v{t3_}, 10, v{t2}
    v_add_u32 v{V_OW+1}, {7168}, v{V_OW}
    v_add_u32 v{V_OW+2}, {2*7168}, v{V_OW}
    v_add_u32 v{V_OW+3}, {3*7168}, v{V_OW}
    v_bfe_u32 v{t2}, v{t0}, 2, 2             ; r'
    v_lshl_add_u32 v{t2}, v{t1}, 2, v{t2}    ; 4g + r'
    v_lshrrev_b32 v{t3_}, 1, v{t2}
    v_and_b32 v{t3_}, 3, v{t3_}
    v_lshlrev_b32 v{t2}, 7, v{t2}
    v_lshl_add_u32 v{t2}, v{t3_}, 5, v{t2}
    v_and_b32 v{t3_}, 3, v{t0}               ; c'
    v_lshl_add_u32 v{t2}, v{t3_}, 3, v{t2}
    s_lshl_b32 s3, s{S_HH}, 13
    v_add_u32 v{V_AW2}, s3, v{t2}
    v_xor_b32 v{V_AW2+1}, 32, v{V_AW2}
    v_xor_b32 v{V_AW2+2}, 64, v{V_AW2}
    v_xor_b32 v{V_AW2+3}, 0x60, v{V_AW2}
    s_mul_i32 s3, s{S_W}, 20480
    v_add_u32 v{V_XA}, s3, v{L}
    s_mov_b32 s{S_WL}, s{S_KV}
    s_lshl_b32 s3, s{S_RH}, 15
    s_lshl_b32 s7, s{S_HH}, 9
    s_add_u32 s3, s3, s7
    s_lshl_b32 s7, s{S_HH}, 17
    s_add_u32 s{S_WA}, s3, s7
    s_xor_b32 s7, s7, 0x20000
    s_add_u32 s{S_WB}, s3, s7
    s_cmp_eq_u32 s{S_BR}, 0
    s_cselect_b32 s60, s98, s100
    s_cselect_b32 s61, s99, s101
    s_sub_u32 s3, s{S_H}, s{S_HH}
    s_lshl_b32 s3, s3, 17                    ; * 128 rows * 1024
    s_add_u32 s{SRD_WO}, s60, s3
    s_addc_u32 s{SRD_WO+1}, s61, 0
    s_mov_b32 s{SRD_WO+2}, 262144
    s_mov_b32 s{SRD_WO+3}, 0x20000
    s_lshl_b32 s3, s{S_BR}, 3
    s_add_u32 s3, s3, s{S_B}
    s_lshl_b32 s3, s3, 4
    s_lshr_b32 s7, s{S_H}, 1
    s_add_u32 s3, s3, s7
    s_lshl_b32 s3, s3, 2
    s_lshl_b32 s7, s{S_RH}, 1
    s_add_u32 s3, s3, s7
    s_add_u32 s3, s3, s{S_HH}
    s_mul_i32 s3, s3, 40960
    s_add_u32 s3, s3, {POFF}
    s_add_u32 s{SRD_P}, s68, s3
    s_addc_u32 s{SRD_P+1}, s69, 0
    s_mov_b32 s{SRD_P+2}, 40960
    s_mov_b32 s{SRD_P+3}, 0x20000
    s_lshl_b32 s3, s{S_HG}, 20
    s_add_u32 s56, s60, s3
    s_addc_u32 s57, s61, 0
    s_mov_b32 s58, 0x100000
    s_mov_b32 s59, 0x20000
    s_lshl_b32 s3, s{S_IDX}, 2
    s_add_u32 s3, s3, s{S_W}
    s_lshl_b32 s3, s3, 13
    v_lshlrev_b32 v{t0}, 3, v{L}             ; lane*128
    v_add_u32 v{t0}, s3, v{t0}
    """)

def dma_wo(o, p, kq, after=-1, before=10**9, pace=0):
    src = S_WA if kq < 2 else S_WB
    fl = [F('s', txt(f"s_add_u32 m0, s{S_WL}, {wo_slot(4 * p + kq)}"), after, before),
          F('s', txt(f"s_add_u32 s{S_T1}, s{src}, {(kq & 1) * 65536 + 128 * p}"), after, before)]
    for t in range(4):
        fl.append(F('l', lambda e, t=t: e.vm_op(f"buffer_load_dwordx4 v{V_OW+t}, s[{SRD_WO}:{SRD_WO+3}], s{S_T1} offen offset:{t*1024} {o.w_flag} lds", f"W{p}_{kq}"), after + pace * t, before))
    return fl

def t3_tail(e, o):
    i = 16; par = 0; ks = 1
    mains = []; rd = []; dm = []; cv = []; st = []; xw = []; xr = []
    gstart = {}
    gstart['l'] = 0
    for qt in range(5):
        mains.append(Main(f"{MFMA} {ar(A_L + 4 * qt, 4)}, {ar(A_ONE, 4)}, {vr(preg(1, qt), 4)}, {ar(A_L + 4 * qt, 4)}"))
    for dt in range(8):
        n = 8 + dt
        gstart[n] = len(mains)
        for qt in range(5):
            mains.append(Main(f"{MFMA} {ar(oacc(dt, qt), 4)}, {ar(fbuf(n), 4)}, {vr(preg(1, qt), 4)}, {ar(oacc(dt, qt), 4)}", [f"F{n}"] if qt == 0 else []))
    for k in range(8):
        n = 8 + k
        after = gstart[8 + k - 4] if k >= 4 else -1
        before = gstart[8 + k - 1] if k >= 1 else 0
        rd += vfrag(ks, k, n, after, before)
    NPV = len(mains)
    def a2(p, nt, qt):
        if (p & 1) == 0 and nt >= 2 and o.acc_hi: return 216 + ((nt - 2) * 5 + qt) * 4
        return A_ACC2[p & 1] + (nt * 5 + qt) * 4
    def bfr(kk, qt): return (kk * 5 + qt) * 4
    S0 = {}
    nfrag = 16
    for p in range(4):
        for kq in range(4):
            S0[(p, kq)] = len(mains)
            for ks2 in range(2):
                kk = 2 * kq + ks2
                for nt in range(4):
                    n = nfrag; nfrag += 1
                    g0 = len(mains)
                    for qt in range(5):
                        cin = "0" if (kq == 0 and ks2 == 0) else ar(a2(p, nt, qt), 4)
                        needs = [f"G{n}"] if qt == 0 else []
                        if p == 0 and kk >= 4 and nt == 0: needs = needs + [f"X{kk}_{qt}"]
                        mains.append(Main(f"{MFMA} {ar(a2(p, nt, qt), 4)}, {ar(fbuf(n), 4)}, {vr(bfr(kk, qt), 4)}, {cin}", needs))
                    gstart[('g', p, kq, ks2, nt)] = (g0, n)
    N = len(mains)
    stages = [(p, kq) for p in range(4) for kq in range(4)]
    def gidx(p, kq, j): return gstart[('g', p, kq, j >> 2, j & 3)]
    BAR = {}
    for si, (p, kq) in enumerate(stages):
        BAR[si] = gidx(p, kq, 5)[0]
    def wfrag(p, kq, j, after, before):
        g0, n = gidx(p, kq, j)
        return [F('d', lambda e, h=h, n=n: e.ds_op(f"ds_read_b64_tr_b16 a[{fbuf(n) + 2*h}:{fbuf(n) + 2*h + 1}], v{V_AWS + 4 * (wo_slot(4 * p + kq) >> 16) + (j & 3)} offset:{(wo_slot(4 * p + kq) & 0xffff) + (j >> 2) * 4096 + h * 2048}", f"G{n}"), after, before) for h in range(2)]
    pv_bar = gstart[8 + 6]
    def bar_first(e):
        e.ds_all()
        e.need_vm("W0_0")
        e("s_barrier")
    mains[pv_bar].pre = bar_first
    rd_pv_last = [f for f in rd]
    for f in rd:
        f.before = min(f.before, pv_bar - 3)
    for si, (p, kq) in enumerate(stages):
        prevbar = pv_bar if si == 0 else BAR[si - 1]
        for j in range(8):
            g0 = gidx(p, kq, j)[0]
            if j < 3:
                after = prevbar; before = S0[(p, kq)] - 1 if j == 0 else gidx(p, kq, j - 1)[0]
                if si == 0 and j == 0: before = NPV - 1
            elif j < 6:
                after = gidx(p, kq, j - 3)[0]; before = gidx(p, kq, j - 1)[0]
            else:
                after = gidx(p, kq, 2)[0] + 2; before = gidx(p, kq, 4)[0] + 3
            rd += wfrag(p, kq, j, after, before)
        def bar(e, si=si):
            if si == o.c_k3_at and o.c_k3:
                n_ = CODE_NAME[0]
                e("s_getpc_b64 s[60:61]")
                e.label(f"L_pck_{n_}")
                e(f"s_add_u32 s60, s60, reduce_kernel-L_pck_{n_}")
                e("s_addc_u32 s61, s61, 0")
                e(f"v_mbcnt_lo_u32_b32 v178, -1, 0")
                e(f"v_mbcnt_hi_u32_b32 v178, -1, v178")
                e(f"v_lshlrev_b32 v178, 7, v178")
                e(f"v_min_u32 v178, K3_END-reduce_kernel-4, v178")
                e.vm_op(f"global_load_dword v179, v178, s[60:61]", "k3t")
            if o.stamp_list or si in ((0, 3, 7, 15) if o.fuse else (0, 3, 7, 11, 15)): stamp(e, o, f"T{si}")
            e.ds_all()
            if si + 1 < 16:
                pn, kn = stages[si + 1]
                e.need_vm(f"W{pn}_{kn}")
            e("s_barrier")
        mains[BAR[si]].pre = bar
    if o.wo_early: pre = dma_wo(o, 0, 2, -1, 24, 3)
    else: pre = dma_wo(o, 0, 0, -1, 3) + dma_wo(o, 0, 1, -1, 10) + dma_wo(o, 0, 2, -1, 18) + dma_wo(o, 0, 3, -1, 26)
    def st_(si): return stages[si]
    P = o.w_pace
    dm = pre + dma_wo(o, *st_(4), pv_bar, BAR[0], P)
    dm += dma_wo(o, *st_(10), BAR[0], BAR[1], P)
    dm += dma_wo(o, *st_(11), BAR[1], BAR[2], P)
    t = BAR[2]
    for si in (5, 6, 7, 8, 9):
        dm += dma_wo(o, *st_(si), t, BAR[si - 2] if si > 5 else BAR[3], P); t += 4 * P
    dm += dma_wo(o, *st_(12), t, BAR[8], P); t += 4 * P
    dm += dma_wo(o, *st_(13), max(t, BAR[3]), BAR[9], P); t += 4 * P
    dm += dma_wo(o, *st_(14), max(t, BAR[4]), BAR[10], P); t += 4 * P
    dm += dma_wo(o, *st_(15), max(t, BAR[5]), BAR[11], P)
    if o.t3_nodma: dm = pre
    RL = V_E; W = V_E + 6
    l0 = 0
    for qt in range(5): cv.append(F('v', txt(f"v_accvgpr_read_b32 v{RL + qt}, a{A_L + 4 * qt}"), l0 + 5 + 6))
    for qt in range(5): cv.append(F('e', txt(f"v_rcp_f32 v{RL + qt}, v{RL + qt}"), l0 + 5 + 6))
    k = 0
    for jj in range(4):
        ready = gstart[8 + 2 * jj + 1] + 5 + 4
        need = gidx(0, jj >> 1, (jj & 1) * 4)[0]
        if jj == 1 and not o.acc_hi: need = gidx(0, 0, 2)[0]
        for qt in range(5):
            w = W + 8 * (k & 1); k += 1
            dl = need + qt - 2 if need + qt - 2 > ready else need
            for tp in range(2):
                for i_ in range(4):
                    cv.append(F('v', txt(f"v_accvgpr_read_b32 v{w + 4*tp + i_}, a{oacc(2*jj + tp, qt) + i_}"), ready, need - 2))
            for r in range(8):
                cv.append(F('v', txt(f"v_mul_f32 v{w + r}, v{w + r}, v{RL + qt}"), ready, need - 2))
            d = bfr(jj, qt)
            for r in range(4):
                cv.append(F('v', txt(f"v_cvt_pk_bf16_f32 v{d + r}, v{w + 2*r}, v{w + 2*r + 1}"), ready, need - 2, mark=(f"of{jj}_{qt}" if r == 3 else None)))
            xw.append(F('d', lambda e, d=d, jj=jj, qt=qt: e.ds_op(f"ds_write_b128 v{V_XA}, v[{d}:{d+3}] offset:{(jj * 5 + qt) * 1024}", "XW"), ready, BAR[1] - 2, dep=f"of{jj}_{qt}"))
    xbar = BAR[1]
    xw.append(F('v', txt(f"v_add_u32 v{V_XA}, s55, v{V_XA}"), xbar, xbar + 2))
    for jj in range(4):
        for qt in range(5):
            d = bfr(4 + jj, qt)
            xw.append(F('d', lambda e, d=d, jj=jj, qt=qt: e.ds_op(f"ds_read_b128 v[{d}:{d+3}], v{V_XA} offset:{(jj * 5 + qt) * 1024}", f"X{4+jj}_{qt}"), xbar + 1, S0[(0, 2)] - 6 if jj < 2 else BAR[2] - 4))
    gd = []
    for qt in range(5):
        a_, b_ = S0[(0, 2)], S0[(1, 0)] - 2
        gd.append(F('v', txt(f"v_med3_f32 v224, v{RL + qt}, s66, v225"), a_, b_))
        gd.append(F('v', txt(f"v_cmp_neq_f32 s[62:63], v224, v{RL + qt}"), a_, b_))
        gd.append(F('s', txt("s_nop 1"), a_, b_))
        gd.append(F('s', txt(f"s_or_b64 s[{S_BAD}:{S_BAD+1}], s[{S_BAD}:{S_BAD+1}], s[62:63]"), a_, b_))
    W2 = V_E + 6
    k = 0
    for p in range(4):
        start = S0[(p + 1, 0)] + 6 if p < 3 else N
        end = S0[(p + 1, 3)] if p < 2 else 10**9
        if p == 2: end = N - 10
        for u in range(2):
            for qt in range(5):
                w = W2 + 12 * (k & 1); k += 1
                for tp in range(2):
                    for i_ in range(4):
                        st.append(F('v', txt(f"v_accvgpr_read_b32 v{w + 4*tp + i_}, a{a2(p, 2*u + tp, qt) + i_}"), start, end))
                for r in range(4):
                    st.append(F('v', txt(f"v_cvt_pk_bf16_f32 v{w + 8 + r}, v{w + 2*r}, v{w + 2*r + 1}"), start, end))
                off = (p * 10 + u * 5 + qt) * 1024
                st.append(F('s', txt(f"s_mov_b32 s{S_T0}, {off}"), start, end))
                if not o.t3_nostore: st.append(F('l', lambda e, w=w: e.vm_op(f"buffer_store_dwordx4 v[{w+8}:{w+11}], v{V_E + 5}, s[{SRD_P}:{SRD_P+3}], s{S_T0} offen {o.p_flag}", "st"), start, end))
    e(f"s_mov_b64 s[{S_BAD}:{S_BAD+1}], 0")
    e(f"s_mov_b32 s66, {hex(R_LO)}")
    e(f"v_mov_b32 v225, {hex(R_HI)}")
    for k_ in range(3):
        for j in range(4):
            e(f"v_add_u32 v{V_AWS + 4 * k_ + j}, {65536 * k_}, v{V_AW2 + j}")
    e(f"s_lshl_b32 s{S_T0}, s{S_HH}, 1")
    e(f"s_sub_u32 s{S_T0}, 1, s{S_T0}")
    e(f"s_mul_i32 s{S_T0}, s{S_T0}, 40960")
    e(f"s_mov_b32 s55, s{S_T0}")
    for f in cv:
        pass
    zip2(e, mains, [rd, dm, cv, xw, gd, st], flush_nop=True, dense=2 if o.vmax > 1 else None, vmax=o.vmax, lgap=o.t_lgap)

def max_pass(e, o, name):
    M = 120; L16 = V_E + 5; T = 126
    e.label(f"L_maxpass_{name}")
    e("s_waitcnt vmcnt(0) lgkmcnt(0)")
    for qt in range(5): e(f"v_mov_b32 v{M + qt}, 0xff800000")
    e(f"s_mov_b32 s{S_CNT}, 0")
    e(f"s_lshl_b32 s{S_T1}, s{S_RH}, 12")
    e.label(f"L_maxloop_{name}")
    e("s_barrier")
    e(f"s_mov_b32 m0, s{S_KV}")
    e("s_nop 0")
    for t in range(4):
        e(f"buffer_load_dwordx4 v{V_OK + t}, s[{SRD_K}:{SRD_K+3}], s{S_T1} offen offset:{t * 1024} lds")
    e("s_waitcnt vmcnt(0)")
    e("s_barrier")
    for n in range(8):
        e(f"ds_read_b128 a[{fbuf(n)}:{fbuf(n)+3}], v{V_AK + (n & 3)} offset:{(n >> 2) * 4096}")
    e("s_waitcnt lgkmcnt(0)")
    for kt in range(2):
        for j in range(4):
            for qt in range(5):
                d = sreg(0, kt, qt)
                e(f"{MFMA} {vr(d, 4)}, {ar(fbuf(kt * 4 + j), 4)}, {vr(qf(j, qt), 4)}, {'0' if j == 0 else vr(d, 4)}")
    e("s_nop 7")
    e("s_nop 3")
    for qt in range(5):
        for kt in range(2):
            d = sreg(0, kt, qt)
            e(f"v_max3_f32 v{M + qt}, v{d}, v{d+1}, v{M + qt}")
            e(f"v_max3_f32 v{M + qt}, v{d+2}, v{d+3}, v{M + qt}")
    e(f"s_add_u32 s{S_T1}, s{S_T1}, 8192")
    e(f"s_add_u32 s{S_CNT}, s{S_CNT}, 1")
    e(f"s_cmp_lt_u32 s{S_CNT}, 16")
    e(f"s_cbranch_scc1 L_maxloop_{name}")
    e("s_barrier")
    e(f"s_lshl_b32 s{S_T1}, s{S_RH}, 12")
    e(f"s_mov_b32 m0, s{S_KV}")
    e("s_nop 0")
    for t in range(4):
        e(f"buffer_load_dwordx4 v{V_OK + t}, s[{SRD_K}:{SRD_K+3}], s{S_T1} offen offset:{t * 1024} lds")
    e(f"v_lshrrev_b32 v{T}, 2, v{L16}")
    e(f"v_xor_b32 v{T+1}, 64, v{T}")
    e(f"v_xor_b32 v{T+2}, 0x80, v{T}")
    for x in (1, 2):
        for qt in range(5): e(f"ds_bpermute_b32 v{T + 3 + qt}, v{T + x}, v{M + qt}")
        e("s_waitcnt lgkmcnt(0)")
        for qt in range(5): e(f"v_max_f32 v{M + qt}, v{M + qt}, v{T + 3 + qt}")
    for qt in range(5):
        for r in range(4): e(f"v_sub_f32 v{V_BIAS + 4 * qt + r}, 0, v{M + qt}")
    e("s_waitcnt vmcnt(0)")
    e("s_barrier")
    for n in range(3): run(e, kfrag(0, 0, n, n))
    e(f"s_branch L_maxdone_{name}")

def vote(e, o, name):
    T = V_E
    e(f"s_cmp_lg_u64 s[{S_BAD}:{S_BAD+1}], 0")
    e(f"s_cselect_b32 s3, 1, 0")
    e(f"v_mov_b32 v{T}, s3")
    e(f"s_lshl_b32 s7, s{S_W}, 2")
    e(f"v_mov_b32 v{T+1}, s7")
    e(f"ds_write_b32 v{T+1}, v{T}")
    if o.fuse:
        e("s_load_dwordx4 s[56:59], s[0:1], 80")
        e("s_waitcnt vmcnt(0) lgkmcnt(0)")
    else:
        e("s_waitcnt lgkmcnt(0)")
    e("s_barrier")
    e(f"v_mov_b32 v{T+1}, 0")
    e(f"ds_read_b128 v[{T+2}:{T+5}], v{T+1}")
    e("s_waitcnt lgkmcnt(0)")
    e(f"v_or_b32 v{T+2}, v{T+2}, v{T+3}")
    e(f"v_or3_b32 v{T+2}, v{T+2}, v{T+4}, v{T+5}")
    e("s_nop 0")
    e(f"v_readfirstlane_b32 s3, v{T+2}")
    e(f"s_cmp_eq_u32 s{S_MODE}, 0")
    e(f"s_cselect_b32 s3, s3, 0")
    e(f"s_cmp_eq_u32 s3, 0")
    e(f"s_cbranch_scc1 L_fine_{name}")
    e(f"s_mov_b32 s{S_MODE}, 1")
    e("s_waitcnt vmcnt(0)")
    e("s_barrier")
    e("v_mbcnt_lo_u32_b32 v0, -1, 0")
    e("v_mbcnt_hi_u32_b32 v0, -1, v0")
    e(f"s_lshl_b32 s3, s{S_W}, 6")
    e("v_add_u32 v0, s3, v0")
    e(f"s_branch L_restart_{name}")
    e.label(f"L_fine_{name}")

def fused_reduce(e, o, name):
    G, R, J = 60, 61, 62
    e(f"""
    s_lshl_b32 s{G}, s{S_BR}, 3
    s_add_u32 s{G}, s{G}, s{S_B}             ; group
    s_lshr_b32 s{R}, s{S_H}, 1
    v_mbcnt_lo_u32_b32 v248, -1, 0
    v_mbcnt_hi_u32_b32 v248, -1, v248        ; lane
    s_cmp_eq_u32 s{S_W}, {99 if o.nosync else 0}
    s_cbranch_scc0 L_arrived_{name}
    s_lshl_b32 s3, s{G}, {12 if o.cnt_ws else 4}
    {f"s_add_u32 s3, s3, {220*1024*1024}" if o.cnt_ws else ""}
    {"s_mov_b32 s58, s68" if o.cnt_ws else ""}
    {"s_mov_b32 s59, s69" if o.cnt_ws else ""}
    v_mov_b32 v249, s3
    v_mov_b32 v250, 1
    s_mov_b64 s[64:65], exec
    s_mov_b64 exec, 1
    global_atomic_add v249, v250, s[58:59]
    s_mov_b32 s7, 0
L_poll_{name}:
    global_load_dword v251, v249, s[58:59] sc1
    s_waitcnt vmcnt(0)
    v_readfirstlane_b32 s3, v251
    s_add_u32 s7, s7, 1
    s_cmp_ge_u32 s3, 16
    s_cbranch_scc1 L_polled_{name}
    s_sleep {o.spin_sleep}
    s_cmp_lt_u32 s7, 0x40000
    s_cbranch_scc1 L_poll_{name}
L_polled_{name}:
    s_mov_b64 exec, s[64:65]
L_arrived_{name}:
    s_barrier
    """)
    stamp(e, o, "polled")
    e(f"""
    v_lshlrev_b32 v249, 4, v248              ; lane*16
    s_mul_i32 s3, s{G}, {16 * 163840}
    s_add_u32 s3, s3, {POFF}
    s_add_u32 s8, s68, s3
    s_addc_u32 s9, s69, 0
    s_mov_b32 s10, {16 * 163840}
    s_mov_b32 s11, 0x20000
    s_mul_i32 s{J}, s{R}, 10
    s_add_u32 s{J}, s{J}, s{S_W}
    s_mov_b32 s12, s56
    s_mov_b32 s13, s57
    s_mov_b32 s14, 2621440
    s_mov_b32 s15, 0x20000
    v_and_b32 v250, 15, v248
    v_lshrrev_b32 v251, 4, v248
    v_lshlrev_b32 v250, 11, v250
    v_lshl_add_u32 v250, v251, 3, v250       ; c*2048 + g*8
    """)
    def load1(k, hp):
        r = 64 * k + 4 * hp
        if hp == 0:
            e(f"s_add_u32 s3, s{J}, {4 * k}")
            e(f"s_lshl_b32 s3, s3, 10")
        e.vm_op(f"buffer_load_dwordx4 v[{r}:{r+3}], v249, s[8:11], s3 offen {o.r_flag}", f"R{k}_{hp}")
        if hp < 15: e("s_add_u32 s3, s3, 163840")
    def outaddr(k, dst):
        e(f"""
    s_add_u32 s16, s{J}, {4 * k}
    s_mul_hi_u32 s17, s16, 0x1999999a
    s_mul_i32 s18, s17, 10
    s_sub_u32 s18, s16, s18
    s_cmp_ge_u32 s18, 5
    s_cselect_b32 s19, 1, 0                  ; u
    s_mul_i32 s20, s19, 5
    s_sub_u32 s18, s18, s20                  ; qt
    s_and_b32 s20, s17, 3                    ; p
    s_bfe_u32 s21, s17, 0x10002              ; hh
    s_lshr_b32 s22, s17, 3                   ; rh
    s_mul_i32 s23, s{S_B}, 160
    s_mul_i32 s22, s22, 80
    s_add_u32 s23, s23, s22
    s_lshl_b32 s18, s18, 4
    s_add_u32 s23, s23, s18
    s_lshl_b32 s23, s23, 11
    s_lshl_b32 s22, s{S_BR}, 10
    s_add_u32 s23, s23, s22
    s_lshl_b32 s21, s21, 9
    s_add_u32 s23, s23, s21
    s_lshl_b32 s20, s20, 7
    s_add_u32 s23, s23, s20
    s_lshl_b32 s19, s19, 6
    s_add_u32 s{dst}, s23, s19
    """)
    def run_pieces(np_):
        A = 224; T = 232
        order = [(k, hp) for k in range(np_) for hp in range(16)]
        D = o.r_depth
        e.vm = []; e.vm_waited = set()
        for x in order[:D]: load1(*x)
        for k in range(np_): outaddr(k, 24 + k)
        for n, (k, hp) in enumerate(order):
            e.need_vm(f"R{k}_{hp}")
            if n + D < len(order): load1(*order[n + D])
            for d in range(4):
                r = 64 * k + 4 * hp + d
                if hp == 0:
                    e(f"v_lshlrev_b32 v{A + 2*d}, 16, v{r}")
                    e(f"v_and_b32 v{A + 2*d + 1}, 0xffff0000, v{r}")
                else:
                    e(f"v_lshlrev_b32 v{T + 2*(d & 1)}, 16, v{r}")
                    e(f"v_and_b32 v{T + 2*(d & 1) + 1}, 0xffff0000, v{r}")
                    e(f"v_add_f32 v{A + 2*d}, v{A + 2*d}, v{T + 2*(d & 1)}")
                    e(f"v_add_f32 v{A + 2*d + 1}, v{A + 2*d + 1}, v{T + 2*(d & 1) + 1}")
            if hp == 15:
                o0 = 236 + 4 * (k & 1)
                for d in range(4): e(f"v_cvt_pk_bf16_f32 v{o0 + d}, v{A + 2*d}, v{A + 2*d + 1}")
                e.vm_op(f"buffer_store_dwordx2 v[{o0}:{o0+1}], v250, s[12:15], s{24 + k} offen", f"S{k}")
                e.vm_op(f"buffer_store_dwordx2 v[{o0+2}:{o0+3}], v250, s[12:15], s{24 + k} offen offset:32", f"S{k}")
    if o.r_loop:
        A = 224; T = 232
        e.label(f"L_rloop_{name}")
        e(f"s_lshl_b32 s3, s{J}, 10")
        for hp in range(16):
            e(f"buffer_load_dwordx4 v[{4*hp}:{4*hp+3}], v249, s[8:11], s3 offen {o.r_flag}")
            if hp < 15: e("s_add_u32 s3, s3, 163840")
        outaddr(0, 24)
        for hp in range(16):
            e(f"s_waitcnt vmcnt({15 - hp})")
            for d in range(4):
                r = 4 * hp + d
                if hp == 0:
                    e(f"v_lshlrev_b32 v{A + 2*d}, 16, v{r}")
                    e(f"v_and_b32 v{A + 2*d + 1}, 0xffff0000, v{r}")
                else:
                    e(f"v_lshlrev_b32 v{T + 2*(d & 1)}, 16, v{r}")
                    e(f"v_and_b32 v{T + 2*(d & 1) + 1}, 0xffff0000, v{r}")
                    e(f"v_add_f32 v{A + 2*d}, v{A + 2*d}, v{T + 2*(d & 1)}")
                    e(f"v_add_f32 v{A + 2*d + 1}, v{A + 2*d + 1}, v{T + 2*(d & 1) + 1}")
        for d in range(4): e(f"v_cvt_pk_bf16_f32 v{236 + d}, v{A + 2*d}, v{A + 2*d + 1}")
        e(f"buffer_store_dwordx2 v[236:237], v250, s[12:15], s24 offen")
        e(f"buffer_store_dwordx2 v[238:239], v250, s[12:15], s24 offen offset:32")
        e(f"s_add_u32 s{J}, s{J}, 4")
        e(f"s_mul_i32 s3, s{R}, 10")
        e(f"s_add_u32 s3, s3, 10")
        e(f"s_cmp_lt_u32 s{J}, s3")
        e(f"s_cbranch_scc1 L_rloop_{name}")
        return
    e(f"s_cmp_lt_u32 s{S_W}, 2")
    e(f"s_cbranch_scc0 L_two_{name}")
    run_pieces(3)
    e(f"s_branch L_reduced_{name}")
    e.label(f"L_two_{name}")
    run_pieces(2)
    e.label(f"L_reduced_{name}")

def gen_k1(name, o):
    NSTAMP[0] = 0
    CODE_NAME[0] = name
    e = Em()
    e.lines.append(kernel_head(name))
    prologue(e, o, name)
    qphase(e, o)
    stamp(e, o, "qdone")
    e(f"v_accvgpr_write_b32 a{A_SAVE}, v{V_OV0}")
    e(f"v_accvgpr_write_b32 a{A_SAVE+1}, v{V_OV0+1}")
    e(f"v_accvgpr_write_b32 a{A_SAVE+2}, v{V_T+1}")
    for n in range(3): run(e, kfrag(0, 0, n, n))
    qconvert(e)
    stamp(e, o, "qconv")
    e(f"""
    v_accvgpr_read_b32 v{V_OV}, a{A_SAVE}
    v_accvgpr_read_b32 v{V_OV+1}, a{A_SAVE+1}
    v_accvgpr_read_b32 v{V_E+5}, a{A_SAVE+2}
    s_mov_b32 s{S_KDST}, s{S_KV}             ; K(4) -> slot 0
    s_add_u32 s{S_VDST}, s{S_KV}, {32768 if o.apf else 0}          ; V(4) / V(2)
    s_lshl_b32 s7, s{S_RH}, 12
    s_add_u32 s{S_KOFF}, s7, {4 * 8192}
    s_add_u32 s{S_VOFF}, s7, {(4 if o.apf else 2) * 8192}
    v_lshlrev_b32 v{V_E+5}, 4, v{V_E+5}
    """)
    if o.t3: t3_setup(e, o)
    for r in range(20): e(f"v_mov_b32 v{V_BIAS + r}, 0")
    e(f"s_cmp_eq_u32 s{S_MODE}, 0")
    e(f"s_cbranch_scc0 L_maxpass_{name}")
    e.label(f"L_maxdone_{name}")
    if o.pf_late:
        e("s_waitcnt vmcnt(0) lgkmcnt(0)"); e("s_barrier"); e.vm = []; e.ds = []
        for n in range(3): e.fresh[f"F{n}"] = 0
        for n in range(3): run(e, kfrag(0, 0, n, n))
    attn_iter(e, o, -1, True, False, False, 1, '', True)
    stamp(e, o, "Titm1")
    if o.apf:
        attn_iter(e, o, 0, True, True, False, 1, 'K', True)
        attn_iter(e, o, 1, True, True, True, 1, 'K', True, first_pv=True)
        attn_iter(e, o, 2, True, True, True, 1, 'KV', True)
    else:
        attn_iter(e, o, 0, True, True, False, 1, 'KV', True)
        stamp(e, o, "Tit0")
        attn_iter(e, o, 1, True, True, True, 1, 'KV', True, first_pv=True)
        stamp(e, o, "Tit1")
        attn_iter(e, o, 2, True, True, True, 1, 'KV', True)
    stamp(e, o, "iter0_done")
    e(f"s_mov_b32 s{S_CNT}, 0")
    ds0 = list(e.ds)
    e.label(f"L_loop_{name}")
    if o.t3 and o.w_touch >= 0:
        e(f"s_cmp_eq_u32 s{S_CNT}, {o.w_touch}")
        e(f"s_cbranch_scc0 L_nowt_{name}")
        e(f"buffer_load_dword v{V_E + 1}, v{V_E}, s[56:59], 0 offen")
        if o.c_touch >= 2:
            vq = list(e.vm); code_touch(e, V_E + 2, V_E + 3, 1); e.vm = vq
        e.label(f"L_nowt_{name}")
    n0 = len(e.lines)
    redirect = [F('s', txt(f"s_cmp_eq_u32 s{S_CNT}, 5")), F('s', txt(f"s_sub_u32 s{S_T1}, s{S_KV}, 32768")),
                F('s', txt(f"s_cmp_eq_u32 s{S_CNT}, 5")), F('s', txt(f"s_cselect_b32 s{S_VDST}, s{S_T1}, s{S_VDST}"))]
    attn_iter(e, o, 3, True, True, True, 1, 'KV', True)
    if o.t3 and o.wo_early: run(e, redirect[1:])
    attn_iter(e, o, 4, True, True, True, 1, 'KV', True)
    import copy
    e2 = copy.deepcopy(e); n1 = len(e2.lines)
    attn_iter(e2, o, 5, True, True, True, 1, 'KV', True)
    if o.t3 and o.wo_early: run(e2, redirect[1:])
    attn_iter(e2, o, 6, True, True, True, 1, 'KV', True)
    assert e.lines[n0:n1] == e2.lines[n1:], "loop body is not in steady state"
    assert e.ds == ds0, (e.ds, ds0)
    e(f"s_add_u32 s{S_CNT}, s{S_CNT}, 1")
    e(f"s_cmp_lt_u32 s{S_CNT}, 6")
    e(f"s_cbranch_scc1 L_loop_{name}")
    e.ds_all()
    stamp(e, o, "loop_done")
    xdm = None
    if o.t3 and o.wo_early:
        e.vm = ['OLD']
        xdm = dma_wo(o, 0, 0, 0, 10**9, 3) + dma_wo(o, 0, 1, 12, 10**9, 3) + dma_wo(o, 0, 3, 24, 10**9, 3)
    attn_iter(e, o, 15, False, True, True, 0, '', False, extra_dm=xdm)
    stamp(e, o, "Tit15")
    if o.t3:
        t3_tail(e, o)
    else:
        attn_iter(e, o, 16, False, False, True, None, '', False, epi=epilogue_fill(o))
    stamp(e, o, "stores_issued")
    vote(e, o, name)
    if o.fuse:
        stamp(e, o, "Tsig")
        fused_reduce(e, o, name)
    if o.stamps: e("s_waitcnt vmcnt(0)")
    stamp(e, o, "end")
    if o.stamps:
        e(f"""
    s_memrealtime s[96:97]
    s_waitcnt lgkmcnt(0)
    s_lshl_b32 s3, s2, 2
    s_add_u32 s3, s3, s{S_W}
    s_lshl_b32 s3, s3, 7
    s_add_u32 s3, s3, {200*1024*1024}
    v_mov_b32 v30, s3
    s_mov_b64 exec, 1
    """)
        for k in range(14):
            e(f"v_mov_b32 v0, s{70 + 2*k}")
            e(f"v_mov_b32 v1, s{71 + 2*k}")
            e(f"global_store_dwordx2 v30, v[0:1], s[68:69] offset:{8*k}")
            e("s_nop 1")
        e("s_waitcnt vmcnt(0)")
        if o.dbg:
            e(f"""
    s_or_b32 s3, s2, s{S_W}
    s_cmp_eq_u32 s3, 0
    s_cbranch_scc0 L_end_{name}
    s_load_dwordx2 s[98:99], s[0:1], 88
    s_waitcnt lgkmcnt(0)
    v_mov_b32 v30, 0
    """)
            for k in range(1, 11):
                e(f"s_sub_u32 s3, s{70 + 2*k}, s70")
                e(f"v_mov_b32 v0, s3")
                e(f"global_store_dword v30, v0, s[98:99] offset:{4*k}")
                e("s_nop 1")
            e("s_sub_u32 s3, s96, s94")
            e("v_mov_b32 v0, s3")
            e("global_store_dword v30, v0, s[98:99] offset:0")
            e("s_waitcnt vmcnt(0)")
    e.label(f"L_end_{name}")
    e("s_endpgm")
    dsq, vmq = list(e.ds), list(e.vm)
    max_pass(e, o, name)
    e.label("CODE_END")
    return e.text() + kernel_desc(name, 512, 256)
```

```python
class Em:
    def __init__(self):
        self.lines = []
        self.ds = []
        self.vm = []
        self.fresh = {}; self.relax = set(); self.marks = set()
        self.vm_waited = set()
    def __call__(self, s):
        for l in s.split("\n"):
            l = l.rstrip()
            if l.strip():
                t = l.strip()
                if t.startswith("buffer_load") and t.endswith(" lds") and self.lines:
                    prev = self.lines[-1].strip()
                    if prev.startswith("s_") and prev.split(None, 1)[1].startswith("m0,"):
                        self.lines.append("    s_nop 0")
                self.lines.append(l if l.startswith(("L", ".", ";")) and (l.rstrip().endswith(":") or l.startswith((".", ";"))) else "    " + l.strip())
    def label(self, name):
        self.lines.append(name + ":")
    def comment(self, s):
        self.lines.append("    ; " + s)
    def ds_op(self, text, tag):
        self(text); self.ds.append(tag)
        self.fresh[tag] = self.fresh.get(tag, 0) + 1
    def check_emitted(self, tag):
        n = self.fresh.get(tag, 0)
        if tag[0] == 'F': want = 2 if ('_' in tag or int(tag[1:]) >= 8) else 1
        elif tag[0] == 'G': want = 2
        else: want = 1
        if tag in self.relax: want = n if n >= 1 else want
        assert n == want, ("fragment reads issued before its consumer", tag, n, want)
        self.fresh[tag] = 0
    def need_ds(self, tags):
        if isinstance(tags, str): tags = [tags]
        last = -1
        for i, t in enumerate(self.ds):
            if t in tags: last = i
        if last < 0: return False
        n = len(self.ds) - 1 - last
        assert n <= 15
        self(f"s_waitcnt lgkmcnt({n})")
        self.ds = self.ds[last + 1:]
        return True
    def ds_all(self):
        self("s_waitcnt lgkmcnt(0)"); self.ds = []
    def vm_op(self, text, tag):
        assert tag not in self.vm_waited, ("vector-memory op issued after the wait that covers it", tag)
        self(text); self.vm.append(tag)
    def need_vm(self, tags):
        if isinstance(tags, str): tags = [tags]
        self.vm_waited.update(tags)
        last = -1
        for i, t in enumerate(self.vm):
            if t in tags: last = i
        if last < 0: return False
        n = len(self.vm) - 1 - last
        assert n <= 63, n
        self(f"s_waitcnt vmcnt({n})")
        self.vm = self.vm[last + 1:]
        return True
    def vm_all(self):
        self("s_waitcnt vmcnt(0)"); self.vm = []
    def text(self):
        return "\n".join(self.lines) + "\n"

class Fill:
    def __init__(self, fn, cost=4, after=-1, before=10**9, name=""):
        self.fn = fn; self.cost = cost; self.after = after; self.before = before; self.name = name

class Main:
    def __init__(self, text, needs=None, pre=None):
        self.text = text; self.needs = needs or []; self.pre = pre

def zipper(em, mains, queues, gap=8, carry_max=16, flush_nop=False):
    qs = [list(q) for q in queues]
    budget = 0
    for idx, m in enumerate(mains):
        for q in qs:
            while q and q[0].before <= idx:
                f = q.pop(0); f.fn(em); budget -= f.cost
        if m.pre:
            n0 = len(em.lines); m.pre(em); budget -= 4 * (len(em.lines) - n0)
        if m.needs:
            if em.need_ds(m.needs): budget -= 4
        em(m.text)
        budget = min(budget + gap, gap + carry_max)
        progress = True
        while progress:
            progress = False
            for q in qs:
                if q and q[0].after <= idx and q[0].cost <= budget:
                    f = q.pop(0); f.fn(em); budget -= f.cost; progress = True
                    break
    if flush_nop and any(qs): em("s_nop 7")
    for q in qs:
        for f in q: f.fn(em)

class F:
    __slots__ = ("kind", "fn0", "after", "before", "dep", "mark")
    def __init__(self, kind, fn, after=-1, before=10**9, dep=None, mark=None):
        self.kind = kind; self.fn0 = fn; self.after = after; self.before = before
        self.dep = dep; self.mark = mark
    def fn(self, em):
        assert self.dep is None or self.dep in em.marks, ("filler emitted before what it depends on", self.dep)
        self.fn0(em)
        if self.mark is not None: em.marks.add(self.mark)

def txt(s):
    return lambda e: e(s)

def zip2(em, mains, queues, flush_nop=False, urgency=3, dense=None, vmax=3, lgap=0, lfirst=False):
    qs = [list(q) for q in queues]
    N = len(mains)
    last_l = [-100]
    def head(q, idx):
        return q[0] if q and q[0].after <= idx and (q[0].dep is None or q[0].dep in em.marks) else None
    for idx, m in enumerate(mains):
        for q in sorted(qs, key=lambda q_: any(f.dep is not None for f in q_)):
            last = -1
            for k, f in enumerate(q):
                if f.before <= idx: last = k
            for k in range(last + 1):
                f = q.pop(0)
                assert f.after < idx or f.before <= idx and f.after <= idx, ("forced before its earliest slot", idx, f.after, f.before)
                f.fn(em)
        if m.pre: m.pre(em)
        if m.needs:
            for t in m.needs: em.check_emitted(t)
            em.need_ds(m.needs)
        em(m.text)
        nsc = 0
        if idx + 1 < N and mains[idx + 1].needs and not mains[idx + 1].pre:
            if em.need_ds(mains[idx + 1].needs): nsc += 1
        def take_scalars(limit):
            nonlocal nsc
            prog = True
            while prog and nsc < limit:
                prog = False
                for q in qs:
                    h = head(q, idx)
                    if h and h.kind == 's':
                        q.pop(0).fn(em); nsc += 1; prog = True
                        break
        def find(kinds, urgent_only=False):
            for q in qs:
                h = head(q, idx)
                if h and h.kind in kinds and (not urgent_only or h.before <= idx + urgency):
                    return q
            return None
        take_scalars(1)
        qd_urg = find('d', True); ql_urg = find('l', True)
        qe = find('e'); qd = find('d'); qv = find('v'); ql = find('l')
        if ql is not None and idx - last_l[0] < lgap and not ql_urg: ql = None
        choice = None
        if qd_urg: choice = 'd'
        elif ql_urg and nsc <= 1: choice = 'l'
        elif qd and qv: choice = 'd'
        elif not qe:
            if lfirst and ql and nsc <= 1: choice = 'l'
            elif qd: choice = 'd'
            elif ql and nsc <= 1: choice = 'l'
            elif qv: choice = 'v'
        elif ql and nsc <= 1: choice = 'l'
        elif nsc <= 1: choice = 'e'
        elif qd: choice = 'd'
        elif qv: choice = 'v'
        if choice == 'e':
            qe.pop(0).fn(em)
        elif choice == 'l':
            (ql_urg if (ql_urg and ql is None) else ql).pop(0).fn(em); last_l[0] = idx
        elif choice == 'd':
            q = qd_urg or qd
            if nsc == 0: take_scalars(1)
            q.pop(0).fn(em)
            if nsc <= 1:
                qv = find('v')
                if qv: qv.pop(0).fn(em)
        elif choice == 'v':
            take_scalars(2)
            qv = find('v') if False else qv
            if qv and qv[0].kind == 'v' and qv[0].after <= idx: qv.pop(0).fn(em)
        else:
            take_scalars(3)
        if dense is not None and choice in ('v', 'd', None):
            q = qs[dense]
            n_v = 1
            while n_v < vmax and q and q[0].kind == 'v' and q[0].after <= idx:
                dl = None; cnt = 0
                for f in q:
                    cnt += 1
                    if f.before < 10**9 and cnt > (f.before - idx - 1):
                        dl = f.before; break
                    if cnt > 120: break
                if dl is None: break
                q.pop(0).fn(em); n_v += 1
    if flush_nop and any(qs): em("s_nop 7")
    for q in sorted(qs, key=lambda q_: any(f.dep is not None for f in q_)):
        for f in q: f.fn(em)
```

```python
from common import *
from sched import *

KRING = 0
VRING = 98304
WQ0 = 32768; WQ_HEAD = 8224; WQ_SLOT = 2 * WQ_HEAD
X0 = 82176; X_SLOT = 20480
LDS_BYTES = 163840
VTOG = 0x38000
S_W, S_HH, S_RH = 4, 5, 6
SRD_X, SRD_WQ, SRD_K, SRD_V, SRD_O = 8, 12, 16, 20, 24
S_T0, S_T1 = 32, 33
S_WQL, S_XL, S_XG, S_WQG = 35, 36, 37, 38
S_KDST, S_VDST, S_KOFF, S_VOFF, S_CNT = 40, 41, 42, 43, 44
S_IDX, S_HG, S_B, S_BR, S_H = 45, 46, 47, 48, 49
S_SC = 50
S_KV = 39; S_WQK = 51; S_XK = 34; S_PT = 7
V_Q = 0
V_XB = [0, 20]
V_AW = 40
V_AX = 44
V_OWQ = 46
V_OX = 50
V_T = 56
V_ACC = 80
V_S = [80, 120]
V_P = [160, 180]
V_OV = 200
V_E = 202
V_OV0 = 70
V_AK = 240; V_AV = 244; V_OK = 252
A_O = 0; A_L = 160; A_ONE = 180; A_F = 184
A_SAVE = 216
SRD_WO, SRD_P = 28, 24
S_WA, S_WB, S_WL = 52, 53, 54
POFF = 32 * 1024 * 1024
WRING = 98304
V_OW = 232
V_AW2 = 236
V_XA = 231
A_ACC2 = [0, 80]
V_BIAS = 208
S_MODE = 92
S_BAD = 64
R_LO, R_HI = 0x27800000, 0x4f800000

def acc(dt, qt): return V_ACC + (dt * 5 + qt) * 4
def qf(j, qt): return V_Q + (j * 5 + qt) * 4
def sreg(par, kt, qt): return V_S[par] + (kt * 5 + qt) * 4
def preg(par, qt): return V_P[par] + qt * 4
def oacc(dt, qt): return A_O + (dt * 5 + qt) * 4
def fbuf(n): return A_F + 4 * (n % 8)

class Opt:
    kv_flag = "nt"
    q_flag = ""
    o_flag = ""
    stamps = False
    pre_all = True
    pf_start = 0
    pf_per = 3
    pf_late = False
    pf_steps = ""
    q_nodma = False
    q_nowait = False
    q_nobar = False
    q_nods = False
    q_nowq = False
    q_nox = False
    rotg = 8
    rot = True
    pace = 4
    apf = True
    stamp_list = ""
    stamp_set = "q"
    fuse = False
    spin_sleep = 1
    nosync = False
    r_depth = 12
    r_loop = False
    r_flag = "sc1"
    cnt_ws = False
    t3 = True
    p_flag = ""
    w_flag = ""
    c_k3_at = 3
    c_k3 = 0
    c_early = 0
    c_touch = 0
    acc_hi = True
    vmax = 3
    wo_early = True
    skew = 0
    tlb = 0
    q_ahead = False
    q_lfirst = False
    q_urg = 3
    few_bar = False
    q_lgap = 0
    t_lgap = 0
    w_pace = 2
    kv_pace = 0
    t3_nostore = False
    t3_nodma = False
    w_touch = -1
    dbg = False

NSTAMP = [0]
NSK = [0]
def stamp(e, o, tag):
    if not o.stamps: return
    if o.stamp_list:
        if tag not in o.stamp_list.split(","): return
        k = NSTAMP[0]; NSTAMP[0] += 1
        assert k < 11
        e.comment("stamp " + tag)
        e(f"s_memtime s[{70 + 2*k}:{71 + 2*k}]")
        return
    early = tag in ("issued", "bar0", "B3", "B9", "qconv")
    late = tag.startswith("T")
    if (o.stamp_set == "tail" and early) or (o.stamp_set != "tail" and late): return
    if o.fuse and o.stamp_set != "tail" and tag == "stores_issued": pass
    k = NSTAMP[0]; NSTAMP[0] += 1
    assert k < 12
    e.comment("stamp " + tag)
    e(f"s_memtime s[{70 + 2*k}:{71 + 2*k}]")

def prologue(e, o, name):
    e(f"""
    s_cmp_ge_u32 s2, 256
    s_cbranch_scc1 L_end_{name}
    s_mov_b32 s{S_MODE}, 0
    """)
    if o.c_early: code_touch_early(e, o, name)
    e(f"""
L_restart_{name}:
    s_load_dwordx8 s[52:59], s[0:1], 0       ; A_x A_k A_v A_wq
    s_load_dwordx8 s[60:67], s[0:1], 40      ; B_x B_k B_v B_wq
    s_load_dwordx2 s[68:69], s[0:1], 96      ; ws
    s_load_dwordx2 s[98:99], s[0:1], 32      ; A_wo
    s_load_dwordx2 s[100:101], s[0:1], 72    ; B_wo
    v_lshrrev_b32 v{V_T}, 6, v0
    v_and_b32 v{V_T+1}, 63, v0               ; lane
    v_readfirstlane_b32 s{S_W}, v{V_T}
    s_and_b32 s3, s2, 7
    s_lshr_b32 s{S_IDX}, s2, 3
    s_lshr_b32 s{S_BR}, s3, 2
    s_and_b32 s{S_HG}, s3, 3
    s_lshr_b32 s{S_B}, s{S_IDX}, 2
    s_and_b32 s7, s{S_IDX}, 3
    s_lshr_b32 s{S_HH}, s{S_W}, 1
    s_and_b32 s{S_RH}, s{S_W}, 1
    s_lshl_b32 s{S_H}, s{S_HG}, 3
    s_lshl_b32 s7, s7, 1
    s_add_u32 s{S_H}, s{S_H}, s7
    s_add_u32 s{S_H}, s{S_H}, s{S_HH}
    """)
    if o.stamps:
        e("s_memrealtime s[94:95]")
    stamp(e, o, "start")
    L = V_T + 1
    c, g, rp, cp, t0, t1 = V_T + 2, V_T + 3, V_T + 4, V_T + 5, V_T + 6, V_T + 7
    e(f"""
    v_and_b32 v{c}, 15, v{L}
    v_lshrrev_b32 v{g}, 4, v{L}
    v_bfe_u32 v{rp}, v{L}, 2, 2
    v_and_b32 v{cp}, 3, v{L}
    """)
    e(f"""
    v_lshlrev_b32 v{t0}, 2, v{g}
    v_xor_b32 v{t0}, v{t0}, v{c}
    v_lshlrev_b32 v{t0}, 4, v{t0}
    v_lshl_add_u32 v{V_OWQ}, v{g}, 13, v{t0}
    """)
    for u in range(1, 4):
        e(f"v_add_u32 v{V_OWQ+u}, {u * 32768 - wq_imm(u)}, v{V_OWQ}")
    e(f"""
    v_and_b32 v{t0}, 7, v{L}
    v_xor_b32 v{t0}, v{t0}, v{g}
    v_lshlrev_b32 v{t0}, 4, v{t0}
    v_lshrrev_b32 v{t1}, 3, v{L}
    v_lshl_add_u32 v{t0}, v{t1}, 10, v{t0}
    s_and_b32 s3, s{S_W}, 1
    s_lshl_b32 s3, s3, 6
    v_xor_b32 v{t0}, s3, v{t0}
    v_xor_b32 v{t1}, 64, v{t0}
    """)
    for u in range(5):
        src = t0 if u % 2 == 0 else t1
        e(f"v_add_u32 v{V_OX+u}, {u * 8192 - (u & 3) * 1024}, v{src}")
    e(f"""
    v_xor_b32 v{t0}, v{c}, v{g}
    v_lshlrev_b32 v{t0}, 4, v{t0}
    v_lshl_add_u32 v{V_OK}, v{g}, 8, v{t0}
    v_xor_b32 v{V_OK+1}, 64, v{V_OK}
    v_xor_b32 v{V_OK+2}, 0x80, v{V_OK}
    v_xor_b32 v{V_OK+3}, 0xc0, v{V_OK}
    """)
    e(f"""
    v_lshlrev_b32 v{t0}, 1, v{g}
    v_xor_b32 v{t0}, v{t0}, v{c}
    v_lshlrev_b32 v{t0}, 4, v{t0}
    v_lshl_add_u32 v{V_OV0}, v{g}, 8, v{t0}
    v_xor_b32 v{V_OV0+1}, 0x80, v{V_OV0}
    """)
    e(f"""
    s_mul_i32 s3, s{S_HH}, {WQ_HEAD}
    s_add_u32 s3, s3, {WQ0}
    v_mul_u32_u24 v{t0}, 2056, v{g}
    v_lshl_add_u32 v{t0}, v{rp}, 8, v{t0}
    v_lshl_add_u32 v{t0}, v{cp}, 4, v{t0}
    v_add_u32 v{t0}, s3, v{t0}
    s_mul_i32 s7, s{S_RH}, {4 * 1024 + 16}
    s_add_u32 s{S_WQL}, s3, s7
    s_lshl_b32 s{S_WQG}, s{S_RH}, 17
    """)
    for j in range(4):
        e(f"""
    v_xor_b32 v{t1}, {j}, v{rp}
    v_lshl_add_u32 v{V_AW+j}, v{t1}, 6, v{t0}""")
    e(f"""
    s_mul_i32 s3, s{S_RH}, {80*128}
    s_add_u32 s3, s3, {X0}
    v_lshrrev_b32 v{t0}, 1, v{c}
    v_xor_b32 v{t0}, v{t0}, v{g}
    v_lshlrev_b32 v{t0}, 4, v{t0}
    v_lshl_add_u32 v{t0}, v{c}, 7, v{t0}
    v_add_u32 v{V_AX}, s3, v{t0}
    v_xor_b32 v{V_AX+1}, 64, v{V_AX}
    s_mul_i32 s{S_XL}, s{S_W}, 5120
    s_add_u32 s{S_XL}, s{S_XL}, {X0}
    s_mul_i32 s{S_XG}, s{S_W}, 40960
    """)
    e(f"""
    s_lshl_b32 s3, s{S_HH}, 13
    s_lshl_b32 s7, s{S_RH}, 12
    s_add_u32 s{S_KV}, s3, s7
    v_xor_b32 v{t0}, v{g}, v{c}
    v_lshlrev_b32 v{t0}, 4, v{t0}
    v_lshl_add_u32 v{t0}, v{c}, 8, v{t0}
    v_add_u32 v{V_AK}, s3, v{t0}
    v_xor_b32 v{V_AK+1}, 64, v{V_AK}
    v_xor_b32 v{V_AK+2}, 0x80, v{V_AK}
    v_xor_b32 v{V_AK+3}, 0xc0, v{V_AK}
    """)
    e(f"""
    v_lshlrev_b32 v{V_APA}, 4, v{L}
    v_add_u32 v{V_APA}, s{S_KV}, v{V_APA}
    v_add_u32 v{V_APA+1}, {VRING}, v{V_APA}
    """)
    e(f"""
    s_add_u32 s3, s3, 0x20000
    v_lshl_add_u32 v{t0}, v{g}, 2, v{rp}       ; 4g + r'
    v_and_b32 v{t1}, 7, v{t0}                  ; rho7
    v_lshlrev_b32 v{t0}, 8, v{t0}
    v_lshl_add_u32 v{t0}, v{t1}, 5, v{t0}
    v_lshl_add_u32 v{t0}, v{cp}, 3, v{t0}
    v_add_u32 v{V_AV}, s3, v{t0}
    """)
    for dt in range(1, 8):
        e(f"v_xor_b32 v{V_AV+dt}, {32*dt}, v{V_AV}")
    e(f"""
    s_waitcnt lgkmcnt(0)
    s_cmp_eq_u32 s{S_BR}, 0
    s_cselect_b32 s52, s52, s60
    s_cselect_b32 s53, s53, s61
    s_cselect_b32 s54, s54, s62
    s_cselect_b32 s55, s55, s63
    s_cselect_b32 s56, s56, s64
    s_cselect_b32 s57, s57, s65
    s_cselect_b32 s58, s58, s66
    s_cselect_b32 s59, s59, s67
    s_lshl_b32 s3, s{S_H}, 8
    s_add_u32 s{SRD_WQ}, s58, s3
    s_addc_u32 s{SRD_WQ+1}, s59, 0
    s_sub_u32 s{SRD_WQ+2}, 4194304, s3
    s_mov_b32 s{SRD_WQ+3}, 0x20000
    s_mul_i32 s3, s{S_B}, 163840
    s_add_u32 s{SRD_X}, s52, s3
    s_addc_u32 s{SRD_X+1}, s53, 0
    s_mov_b32 s{SRD_X+2}, 163840
    s_mov_b32 s{SRD_X+3}, 0x20000
    """)
    if o.rot and o.rotg > 1:
        G = o.rotg
        e(f"""
    s_and_b32 s3, s{S_IDX}, 3                ; p
    s_lshl_b32 s3, s3, {1 if G == 8 else 0}
    s_add_u32 s3, s3, s{S_B}
    s_and_b32 s3, s3, {G - 1}
    s_mul_i32 s3, s3, {8 // G}
    s_lshl_b32 s{S_WQK}, s3, 7
    s_lshl_b32 s3, s3, 19                    ; 64 rows * 8192
    s_add_u32 s{S_WQG}, s{S_WQG}, s3
    """)
    else:
        e(f"s_mov_b32 s{S_WQK}, 0")

def prologue2(e, o):
    e(f"""
    s_lshl_b32 s3, s{S_B}, 5
    s_add_u32 s3, s3, s{S_H}
    s_lshl_b32 s3, s3, 17
    s_add_u32 s{SRD_K}, s54, s3
    s_addc_u32 s{SRD_K+1}, s55, 0
    s_mov_b32 s{SRD_K+2}, 131072
    s_mov_b32 s{SRD_K+3}, 0x20000
    s_add_u32 s{SRD_V}, s56, s3
    s_addc_u32 s{SRD_V+1}, s57, 0
    s_mov_b32 s{SRD_V+2}, 131072
    s_mov_b32 s{SRD_V+3}, 0x20000
    s_lshl_b32 s3, s{S_BR}, 3
    s_add_u32 s3, s3, s{S_B}
    s_lshl_b32 s3, s3, 1
    s_add_u32 s3, s3, s{S_RH}
    s_lshl_b32 s3, s3, 5
    s_add_u32 s3, s3, s{S_H}
    s_mul_i32 s3, s3, 20480
    s_add_u32 s{SRD_O}, s68, s3
    s_addc_u32 s{SRD_O+1}, s69, 0
    s_mov_b32 s{SRD_O+2}, 20480
    s_mov_b32 s{SRD_O+3}, 0x20000
    s_mov_b32 s{S_SC}, {f32hex(C_SCALE)}
    """)

def wq_imm(u): return u * 1024 + 8 * (u >> 1)

def dma_wq(o, m, after=-1, before=10**9, pace=0):
    fl = [F('s', txt(f"s_add_u32 m0, s{S_WQL}, {(m % 3) * WQ_SLOT}"), after, before)]
    for u in range(4):
        fl.append(F('l', lambda e, u=u: e.vm_op(f"buffer_load_dwordx4 v{V_OWQ+u}, s[{SRD_WQ}:{SRD_WQ+3}], s{S_WQG} offen offset:{wq_imm(u)} {o.q_flag} lds", f"wq{m}"), after + pace * u, before))
    fl.append(F('s', txt(f"s_add_u32 s{S_WQG}, s{S_WQG}, {32 * 8192}"), after, before))
    fl.append(F('s', txt(f"s_and_b32 s{S_WQG}, s{S_WQG}, 0x3fffff"), after, before))
    return fl

def dma_x(o, M, after=-1, before=10**9, pace=0):
    fl = [F('s', txt(f"s_add_u32 m0, s{S_XL}, {(M % 2) * X_SLOT}"), after, before),
          F('s', txt(f"s_add_u32 s{S_T1}, s{S_XG}, s{S_WQK}"), after, before)]
    for u in range(5):
        if u == 4: fl.append(F('s', txt(f"s_add_u32 m0, s{S_XL}, {(M % 2) * X_SLOT + 4096}"), after, before))
        if u == 4: fl.append(F('s', txt("s_nop 0"), after, before))
        fl.append(F('l', lambda e, u=u: e.vm_op(f"buffer_load_dwordx4 v{V_OX+u}, s[{SRD_X}:{SRD_X+3}], s{S_T1} offen offset:{(u & 3) * 1024} {o.q_flag} lds", f"x{M}"), after + pace * u, before))
    fl.append(F('s', txt(f"s_add_u32 s{S_WQK}, s{S_WQK}, 128"), after, before))
    fl.append(F('s', txt(f"s_and_b32 s{S_WQK}, s{S_WQK}, 0x3ff"), after, before))
    return fl

def dma_pref(o, which, s, after=-1, before=10**9, pace=0):
    if which == 'K':
        base = KRING + 16384 * s; srd = SRD_K; vo = lambda t: V_OK + t
    else:
        base = 0x20000 + 16384 * s; srd = SRD_V; vo = lambda t: V_OV0 + (t & 1)
    fl = [F('s', txt(f"s_add_u32 m0, s{S_KV}, {base}"), after, before),
          F('s', txt(f"s_lshl_b32 s34, s{S_RH}, 12"), after, before),
          F('s', txt(f"s_add_u32 s34, s34, {s * 8192}"), after, before)]
    for t in range(4):
        fl.append(F('l', lambda e, t=t: e.vm_op(f"buffer_load_dwordx4 v{vo(t)}, s[{srd}:{srd+3}], s34 offen offset:{t * 1024} {o.kv_flag} lds", f"{which}{s}"), after + pace * t, before))
    return fl

APF = {('K', 2): 0, ('K', 3): 16, ('V', 2): 32, ('V', 3): 48}
def dma_apf(o, which, s, after=-1, before=10**9, pace=0):
    srd = SRD_K if which == 'K' else SRD_V
    vo = (lambda t: V_OK + t) if which == 'K' else (lambda t: V_OV0 + (t & 1))
    fl = [F('s', txt(f"s_lshl_b32 s34, s{S_RH}, 12"), after, before),
          F('s', txt(f"s_add_u32 s34, s34, {s * 8192}"), after, before)]
    for t in range(4):
        a = APF[(which, s)] + 4 * t
        fl.append(F('l', lambda e, t=t, a=a: e.vm_op(f"buffer_load_dwordx4 a[{a}:{a+3}], v{vo(t)}, s[{srd}:{srd+3}], s34 offen offset:{t * 1024} {o.kv_flag}", f"{which}{s}"), after + pace * t, before))
    return fl
V_APA = 72
def apf_copy(after):
    fl = []
    for (which, s), a0 in APF.items():
        for t in range(4):
            a = a0 + 4 * t
            if which == 'K': txt_ = f"ds_write_b128 v{V_APA}, a[{a}:{a+3}] offset:{KRING + 16384 * s + 1024 * t}"
            else: txt_ = f"ds_write_b128 v{V_APA+1}, a[{a}:{a+3}] offset:{16384 * (s - 2) + 1024 * t}"
            fl.append(F('d', lambda e, txt_=txt_: e.ds_op(txt_, "APF"), after))
    return fl

def zero_acc(e):
    e(f"v_mov_b32 v{V_T+8}, 0x3f803f80")
    for r in range(4):
        e(f"v_accvgpr_write_b32 a{A_ONE + r}, v{V_T+8}")

def code_touch_early(e, o, name):
    e("s_getpc_b64 s[66:67]")
    e.label(f"L_pce_{name}")
    e(f"s_sub_u32 s66, s66, L_pce_{name}-{name}")
    e("s_subb_u32 s67, s67, 0")
    if o.c_early == 1:
        e("v_lshlrev_b32 v74, 7, v0")
        e(f"v_min_u32 v75, CODE_END-{name}-4, v74")
        e.vm_op("global_load_dword v76, v75, s[66:67]", "ce")
        e("v_add_u32 v74, 0x8000, v74")
        e(f"v_min_u32 v75, CODE_END-{name}-4, v74")
        e.vm_op("global_load_dword v77, v75, s[66:67]", "ce")
    elif o.c_early == 2:
        e("v_and_b32 v74, 63, v0")
        e("v_lshlrev_b32 v74, 7, v74")
        e.vm_op("global_load_dword v76, v74, s[66:67]", "ce")
        e("s_lshr_b32 s3, s2, 3")
        e("s_lshl_b32 s3, s3, 11")
        e("v_and_b32 v74, 15, v0")
        e("v_lshlrev_b32 v74, 7, v74")
        e("v_add_u32 v74, s3, v74")
        e(f"v_min_u32 v75, CODE_END-{name}-4, v74")
        e.vm_op("global_load_dword v77, v75, s[66:67]", "ce")
    elif o.c_early == 3:
        e("v_lshlrev_b32 v74, 7, v0")
        e(f"v_min_u32 v75, CODE_END-{name}-4, v74")
        e.vm_op("global_load_dword v76, v75, s[66:67]", "ce")
        e("s_lshr_b32 s3, s2, 3")
        e("s_lshl_b32 s3, s3, 9")
        e("s_add_u32 s3, s3, 0x8000")
        e("v_and_b32 v74, 3, v0")
        e("v_lshlrev_b32 v74, 7, v74")
        e("v_add_u32 v74, s3, v74")
        e(f"v_min_u32 v75, CODE_END-{name}-4, v74")
        e.vm_op("global_load_dword v77, v75, s[66:67]", "ce")

def code_touch(e, va, vd, first):
    e("s_getpc_b64 s[66:67]")
    e.label(f"L_pc{first}_{CODE_NAME[0]}")
    e(f"s_sub_u32 s66, s66, L_pc{first}_{CODE_NAME[0]}-{CODE_NAME[0]}")
    e("s_subb_u32 s67, s67, 0")
    e(f"s_lshl_b32 s3, s{S_IDX}, 11")
    e(f"v_mbcnt_lo_u32_b32 v{va}, -1, 0")
    e(f"v_mbcnt_hi_u32_b32 v{va}, -1, v{va}")
    e(f"v_and_b32 v{va}, 15, v{va}")
    e(f"v_lshlrev_b32 v{va}, 7, v{va}")
    e(f"v_add_u32 v{va}, s3, v{va}")
    e(f"v_min_u32 v{va}, CODE_END-{CODE_NAME[0]}-4, v{va}")
    e.vm_op(f"global_load_dword v{vd}, v{va}, s[66:67]", "ctouch")

CODE_NAME = [""]
def run(e, fl):
    for f in fl: f.fn(e)

def qphase(e, o):
    run(e, dma_wq(o, 0) + dma_x(o, 0) + dma_wq(o, 1))
    if o.pre_all: run(e, dma_wq(o, 2) + dma_x(o, 1))
    prologue2(e, o)
    if o.c_touch: code_touch(e, V_T + 9, V_T + 10, 0)
    if o.tlb:
        e(f"""
    s_lshl_b32 s3, s{S_BR}, 3
    s_add_u32 s3, s3, s{S_B}
    s_lshl_b32 s3, s3, 4
    s_lshr_b32 s7, s{S_H}, 1
    s_add_u32 s3, s3, s7
    s_mul_i32 s3, s3, 163840
    s_add_u32 s3, s3, {POFF}
    s_add_u32 s28, s68, s3
    s_addc_u32 s29, s69, 0
    s_mov_b32 s30, 163840
    s_mov_b32 s31, 0x20000
    v_mov_b32 v78, 0
    """)
        if o.tlb & 1: e.vm_op(f"buffer_load_dword v79, v78, s[28:31], 0 offen", "tlb")
        if o.tlb & 2:
            e.vm_op(f"buffer_load_dword v79, v78, s[{SRD_K}:{SRD_K+3}], 0 offen", "tlb")
            e.vm_op(f"buffer_load_dword v79, v78, s[{SRD_V}:{SRD_V+3}], 0 offen", "tlb")
    stamp(e, o, "issued")
    zero_acc(e)
    idx = lambda m, dt, qt: 40 * m + 5 * dt + qt
    def wfrag(m, dt, after=-1, before=10**9):
        j, tp = dt >> 1, dt & 1
        return [F('d', lambda e, n=n: e.ds_op(f"ds_read_b64_tr_b16 a[{fbuf(dt) + 2 * n}:{fbuf(dt) + 2 * n + 1}], v{V_AW + j} offset:{(m % 3) * WQ_SLOT + n * 1024 + 8 * tp}", f"F{m}_{dt}"), after, before) for n in range(2)]
    def xfrag(m, qt, after=-1, before=10**9):
        M, h = m >> 1, m & 1
        b = V_XB[m & 1] + 4 * qt
        return [F('d', lambda e: e.ds_op(f"ds_read_b128 v[{b}:{b+3}], v{V_AX + h} offset:{(M % 2) * X_SLOT + qt * 2048}", f"B{m}_{qt}"), after, before)]
    def barrier(m):
        def fn(e):
            e.ds_all()
            tags = [f"wq{m+1}"]
            if (m + 1) % 2 == 0: tags.append(f"x{(m+1)//2}")
            if m == 15:
                e.vm_all()
            elif not o.q_nowait or m < 0:
                e.need_vm(tags)
            if not o.q_nobar or m in (-1, 15): e("s_barrier")
            if o.skew and -1 <= m < 15:
                n_ = NSK[0]; NSK[0] += 1
                e(f"s_cmp_eq_u32 s{S_W}, 0")
                e(f"s_cbranch_scc1 L_sk{n_}")
                e(f"s_nop {o.skew - 1}")
                e(f"s_cmp_eq_u32 s{S_W}, 1")
                e(f"s_cbranch_scc1 L_sk{n_}")
                e(f"s_nop {o.skew - 1}")
                e(f"s_cmp_eq_u32 s{S_W}, 2")
                e(f"s_cbranch_scc1 L_sk{n_}")
                e(f"s_nop {o.skew - 1}")
                e.label(f"L_sk{n_}")
            stamp(e, o, f"B{m}") if (o.stamp_list or m in (3, 9)) else None
        return fn
    barrier(-1)(e)
    stamp(e, o, "bar0")
    def nextfrags(m, after, before):
        fl = wfrag(m, 0, after, before)
        for q in range(5): fl += xfrag(m, q, after, before)
        return fl + wfrag(m, 1, after, before) + wfrag(m, 2, after, before)
    run(e, nextfrags(0, -1, 0))
    mains = []; rd = []; dm = []
    pref = [('K', 0), ('K', 1), ('V', 0), ('V', 1)]
    if o.apf: pref += [('K', 2), ('K', 3), ('V', 2), ('V', 3)]
    tnext = [0]
    for m in range(16):
        for dt in range(8):
            for qt in range(5):
                cin = "0" if m == 0 else vr(acc(dt, qt), 4)
                needs = []
                if qt == 0: needs.append(f"F{m}_{dt}")
                if dt == 0: needs.append(f"B{m}_{qt}")
                pre = barrier(m) if (dt == 5 and qt == 0) else None
                mains.append(Main(f"{MFMA} {vr(acc(dt, qt), 4)}, {ar(fbuf(dt), 4)}, {vr(V_XB[m & 1] + 4 * qt, 4)}, {cin}", needs, pre))
        if o.q_ahead:
            if m == 0:
                for dt in (3, 4, 5, 6, 7): rd += wfrag(0, dt, -1, idx(0, min(dt - 1, 4), 0))
            if m < 15:
                a_ = idx(m, 5, 0)
                rd += nextfrags(m + 1, a_, idx(m, 7, 4))
                for dt in (3, 4): rd += wfrag(m + 1, dt, a_, idx(m + 1, dt - 2, 0))
                for dt in (5, 6, 7): rd += wfrag(m + 1, dt, idx(m, dt, 4), idx(m + 1, min(dt - 2, 4), 0))
        else:
            for dt in (3, 4, 5):
                rd += wfrag(m, dt, idx(m, dt - 3, 0), idx(m, dt - 1, 0))
            for dt in (6, 7):
                rd += wfrag(m, dt, idx(m, 2, 2), idx(m, 4, 3))
            if m < 15:
                rd += nextfrags(m + 1, idx(m, 5, 0), idx(m, 7, 4))
        a = idx(m, 5, 0); b = idx(m + 1, 5, 0) if m < 15 else 10**9
        if m == 0 and not o.pre_all:
            dm += dma_wq(o, 2, -1, idx(0, 4, 0)) + dma_x(o, 1, -1, idx(0, 4, 4))
        t = max(a, tnext[0])
        if m + 3 < 16 and not o.q_nodma and not o.q_nowq:
            dm += dma_wq(o, m + 3, t, b, o.pace); t += 4 * o.pace
        if m % 2 == 1 and (m - 1) // 2 + 2 < 8 and not o.q_nodma and not o.q_nox:
            dm += dma_x(o, (m - 1) // 2 + 2, t, idx(m + 2, 4, 0) if m < 14 else 10**9, o.pace); t += 5 * o.pace
        for n_, (w, s) in enumerate(pref):
            when = int(o.pf_steps.split(",")[n_]) if o.pf_steps else min(o.pf_start + n_ * o.pf_per, 15 if o.pf_late else 13)
            if m == when:
                fn_ = dma_pref if s < 2 else dma_apf
                dm += fn_(o, w, s, t, idx(m + 2, 5, 0) if m < 14 else 10**9, o.pace); t += 4 * o.pace
        tnext[0] = t
        if m == 15 and o.apf:
            rd += apf_copy(a)
        if m == 15 and not o.apf:
            for s in (2, 3):
                dm += [F('s', txt(f"s_add_u32 m0, s{S_KV}, {KRING + 16384 * s}"), a),
                       F('s', txt(f"s_lshl_b32 s34, s{S_RH}, 12"), a),
                       F('s', txt(f"s_add_u32 s34, s34, {s * 8192}"), a)]
                for t in range(4):
                    dm.append(F('l', lambda e, t=t, s=s: e.vm_op(f"buffer_load_dwordx4 v{V_OK + t}, s[{SRD_K}:{SRD_K+3}], s34 offen offset:{t * 1024} {o.kv_flag} lds", f"K{s}"), a))
    if o.q_nods: rd = []
    zip2(e, mains, [rd, dm], lgap=o.q_lgap, lfirst=o.q_lfirst, urgency=o.q_urg)

def qconvert(e):
    e("s_nop 7")
    for r in range(V_ACC, V_ACC + 160, 2):
        e(f"v_pk_mul_f32 v[{r}:{r+1}], v[{r}:{r+1}], s[{S_SC}:{S_SC+1}] op_sel_hi:[1,0]")
    for j in range(4):
        for qt in range(5):
            for tp in range(2):
                a0 = acc(2 * j + tp, qt); d = qf(j, qt) + 2 * tp
                e(f"v_cvt_pk_bf16_f32 v{d}, v{a0}, v{a0+1}")
                e(f"v_cvt_pk_bf16_f32 v{d+1}, v{a0+2}, v{a0+3}")

def dma_kv(o, which, after0, i):
    fl = []
    P = o.kv_pace
    after = after0
    if 'K' in which:
        fl.append(F('s', txt(f"s_mov_b32 m0, s{S_KDST}"), after))
        fl.append(F('s', txt(f"s_add_u32 s{S_KDST}, s{S_KDST}, 16384"), after))
        for t in range(4):
            fl.append(F('l', lambda e, t=t: e.vm_op(f"buffer_load_dwordx4 v{V_OK + t}, s[{SRD_K}:{SRD_K+3}], s{S_KOFF} offen offset:{t * 1024} {o.kv_flag} lds", f"K{i+4}"), after))
            after += P
        fl.append(F('s', txt(f"s_and_b32 s{S_KDST}, s{S_KDST}, 0xffff"), after0))
        fl.append(F('s', txt(f"s_add_u32 s{S_KOFF}, s{S_KOFF}, 8192"), after0))
    if 'V' in which:
        fl.append(F('s', txt(f"s_add_u32 m0, s{S_VDST}, {VRING}"), after0))
        fl.append(F('s', txt(f"s_add_u32 s{S_VDST}, s{S_VDST}, 16384"), after0))
        for t in range(4):
            fl.append(F('l', lambda e, t=t: e.vm_op(f"buffer_load_dwordx4 v{V_OV + (t & 1)}, s[{SRD_V}:{SRD_V+3}], s{S_VOFF} offen offset:{t * 1024} {o.kv_flag} lds", f"V{i+2}"), after))
            after += P
        fl.append(F('s', txt(f"s_and_b32 s{S_VDST}, s{S_VDST}, 0xffff"), after0))
        fl.append(F('s', txt(f"s_add_u32 s{S_VOFF}, s{S_VOFF}, 8192"), after0))
    return fl

def kfrag(par_slot, kt, j, n, after=-1, before=10**9):
    return [F('d', lambda e: e.ds_op(f"ds_read_b128 a[{fbuf(n)}:{fbuf(n)+3}], v{V_AK + j} offset:{kt * 4096 + 16384 * par_slot}", f"F{n}"), after, before)]
def vfrag(par_slot, dt, n, after=-1, before=10**9):
    return [F('d', lambda e, h=h: e.ds_op(f"ds_read_b64_tr_b16 a[{fbuf(n) + 2*h}:{fbuf(n) + 2*h + 1}], v{V_AV + dt} offset:{h * 4096 + 16384 * par_slot}", f"F{n}"), after, before) for h in range(2)]

def softmax_fill(par):
    seq = []
    for qt in range(5):
        for kt in range(2):
            s = sreg(par, kt, qt); p = preg(par, qt) + 2 * kt
            seq += [("e", s), ("e", s + 1), ("c", p, s, s + 1), ("e", s + 2), ("e", s + 3), ("c", p + 1, s + 2, s + 3)]
    out = []; pend = None
    for x in seq:
        if x[0] == "c": pend = x
        else:
            out.append(x)
            if pend is not None: out.append(pend); pend = None
    if pend is not None: out.append(("n",)); out.append(pend)
    fl = []
    for x in out:
        if x[0] == "e": fl.append(F('e', txt(f"v_exp_f32 v{x[1]}, v{x[1]}")))
        elif x[0] == "c": fl.append(F('v', txt(f"v_cvt_pk_bf16_f32 v{x[1]}, v{x[2]}, v{x[3]}")))
        else: fl.append(F('s', txt("s_nop 0")))
    return fl

def attn_iter(e, o, i, qk, sm, pv, vwait, dma, pre_next, epi=None, first_pv=False, extra_dm=None):
    par = i & 1; ks = (i + 1) & 1
    mains = []; rd = []; dm = []
    gstart = {}
    if qk:
        for kt in range(2):
            for j in range(4):
                n = kt * 4 + j
                gstart[n] = len(mains)
                for qt in range(5):
                    d = sreg(par ^ 1, kt, qt)
                    cin = vr(V_BIAS + 4 * qt, 4) if j == 0 else vr(d, 4)
                    mains.append(Main(f"{MFMA} {vr(d, 4)}, {ar(fbuf(n), 4)}, {vr(qf(j, qt), 4)}, {cin}", [f"F{n}"] if qt == 0 else []))
    if pv:
        gstart['l'] = len(mains)
        for qt in range(5):
            mains.append(Main(f"{MFMA} {ar(A_L + 4 * qt, 4)}, {ar(A_ONE, 4)}, {vr(preg(par ^ 1, qt), 4)}, {'0' if first_pv else ar(A_L + 4 * qt, 4)}"))
        for dt in range(8):
            n = 8 + dt
            gstart[n] = len(mains)
            for qt in range(5):
                mains.append(Main(f"{MFMA} {ar(oacc(dt, qt), 4)}, {ar(fbuf(n), 4)}, {vr(preg(par ^ 1, qt), 4)}, {'0' if first_pv else ar(oacc(dt, qt), 4)}", [f"F{n}"] if qt == 0 else []))
    order = [n for n in range(16) if n in gstart]
    ln = len(order)
    for k, n in enumerate(order):
        if qk and n < 3: continue
        after = gstart[order[k - 4]] if k >= 4 else -1
        if k >= ln - 3 and ln >= 6: after = gstart[order[ln - 6]]
        before = gstart[order[k - 1]] if k >= 1 else 0
        if k >= ln - 3 and ln >= 4: before = min(before, gstart[order[ln - 3]])
        rd += kfrag(ks, n >> 2, n & 3, n, after, before) if n < 8 else vfrag(ks, n - 8, n, after, before)
    has_bar = pre_next or vwait is not None
    if has_bar:
        bpos = gstart[order[-2]]
        def bar(e):
            e.ds_all()
            if vwait == 0:
                if 'OLD' in e.vm: e.need_vm('OLD')
                else: e.vm_all()
            elif vwait is not None: e.need_vm([f"K{i+2}", f"V{i}"])
            e("s_barrier")
        mains[bpos].pre = bar
        if par == 0 and qk:
            for j in range(4): rd.append(F('v', txt(f"v_xor_b32 v{V_AK + j}, 0x8000, v{V_AK + j}"), bpos))
        if pre_next:
            for n in range(3): rd += kfrag(ks ^ 1, 0, n, n, bpos, len(mains) - 1)
        if par == 0 and pv:
            for dt in range(8): rd.append(F('v', txt(f"v_xor_b32 v{V_AV + dt}, {hex(VTOG)}, v{V_AV + dt}"), bpos))
    dm += dma_kv(o, dma, -1, i)
    if extra_dm: dm += extra_dm
    sf = softmax_fill(par) if sm else []
    qs = [rd, dm, sf]
    if epi: qs.append(epi(gstart))
    zip2(e, mains, qs, flush_nop=bool(epi))

def epilogue_fill(o):
    def build(gstart):
        fl = []
        RL = V_E
        W = V_E + 6
        l0 = gstart['l']
        for qt in range(5):
            fl.append(F('v', txt(f"v_accvgpr_read_b32 v{RL + qt}, a{A_L + 4 * qt}"), l0 + 5 + 8))
        for qt in range(5):
            fl.append(F('e', txt(f"v_rcp_f32 v{RL + qt}, v{RL + qt}"), l0 + 5 + 8))
        k = 0
        for jj in range(4):
            ready = gstart[8 + 2 * jj + 1] + 5 + 4
            for qt in range(5):
                w = W + 12 * (k & 1); k += 1
                for tp in range(2):
                    for i in range(4):
                        fl.append(F('v', txt(f"v_accvgpr_read_b32 v{w + 4*tp + i}, a{oacc(2*jj + tp, qt) + i}"), ready))
                for r in range(8):
                    fl.append(F('v', txt(f"v_mul_f32 v{w + r}, v{w + r}, v{RL + qt}"), ready))
                for r in range(4):
                    fl.append(F('v', txt(f"v_cvt_pk_bf16_f32 v{w + 8 + r}, v{w + 2*r}, v{w + 2*r + 1}"), ready))
                off = (jj * 5 + qt) * 1024
                fl.append(F('s', txt(f"s_mov_b32 s{S_T0}, {off}"), ready))
                fl.append(F('l', lambda e, w=w: e.vm_op(f"buffer_store_dwordx4 v[{w+8}:{w+11}], v{V_E + 5}, s[{SRD_O}:{SRD_O+3}], s{S_T0} offen {o.o_flag}", "st"), ready))
        return fl
    return build

WO_A = [131072, 147456, 98304, 81920, 114688]
WO_B = [0, 16384, 32768, 49152, 65536]
def wo_slot(si): return WO_A[si] if si < 5 else WO_B[si - 5] if si < 10 else WO_A[si - 10] if si < 15 else WO_B[0]
VOTE_LDS = 16384
V_AWS = 160

def t3_setup(e, o):
    L = V_E + 5
    t0, t1, t2, t3_ = V_E, V_E + 1, V_E + 2, V_E + 3
    e(f"""
    v_lshrrev_b32 v{t0}, 4, v{L}             ; lane
    v_lshrrev_b32 v{t1}, 4, v{t0}            ; g
    v_and_b32 v{t2}, 7, v{t0}
    v_lshlrev_b32 v{t3_}, 1, v{t1}
    v_xor_b32 v{t2}, v{t2}, v{t3_}
    v_lshlrev_b32 v{t2}, 4, v{t2}
    v_lshrrev_b32 v{t3_}, 3, v{t0}
    v_lshl_add_u32 v{V_OW}, v{t3_}, 10, v{t2}
    v_add_u32 v{V_OW+1}, {7168}, v{V_OW}
    v_add_u32 v{V_OW+2}, {2*7168}, v{V_OW}
    v_add_u32 v{V_OW+3}, {3*7168}, v{V_OW}
    v_bfe_u32 v{t2}, v{t0}, 2, 2             ; r'
    v_lshl_add_u32 v{t2}, v{t1}, 2, v{t2}    ; 4g + r'
    v_lshrrev_b32 v{t3_}, 1, v{t2}
    v_and_b32 v{t3_}, 3, v{t3_}
    v_lshlrev_b32 v{t2}, 7, v{t2}
    v_lshl_add_u32 v{t2}, v{t3_}, 5, v{t2}
    v_and_b32 v{t3_}, 3, v{t0}               ; c'
    v_lshl_add_u32 v{t2}, v{t3_}, 3, v{t2}
    s_lshl_b32 s3, s{S_HH}, 13
    v_add_u32 v{V_AW2}, s3, v{t2}
    v_xor_b32 v{V_AW2+1}, 32, v{V_AW2}
    v_xor_b32 v{V_AW2+2}, 64, v{V_AW2}
    v_xor_b32 v{V_AW2+3}, 0x60, v{V_AW2}
    s_mul_i32 s3, s{S_W}, 20480
    v_add_u32 v{V_XA}, s3, v{L}
    s_mov_b32 s{S_WL}, s{S_KV}
    s_lshl_b32 s3, s{S_RH}, 15
    s_lshl_b32 s7, s{S_HH}, 9
    s_add_u32 s3, s3, s7
    s_lshl_b32 s7, s{S_HH}, 17
    s_add_u32 s{S_WA}, s3, s7
    s_xor_b32 s7, s7, 0x20000
    s_add_u32 s{S_WB}, s3, s7
    s_cmp_eq_u32 s{S_BR}, 0
    s_cselect_b32 s60, s98, s100
    s_cselect_b32 s61, s99, s101
    s_sub_u32 s3, s{S_H}, s{S_HH}
    s_lshl_b32 s3, s3, 17                    ; * 128 rows * 1024
    s_add_u32 s{SRD_WO}, s60, s3
    s_addc_u32 s{SRD_WO+1}, s61, 0
    s_mov_b32 s{SRD_WO+2}, 262144
    s_mov_b32 s{SRD_WO+3}, 0x20000
    s_lshl_b32 s3, s{S_BR}, 3
    s_add_u32 s3, s3, s{S_B}
    s_lshl_b32 s3, s3, 4
    s_lshr_b32 s7, s{S_H}, 1
    s_add_u32 s3, s3, s7
    s_lshl_b32 s3, s3, 2
    s_lshl_b32 s7, s{S_RH}, 1
    s_add_u32 s3, s3, s7
    s_add_u32 s3, s3, s{S_HH}
    s_mul_i32 s3, s3, 40960
    s_add_u32 s3, s3, {POFF}
    s_add_u32 s{SRD_P}, s68, s3
    s_addc_u32 s{SRD_P+1}, s69, 0
    s_mov_b32 s{SRD_P+2}, 40960
    s_mov_b32 s{SRD_P+3}, 0x20000
    s_lshl_b32 s3, s{S_HG}, 20
    s_add_u32 s56, s60, s3
    s_addc_u32 s57, s61, 0
    s_mov_b32 s58, 0x100000
    s_mov_b32 s59, 0x20000
    s_lshl_b32 s3, s{S_IDX}, 2
    s_add_u32 s3, s3, s{S_W}
    s_lshl_b32 s3, s3, 13
    v_lshlrev_b32 v{t0}, 3, v{L}             ; lane*128
    v_add_u32 v{t0}, s3, v{t0}
    """)

def dma_wo(o, p, kq, after=-1, before=10**9, pace=0):
    src = S_WA if kq < 2 else S_WB
    fl = [F('s', txt(f"s_add_u32 m0, s{S_WL}, {wo_slot(4 * p + kq)}"), after, before),
          F('s', txt(f"s_add_u32 s{S_T1}, s{src}, {(kq & 1) * 65536 + 128 * p}"), after, before)]
    for t in range(4):
        fl.append(F('l', lambda e, t=t: e.vm_op(f"buffer_load_dwordx4 v{V_OW+t}, s[{SRD_WO}:{SRD_WO+3}], s{S_T1} offen offset:{t*1024} {o.w_flag} lds", f"W{p}_{kq}"), after + pace * t, before))
    return fl

def t3_tail(e, o):
    i = 16; par = 0; ks = 1
    mains = []; rd = []; dm = []; cv = []; st = []; xw = []; xr = []
    gstart = {}
    gstart['l'] = 0
    for qt in range(5):
        mains.append(Main(f"{MFMA} {ar(A_L + 4 * qt, 4)}, {ar(A_ONE, 4)}, {vr(preg(1, qt), 4)}, {ar(A_L + 4 * qt, 4)}"))
    for dt in range(8):
        n = 8 + dt
        gstart[n] = len(mains)
        for qt in range(5):
            mains.append(Main(f"{MFMA} {ar(oacc(dt, qt), 4)}, {ar(fbuf(n), 4)}, {vr(preg(1, qt), 4)}, {ar(oacc(dt, qt), 4)}", [f"F{n}"] if qt == 0 else []))
    for k in range(8):
        n = 8 + k
        after = gstart[8 + k - 4] if k >= 4 else -1
        before = gstart[8 + k - 1] if k >= 1 else 0
        rd += vfrag(ks, k, n, after, before)
    NPV = len(mains)
    def a2(p, nt, qt):
        if (p & 1) == 0 and nt >= 2 and o.acc_hi: return 216 + ((nt - 2) * 5 + qt) * 4
        return A_ACC2[p & 1] + (nt * 5 + qt) * 4
    def bfr(kk, qt): return (kk * 5 + qt) * 4
    S0 = {}
    nfrag = 16
    for p in range(4):
        for kq in range(4):
            S0[(p, kq)] = len(mains)
            for ks2 in range(2):
                kk = 2 * kq + ks2
                for nt in range(4):
                    n = nfrag; nfrag += 1
                    g0 = len(mains)
                    for qt in range(5):
                        cin = "0" if (kq == 0 and ks2 == 0) else ar(a2(p, nt, qt), 4)
                        needs = [f"G{n}"] if qt == 0 else []
                        if p == 0 and kk >= 4 and nt == 0: needs = needs + [f"X{kk}_{qt}"]
                        mains.append(Main(f"{MFMA} {ar(a2(p, nt, qt), 4)}, {ar(fbuf(n), 4)}, {vr(bfr(kk, qt), 4)}, {cin}", needs))
                    gstart[('g', p, kq, ks2, nt)] = (g0, n)
    N = len(mains)
    stages = [(p, kq) for p in range(4) for kq in range(4)]
    def gidx(p, kq, j): return gstart[('g', p, kq, j >> 2, j & 3)]
    BAR = {}
    for si, (p, kq) in enumerate(stages):
        BAR[si] = gidx(p, kq, 5)[0]
    def wfrag(p, kq, j, after, before):
        g0, n = gidx(p, kq, j)
        return [F('d', lambda e, h=h, n=n: e.ds_op(f"ds_read_b64_tr_b16 a[{fbuf(n) + 2*h}:{fbuf(n) + 2*h + 1}], v{V_AWS + 4 * (wo_slot(4 * p + kq) >> 16) + (j & 3)} offset:{(wo_slot(4 * p + kq) & 0xffff) + (j >> 2) * 4096 + h * 2048}", f"G{n}"), after, before) for h in range(2)]
    pv_bar = gstart[8 + 6]
    def bar_first(e):
        e.ds_all()
        e.need_vm("W0_0")
        e("s_barrier")
    mains[pv_bar].pre = bar_first
    rd_pv_last = [f for f in rd]
    for f in rd:
        f.before = min(f.before, pv_bar - 3)
    for si, (p, kq) in enumerate(stages):
        prevbar = pv_bar if si == 0 else BAR[si - 1]
        for j in range(8):
            g0 = gidx(p, kq, j)[0]
            if j < 3:
                after = prevbar; before = S0[(p, kq)] - 1 if j == 0 else gidx(p, kq, j - 1)[0]
                if si == 0 and j == 0: before = NPV - 1
            elif j < 6:
                after = gidx(p, kq, j - 3)[0]; before = gidx(p, kq, j - 1)[0]
            else:
                after = gidx(p, kq, 2)[0] + 2; before = gidx(p, kq, 4)[0] + 3
            rd += wfrag(p, kq, j, after, before)
        def bar(e, si=si):
            if si == o.c_k3_at and o.c_k3:
                n_ = CODE_NAME[0]
                e("s_getpc_b64 s[60:61]")
                e.label(f"L_pck_{n_}")
                e(f"s_add_u32 s60, s60, reduce_kernel-L_pck_{n_}")
                e("s_addc_u32 s61, s61, 0")
                e(f"v_mbcnt_lo_u32_b32 v178, -1, 0")
                e(f"v_mbcnt_hi_u32_b32 v178, -1, v178")
                e(f"v_lshlrev_b32 v178, 7, v178")
                e(f"v_min_u32 v178, K3_END-reduce_kernel-4, v178")
                e.vm_op(f"global_load_dword v179, v178, s[60:61]", "k3t")
            if o.stamp_list or si in ((0, 3, 7, 15) if o.fuse else (0, 3, 7, 11, 15)): stamp(e, o, f"T{si}")
            if o.few_bar and si not in (0, 1, 2, 3, 4, 5, 10):
                return
            e.ds_all()
            cover = [si + 1]
            if o.few_bar and si == 5: cover = list(range(6, 12))
            if o.few_bar and si == 10: cover = list(range(11, 16))
            e.need_vm([f"W{stages[x][0]}_{stages[x][1]}" for x in cover if x < 16])
            e("s_barrier")
        mains[BAR[si]].pre = bar
    if o.wo_early: pre = dma_wo(o, 0, 2, -1, 24, 3)
    else: pre = dma_wo(o, 0, 0, -1, 3) + dma_wo(o, 0, 1, -1, 10) + dma_wo(o, 0, 2, -1, 18) + dma_wo(o, 0, 3, -1, 26)
    def st_(si): return stages[si]
    P = o.w_pace
    dm = pre + dma_wo(o, *st_(4), pv_bar, BAR[0], P)
    dm += dma_wo(o, *st_(10), BAR[0], BAR[1], P)
    dm += dma_wo(o, *st_(11), BAR[1], BAR[2], P)
    t = BAR[2]
    for si in (5, 6, 7, 8, 9):
        dl = BAR[si - 2] if si > 5 else BAR[3]
        if o.few_bar: dl = min(dl, BAR[5] - 8)
        dm += dma_wo(o, *st_(si), t, dl, P); t += 4 * P
    dm += dma_wo(o, *st_(12), t, BAR[8], P); t += 4 * P
    dm += dma_wo(o, *st_(13), max(t, BAR[3]), BAR[9], P); t += 4 * P
    dm += dma_wo(o, *st_(14), max(t, BAR[4]), BAR[10] - (8 if o.few_bar else 0), P); t += 4 * P
    dm += dma_wo(o, *st_(15), max(t, BAR[5]), BAR[11] if not o.few_bar else BAR[10] - 4, P)
    if o.t3_nodma: dm = pre
    RL = V_E; W = V_E + 6
    l0 = 0
    for qt in range(5): cv.append(F('v', txt(f"v_accvgpr_read_b32 v{RL + qt}, a{A_L + 4 * qt}"), l0 + 5 + 6))
    for qt in range(5): cv.append(F('e', txt(f"v_rcp_f32 v{RL + qt}, v{RL + qt}"), l0 + 5 + 6))
    k = 0
    for jj in range(4):
        ready = gstart[8 + 2 * jj + 1] + 5 + 4
        need = gidx(0, jj >> 1, (jj & 1) * 4)[0]
        if jj == 1 and not o.acc_hi: need = gidx(0, 0, 2)[0]
        for qt in range(5):
            w = W + 8 * (k & 1); k += 1
            dl = need + qt - 2 if need + qt - 2 > ready else need
            for tp in range(2):
                for i_ in range(4):
                    cv.append(F('v', txt(f"v_accvgpr_read_b32 v{w + 4*tp + i_}, a{oacc(2*jj + tp, qt) + i_}"), ready, need - 2))
            for r in range(8):
                cv.append(F('v', txt(f"v_mul_f32 v{w + r}, v{w + r}, v{RL + qt}"), ready, need - 2))
            d = bfr(jj, qt)
            for r in range(4):
                cv.append(F('v', txt(f"v_cvt_pk_bf16_f32 v{d + r}, v{w + 2*r}, v{w + 2*r + 1}"), ready, need - 2, mark=(f"of{jj}_{qt}" if r == 3 else None)))
            xw.append(F('d', lambda e, d=d, jj=jj, qt=qt: e.ds_op(f"ds_write_b128 v{V_XA}, v[{d}:{d+3}] offset:{(jj * 5 + qt) * 1024}", "XW"), ready, BAR[1] - 2, dep=f"of{jj}_{qt}"))
    xbar = BAR[1]
    xw.append(F('v', txt(f"v_add_u32 v{V_XA}, s55, v{V_XA}"), xbar, xbar + 2))
    for jj in range(4):
        for qt in range(5):
            d = bfr(4 + jj, qt)
            xw.append(F('d', lambda e, d=d, jj=jj, qt=qt: e.ds_op(f"ds_read_b128 v[{d}:{d+3}], v{V_XA} offset:{(jj * 5 + qt) * 1024}", f"X{4+jj}_{qt}"), xbar + 1, S0[(0, 2)] - 6 if jj < 2 else BAR[2] - 4))
    gd = []
    for qt in range(5):
        a_, b_ = S0[(0, 2)], S0[(1, 0)] - 2
        gd.append(F('v', txt(f"v_med3_f32 v224, v{RL + qt}, s66, v225"), a_, b_))
        gd.append(F('v', txt(f"v_cmp_neq_f32 s[62:63], v224, v{RL + qt}"), a_, b_))
        gd.append(F('s', txt("s_nop 1"), a_, b_))
        gd.append(F('s', txt(f"s_or_b64 s[{S_BAD}:{S_BAD+1}], s[{S_BAD}:{S_BAD+1}], s[62:63]"), a_, b_))
    W2 = V_E + 6
    k = 0
    for p in range(4):
        start = S0[(p + 1, 0)] + 6 if p < 3 else N
        end = S0[(p + 1, 3)] if p < 2 else 10**9
        if p == 2: end = N - 10
        for u in range(2):
            for qt in range(5):
                w = W2 + 12 * (k & 1); k += 1
                for tp in range(2):
                    for i_ in range(4):
                        st.append(F('v', txt(f"v_accvgpr_read_b32 v{w + 4*tp + i_}, a{a2(p, 2*u + tp, qt) + i_}"), start, end))
                for r in range(4):
                    st.append(F('v', txt(f"v_cvt_pk_bf16_f32 v{w + 8 + r}, v{w + 2*r}, v{w + 2*r + 1}"), start, end))
                off = (p * 10 + u * 5 + qt) * 1024
                st.append(F('s', txt(f"s_mov_b32 s{S_T0}, {off}"), start, end))
                if not o.t3_nostore: st.append(F('l', lambda e, w=w: e.vm_op(f"buffer_store_dwordx4 v[{w+8}:{w+11}], v{V_E + 5}, s[{SRD_P}:{SRD_P+3}], s{S_T0} offen {o.p_flag}", "st"), start, end))
    e(f"s_mov_b64 s[{S_BAD}:{S_BAD+1}], 0")
    e(f"s_mov_b32 s66, {hex(R_LO)}")
    e(f"v_mov_b32 v225, {hex(R_HI)}")
    for k_ in range(3):
        for j in range(4):
            e(f"v_add_u32 v{V_AWS + 4 * k_ + j}, {65536 * k_}, v{V_AW2 + j}")
    e(f"s_lshl_b32 s{S_T0}, s{S_HH}, 1")
    e(f"s_sub_u32 s{S_T0}, 1, s{S_T0}")
    e(f"s_mul_i32 s{S_T0}, s{S_T0}, 40960")
    e(f"s_mov_b32 s55, s{S_T0}")
    for f in cv:
        pass
    zip2(e, mains, [rd, dm, cv, xw, gd, st], flush_nop=True, dense=2 if o.vmax > 1 else None, vmax=o.vmax, lgap=o.t_lgap)

def max_pass(e, o, name):
    M = 120; L16 = V_E + 5; T = 126
    e.label(f"L_maxpass_{name}")
    e("s_waitcnt vmcnt(0) lgkmcnt(0)")
    for qt in range(5): e(f"v_mov_b32 v{M + qt}, 0xff800000")
    e(f"s_mov_b32 s{S_CNT}, 0")
    e(f"s_lshl_b32 s{S_T1}, s{S_RH}, 12")
    e.label(f"L_maxloop_{name}")
    e("s_barrier")
    e(f"s_mov_b32 m0, s{S_KV}")
    e("s_nop 0")
    for t in range(4):
        e(f"buffer_load_dwordx4 v{V_OK + t}, s[{SRD_K}:{SRD_K+3}], s{S_T1} offen offset:{t * 1024} lds")
    e("s_waitcnt vmcnt(0)")
    e("s_barrier")
    for n in range(8):
        e(f"ds_read_b128 a[{fbuf(n)}:{fbuf(n)+3}], v{V_AK + (n & 3)} offset:{(n >> 2) * 4096}")
    e("s_waitcnt lgkmcnt(0)")
    for kt in range(2):
        for j in range(4):
            for qt in range(5):
                d = sreg(0, kt, qt)
                e(f"{MFMA} {vr(d, 4)}, {ar(fbuf(kt * 4 + j), 4)}, {vr(qf(j, qt), 4)}, {'0' if j == 0 else vr(d, 4)}")
    e("s_nop 7")
    e("s_nop 3")
    for qt in range(5):
        for kt in range(2):
            d = sreg(0, kt, qt)
            e(f"v_max3_f32 v{M + qt}, v{d}, v{d+1}, v{M + qt}")
            e(f"v_max3_f32 v{M + qt}, v{d+2}, v{d+3}, v{M + qt}")
    e(f"s_add_u32 s{S_T1}, s{S_T1}, 8192")
    e(f"s_add_u32 s{S_CNT}, s{S_CNT}, 1")
    e(f"s_cmp_lt_u32 s{S_CNT}, 16")
    e(f"s_cbranch_scc1 L_maxloop_{name}")
    e("s_barrier")
    e(f"s_lshl_b32 s{S_T1}, s{S_RH}, 12")
    e(f"s_mov_b32 m0, s{S_KV}")
    e("s_nop 0")
    for t in range(4):
        e(f"buffer_load_dwordx4 v{V_OK + t}, s[{SRD_K}:{SRD_K+3}], s{S_T1} offen offset:{t * 1024} lds")
    e(f"v_lshrrev_b32 v{T}, 2, v{L16}")
    e(f"v_xor_b32 v{T+1}, 64, v{T}")
    e(f"v_xor_b32 v{T+2}, 0x80, v{T}")
    for x in (1, 2):
        for qt in range(5): e(f"ds_bpermute_b32 v{T + 3 + qt}, v{T + x}, v{M + qt}")
        e("s_waitcnt lgkmcnt(0)")
        for qt in range(5): e(f"v_max_f32 v{M + qt}, v{M + qt}, v{T + 3 + qt}")
    for qt in range(5):
        for r in range(4): e(f"v_sub_f32 v{V_BIAS + 4 * qt + r}, 0, v{M + qt}")
    e("s_waitcnt vmcnt(0)")
    e("s_barrier")
    for n in range(3): run(e, kfrag(0, 0, n, n))
    e(f"s_branch L_maxdone_{name}")

def vote(e, o, name):
    T = V_E
    e(f"s_cmp_lg_u64 s[{S_BAD}:{S_BAD+1}], 0")
    e(f"s_cselect_b32 s3, 1, 0")
    e(f"v_mov_b32 v{T}, s3")
    e(f"s_lshl_b32 s7, s{S_W}, 2")
    e(f"s_add_u32 s7, s7, {VOTE_LDS}")
    e(f"v_mov_b32 v{T+1}, s7")
    e(f"ds_write_b32 v{T+1}, v{T}")
    if o.fuse:
        e("s_load_dwordx4 s[56:59], s[0:1], 80")
        e("s_waitcnt vmcnt(0) lgkmcnt(0)")
    else:
        e("s_waitcnt lgkmcnt(0)")
    e("s_barrier")
    e(f"v_mov_b32 v{T+1}, {VOTE_LDS}")
    e(f"ds_read_b128 v[{T+2}:{T+5}], v{T+1}")
    e("s_waitcnt lgkmcnt(0)")
    e(f"v_or_b32 v{T+2}, v{T+2}, v{T+3}")
    e(f"v_or3_b32 v{T+2}, v{T+2}, v{T+4}, v{T+5}")
    e("s_nop 0")
    e(f"v_readfirstlane_b32 s3, v{T+2}")
    e(f"s_cmp_eq_u32 s{S_MODE}, 0")
    e(f"s_cselect_b32 s3, s3, 0")
    e(f"s_cmp_eq_u32 s3, 0")
    e(f"s_cbranch_scc1 L_fine_{name}")
    e(f"s_mov_b32 s{S_MODE}, 1")
    e("s_waitcnt vmcnt(0)")
    e("s_barrier")
    e("v_mbcnt_lo_u32_b32 v0, -1, 0")
    e("v_mbcnt_hi_u32_b32 v0, -1, v0")
    e(f"s_lshl_b32 s3, s{S_W}, 6")
    e("v_add_u32 v0, s3, v0")
    e(f"s_branch L_restart_{name}")
    e.label(f"L_fine_{name}")

def fused_reduce(e, o, name):
    G, R, J = 60, 61, 62
    e(f"""
    s_lshl_b32 s{G}, s{S_BR}, 3
    s_add_u32 s{G}, s{G}, s{S_B}             ; group
    s_lshr_b32 s{R}, s{S_H}, 1
    v_mbcnt_lo_u32_b32 v248, -1, 0
    v_mbcnt_hi_u32_b32 v248, -1, v248        ; lane
    s_cmp_eq_u32 s{S_W}, {99 if o.nosync else 0}
    s_cbranch_scc0 L_arrived_{name}
    s_lshl_b32 s3, s{G}, {12 if o.cnt_ws else 4}
    {f"s_add_u32 s3, s3, {220*1024*1024}" if o.cnt_ws else ""}
    {"s_mov_b32 s58, s68" if o.cnt_ws else ""}
    {"s_mov_b32 s59, s69" if o.cnt_ws else ""}
    v_mov_b32 v249, s3
    v_mov_b32 v250, 1
    s_mov_b64 s[64:65], exec
    s_mov_b64 exec, 1
    global_atomic_add v249, v250, s[58:59]
    s_mov_b32 s7, 0
L_poll_{name}:
    global_load_dword v251, v249, s[58:59] sc1
    s_waitcnt vmcnt(0)
    v_readfirstlane_b32 s3, v251
    s_add_u32 s7, s7, 1
    s_cmp_ge_u32 s3, 16
    s_cbranch_scc1 L_polled_{name}
    s_sleep {o.spin_sleep}
    s_cmp_lt_u32 s7, 0x40000
    s_cbranch_scc1 L_poll_{name}
L_polled_{name}:
    s_mov_b64 exec, s[64:65]
L_arrived_{name}:
    s_barrier
    """)
    stamp(e, o, "polled")
    e(f"""
    v_lshlrev_b32 v249, 4, v248              ; lane*16
    s_mul_i32 s3, s{G}, {16 * 163840}
    s_add_u32 s3, s3, {POFF}
    s_add_u32 s8, s68, s3
    s_addc_u32 s9, s69, 0
    s_mov_b32 s10, {16 * 163840}
    s_mov_b32 s11, 0x20000
    s_mul_i32 s{J}, s{R}, 10
    s_add_u32 s{J}, s{J}, s{S_W}
    s_mov_b32 s12, s56
    s_mov_b32 s13, s57
    s_mov_b32 s14, 2621440
    s_mov_b32 s15, 0x20000
    v_and_b32 v250, 15, v248
    v_lshrrev_b32 v251, 4, v248
    v_lshlrev_b32 v250, 11, v250
    v_lshl_add_u32 v250, v251, 3, v250       ; c*2048 + g*8
    """)
    def load1(k, hp):
        r = 64 * k + 4 * hp
        if hp == 0:
            e(f"s_add_u32 s3, s{J}, {4 * k}")
            e(f"s_lshl_b32 s3, s3, 10")
        e.vm_op(f"buffer_load_dwordx4 v[{r}:{r+3}], v249, s[8:11], s3 offen {o.r_flag}", f"R{k}_{hp}")
        if hp < 15: e("s_add_u32 s3, s3, 163840")
    def outaddr(k, dst):
        e(f"""
    s_add_u32 s16, s{J}, {4 * k}
    s_mul_hi_u32 s17, s16, 0x1999999a
    s_mul_i32 s18, s17, 10
    s_sub_u32 s18, s16, s18
    s_cmp_ge_u32 s18, 5
    s_cselect_b32 s19, 1, 0                  ; u
    s_mul_i32 s20, s19, 5
    s_sub_u32 s18, s18, s20                  ; qt
    s_and_b32 s20, s17, 3                    ; p
    s_bfe_u32 s21, s17, 0x10002              ; hh
    s_lshr_b32 s22, s17, 3                   ; rh
    s_mul_i32 s23, s{S_B}, 160
    s_mul_i32 s22, s22, 80
    s_add_u32 s23, s23, s22
    s_lshl_b32 s18, s18, 4
    s_add_u32 s23, s23, s18
    s_lshl_b32 s23, s23, 11
    s_lshl_b32 s22, s{S_BR}, 10
    s_add_u32 s23, s23, s22
    s_lshl_b32 s21, s21, 9
    s_add_u32 s23, s23, s21
    s_lshl_b32 s20, s20, 7
    s_add_u32 s23, s23, s20
    s_lshl_b32 s19, s19, 6
    s_add_u32 s{dst}, s23, s19
    """)
    def run_pieces(np_):
        A = 224; T = 232
        order = [(k, hp) for k in range(np_) for hp in range(16)]
        D = o.r_depth
        e.vm = []; e.vm_waited = set()
        for x in order[:D]: load1(*x)
        for k in range(np_): outaddr(k, 24 + k)
        for n, (k, hp) in enumerate(order):
            e.need_vm(f"R{k}_{hp}")
            if n + D < len(order): load1(*order[n + D])
            for d in range(4):
                r = 64 * k + 4 * hp + d
                if hp == 0:
                    e(f"v_lshlrev_b32 v{A + 2*d}, 16, v{r}")
                    e(f"v_and_b32 v{A + 2*d + 1}, 0xffff0000, v{r}")
                else:
                    e(f"v_lshlrev_b32 v{T + 2*(d & 1)}, 16, v{r}")
                    e(f"v_and_b32 v{T + 2*(d & 1) + 1}, 0xffff0000, v{r}")
                    e(f"v_add_f32 v{A + 2*d}, v{A + 2*d}, v{T + 2*(d & 1)}")
                    e(f"v_add_f32 v{A + 2*d + 1}, v{A + 2*d + 1}, v{T + 2*(d & 1) + 1}")
            if hp == 15:
                o0 = 236 + 4 * (k & 1)
                for d in range(4): e(f"v_cvt_pk_bf16_f32 v{o0 + d}, v{A + 2*d}, v{A + 2*d + 1}")
                e.vm_op(f"buffer_store_dwordx2 v[{o0}:{o0+1}], v250, s[12:15], s{24 + k} offen", f"S{k}")
                e.vm_op(f"buffer_store_dwordx2 v[{o0+2}:{o0+3}], v250, s[12:15], s{24 + k} offen offset:32", f"S{k}")
    if o.r_loop:
        A = 224; T = 232
        e.label(f"L_rloop_{name}")
        e(f"s_lshl_b32 s3, s{J}, 10")
        for hp in range(16):
            e(f"buffer_load_dwordx4 v[{4*hp}:{4*hp+3}], v249, s[8:11], s3 offen {o.r_flag}")
            if hp < 15: e("s_add_u32 s3, s3, 163840")
        outaddr(0, 24)
        for hp in range(16):
            e(f"s_waitcnt vmcnt({15 - hp})")
            for d in range(4):
                r = 4 * hp + d
                if hp == 0:
                    e(f"v_lshlrev_b32 v{A + 2*d}, 16, v{r}")
                    e(f"v_and_b32 v{A + 2*d + 1}, 0xffff0000, v{r}")
                else:
                    e(f"v_lshlrev_b32 v{T + 2*(d & 1)}, 16, v{r}")
                    e(f"v_and_b32 v{T + 2*(d & 1) + 1}, 0xffff0000, v{r}")
                    e(f"v_add_f32 v{A + 2*d}, v{A + 2*d}, v{T + 2*(d & 1)}")
                    e(f"v_add_f32 v{A + 2*d + 1}, v{A + 2*d + 1}, v{T + 2*(d & 1) + 1}")
        for d in range(4): e(f"v_cvt_pk_bf16_f32 v{236 + d}, v{A + 2*d}, v{A + 2*d + 1}")
        e(f"buffer_store_dwordx2 v[236:237], v250, s[12:15], s24 offen")
        e(f"buffer_store_dwordx2 v[238:239], v250, s[12:15], s24 offen offset:32")
        e(f"s_add_u32 s{J}, s{J}, 4")
        e(f"s_mul_i32 s3, s{R}, 10")
        e(f"s_add_u32 s3, s3, 10")
        e(f"s_cmp_lt_u32 s{J}, s3")
        e(f"s_cbranch_scc1 L_rloop_{name}")
        return
    e(f"s_cmp_lt_u32 s{S_W}, 2")
    e(f"s_cbranch_scc0 L_two_{name}")
    run_pieces(3)
    e(f"s_branch L_reduced_{name}")
    e.label(f"L_two_{name}")
    run_pieces(2)
    e.label(f"L_reduced_{name}")

def gen_k1(name, o):
    NSTAMP[0] = 0
    CODE_NAME[0] = name
    e = Em()
    e.lines.append(kernel_head(name))
    prologue(e, o, name)
    qphase(e, o)
    stamp(e, o, "qdone")
    e(f"v_accvgpr_write_b32 a{A_SAVE}, v{V_OV0}")
    e(f"v_accvgpr_write_b32 a{A_SAVE+1}, v{V_OV0+1}")
    e(f"v_accvgpr_write_b32 a{A_SAVE+2}, v{V_T+1}")
    for n in range(3): run(e, kfrag(0, 0, n, n))
    qconvert(e)
    stamp(e, o, "qconv")
    e(f"""
    v_accvgpr_read_b32 v{V_OV}, a{A_SAVE}
    v_accvgpr_read_b32 v{V_OV+1}, a{A_SAVE+1}
    v_accvgpr_read_b32 v{V_E+5}, a{A_SAVE+2}
    s_mov_b32 s{S_KDST}, s{S_KV}             ; K(4) -> slot 0
    s_add_u32 s{S_VDST}, s{S_KV}, {32768 if o.apf else 0}          ; V(4) / V(2)
    s_lshl_b32 s7, s{S_RH}, 12
    s_add_u32 s{S_KOFF}, s7, {4 * 8192}
    s_add_u32 s{S_VOFF}, s7, {(4 if o.apf else 2) * 8192}
    v_lshlrev_b32 v{V_E+5}, 4, v{V_E+5}
    """)
    if o.t3: t3_setup(e, o)
    for r in range(20): e(f"v_mov_b32 v{V_BIAS + r}, 0")
    e(f"s_cmp_eq_u32 s{S_MODE}, 0")
    e(f"s_cbranch_scc0 L_maxpass_{name}")
    e.label(f"L_maxdone_{name}")
    if o.pf_late:
        e("s_waitcnt vmcnt(0) lgkmcnt(0)"); e("s_barrier"); e.vm = []; e.ds = []
        for n in range(3): e.fresh[f"F{n}"] = 0
        for n in range(3): run(e, kfrag(0, 0, n, n))
    attn_iter(e, o, -1, True, False, False, 1, '', True)
    stamp(e, o, "Titm1")
    if o.apf:
        attn_iter(e, o, 0, True, True, False, 1, 'K', True)
        attn_iter(e, o, 1, True, True, True, 1, 'K', True, first_pv=True)
        attn_iter(e, o, 2, True, True, True, 1, 'KV', True)
    else:
        attn_iter(e, o, 0, True, True, False, 1, 'KV', True)
        stamp(e, o, "Tit0")
        attn_iter(e, o, 1, True, True, True, 1, 'KV', True, first_pv=True)
        stamp(e, o, "Tit1")
        attn_iter(e, o, 2, True, True, True, 1, 'KV', True)
    stamp(e, o, "iter0_done")
    e(f"s_mov_b32 s{S_CNT}, 0")
    ds0 = list(e.ds)
    e.label(f"L_loop_{name}")
    if o.t3 and o.w_touch >= 0:
        e(f"s_cmp_eq_u32 s{S_CNT}, {o.w_touch}")
        e(f"s_cbranch_scc0 L_nowt_{name}")
        e(f"buffer_load_dword v{V_E + 1}, v{V_E}, s[56:59], 0 offen")
        if o.c_touch >= 2:
            vq = list(e.vm); code_touch(e, V_E + 2, V_E + 3, 1); e.vm = vq
        e.label(f"L_nowt_{name}")
    n0 = len(e.lines)
    redirect = [F('s', txt(f"s_cmp_eq_u32 s{S_CNT}, 5")), F('s', txt(f"s_sub_u32 s{S_T1}, s{S_KV}, 32768")),
                F('s', txt(f"s_cmp_eq_u32 s{S_CNT}, 5")), F('s', txt(f"s_cselect_b32 s{S_VDST}, s{S_T1}, s{S_VDST}"))]
    attn_iter(e, o, 3, True, True, True, 1, 'KV', True)
    if o.t3 and o.wo_early: run(e, redirect[1:])
    attn_iter(e, o, 4, True, True, True, 1, 'KV', True)
    import copy
    e2 = copy.deepcopy(e); n1 = len(e2.lines)
    attn_iter(e2, o, 5, True, True, True, 1, 'KV', True)
    if o.t3 and o.wo_early: run(e2, redirect[1:])
    attn_iter(e2, o, 6, True, True, True, 1, 'KV', True)
    assert e.lines[n0:n1] == e2.lines[n1:], "loop body is not in steady state"
    assert e.ds == ds0, (e.ds, ds0)
    e(f"s_add_u32 s{S_CNT}, s{S_CNT}, 1")
    e(f"s_cmp_lt_u32 s{S_CNT}, 6")
    e(f"s_cbranch_scc1 L_loop_{name}")
    e.ds_all()
    stamp(e, o, "loop_done")
    xdm = None
    if o.t3 and o.wo_early:
        e.vm = ['OLD']
        xdm = dma_wo(o, 0, 0, 0, 10**9, 3) + dma_wo(o, 0, 1, 12, 10**9, 3) + dma_wo(o, 0, 3, 24, 10**9, 3)
    attn_iter(e, o, 15, False, True, True, 0, '', False, extra_dm=xdm)
    stamp(e, o, "Tit15")
    if o.t3:
        t3_tail(e, o)
    else:
        attn_iter(e, o, 16, False, False, True, None, '', False, epi=epilogue_fill(o))
    stamp(e, o, "stores_issued")
    vote(e, o, name)
    if o.fuse:
        stamp(e, o, "Tsig")
        fused_reduce(e, o, name)
    if o.stamps: e("s_waitcnt vmcnt(0)")
    stamp(e, o, "end")
    if o.stamps:
        e(f"""
    s_memrealtime s[96:97]
    s_waitcnt lgkmcnt(0)
    s_lshl_b32 s3, s2, 2
    s_add_u32 s3, s3, s{S_W}
    s_lshl_b32 s3, s3, 7
    s_add_u32 s3, s3, {200*1024*1024}
    v_mov_b32 v30, s3
    s_mov_b64 exec, 1
    """)
        for k in range(14):
            e(f"v_mov_b32 v0, s{70 + 2*k}")
            e(f"v_mov_b32 v1, s{71 + 2*k}")
            e(f"global_store_dwordx2 v30, v[0:1], s[68:69] offset:{8*k}")
            e("s_nop 1")
        e("s_waitcnt vmcnt(0)")
        if o.dbg:
            e(f"""
    s_or_b32 s3, s2, s{S_W}
    s_cmp_eq_u32 s3, 0
    s_cbranch_scc0 L_end_{name}
    s_load_dwordx2 s[98:99], s[0:1], 88
    s_waitcnt lgkmcnt(0)
    v_mov_b32 v30, 0
    """)
            for k in range(1, 11):
                e(f"s_sub_u32 s3, s{70 + 2*k}, s70")
                e(f"v_mov_b32 v0, s3")
                e(f"global_store_dword v30, v0, s[98:99] offset:{4*k}")
                e("s_nop 1")
            e("s_sub_u32 s3, s96, s94")
            e("v_mov_b32 v0, s3")
            e("global_store_dword v30, v0, s[98:99] offset:0")
            e("s_waitcnt vmcnt(0)")
    e.label(f"L_end_{name}")
    e("s_endpgm")
    dsq, vmq = list(e.ds), list(e.vm)
    max_pass(e, o, name)
    e.label("CODE_END")
    return e.text() + kernel_desc(name, 512, 256)
```

```python
from common import *
from sched import *

KRING = 0
VRING = 98304
WQ0 = 32768; WQ_HEAD = 8224; WQ_SLOT = 2 * WQ_HEAD
X0 = 82176; X_SLOT = 20480
LDS_BYTES = 163840
VTOG = 0x38000
S_W, S_HH, S_RH = 4, 5, 6
SRD_X, SRD_WQ, SRD_K, SRD_V, SRD_O = 8, 12, 16, 20, 24
S_T0, S_T1 = 32, 33
S_WQL, S_XL, S_XG, S_WQG = 35, 36, 37, 38
S_KDST, S_VDST, S_KOFF, S_VOFF, S_CNT = 40, 41, 42, 43, 44
S_IDX, S_HG, S_B, S_BR, S_H = 45, 46, 47, 48, 49
S_SC = 50
S_KV = 39; S_WQK = 51; S_XK = 34; S_PT = 7
V_Q = 0
V_XB = [0, 20]
V_AW = 40
V_AX = 44
V_OWQ = 46
V_OX = 50
V_T = 56
V_ACC = 80
V_S = [80, 120]
V_P = [160, 180]
V_OV = 200
V_E = 202
V_OV0 = 70
V_AK = 240; V_AV = 244; V_OK = 252
A_O = 0; A_L = 160; A_ONE = 180; A_F = 184
A_SAVE = 216
SRD_WO, SRD_P = 28, 24
S_WA, S_WB, S_WL = 52, 53, 54
POFF = 32 * 1024 * 1024
WRING = 98304
V_OW = 232
V_AW2 = 236
V_XA = 231
A_ACC2 = [0, 80]
V_BIAS = 208
S_K0 = 93; S_KEND = 63
S_MODE = 92
S_BAD = 64
R_LO, R_HI = 0x27800000, 0x4f800000

def acc(dt, qt): return V_ACC + (dt * 5 + qt) * 4
def qf(j, qt): return V_Q + (j * 5 + qt) * 4
def sreg(par, kt, qt): return V_S[par] + (kt * 5 + qt) * 4
def preg(par, qt): return V_P[par] + qt * 4
def oacc(dt, qt): return A_O + (dt * 5 + qt) * 4
def fbuf(n): return A_F + 4 * (n % 8)

class Opt:
    kv_flag = "nt"
    q_flag = ""
    o_flag = ""
    stamps = False
    pre_all = True
    pf_start = 0
    pf_per = 3
    pf_late = False
    pf_steps = ""
    q_nodma = False
    q_nowait = False
    q_nobar = False
    q_nods = False
    q_nowq = False
    q_nox = False
    rotg = 8
    rot = True
    pace = 4
    apf = True
    stamp_list = ""
    stamp_set = "q"
    fuse = False
    spin_sleep = 1
    nosync = False
    r_depth = 12
    r_loop = False
    r_flag = "sc1"
    cnt_ws = False
    t3 = True
    p_flag = ""
    w_flag = ""
    c_k3_at = 3
    c_k3 = 0
    c_early = 0
    c_touch = 0
    acc_hi = True
    vmax = 3
    wo_early = True
    skew = 0
    tlb = 0
    q_ahead = False
    q_lfirst = False
    q_urg = 3
    few_bar = False
    krot = 0
    st_late = False
    q_lgap = 0
    t_lgap = 0
    w_pace = 2
    kv_pace = 0
    t3_nostore = False
    t3_nodma = False
    w_touch = -1
    dbg = False

NSTAMP = [0]
NSK = [0]
def stamp(e, o, tag):
    if not o.stamps: return
    if o.stamp_list:
        if tag not in o.stamp_list.split(","): return
        k = NSTAMP[0]; NSTAMP[0] += 1
        assert k < 11
        e.comment("stamp " + tag)
        e(f"s_memtime s[{70 + 2*k}:{71 + 2*k}]")
        return
    early = tag in ("issued", "bar0", "B3", "B9", "qconv")
    late = tag.startswith("T")
    if (o.stamp_set == "tail" and early) or (o.stamp_set != "tail" and late): return
    if o.fuse and o.stamp_set != "tail" and tag == "stores_issued": pass
    k = NSTAMP[0]; NSTAMP[0] += 1
    assert k < 12
    e.comment("stamp " + tag)
    e(f"s_memtime s[{70 + 2*k}:{71 + 2*k}]")

def prologue(e, o, name):
    e(f"""
    s_cmp_ge_u32 s2, 256
    s_cbranch_scc1 L_end_{name}
    s_mov_b32 s{S_MODE}, 0
    """)
    if o.c_early: code_touch_early(e, o, name)
    e(f"""
L_restart_{name}:
    s_load_dwordx8 s[52:59], s[0:1], 0       ; A_x A_k A_v A_wq
    s_load_dwordx8 s[60:67], s[0:1], 40      ; B_x B_k B_v B_wq
    s_load_dwordx2 s[68:69], s[0:1], 96      ; ws
    s_load_dwordx2 s[98:99], s[0:1], 32      ; A_wo
    s_load_dwordx2 s[100:101], s[0:1], 72    ; B_wo
    v_lshrrev_b32 v{V_T}, 6, v0
    v_and_b32 v{V_T+1}, 63, v0               ; lane
    v_readfirstlane_b32 s{S_W}, v{V_T}
    s_and_b32 s3, s2, 7
    s_lshr_b32 s{S_IDX}, s2, 3
    s_lshr_b32 s{S_BR}, s3, 2
    s_and_b32 s{S_HG}, s3, 3
    s_lshr_b32 s{S_B}, s{S_IDX}, 2
    s_and_b32 s7, s{S_IDX}, 3
    s_lshr_b32 s{S_HH}, s{S_W}, 1
    s_and_b32 s{S_RH}, s{S_W}, 1
    s_lshl_b32 s{S_H}, s{S_HG}, 3
    s_lshl_b32 s7, s7, 1
    s_add_u32 s{S_H}, s{S_H}, s7
    s_add_u32 s{S_H}, s{S_H}, s{S_HH}
    """)
    if o.stamps:
        e("s_memrealtime s[94:95]")
    stamp(e, o, "start")
    L = V_T + 1
    c, g, rp, cp, t0, t1 = V_T + 2, V_T + 3, V_T + 4, V_T + 5, V_T + 6, V_T + 7
    e(f"""
    v_and_b32 v{c}, 15, v{L}
    v_lshrrev_b32 v{g}, 4, v{L}
    v_bfe_u32 v{rp}, v{L}, 2, 2
    v_and_b32 v{cp}, 3, v{L}
    """)
    e(f"""
    v_lshlrev_b32 v{t0}, 2, v{g}
    v_xor_b32 v{t0}, v{t0}, v{c}
    v_lshlrev_b32 v{t0}, 4, v{t0}
    v_lshl_add_u32 v{V_OWQ}, v{g}, 13, v{t0}
    """)
    for u in range(1, 4):
        e(f"v_add_u32 v{V_OWQ+u}, {u * 32768 - wq_imm(u)}, v{V_OWQ}")
    e(f"""
    v_and_b32 v{t0}, 7, v{L}
    v_xor_b32 v{t0}, v{t0}, v{g}
    v_lshlrev_b32 v{t0}, 4, v{t0}
    v_lshrrev_b32 v{t1}, 3, v{L}
    v_lshl_add_u32 v{t0}, v{t1}, 10, v{t0}
    s_and_b32 s3, s{S_W}, 1
    s_lshl_b32 s3, s3, 6
    v_xor_b32 v{t0}, s3, v{t0}
    v_xor_b32 v{t1}, 64, v{t0}
    """)
    for u in range(5):
        src = t0 if u % 2 == 0 else t1
        e(f"v_add_u32 v{V_OX+u}, {u * 8192 - (u & 3) * 1024}, v{src}")
    e(f"""
    v_xor_b32 v{t0}, v{c}, v{g}
    v_lshlrev_b32 v{t0}, 4, v{t0}
    v_lshl_add_u32 v{V_OK}, v{g}, 8, v{t0}
    v_xor_b32 v{V_OK+1}, 64, v{V_OK}
    v_xor_b32 v{V_OK+2}, 0x80, v{V_OK}
    v_xor_b32 v{V_OK+3}, 0xc0, v{V_OK}
    """)
    e(f"""
    v_lshlrev_b32 v{t0}, 1, v{g}
    v_xor_b32 v{t0}, v{t0}, v{c}
    v_lshlrev_b32 v{t0}, 4, v{t0}
    v_lshl_add_u32 v{V_OV0}, v{g}, 8, v{t0}
    v_xor_b32 v{V_OV0+1}, 0x80, v{V_OV0}
    """)
    e(f"""
    s_mul_i32 s3, s{S_HH}, {WQ_HEAD}
    s_add_u32 s3, s3, {WQ0}
    v_mul_u32_u24 v{t0}, 2056, v{g}
    v_lshl_add_u32 v{t0}, v{rp}, 8, v{t0}
    v_lshl_add_u32 v{t0}, v{cp}, 4, v{t0}
    v_add_u32 v{t0}, s3, v{t0}
    s_mul_i32 s7, s{S_RH}, {4 * 1024 + 16}
    s_add_u32 s{S_WQL}, s3, s7
    s_lshl_b32 s{S_WQG}, s{S_RH}, 17
    """)
    for j in range(4):
        e(f"""
    v_xor_b32 v{t1}, {j}, v{rp}
    v_lshl_add_u32 v{V_AW+j}, v{t1}, 6, v{t0}""")
    e(f"""
    s_mul_i32 s3, s{S_RH}, {80*128}
    s_add_u32 s3, s3, {X0}
    v_lshrrev_b32 v{t0}, 1, v{c}
    v_xor_b32 v{t0}, v{t0}, v{g}
    v_lshlrev_b32 v{t0}, 4, v{t0}
    v_lshl_add_u32 v{t0}, v{c}, 7, v{t0}
    v_add_u32 v{V_AX}, s3, v{t0}
    v_xor_b32 v{V_AX+1}, 64, v{V_AX}
    s_mul_i32 s{S_XL}, s{S_W}, 5120
    s_add_u32 s{S_XL}, s{S_XL}, {X0}
    s_mul_i32 s{S_XG}, s{S_W}, 40960
    """)
    e(f"""
    s_lshl_b32 s3, s{S_HH}, 13
    s_lshl_b32 s7, s{S_RH}, 12
    s_add_u32 s{S_KV}, s3, s7
    v_xor_b32 v{t0}, v{g}, v{c}
    v_lshlrev_b32 v{t0}, 4, v{t0}
    v_lshl_add_u32 v{t0}, v{c}, 8, v{t0}
    v_add_u32 v{V_AK}, s3, v{t0}
    v_xor_b32 v{V_AK+1}, 64, v{V_AK}
    v_xor_b32 v{V_AK+2}, 0x80, v{V_AK}
    v_xor_b32 v{V_AK+3}, 0xc0, v{V_AK}
    """)
    e(f"""
    v_lshlrev_b32 v{V_APA}, 4, v{L}
    v_add_u32 v{V_APA}, s{S_KV}, v{V_APA}
    v_add_u32 v{V_APA+1}, {VRING}, v{V_APA}
    """)
    e(f"""
    s_add_u32 s3, s3, 0x20000
    v_lshl_add_u32 v{t0}, v{g}, 2, v{rp}       ; 4g + r'
    v_and_b32 v{t1}, 7, v{t0}                  ; rho7
    v_lshlrev_b32 v{t0}, 8, v{t0}
    v_lshl_add_u32 v{t0}, v{t1}, 5, v{t0}
    v_lshl_add_u32 v{t0}, v{cp}, 3, v{t0}
    v_add_u32 v{V_AV}, s3, v{t0}
    """)
    for dt in range(1, 8):
        e(f"v_xor_b32 v{V_AV+dt}, {32*dt}, v{V_AV}")
    e(f"""
    s_waitcnt lgkmcnt(0)
    s_cmp_eq_u32 s{S_BR}, 0
    s_cselect_b32 s52, s52, s60
    s_cselect_b32 s53, s53, s61
    s_cselect_b32 s54, s54, s62
    s_cselect_b32 s55, s55, s63
    s_cselect_b32 s56, s56, s64
    s_cselect_b32 s57, s57, s65
    s_cselect_b32 s58, s58, s66
    s_cselect_b32 s59, s59, s67
    s_lshl_b32 s3, s{S_H}, 8
    s_add_u32 s{SRD_WQ}, s58, s3
    s_addc_u32 s{SRD_WQ+1}, s59, 0
    s_sub_u32 s{SRD_WQ+2}, 4194304, s3
    s_mov_b32 s{SRD_WQ+3}, 0x20000
    s_mul_i32 s3, s{S_B}, 163840
    s_add_u32 s{SRD_X}, s52, s3
    s_addc_u32 s{SRD_X+1}, s53, 0
    s_mov_b32 s{SRD_X+2}, 163840
    s_mov_b32 s{SRD_X+3}, 0x20000
    """)
    if o.rot and o.rotg > 1:
        G = o.rotg
        e(f"""
    s_and_b32 s3, s{S_IDX}, 3                ; p
    s_lshl_b32 s3, s3, {1 if G == 8 else 0}
    s_add_u32 s3, s3, s{S_B}
    s_and_b32 s3, s3, {G - 1}
    s_mul_i32 s3, s3, {8 // G}
    s_lshl_b32 s{S_WQK}, s3, 7
    s_lshl_b32 s3, s3, 19                    ; 64 rows * 8192
    s_add_u32 s{S_WQG}, s{S_WQG}, s3
    """)
    else:
        e(f"s_mov_b32 s{S_WQK}, 0")

def prologue2(e, o):
    e(f"""
    s_lshl_b32 s3, s{S_B}, 5
    s_add_u32 s3, s3, s{S_H}
    s_lshl_b32 s3, s3, 17
    s_add_u32 s{SRD_K}, s54, s3
    s_addc_u32 s{SRD_K+1}, s55, 0
    s_mov_b32 s{SRD_K+2}, 131072
    s_mov_b32 s{SRD_K+3}, 0x20000
    s_add_u32 s{SRD_V}, s56, s3
    s_addc_u32 s{SRD_V+1}, s57, 0
    s_mov_b32 s{SRD_V+2}, 131072
    s_mov_b32 s{SRD_V+3}, 0x20000
    s_lshl_b32 s3, s{S_BR}, 3
    s_add_u32 s3, s3, s{S_B}
    s_lshl_b32 s3, s3, 1
    s_add_u32 s3, s3, s{S_RH}
    s_lshl_b32 s3, s3, 5
    s_add_u32 s3, s3, s{S_H}
    s_mul_i32 s3, s3, 20480
    s_add_u32 s{SRD_O}, s68, s3
    s_addc_u32 s{SRD_O+1}, s69, 0
    s_mov_b32 s{SRD_O+2}, 20480
    s_mov_b32 s{SRD_O+3}, 0x20000
    s_mov_b32 s{S_SC}, {f32hex(C_SCALE)}
    s_mul_i32 s3, s2, {o.krot}
    s_lshr_b32 s3, s3, 3
    s_and_b32 s3, s3, {15 if o.krot else 0}
    s_lshl_b32 s3, s3, 13
    s_lshl_b32 s{S_K0}, s{S_RH}, 12
    s_add_u32 s{S_K0}, s{S_K0}, s3
    s_add_u32 s{S_KEND}, s{S_K0}, 0x20000
    """)

def wq_imm(u): return u * 1024 + 8 * (u >> 1)

def dma_wq(o, m, after=-1, before=10**9, pace=0):
    fl = [F('s', txt(f"s_add_u32 m0, s{S_WQL}, {(m % 3) * WQ_SLOT}"), after, before)]
    for u in range(4):
        fl.append(F('l', lambda e, u=u: e.vm_op(f"buffer_load_dwordx4 v{V_OWQ+u}, s[{SRD_WQ}:{SRD_WQ+3}], s{S_WQG} offen offset:{wq_imm(u)} {o.q_flag} lds", f"wq{m}"), after + pace * u, before))
    fl.append(F('s', txt(f"s_add_u32 s{S_WQG}, s{S_WQG}, {32 * 8192}"), after, before))
    fl.append(F('s', txt(f"s_and_b32 s{S_WQG}, s{S_WQG}, 0x3fffff"), after, before))
    return fl

def dma_x(o, M, after=-1, before=10**9, pace=0):
    fl = [F('s', txt(f"s_add_u32 m0, s{S_XL}, {(M % 2) * X_SLOT}"), after, before),
          F('s', txt(f"s_add_u32 s{S_T1}, s{S_XG}, s{S_WQK}"), after, before)]
    for u in range(5):
        if u == 4: fl.append(F('s', txt(f"s_add_u32 m0, s{S_XL}, {(M % 2) * X_SLOT + 4096}"), after, before))
        if u == 4: fl.append(F('s', txt("s_nop 0"), after, before))
        fl.append(F('l', lambda e, u=u: e.vm_op(f"buffer_load_dwordx4 v{V_OX+u}, s[{SRD_X}:{SRD_X+3}], s{S_T1} offen offset:{(u & 3) * 1024} {o.q_flag} lds", f"x{M}"), after + pace * u, before))
    fl.append(F('s', txt(f"s_add_u32 s{S_WQK}, s{S_WQK}, 128"), after, before))
    fl.append(F('s', txt(f"s_and_b32 s{S_WQK}, s{S_WQK}, 0x3ff"), after, before))
    return fl

def dma_pref(o, which, s, after=-1, before=10**9, pace=0):
    if which == 'K':
        base = KRING + 16384 * s; srd = SRD_K; vo = lambda t: V_OK + t
    else:
        base = 0x20000 + 16384 * s; srd = SRD_V; vo = lambda t: V_OV0 + (t & 1)
    fl = [F('s', txt(f"s_add_u32 m0, s{S_KV}, {base}"), after, before),
          F('s', txt(f"s_add_u32 s34, s{S_K0}, {s * 8192}"), after, before),
          F('s', txt(f"s_and_b32 s34, s34, 0x1ffff"), after, before)]
    for t in range(4):
        fl.append(F('l', lambda e, t=t: e.vm_op(f"buffer_load_dwordx4 v{vo(t)}, s[{srd}:{srd+3}], s34 offen offset:{t * 1024} {o.kv_flag} lds", f"{which}{s}"), after + pace * t, before))
    return fl

APF = {('K', 2): 0, ('K', 3): 16, ('V', 2): 32, ('V', 3): 48}
def dma_apf(o, which, s, after=-1, before=10**9, pace=0):
    srd = SRD_K if which == 'K' else SRD_V
    vo = (lambda t: V_OK + t) if which == 'K' else (lambda t: V_OV0 + (t & 1))
    fl = [F('s', txt(f"s_add_u32 s34, s{S_K0}, {s * 8192}"), after, before),
          F('s', txt(f"s_and_b32 s34, s34, 0x1ffff"), after, before)]
    for t in range(4):
        a = APF[(which, s)] + 4 * t
        fl.append(F('l', lambda e, t=t, a=a: e.vm_op(f"buffer_load_dwordx4 a[{a}:{a+3}], v{vo(t)}, s[{srd}:{srd+3}], s34 offen offset:{t * 1024} {o.kv_flag}", f"{which}{s}"), after + pace * t, before))
    return fl
V_APA = 72
def apf_copy(after):
    fl = []
    for (which, s), a0 in APF.items():
        for t in range(4):
            a = a0 + 4 * t
            if which == 'K': txt_ = f"ds_write_b128 v{V_APA}, a[{a}:{a+3}] offset:{KRING + 16384 * s + 1024 * t}"
            else: txt_ = f"ds_write_b128 v{V_APA+1}, a[{a}:{a+3}] offset:{16384 * (s - 2) + 1024 * t}"
            fl.append(F('d', lambda e, txt_=txt_: e.ds_op(txt_, "APF"), after))
    return fl

def zero_acc(e):
    e(f"v_mov_b32 v{V_T+8}, 0x3f803f80")
    for r in range(4):
        e(f"v_accvgpr_write_b32 a{A_ONE + r}, v{V_T+8}")

def code_touch_early(e, o, name):
    e("s_getpc_b64 s[66:67]")
    e.label(f"L_pce_{name}")
    e(f"s_sub_u32 s66, s66, L_pce_{name}-{name}")
    e("s_subb_u32 s67, s67, 0")
    if o.c_early == 1:
        e("v_lshlrev_b32 v74, 7, v0")
        e(f"v_min_u32 v75, CODE_END-{name}-4, v74")
        e.vm_op("global_load_dword v76, v75, s[66:67]", "ce")
        e("v_add_u32 v74, 0x8000, v74")
        e(f"v_min_u32 v75, CODE_END-{name}-4, v74")
        e.vm_op("global_load_dword v77, v75, s[66:67]", "ce")
    elif o.c_early == 2:
        e("v_and_b32 v74, 63, v0")
        e("v_lshlrev_b32 v74, 7, v74")
        e.vm_op("global_load_dword v76, v74, s[66:67]", "ce")
        e("s_lshr_b32 s3, s2, 3")
        e("s_lshl_b32 s3, s3, 11")
        e("v_and_b32 v74, 15, v0")
        e("v_lshlrev_b32 v74, 7, v74")
        e("v_add_u32 v74, s3, v74")
        e(f"v_min_u32 v75, CODE_END-{name}-4, v74")
        e.vm_op("global_load_dword v77, v75, s[66:67]", "ce")
    elif o.c_early == 3:
        e("v_lshlrev_b32 v74, 7, v0")
        e(f"v_min_u32 v75, CODE_END-{name}-4, v74")
        e.vm_op("global_load_dword v76, v75, s[66:67]", "ce")
        e("s_lshr_b32 s3, s2, 3")
        e("s_lshl_b32 s3, s3, 9")
        e("s_add_u32 s3, s3, 0x8000")
        e("v_and_b32 v74, 3, v0")
        e("v_lshlrev_b32 v74, 7, v74")
        e("v_add_u32 v74, s3, v74")
        e(f"v_min_u32 v75, CODE_END-{name}-4, v74")
        e.vm_op("global_load_dword v77, v75, s[66:67]", "ce")

def code_touch(e, va, vd, first):
    e("s_getpc_b64 s[66:67]")
    e.label(f"L_pc{first}_{CODE_NAME[0]}")
    e(f"s_sub_u32 s66, s66, L_pc{first}_{CODE_NAME[0]}-{CODE_NAME[0]}")
    e("s_subb_u32 s67, s67, 0")
    e(f"s_lshl_b32 s3, s{S_IDX}, 11")
    e(f"v_mbcnt_lo_u32_b32 v{va}, -1, 0")
    e(f"v_mbcnt_hi_u32_b32 v{va}, -1, v{va}")
    e(f"v_and_b32 v{va}, 15, v{va}")
    e(f"v_lshlrev_b32 v{va}, 7, v{va}")
    e(f"v_add_u32 v{va}, s3, v{va}")
    e(f"v_min_u32 v{va}, CODE_END-{CODE_NAME[0]}-4, v{va}")
    e.vm_op(f"global_load_dword v{vd}, v{va}, s[66:67]", "ctouch")

CODE_NAME = [""]
def run(e, fl):
    for f in fl: f.fn(e)

def qphase(e, o):
    run(e, dma_wq(o, 0) + dma_x(o, 0) + dma_wq(o, 1))
    if o.pre_all: run(e, dma_wq(o, 2) + dma_x(o, 1))
    prologue2(e, o)
    if o.c_touch: code_touch(e, V_T + 9, V_T + 10, 0)
    if o.tlb:
        e(f"""
    s_lshl_b32 s3, s{S_BR}, 3
    s_add_u32 s3, s3, s{S_B}
    s_lshl_b32 s3, s3, 4
    s_lshr_b32 s7, s{S_H}, 1
    s_add_u32 s3, s3, s7
    s_mul_i32 s3, s3, 163840
    s_add_u32 s3, s3, {POFF}
    s_add_u32 s28, s68, s3
    s_addc_u32 s29, s69, 0
    s_mov_b32 s30, 163840
    s_mov_b32 s31, 0x20000
    v_mov_b32 v78, 0
    """)
        if o.tlb & 1: e.vm_op(f"buffer_load_dword v79, v78, s[28:31], 0 offen", "tlb")
        if o.tlb & 2:
            e.vm_op(f"buffer_load_dword v79, v78, s[{SRD_K}:{SRD_K+3}], 0 offen", "tlb")
            e.vm_op(f"buffer_load_dword v79, v78, s[{SRD_V}:{SRD_V+3}], 0 offen", "tlb")
    stamp(e, o, "issued")
    zero_acc(e)
    idx = lambda m, dt, qt: 40 * m + 5 * dt + qt
    def wfrag(m, dt, after=-1, before=10**9):
        j, tp = dt >> 1, dt & 1
        return [F('d', lambda e, n=n: e.ds_op(f"ds_read_b64_tr_b16 a[{fbuf(dt) + 2 * n}:{fbuf(dt) + 2 * n + 1}], v{V_AW + j} offset:{(m % 3) * WQ_SLOT + n * 1024 + 8 * tp}", f"F{m}_{dt}"), after, before) for n in range(2)]
    def xfrag(m, qt, after=-1, before=10**9):
        M, h = m >> 1, m & 1
        b = V_XB[m & 1] + 4 * qt
        return [F('d', lambda e: e.ds_op(f"ds_read_b128 v[{b}:{b+3}], v{V_AX + h} offset:{(M % 2) * X_SLOT + qt * 2048}", f"B{m}_{qt}"), after, before)]
    def barrier(m):
        def fn(e):
            e.ds_all()
            tags = [f"wq{m+1}"]
            if (m + 1) % 2 == 0: tags.append(f"x{(m+1)//2}")
            if m == 15:
                e.vm_all()
            elif not o.q_nowait or m < 0:
                e.need_vm(tags)
            if not o.q_nobar or m in (-1, 15): e("s_barrier")
            if o.skew and -1 <= m < 15:
                n_ = NSK[0]; NSK[0] += 1
                e(f"s_cmp_eq_u32 s{S_W}, 0")
                e(f"s_cbranch_scc1 L_sk{n_}")
                e(f"s_nop {o.skew - 1}")
                e(f"s_cmp_eq_u32 s{S_W}, 1")
                e(f"s_cbranch_scc1 L_sk{n_}")
                e(f"s_nop {o.skew - 1}")
                e(f"s_cmp_eq_u32 s{S_W}, 2")
                e(f"s_cbranch_scc1 L_sk{n_}")
                e(f"s_nop {o.skew - 1}")
                e.label(f"L_sk{n_}")
            stamp(e, o, f"B{m}") if (o.stamp_list or m in (3, 9)) else None
        return fn
    barrier(-1)(e)
    stamp(e, o, "bar0")
    def nextfrags(m, after, before):
        fl = wfrag(m, 0, after, before)
        for q in range(5): fl += xfrag(m, q, after, before)
        return fl + wfrag(m, 1, after, before) + wfrag(m, 2, after, before)
    run(e, nextfrags(0, -1, 0))
    mains = []; rd = []; dm = []
    pref = [('K', 0), ('K', 1), ('V', 0), ('V', 1)]
    if o.apf: pref += [('K', 2), ('K', 3), ('V', 2), ('V', 3)]
    tnext = [0]
    for m in range(16):
        for dt in range(8):
            for qt in range(5):
                cin = "0" if m == 0 else vr(acc(dt, qt), 4)
                needs = []
                if qt == 0: needs.append(f"F{m}_{dt}")
                if dt == 0: needs.append(f"B{m}_{qt}")
                pre = barrier(m) if (dt == 5 and qt == 0) else None
                mains.append(Main(f"{MFMA} {vr(acc(dt, qt), 4)}, {ar(fbuf(dt), 4)}, {vr(V_XB[m & 1] + 4 * qt, 4)}, {cin}", needs, pre))
        if o.q_ahead:
            if m == 0:
                for dt in (3, 4, 5, 6, 7): rd += wfrag(0, dt, -1, idx(0, min(dt - 1, 4), 0))
            if m < 15:
                a_ = idx(m, 5, 0)
                rd += nextfrags(m + 1, a_, idx(m, 7, 4))
                for dt in (3, 4): rd += wfrag(m + 1, dt, a_, idx(m + 1, dt - 2, 0))
                for dt in (5, 6, 7): rd += wfrag(m + 1, dt, idx(m, dt, 4), idx(m + 1, min(dt - 2, 4), 0))
        else:
            for dt in (3, 4, 5):
                rd += wfrag(m, dt, idx(m, dt - 3, 0), idx(m, dt - 1, 0))
            for dt in (6, 7):
                rd += wfrag(m, dt, idx(m, 2, 2), idx(m, 4, 3))
            if m < 15:
                rd += nextfrags(m + 1, idx(m, 5, 0), idx(m, 7, 4))
        a = idx(m, 5, 0); b = idx(m + 1, 5, 0) if m < 15 else 10**9
        if m == 0 and not o.pre_all:
            dm += dma_wq(o, 2, -1, idx(0, 4, 0)) + dma_x(o, 1, -1, idx(0, 4, 4))
        t = max(a, tnext[0])
        if m + 3 < 16 and not o.q_nodma and not o.q_nowq:
            dm += dma_wq(o, m + 3, t, b, o.pace); t += 4 * o.pace
        if m % 2 == 1 and (m - 1) // 2 + 2 < 8 and not o.q_nodma and not o.q_nox:
            dm += dma_x(o, (m - 1) // 2 + 2, t, idx(m + 2, 4, 0) if m < 14 else 10**9, o.pace); t += 5 * o.pace
        for n_, (w, s) in enumerate(pref):
            when = int(o.pf_steps.split(",")[n_]) if o.pf_steps else min(o.pf_start + n_ * o.pf_per, 15 if o.pf_late else 13)
            if m == when:
                fn_ = dma_pref if s < 2 else dma_apf
                dm += fn_(o, w, s, t, idx(m + 2, 5, 0) if m < 14 else 10**9, o.pace); t += 4 * o.pace
        tnext[0] = t
        if m == 15 and o.apf:
            rd += apf_copy(a)
        if m == 15 and not o.apf:
            for s in (2, 3):
                dm += [F('s', txt(f"s_add_u32 m0, s{S_KV}, {KRING + 16384 * s}"), a),
                       F('s', txt(f"s_add_u32 s34, s{S_K0}, {s * 8192}"), a),
                       F('s', txt(f"s_and_b32 s34, s34, 0x1ffff"), a)]
                for t in range(4):
                    dm.append(F('l', lambda e, t=t, s=s: e.vm_op(f"buffer_load_dwordx4 v{V_OK + t}, s[{SRD_K}:{SRD_K+3}], s34 offen offset:{t * 1024} {o.kv_flag} lds", f"K{s}"), a))
    if o.q_nods: rd = []
    zip2(e, mains, [rd, dm], lgap=o.q_lgap, lfirst=o.q_lfirst, urgency=o.q_urg)

def qconvert(e):
    e("s_nop 7")
    for r in range(V_ACC, V_ACC + 160, 2):
        e(f"v_pk_mul_f32 v[{r}:{r+1}], v[{r}:{r+1}], s[{S_SC}:{S_SC+1}] op_sel_hi:[1,0]")
    for j in range(4):
        for qt in range(5):
            for tp in range(2):
                a0 = acc(2 * j + tp, qt); d = qf(j, qt) + 2 * tp
                e(f"v_cvt_pk_bf16_f32 v{d}, v{a0}, v{a0+1}")
                e(f"v_cvt_pk_bf16_f32 v{d+1}, v{a0+2}, v{a0+3}")

def dma_kv(o, which, after0, i):
    fl = []
    P = o.kv_pace
    after = after0
    def off(run, tmp):
        return [F('s', txt(f"s_and_b32 s{tmp}, s{run}, 0x1ffff"), after0),
                F('s', txt(f"s_cmp_lt_u32 s{run}, s{S_KEND}"), after0),
                F('s', txt(f"s_cselect_b32 s{tmp}, s{tmp}, 0x20000"), after0),
                F('s', txt(f"s_add_u32 s{run}, s{run}, 8192"), after0)]
    if 'K' in which:
        fl.append(F('s', txt(f"s_mov_b32 m0, s{S_KDST}"), after))
        if o.krot: fl += off(S_KOFF, S_T0)
        fl.append(F('s', txt(f"s_add_u32 s{S_KDST}, s{S_KDST}, 16384"), after))
        ko = S_T0 if o.krot else S_KOFF
        for t in range(4):
            fl.append(F('l', lambda e, t=t: e.vm_op(f"buffer_load_dwordx4 v{V_OK + t}, s[{SRD_K}:{SRD_K+3}], s{ko} offen offset:{t * 1024} {o.kv_flag} lds", f"K{i+4}"), after))
            after += P
        fl.append(F('s', txt(f"s_and_b32 s{S_KDST}, s{S_KDST}, 0xffff"), after0))
        if not o.krot: fl.append(F('s', txt(f"s_add_u32 s{S_KOFF}, s{S_KOFF}, 8192"), after0))
    if 'V' in which:
        fl.append(F('s', txt(f"s_add_u32 m0, s{S_VDST}, {VRING}"), after0))
        if o.krot: fl += off(S_VOFF, 34)
        fl.append(F('s', txt(f"s_add_u32 s{S_VDST}, s{S_VDST}, 16384"), after0))
        vo_ = 34 if o.krot else S_VOFF
        for t in range(4):
            fl.append(F('l', lambda e, t=t: e.vm_op(f"buffer_load_dwordx4 v{V_OV + (t & 1)}, s[{SRD_V}:{SRD_V+3}], s{vo_} offen offset:{t * 1024} {o.kv_flag} lds", f"V{i+2}"), after))
            after += P
        fl.append(F('s', txt(f"s_and_b32 s{S_VDST}, s{S_VDST}, 0xffff"), after0))
        if not o.krot: fl.append(F('s', txt(f"s_add_u32 s{S_VOFF}, s{S_VOFF}, 8192"), after0))
    return fl

def kfrag(par_slot, kt, j, n, after=-1, before=10**9):
    return [F('d', lambda e: e.ds_op(f"ds_read_b128 a[{fbuf(n)}:{fbuf(n)+3}], v{V_AK + j} offset:{kt * 4096 + 16384 * par_slot}", f"F{n}"), after, before)]
def vfrag(par_slot, dt, n, after=-1, before=10**9):
    return [F('d', lambda e, h=h: e.ds_op(f"ds_read_b64_tr_b16 a[{fbuf(n) + 2*h}:{fbuf(n) + 2*h + 1}], v{V_AV + dt} offset:{h * 4096 + 16384 * par_slot}", f"F{n}"), after, before) for h in range(2)]

def softmax_fill(par):
    seq = []
    for qt in range(5):
        for kt in range(2):
            s = sreg(par, kt, qt); p = preg(par, qt) + 2 * kt
            seq += [("e", s), ("e", s + 1), ("c", p, s, s + 1), ("e", s + 2), ("e", s + 3), ("c", p + 1, s + 2, s + 3)]
    out = []; pend = None
    for x in seq:
        if x[0] == "c": pend = x
        else:
            out.append(x)
            if pend is not None: out.append(pend); pend = None
    if pend is not None: out.append(("n",)); out.append(pend)
    fl = []
    for x in out:
        if x[0] == "e": fl.append(F('e', txt(f"v_exp_f32 v{x[1]}, v{x[1]}")))
        elif x[0] == "c": fl.append(F('v', txt(f"v_cvt_pk_bf16_f32 v{x[1]}, v{x[2]}, v{x[3]}")))
        else: fl.append(F('s', txt("s_nop 0")))
    return fl

def attn_iter(e, o, i, qk, sm, pv, vwait, dma, pre_next, epi=None, first_pv=False, extra_dm=None):
    par = i & 1; ks = (i + 1) & 1
    mains = []; rd = []; dm = []
    gstart = {}
    if qk:
        for kt in range(2):
            for j in range(4):
                n = kt * 4 + j
                gstart[n] = len(mains)
                for qt in range(5):
                    d = sreg(par ^ 1, kt, qt)
                    cin = vr(V_BIAS + 4 * qt, 4) if j == 0 else vr(d, 4)
                    mains.append(Main(f"{MFMA} {vr(d, 4)}, {ar(fbuf(n), 4)}, {vr(qf(j, qt), 4)}, {cin}", [f"F{n}"] if qt == 0 else []))
    if pv:
        gstart['l'] = len(mains)
        for qt in range(5):
            mains.append(Main(f"{MFMA} {ar(A_L + 4 * qt, 4)}, {ar(A_ONE, 4)}, {vr(preg(par ^ 1, qt), 4)}, {'0' if first_pv else ar(A_L + 4 * qt, 4)}"))
        for dt in range(8):
            n = 8 + dt
            gstart[n] = len(mains)
            for qt in range(5):
                mains.append(Main(f"{MFMA} {ar(oacc(dt, qt), 4)}, {ar(fbuf(n), 4)}, {vr(preg(par ^ 1, qt), 4)}, {'0' if first_pv else ar(oacc(dt, qt), 4)}", [f"F{n}"] if qt == 0 else []))
    order = [n for n in range(16) if n in gstart]
    ln = len(order)
    for k, n in enumerate(order):
        if qk and n < 3: continue
        after = gstart[order[k - 4]] if k >= 4 else -1
        if k >= ln - 3 and ln >= 6: after = gstart[order[ln - 6]]
        before = gstart[order[k - 1]] if k >= 1 else 0
        if k >= ln - 3 and ln >= 4: before = min(before, gstart[order[ln - 3]])
        rd += kfrag(ks, n >> 2, n & 3, n, after, before) if n < 8 else vfrag(ks, n - 8, n, after, before)
    has_bar = pre_next or vwait is not None
    if has_bar:
        bpos = gstart[order[-2]]
        def bar(e):
            e.ds_all()
            if vwait == 0:
                if 'OLD' in e.vm: e.need_vm('OLD')
                else: e.vm_all()
            elif vwait is not None: e.need_vm([f"K{i+2}", f"V{i}"])
            e("s_barrier")
        mains[bpos].pre = bar
        if par == 0 and qk:
            for j in range(4): rd.append(F('v', txt(f"v_xor_b32 v{V_AK + j}, 0x8000, v{V_AK + j}"), bpos))
        if pre_next:
            for n in range(3): rd += kfrag(ks ^ 1, 0, n, n, bpos, len(mains) - 1)
        if par == 0 and pv:
            for dt in range(8): rd.append(F('v', txt(f"v_xor_b32 v{V_AV + dt}, {hex(VTOG)}, v{V_AV + dt}"), bpos))
    dm += dma_kv(o, dma, -1, i)
    if extra_dm: dm += extra_dm
    sf = softmax_fill(par) if sm else []
    qs = [rd, dm, sf]
    if epi: qs.append(epi(gstart))
    zip2(e, mains, qs, flush_nop=bool(epi))

def epilogue_fill(o):
    def build(gstart):
        fl = []
        RL = V_E
        W = V_E + 6
        l0 = gstart['l']
        for qt in range(5):
            fl.append(F('v', txt(f"v_accvgpr_read_b32 v{RL + qt}, a{A_L + 4 * qt}"), l0 + 5 + 8))
        for qt in range(5):
            fl.append(F('e', txt(f"v_rcp_f32 v{RL + qt}, v{RL + qt}"), l0 + 5 + 8))
        k = 0
        for jj in range(4):
            ready = gstart[8 + 2 * jj + 1] + 5 + 4
            for qt in range(5):
                w = W + 12 * (k & 1); k += 1
                for tp in range(2):
                    for i in range(4):
                        fl.append(F('v', txt(f"v_accvgpr_read_b32 v{w + 4*tp + i}, a{oacc(2*jj + tp, qt) + i}"), ready))
                for r in range(8):
                    fl.append(F('v', txt(f"v_mul_f32 v{w + r}, v{w + r}, v{RL + qt}"), ready))
                for r in range(4):
                    fl.append(F('v', txt(f"v_cvt_pk_bf16_f32 v{w + 8 + r}, v{w + 2*r}, v{w + 2*r + 1}"), ready))
                off = (jj * 5 + qt) * 1024
                fl.append(F('s', txt(f"s_mov_b32 s{S_T0}, {off}"), ready))
                fl.append(F('l', lambda e, w=w: e.vm_op(f"buffer_store_dwordx4 v[{w+8}:{w+11}], v{V_E + 5}, s[{SRD_O}:{SRD_O+3}], s{S_T0} offen {o.o_flag}", "st"), ready))
        return fl
    return build

WO_A = [131072, 147456, 98304, 81920, 114688]
WO_B = [0, 16384, 32768, 49152, 65536]
def wo_slot(si): return WO_A[si] if si < 5 else WO_B[si - 5] if si < 10 else WO_A[si - 10] if si < 15 else WO_B[0]
VOTE_LDS = 16384
V_AWS = 160

def t3_setup(e, o):
    L = V_E + 5
    t0, t1, t2, t3_ = V_E, V_E + 1, V_E + 2, V_E + 3
    e(f"""
    v_lshrrev_b32 v{t0}, 4, v{L}             ; lane
    v_lshrrev_b32 v{t1}, 4, v{t0}            ; g
    v_and_b32 v{t2}, 7, v{t0}
    v_lshlrev_b32 v{t3_}, 1, v{t1}
    v_xor_b32 v{t2}, v{t2}, v{t3_}
    v_lshlrev_b32 v{t2}, 4, v{t2}
    v_lshrrev_b32 v{t3_}, 3, v{t0}
    v_lshl_add_u32 v{V_OW}, v{t3_}, 10, v{t2}
    v_add_u32 v{V_OW+1}, {7168}, v{V_OW}
    v_add_u32 v{V_OW+2}, {2*7168}, v{V_OW}
    v_add_u32 v{V_OW+3}, {3*7168}, v{V_OW}
    v_bfe_u32 v{t2}, v{t0}, 2, 2             ; r'
    v_lshl_add_u32 v{t2}, v{t1}, 2, v{t2}    ; 4g + r'
    v_lshrrev_b32 v{t3_}, 1, v{t2}
    v_and_b32 v{t3_}, 3, v{t3_}
    v_lshlrev_b32 v{t2}, 7, v{t2}
    v_lshl_add_u32 v{t2}, v{t3_}, 5, v{t2}
    v_and_b32 v{t3_}, 3, v{t0}               ; c'
    v_lshl_add_u32 v{t2}, v{t3_}, 3, v{t2}
    s_lshl_b32 s3, s{S_HH}, 13
    v_add_u32 v{V_AW2}, s3, v{t2}
    v_xor_b32 v{V_AW2+1}, 32, v{V_AW2}
    v_xor_b32 v{V_AW2+2}, 64, v{V_AW2}
    v_xor_b32 v{V_AW2+3}, 0x60, v{V_AW2}
    s_mul_i32 s3, s{S_W}, 20480
    v_add_u32 v{V_XA}, s3, v{L}
    s_mov_b32 s{S_WL}, s{S_KV}
    s_lshl_b32 s3, s{S_RH}, 15
    s_lshl_b32 s7, s{S_HH}, 9
    s_add_u32 s3, s3, s7
    s_lshl_b32 s7, s{S_HH}, 17
    s_add_u32 s{S_WA}, s3, s7
    s_xor_b32 s7, s7, 0x20000
    s_add_u32 s{S_WB}, s3, s7
    s_cmp_eq_u32 s{S_BR}, 0
    s_cselect_b32 s60, s98, s100
    s_cselect_b32 s61, s99, s101
    s_sub_u32 s3, s{S_H}, s{S_HH}
    s_lshl_b32 s3, s3, 17                    ; * 128 rows * 1024
    s_add_u32 s{SRD_WO}, s60, s3
    s_addc_u32 s{SRD_WO+1}, s61, 0
    s_mov_b32 s{SRD_WO+2}, 262144
    s_mov_b32 s{SRD_WO+3}, 0x20000
    s_lshl_b32 s3, s{S_BR}, 3
    s_add_u32 s3, s3, s{S_B}
    s_lshl_b32 s3, s3, 4
    s_lshr_b32 s7, s{S_H}, 1
    s_add_u32 s3, s3, s7
    s_lshl_b32 s3, s3, 2
    s_lshl_b32 s7, s{S_RH}, 1
    s_add_u32 s3, s3, s7
    s_add_u32 s3, s3, s{S_HH}
    s_mul_i32 s3, s3, 40960
    s_add_u32 s3, s3, {POFF}
    s_add_u32 s{SRD_P}, s68, s3
    s_addc_u32 s{SRD_P+1}, s69, 0
    s_mov_b32 s{SRD_P+2}, 40960
    s_mov_b32 s{SRD_P+3}, 0x20000
    s_lshl_b32 s3, s{S_HG}, 20
    s_add_u32 s56, s60, s3
    s_addc_u32 s57, s61, 0
    s_mov_b32 s58, 0x100000
    s_mov_b32 s59, 0x20000
    s_lshl_b32 s3, s{S_IDX}, 2
    s_add_u32 s3, s3, s{S_W}
    s_lshl_b32 s3, s3, 13
    v_lshlrev_b32 v{t0}, 3, v{L}             ; lane*128
    v_add_u32 v{t0}, s3, v{t0}
    """)

def dma_wo(o, p, kq, after=-1, before=10**9, pace=0, mark=None):
    src = S_WA if kq < 2 else S_WB
    fl = [F('s', txt(f"s_add_u32 m0, s{S_WL}, {wo_slot(4 * p + kq)}"), after, before),
          F('s', txt(f"s_add_u32 s{S_T1}, s{src}, {(kq & 1) * 65536 + 128 * p}"), after, before)]
    for t in range(4):
        fl.append(F('l', lambda e, t=t: e.vm_op(f"buffer_load_dwordx4 v{V_OW+t}, s[{SRD_WO}:{SRD_WO+3}], s{S_T1} offen offset:{t*1024} {o.w_flag} lds", f"W{p}_{kq}"), after + pace * t, before, mark=(mark if t == 3 else None)))
    return fl

def t3_tail(e, o):
    i = 16; par = 0; ks = 1
    mains = []; rd = []; dm = []; cv = []; st = []; xw = []; xr = []
    gstart = {}
    gstart['l'] = 0
    for qt in range(5):
        mains.append(Main(f"{MFMA} {ar(A_L + 4 * qt, 4)}, {ar(A_ONE, 4)}, {vr(preg(1, qt), 4)}, {ar(A_L + 4 * qt, 4)}"))
    for dt in range(8):
        n = 8 + dt
        gstart[n] = len(mains)
        for qt in range(5):
            mains.append(Main(f"{MFMA} {ar(oacc(dt, qt), 4)}, {ar(fbuf(n), 4)}, {vr(preg(1, qt), 4)}, {ar(oacc(dt, qt), 4)}", [f"F{n}"] if qt == 0 else []))
    for k in range(8):
        n = 8 + k
        after = gstart[8 + k - 4] if k >= 4 else -1
        before = gstart[8 + k - 1] if k >= 1 else 0
        rd += vfrag(ks, k, n, after, before)
    NPV = len(mains)
    def a2(p, nt, qt):
        if (p & 1) == 0 and nt >= 2 and o.acc_hi: return 216 + ((nt - 2) * 5 + qt) * 4
        return A_ACC2[p & 1] + (nt * 5 + qt) * 4
    def bfr(kk, qt): return (kk * 5 + qt) * 4
    S0 = {}
    nfrag = 16
    for p in range(4):
        for kq in range(4):
            S0[(p, kq)] = len(mains)
            for ks2 in range(2):
                kk = 2 * kq + ks2
                for nt in range(4):
                    n = nfrag; nfrag += 1
                    g0 = len(mains)
                    for qt in range(5):
                        cin = "0" if (kq == 0 and ks2 == 0) else ar(a2(p, nt, qt), 4)
                        needs = [f"G{n}"] if qt == 0 else []
                        if p == 0 and kk >= 4 and nt == 0: needs = needs + [f"X{kk}_{qt}"]
                        mains.append(Main(f"{MFMA} {ar(a2(p, nt, qt), 4)}, {ar(fbuf(n), 4)}, {vr(bfr(kk, qt), 4)}, {cin}", needs))
                    gstart[('g', p, kq, ks2, nt)] = (g0, n)
    N = len(mains)
    stages = [(p, kq) for p in range(4) for kq in range(4)]
    def gidx(p, kq, j): return gstart[('g', p, kq, j >> 2, j & 3)]
    BAR = {}
    for si, (p, kq) in enumerate(stages):
        BAR[si] = gidx(p, kq, 5)[0]
    def wfrag(p, kq, j, after, before):
        g0, n = gidx(p, kq, j)
        return [F('d', lambda e, h=h, n=n: e.ds_op(f"ds_read_b64_tr_b16 a[{fbuf(n) + 2*h}:{fbuf(n) + 2*h + 1}], v{V_AWS + 4 * (wo_slot(4 * p + kq) >> 16) + (j & 3)} offset:{(wo_slot(4 * p + kq) & 0xffff) + (j >> 2) * 4096 + h * 2048}", f"G{n}"), after, before) for h in range(2)]
    pv_bar = gstart[8 + 6]
    def bar_first(e):
        e.ds_all()
        e.need_vm("W0_0")
        e("s_barrier")
    mains[pv_bar].pre = bar_first
    rd_pv_last = [f for f in rd]
    for f in rd:
        f.before = min(f.before, pv_bar - 3)
    for si, (p, kq) in enumerate(stages):
        prevbar = pv_bar if si == 0 else BAR[si - 1]
        for j in range(8):
            g0 = gidx(p, kq, j)[0]
            if j < 3:
                after = prevbar; before = S0[(p, kq)] - 1 if j == 0 else gidx(p, kq, j - 1)[0]
                if si == 0 and j == 0: before = NPV - 1
            elif j < 6:
                after = gidx(p, kq, j - 3)[0]; before = gidx(p, kq, j - 1)[0]
            else:
                after = gidx(p, kq, 2)[0] + 2; before = gidx(p, kq, 4)[0] + 3
            rd += wfrag(p, kq, j, after, before)
        def bar(e, si=si):
            if si == o.c_k3_at and o.c_k3:
                n_ = CODE_NAME[0]
                e("s_getpc_b64 s[60:61]")
                e.label(f"L_pck_{n_}")
                e(f"s_add_u32 s60, s60, reduce_kernel-L_pck_{n_}")
                e("s_addc_u32 s61, s61, 0")
                e(f"v_mbcnt_lo_u32_b32 v178, -1, 0")
                e(f"v_mbcnt_hi_u32_b32 v178, -1, v178")
                e(f"v_lshlrev_b32 v178, 7, v178")
                e(f"v_min_u32 v178, K3_END-reduce_kernel-4, v178")
                e.vm_op(f"global_load_dword v179, v178, s[60:61]", "k3t")
            if o.stamp_list or si in ((0, 3, 7, 15) if o.fuse else (0, 3, 7, 11, 15)): stamp(e, o, f"T{si}")
            if o.few_bar and si not in (0, 1, 2, 3, 4, 5, 10):
                return
            e.ds_all()
            cover = [si + 1]
            if o.few_bar and si == 5: cover = list(range(6, 12))
            if o.few_bar and si == 10: cover = list(range(11, 16))
            e.need_vm([f"W{stages[x][0]}_{stages[x][1]}" for x in cover if x < 16])
            e("s_barrier")
        mains[BAR[si]].pre = bar
    if o.wo_early: pre = dma_wo(o, 0, 2, -1, 24, 3)
    else: pre = dma_wo(o, 0, 0, -1, 3) + dma_wo(o, 0, 1, -1, 10) + dma_wo(o, 0, 2, -1, 18) + dma_wo(o, 0, 3, -1, 26)
    def st_(si): return stages[si]
    P = o.w_pace
    dm = pre + dma_wo(o, *st_(4), pv_bar, BAR[0], P)
    dm += dma_wo(o, *st_(10), BAR[0], BAR[1], P)
    dm += dma_wo(o, *st_(11), BAR[1], BAR[2], P)
    t = BAR[2]
    for si in (5, 6, 7, 8, 9):
        dl = BAR[si - 2] if si > 5 else BAR[3]
        if o.few_bar: dl = min(dl, BAR[5] - 8)
        dm += dma_wo(o, *st_(si), t, dl, P); t += 4 * P
    dm += dma_wo(o, *st_(12), t, BAR[8] if not o.st_late else BAR[5] - 6, P); t += 4 * P
    dm += dma_wo(o, *st_(13), max(t, BAR[3]), BAR[9] if not o.st_late else BAR[5] - 4, P); t += 4 * P
    dm += dma_wo(o, *st_(14), max(t, BAR[4]), (BAR[10] - (8 if o.few_bar else 0)) if not o.st_late else BAR[5] + 4, P); t += 4 * P
    dm += dma_wo(o, *st_(15), max(t, BAR[5]), (BAR[11] if not o.few_bar else BAR[10] - 4) if not o.st_late else BAR[5] + 14, P, mark="lastW")
    if o.t3_nodma: dm = pre
    RL = V_E; W = V_E + 6
    l0 = 0
    for qt in range(5): cv.append(F('v', txt(f"v_accvgpr_read_b32 v{RL + qt}, a{A_L + 4 * qt}"), l0 + 5 + 6))
    for qt in range(5): cv.append(F('e', txt(f"v_rcp_f32 v{RL + qt}, v{RL + qt}"), l0 + 5 + 6))
    k = 0
    for jj in range(4):
        ready = gstart[8 + 2 * jj + 1] + 5 + 4
        need = gidx(0, jj >> 1, (jj & 1) * 4)[0]
        if jj == 1 and not o.acc_hi: need = gidx(0, 0, 2)[0]
        for qt in range(5):
            w = W + 8 * (k & 1); k += 1
            dl = need + qt - 2 if need + qt - 2 > ready else need
            for tp in range(2):
                for i_ in range(4):
                    cv.append(F('v', txt(f"v_accvgpr_read_b32 v{w + 4*tp + i_}, a{oacc(2*jj + tp, qt) + i_}"), ready, need - 2))
            for r in range(8):
                cv.append(F('v', txt(f"v_mul_f32 v{w + r}, v{w + r}, v{RL + qt}"), ready, need - 2))
            d = bfr(jj, qt)
            for r in range(4):
                cv.append(F('v', txt(f"v_cvt_pk_bf16_f32 v{d + r}, v{w + 2*r}, v{w + 2*r + 1}"), ready, need - 2, mark=(f"of{jj}_{qt}" if r == 3 else None)))
            xw.append(F('d', lambda e, d=d, jj=jj, qt=qt: e.ds_op(f"ds_write_b128 v{V_XA}, v[{d}:{d+3}] offset:{(jj * 5 + qt) * 1024}", "XW"), ready, BAR[1] - 2, dep=f"of{jj}_{qt}"))
    xbar = BAR[1]
    xw.append(F('v', txt(f"v_add_u32 v{V_XA}, s55, v{V_XA}"), xbar, xbar + 2))
    for jj in range(4):
        for qt in range(5):
            d = bfr(4 + jj, qt)
            xw.append(F('d', lambda e, d=d, jj=jj, qt=qt: e.ds_op(f"ds_read_b128 v[{d}:{d+3}], v{V_XA} offset:{(jj * 5 + qt) * 1024}", f"X{4+jj}_{qt}"), xbar + 1, S0[(0, 2)] - 6 if jj < 2 else BAR[2] - 4))
    gd = []
    for qt in range(5):
        a_, b_ = S0[(0, 2)], S0[(1, 0)] - 2
        gd.append(F('v', txt(f"v_med3_f32 v224, v{RL + qt}, s66, v225"), a_, b_))
        gd.append(F('v', txt(f"v_cmp_neq_f32 s[62:63], v224, v{RL + qt}"), a_, b_))
        gd.append(F('s', txt("s_nop 1"), a_, b_))
        gd.append(F('s', txt(f"s_or_b64 s[{S_BAD}:{S_BAD+1}], s[{S_BAD}:{S_BAD+1}], s[62:63]"), a_, b_))
    W2 = V_E + 6
    k = 0
    for p in range(4):
        start = S0[(p + 1, 0)] + 6 if p < 3 else N
        end = S0[(p + 1, 3)] if p < 2 else 10**9
        if o.st_late and p == 0: start = BAR[5] + 2; end = S0[(2, 0)] - 8
        if o.st_late and p == 1: start = max(start, S0[(2, 0)] + 6); end = S0[(3, 0)] - 8
        if p == 2: end = N - 10
        for u in range(2):
            for qt in range(5):
                w = W2 + 12 * (k & 1); k += 1
                for tp in range(2):
                    for i_ in range(4):
                        st.append(F('v', txt(f"v_accvgpr_read_b32 v{w + 4*tp + i_}, a{a2(p, 2*u + tp, qt) + i_}"), start, end))
                for r in range(4):
                    st.append(F('v', txt(f"v_cvt_pk_bf16_f32 v{w + 8 + r}, v{w + 2*r}, v{w + 2*r + 1}"), start, end))
                off = (p * 10 + u * 5 + qt) * 1024
                st.append(F('s', txt(f"s_mov_b32 s{S_T0}, {off}"), start, end))
                if not o.t3_nostore: st.append(F('l', lambda e, w=w: e.vm_op(f"buffer_store_dwordx4 v[{w+8}:{w+11}], v{V_E + 5}, s[{SRD_P}:{SRD_P+3}], s{S_T0} offen {o.p_flag}", "st"), start, end,
                                                    dep=("lastW" if (o.st_late and p == 0 and u == 0 and qt == 0) else None)))
    e(f"s_mov_b64 s[{S_BAD}:{S_BAD+1}], 0")
    e(f"s_mov_b32 s66, {hex(R_LO)}")
    e(f"v_mov_b32 v225, {hex(R_HI)}")
    for k_ in range(3):
        for j in range(4):
            e(f"v_add_u32 v{V_AWS + 4 * k_ + j}, {65536 * k_}, v{V_AW2 + j}")
    e(f"s_lshl_b32 s{S_T0}, s{S_HH}, 1")
    e(f"s_sub_u32 s{S_T0}, 1, s{S_T0}")
    e(f"s_mul_i32 s{S_T0}, s{S_T0}, 40960")
    e(f"s_mov_b32 s55, s{S_T0}")
    for f in cv:
        pass
    zip2(e, mains, [rd, dm, cv, xw, gd, st], flush_nop=True, dense=2 if o.vmax > 1 else None, vmax=o.vmax, lgap=o.t_lgap)

def max_pass(e, o, name):
    M = 120; L16 = V_E + 5; T = 126
    e.label(f"L_maxpass_{name}")
    e("s_waitcnt vmcnt(0) lgkmcnt(0)")
    for qt in range(5): e(f"v_mov_b32 v{M + qt}, 0xff800000")
    e(f"s_mov_b32 s{S_CNT}, 0")
    e(f"s_lshl_b32 s{S_T1}, s{S_RH}, 12")
    e.label(f"L_maxloop_{name}")
    e("s_barrier")
    e(f"s_mov_b32 m0, s{S_KV}")
    e("s_nop 0")
    for t in range(4):
        e(f"buffer_load_dwordx4 v{V_OK + t}, s[{SRD_K}:{SRD_K+3}], s{S_T1} offen offset:{t * 1024} lds")
    e("s_waitcnt vmcnt(0)")
    e("s_barrier")
    for n in range(8):
        e(f"ds_read_b128 a[{fbuf(n)}:{fbuf(n)+3}], v{V_AK + (n & 3)} offset:{(n >> 2) * 4096}")
    e("s_waitcnt lgkmcnt(0)")
    for kt in range(2):
        for j in range(4):
            for qt in range(5):
                d = sreg(0, kt, qt)
                e(f"{MFMA} {vr(d, 4)}, {ar(fbuf(kt * 4 + j), 4)}, {vr(qf(j, qt), 4)}, {'0' if j == 0 else vr(d, 4)}")
    e("s_nop 7")
    e("s_nop 3")
    for qt in range(5):
        for kt in range(2):
            d = sreg(0, kt, qt)
            e(f"v_max3_f32 v{M + qt}, v{d}, v{d+1}, v{M + qt}")
            e(f"v_max3_f32 v{M + qt}, v{d+2}, v{d+3}, v{M + qt}")
    e(f"s_add_u32 s{S_T1}, s{S_T1}, 8192")
    e(f"s_add_u32 s{S_CNT}, s{S_CNT}, 1")
    e(f"s_cmp_lt_u32 s{S_CNT}, 16")
    e(f"s_cbranch_scc1 L_maxloop_{name}")
    e("s_barrier")
    e(f"s_and_b32 s{S_T1}, s{S_K0}, 0x1ffff")
    e(f"s_mov_b32 m0, s{S_KV}")
    e("s_nop 0")
    for t in range(4):
        e(f"buffer_load_dwordx4 v{V_OK + t}, s[{SRD_K}:{SRD_K+3}], s{S_T1} offen offset:{t * 1024} lds")
    e(f"v_lshrrev_b32 v{T}, 2, v{L16}")
    e(f"v_xor_b32 v{T+1}, 64, v{T}")
    e(f"v_xor_b32 v{T+2}, 0x80, v{T}")
    for x in (1, 2):
        for qt in range(5): e(f"ds_bpermute_b32 v{T + 3 + qt}, v{T + x}, v{M + qt}")
        e("s_waitcnt lgkmcnt(0)")
        for qt in range(5): e(f"v_max_f32 v{M + qt}, v{M + qt}, v{T + 3 + qt}")
    for qt in range(5):
        for r in range(4): e(f"v_sub_f32 v{V_BIAS + 4 * qt + r}, 0, v{M + qt}")
    e("s_waitcnt vmcnt(0)")
    e("s_barrier")
    for n in range(3): run(e, kfrag(0, 0, n, n))
    e(f"s_branch L_maxdone_{name}")

def vote(e, o, name):
    T = V_E
    e(f"s_cmp_lg_u64 s[{S_BAD}:{S_BAD+1}], 0")
    e(f"s_cselect_b32 s3, 1, 0")
    e(f"v_mov_b32 v{T}, s3")
    e(f"s_lshl_b32 s7, s{S_W}, 2")
    e(f"s_add_u32 s7, s7, {VOTE_LDS}")
    e(f"v_mov_b32 v{T+1}, s7")
    e(f"ds_write_b32 v{T+1}, v{T}")
    if o.fuse:
        e("s_load_dwordx4 s[56:59], s[0:1], 80")
        e("s_waitcnt vmcnt(0) lgkmcnt(0)")
    else:
        e("s_waitcnt lgkmcnt(0)")
    e("s_barrier")
    e(f"v_mov_b32 v{T+1}, {VOTE_LDS}")
    e(f"ds_read_b128 v[{T+2}:{T+5}], v{T+1}")
    e("s_waitcnt lgkmcnt(0)")
    e(f"v_or_b32 v{T+2}, v{T+2}, v{T+3}")
    e(f"v_or3_b32 v{T+2}, v{T+2}, v{T+4}, v{T+5}")
    e("s_nop 0")
    e(f"v_readfirstlane_b32 s3, v{T+2}")
    e(f"s_cmp_eq_u32 s{S_MODE}, 0")
    e(f"s_cselect_b32 s3, s3, 0")
    e(f"s_cmp_eq_u32 s3, 0")
    e(f"s_cbranch_scc1 L_fine_{name}")
    e(f"s_mov_b32 s{S_MODE}, 1")
    e("s_waitcnt vmcnt(0)")
    e("s_barrier")
    e("v_mbcnt_lo_u32_b32 v0, -1, 0")
    e("v_mbcnt_hi_u32_b32 v0, -1, v0")
    e(f"s_lshl_b32 s3, s{S_W}, 6")
    e("v_add_u32 v0, s3, v0")
    e(f"s_branch L_restart_{name}")
    e.label(f"L_fine_{name}")

def fused_reduce(e, o, name):
    G, R, J = 60, 61, 62
    e(f"""
    s_lshl_b32 s{G}, s{S_BR}, 3
    s_add_u32 s{G}, s{G}, s{S_B}             ; group
    s_lshr_b32 s{R}, s{S_H}, 1
    v_mbcnt_lo_u32_b32 v248, -1, 0
    v_mbcnt_hi_u32_b32 v248, -1, v248        ; lane
    s_cmp_eq_u32 s{S_W}, {99 if o.nosync else 0}
    s_cbranch_scc0 L_arrived_{name}
    s_lshl_b32 s3, s{G}, {12 if o.cnt_ws else 4}
    {f"s_add_u32 s3, s3, {220*1024*1024}" if o.cnt_ws else ""}
    {"s_mov_b32 s58, s68" if o.cnt_ws else ""}
    {"s_mov_b32 s59, s69" if o.cnt_ws else ""}
    v_mov_b32 v249, s3
    v_mov_b32 v250, 1
    s_mov_b64 s[64:65], exec
    s_mov_b64 exec, 1
    global_atomic_add v249, v250, s[58:59]
    s_mov_b32 s7, 0
L_poll_{name}:
    global_load_dword v251, v249, s[58:59] sc1
    s_waitcnt vmcnt(0)
    v_readfirstlane_b32 s3, v251
    s_add_u32 s7, s7, 1
    s_cmp_ge_u32 s3, 16
    s_cbranch_scc1 L_polled_{name}
    s_sleep {o.spin_sleep}
    s_cmp_lt_u32 s7, 0x40000
    s_cbranch_scc1 L_poll_{name}
L_polled_{name}:
    s_mov_b64 exec, s[64:65]
L_arrived_{name}:
    s_barrier
    """)
    stamp(e, o, "polled")
    e(f"""
    v_lshlrev_b32 v249, 4, v248              ; lane*16
    s_mul_i32 s3, s{G}, {16 * 163840}
    s_add_u32 s3, s3, {POFF}
    s_add_u32 s8, s68, s3
    s_addc_u32 s9, s69, 0
    s_mov_b32 s10, {16 * 163840}
    s_mov_b32 s11, 0x20000
    s_mul_i32 s{J}, s{R}, 10
    s_add_u32 s{J}, s{J}, s{S_W}
    s_mov_b32 s12, s56
    s_mov_b32 s13, s57
    s_mov_b32 s14, 2621440
    s_mov_b32 s15, 0x20000
    v_and_b32 v250, 15, v248
    v_lshrrev_b32 v251, 4, v248
    v_lshlrev_b32 v250, 11, v250
    v_lshl_add_u32 v250, v251, 3, v250       ; c*2048 + g*8
    """)
    def load1(k, hp):
        r = 64 * k + 4 * hp
        if hp == 0:
            e(f"s_add_u32 s3, s{J}, {4 * k}")
            e(f"s_lshl_b32 s3, s3, 10")
        e.vm_op(f"buffer_load_dwordx4 v[{r}:{r+3}], v249, s[8:11], s3 offen {o.r_flag}", f"R{k}_{hp}")
        if hp < 15: e("s_add_u32 s3, s3, 163840")
    def outaddr(k, dst):
        e(f"""
    s_add_u32 s16, s{J}, {4 * k}
    s_mul_hi_u32 s17, s16, 0x1999999a
    s_mul_i32 s18, s17, 10
    s_sub_u32 s18, s16, s18
    s_cmp_ge_u32 s18, 5
    s_cselect_b32 s19, 1, 0                  ; u
    s_mul_i32 s20, s19, 5
    s_sub_u32 s18, s18, s20                  ; qt
    s_and_b32 s20, s17, 3                    ; p
    s_bfe_u32 s21, s17, 0x10002              ; hh
    s_lshr_b32 s22, s17, 3                   ; rh
    s_mul_i32 s23, s{S_B}, 160
    s_mul_i32 s22, s22, 80
    s_add_u32 s23, s23, s22
    s_lshl_b32 s18, s18, 4
    s_add_u32 s23, s23, s18
    s_lshl_b32 s23, s23, 11
    s_lshl_b32 s22, s{S_BR}, 10
    s_add_u32 s23, s23, s22
    s_lshl_b32 s21, s21, 9
    s_add_u32 s23, s23, s21
    s_lshl_b32 s20, s20, 7
    s_add_u32 s23, s23, s20
    s_lshl_b32 s19, s19, 6
    s_add_u32 s{dst}, s23, s19
    """)
    def run_pieces(np_):
        A = 224; T = 232
        order = [(k, hp) for k in range(np_) for hp in range(16)]
        D = o.r_depth
        e.vm = []; e.vm_waited = set()
        for x in order[:D]: load1(*x)
        for k in range(np_): outaddr(k, 24 + k)
        for n, (k, hp) in enumerate(order):
            e.need_vm(f"R{k}_{hp}")
            if n + D < len(order): load1(*order[n + D])
            for d in range(4):
                r = 64 * k + 4 * hp + d
                if hp == 0:
                    e(f"v_lshlrev_b32 v{A + 2*d}, 16, v{r}")
                    e(f"v_and_b32 v{A + 2*d + 1}, 0xffff0000, v{r}")
                else:
                    e(f"v_lshlrev_b32 v{T + 2*(d & 1)}, 16, v{r}")
                    e(f"v_and_b32 v{T + 2*(d & 1) + 1}, 0xffff0000, v{r}")
                    e(f"v_add_f32 v{A + 2*d}, v{A + 2*d}, v{T + 2*(d & 1)}")
                    e(f"v_add_f32 v{A + 2*d + 1}, v{A + 2*d + 1}, v{T + 2*(d & 1) + 1}")
            if hp == 15:
                o0 = 236 + 4 * (k & 1)
                for d in range(4): e(f"v_cvt_pk_bf16_f32 v{o0 + d}, v{A + 2*d}, v{A + 2*d + 1}")
                e.vm_op(f"buffer_store_dwordx2 v[{o0}:{o0+1}], v250, s[12:15], s{24 + k} offen", f"S{k}")
                e.vm_op(f"buffer_store_dwordx2 v[{o0+2}:{o0+3}], v250, s[12:15], s{24 + k} offen offset:32", f"S{k}")
    if o.r_loop:
        A = 224; T = 232
        e.label(f"L_rloop_{name}")
        e(f"s_lshl_b32 s3, s{J}, 10")
        for hp in range(16):
            e(f"buffer_load_dwordx4 v[{4*hp}:{4*hp+3}], v249, s[8:11], s3 offen {o.r_flag}")
            if hp < 15: e("s_add_u32 s3, s3, 163840")
        outaddr(0, 24)
        for hp in range(16):
            e(f"s_waitcnt vmcnt({15 - hp})")
            for d in range(4):
                r = 4 * hp + d
                if hp == 0:
                    e(f"v_lshlrev_b32 v{A + 2*d}, 16, v{r}")
                    e(f"v_and_b32 v{A + 2*d + 1}, 0xffff0000, v{r}")
                else:
                    e(f"v_lshlrev_b32 v{T + 2*(d & 1)}, 16, v{r}")
                    e(f"v_and_b32 v{T + 2*(d & 1) + 1}, 0xffff0000, v{r}")
                    e(f"v_add_f32 v{A + 2*d}, v{A + 2*d}, v{T + 2*(d & 1)}")
                    e(f"v_add_f32 v{A + 2*d + 1}, v{A + 2*d + 1}, v{T + 2*(d & 1) + 1}")
        for d in range(4): e(f"v_cvt_pk_bf16_f32 v{236 + d}, v{A + 2*d}, v{A + 2*d + 1}")
        e(f"buffer_store_dwordx2 v[236:237], v250, s[12:15], s24 offen")
        e(f"buffer_store_dwordx2 v[238:239], v250, s[12:15], s24 offen offset:32")
        e(f"s_add_u32 s{J}, s{J}, 4")
        e(f"s_mul_i32 s3, s{R}, 10")
        e(f"s_add_u32 s3, s3, 10")
        e(f"s_cmp_lt_u32 s{J}, s3")
        e(f"s_cbranch_scc1 L_rloop_{name}")
        return
    e(f"s_cmp_lt_u32 s{S_W}, 2")
    e(f"s_cbranch_scc0 L_two_{name}")
    run_pieces(3)
    e(f"s_branch L_reduced_{name}")
    e.label(f"L_two_{name}")
    run_pieces(2)
    e.label(f"L_reduced_{name}")

def gen_k1(name, o):
    NSTAMP[0] = 0
    CODE_NAME[0] = name
    e = Em()
    e.lines.append(kernel_head(name))
    prologue(e, o, name)
    qphase(e, o)
    stamp(e, o, "qdone")
    e(f"v_accvgpr_write_b32 a{A_SAVE}, v{V_OV0}")
    e(f"v_accvgpr_write_b32 a{A_SAVE+1}, v{V_OV0+1}")
    e(f"v_accvgpr_write_b32 a{A_SAVE+2}, v{V_T+1}")
    for n in range(3): run(e, kfrag(0, 0, n, n))
    qconvert(e)
    stamp(e, o, "qconv")
    e(f"""
    v_accvgpr_read_b32 v{V_OV}, a{A_SAVE}
    v_accvgpr_read_b32 v{V_OV+1}, a{A_SAVE+1}
    v_accvgpr_read_b32 v{V_E+5}, a{A_SAVE+2}
    s_mov_b32 s{S_KDST}, s{S_KV}             ; K(4) -> slot 0
    s_add_u32 s{S_VDST}, s{S_KV}, {32768 if o.apf else 0}          ; V(4) / V(2)
    s_add_u32 s{S_KOFF}, s{S_K0}, {4 * 8192}
    s_add_u32 s{S_VOFF}, s{S_K0}, {(4 if o.apf else 2) * 8192}
    v_lshlrev_b32 v{V_E+5}, 4, v{V_E+5}
    """)
    if o.t3: t3_setup(e, o)
    for r in range(20): e(f"v_mov_b32 v{V_BIAS + r}, 0")
    e(f"s_cmp_eq_u32 s{S_MODE}, 0")
    e(f"s_cbranch_scc0 L_maxpass_{name}")
    e.label(f"L_maxdone_{name}")
    if o.pf_late:
        e("s_waitcnt vmcnt(0) lgkmcnt(0)"); e("s_barrier"); e.vm = []; e.ds = []
        for n in range(3): e.fresh[f"F{n}"] = 0
        for n in range(3): run(e, kfrag(0, 0, n, n))
    attn_iter(e, o, -1, True, False, False, 1, '', True)
    stamp(e, o, "Titm1")
    if o.apf:
        attn_iter(e, o, 0, True, True, False, 1, 'K', True)
        attn_iter(e, o, 1, True, True, True, 1, 'K', True, first_pv=True)
        attn_iter(e, o, 2, True, True, True, 1, 'KV', True)
    else:
        attn_iter(e, o, 0, True, True, False, 1, 'KV', True)
        stamp(e, o, "Tit0")
        attn_iter(e, o, 1, True, True, True, 1, 'KV', True, first_pv=True)
        stamp(e, o, "Tit1")
        attn_iter(e, o, 2, True, True, True, 1, 'KV', True)
    stamp(e, o, "iter0_done")
    e(f"s_mov_b32 s{S_CNT}, 0")
    ds0 = list(e.ds)
    e.label(f"L_loop_{name}")
    if o.t3 and o.w_touch >= 0:
        e(f"s_cmp_eq_u32 s{S_CNT}, {o.w_touch}")
        e(f"s_cbranch_scc0 L_nowt_{name}")
        e(f"buffer_load_dword v{V_E + 1}, v{V_E}, s[56:59], 0 offen")
        if o.c_touch >= 2:
            vq = list(e.vm); code_touch(e, V_E + 2, V_E + 3, 1); e.vm = vq
        e.label(f"L_nowt_{name}")
    n0 = len(e.lines)
    redirect = [F('s', txt(f"s_cmp_eq_u32 s{S_CNT}, 5")), F('s', txt(f"s_sub_u32 s{S_T1}, s{S_KV}, 32768")),
                F('s', txt(f"s_cmp_eq_u32 s{S_CNT}, 5")), F('s', txt(f"s_cselect_b32 s{S_VDST}, s{S_T1}, s{S_VDST}"))]
    attn_iter(e, o, 3, True, True, True, 1, 'KV', True)
    if o.t3 and o.wo_early: run(e, redirect[1:])
    attn_iter(e, o, 4, True, True, True, 1, 'KV', True)
    import copy
    e2 = copy.deepcopy(e); n1 = len(e2.lines)
    attn_iter(e2, o, 5, True, True, True, 1, 'KV', True)
    if o.t3 and o.wo_early: run(e2, redirect[1:])
    attn_iter(e2, o, 6, True, True, True, 1, 'KV', True)
    assert e.lines[n0:n1] == e2.lines[n1:], "loop body is not in steady state"
    assert e.ds == ds0, (e.ds, ds0)
    e(f"s_add_u32 s{S_CNT}, s{S_CNT}, 1")
    e(f"s_cmp_lt_u32 s{S_CNT}, 6")
    e(f"s_cbranch_scc1 L_loop_{name}")
    e.ds_all()
    stamp(e, o, "loop_done")
    xdm = None
    if o.t3 and o.wo_early:
        e.vm = ['OLD']
        xdm = dma_wo(o, 0, 0, 0, 10**9, 3) + dma_wo(o, 0, 1, 12, 10**9, 3) + dma_wo(o, 0, 3, 24, 10**9, 3)
    attn_iter(e, o, 15, False, True, True, 0, '', False, extra_dm=xdm)
    stamp(e, o, "Tit15")
    if o.t3:
        t3_tail(e, o)
    else:
        attn_iter(e, o, 16, False, False, True, None, '', False, epi=epilogue_fill(o))
    stamp(e, o, "stores_issued")
    vote(e, o, name)
    if o.fuse:
        stamp(e, o, "Tsig")
        fused_reduce(e, o, name)
    if o.stamps: e("s_waitcnt vmcnt(0)")
    stamp(e, o, "end")
    if o.stamps:
        e(f"""
    s_memrealtime s[96:97]
    s_waitcnt lgkmcnt(0)
    s_lshl_b32 s3, s2, 2
    s_add_u32 s3, s3, s{S_W}
    s_lshl_b32 s3, s3, 7
    s_add_u32 s3, s3, {200*1024*1024}
    v_mov_b32 v30, s3
    s_mov_b64 exec, 1
    """)
        for k in range(14):
            e(f"v_mov_b32 v0, s{70 + 2*k}")
            e(f"v_mov_b32 v1, s{71 + 2*k}")
            e(f"global_store_dwordx2 v30, v[0:1], s[68:69] offset:{8*k}")
            e("s_nop 1")
        e("s_waitcnt vmcnt(0)")
        if o.dbg:
            e(f"""
    s_or_b32 s3, s2, s{S_W}
    s_cmp_eq_u32 s3, 0
    s_cbranch_scc0 L_end_{name}
    s_load_dwordx2 s[98:99], s[0:1], 88
    s_waitcnt lgkmcnt(0)
    v_mov_b32 v30, 0
    """)
            for k in range(1, 11):
                e(f"s_sub_u32 s3, s{70 + 2*k}, s70")
                e(f"v_mov_b32 v0, s3")
                e(f"global_store_dword v30, v0, s[98:99] offset:{4*k}")
                e("s_nop 1")
            e("s_sub_u32 s3, s96, s94")
            e("v_mov_b32 v0, s3")
            e("global_store_dword v30, v0, s[98:99] offset:0")
            e("s_waitcnt vmcnt(0)")
    e.label(f"L_end_{name}")
    e("s_endpgm")
    dsq, vmq = list(e.ds), list(e.vm)
    max_pass(e, o, name)
    e.label("CODE_END")
    return e.text() + kernel_desc(name, 512, 256)
```

```python
from common import *
from sched import *
POFF = 32 * 1024 * 1024
class Opt3:
    pk = False
    npc = 1
    c_early = False
    w4 = False
    r_loop = False
    p_flag = ""
    stamps = False
    dbg = False
def gen_k3w4(name, o):
    import k1
    e = Em()
    e.lines.append(kernel_head(name))
    e(f"""
    s_cmp_ge_u32 s2, 256
    s_cbranch_scc1 L_end_{name}
    s_load_dwordx4 s[56:59], s[0:1], 80
    s_load_dwordx2 s[68:69], s[0:1], 96
    v_lshrrev_b32 v1, 6, v0
    s_nop 0
    v_readfirstlane_b32 s{k1.S_W}, v1
    s_lshr_b32 s3, s2, 4
    s_lshr_b32 s{k1.S_BR}, s3, 3
    s_and_b32 s{k1.S_B}, s3, 7
    s_and_b32 s{k1.S_H}, s2, 15
    s_lshl_b32 s{k1.S_H}, s{k1.S_H}, 1
    """)
    if o.stamps: e("s_memrealtime s[40:41]")
    e("s_waitcnt lgkmcnt(0)")
    oo = k1.Opt(); oo.nosync = True; oo.r_loop = o.r_loop
    k1.fused_reduce(e, oo, name)
    if o.stamps:
        e(f"""
    s_waitcnt vmcnt(0)
    s_memrealtime s[42:43]
    s_waitcnt lgkmcnt(0)
    s_cmp_eq_u32 s{k1.S_W}, 0
    s_cbranch_scc0 L_end_{name}
    v_mov_b32 v0, s40
    v_mov_b32 v1, s41
    v_mov_b32 v2, s42
    v_mov_b32 v3, s43
    s_lshl_b32 s3, s2, 7
    s_add_u32 s3, s3, {201*1024*1024}
    v_mov_b32 v6, s3
    s_mov_b64 exec, 1
    global_store_dwordx4 v6, v[0:3], s[68:69]
    s_waitcnt vmcnt(0)
    """)
    e.label(f"L_end_{name}")
    e("s_endpgm")
    return e.text() + kernel_desc(name, 256, 256, 102)

def gen_k3(name, o):
    if o.w4: return gen_k3w4(name, o)
    e = Em()
    e.lines.append(kernel_head(name))
    NP = o.npc
    e(f"""
    s_cmp_ge_u32 s2, 256
    s_cbranch_scc1 L_end_{name}
    s_load_dwordx2 s[4:5], s[0:1], 80        ; out
    s_load_dwordx2 s[6:7], s[0:1], 96        ; ws
    """)
    TV = 64 * NP + 8
    if o.c_early:
        e(f"""
    s_getpc_b64 s[34:35]
L_pc_{name}:
    s_sub_u32 s34, s34, L_pc_{name}-{name}
    s_subb_u32 s35, s35, 0
    v_and_b32 v{TV+16}, 63, v0
    v_lshlrev_b32 v{TV+16}, 7, v{TV+16}
    v_min_u32 v{TV+16}, K3_END-{name}-4, v{TV+16}
    global_load_dword v{TV+17}, v{TV+16}, s[34:35]
    """)
    e(f"""
    v_lshrrev_b32 v1, 6, v0
    v_and_b32 v2, 63, v0
    v_readfirstlane_b32 s8, v1               ; wave
    s_lshr_b32 s9, s2, 4                     ; group
    s_and_b32 s10, s2, 15
    s_mul_i32 s10, s10, 10
    s_mul_i32 s11, s8, {NP}
    s_add_u32 s10, s10, s11
    v_lshlrev_b32 v3, 4, v2                  ; lane*16
    """)
    if o.stamps: e("s_memrealtime s[40:41]")
    e(f"""
    s_waitcnt lgkmcnt(0)
    s_mul_i32 s11, s9, {16 * 163840}
    s_add_u32 s11, s11, {POFF}
    s_add_u32 s16, s6, s11
    s_addc_u32 s17, s7, 0
    s_mov_b32 s18, {16 * 163840}
    s_mov_b32 s19, 0x20000
    """)
    for k in range(NP):
        e(f"s_add_u32 s12, s10, {k}")
        e(f"s_lshl_b32 s12, s12, 10")
        for hp in range(16):
            r = 8 + 64 * k + 4 * hp
            e(f"buffer_load_dwordx4 v[{r}:{r+3}], v3, s[16:19], s12 offen {o.p_flag}")
            if hp < 15: e(f"s_add_u32 s12, s12, 163840")
    e(f"""
    v_and_b32 v4, 15, v2
    v_lshrrev_b32 v5, 4, v2
    v_lshlrev_b32 v4, 11, v4
    v_lshl_add_u32 v4, v5, 3, v4
    s_mov_b32 s28, s4
    s_mov_b32 s29, s5
    s_mov_b32 s30, 2621440
    s_mov_b32 s31, 0x20000
    """)
    for k in range(NP):
        e(f"""
    s_add_u32 s36, s10, {k}
    s_mul_hi_u32 s13, s36, 0x1999999a        ; j / 10
    s_mul_i32 s14, s13, 10
    s_sub_u32 s14, s36, s14                  ; u*5 + qt
    s_cmp_ge_u32 s14, 5
    s_cselect_b32 s15, 1, 0                  ; u
    s_mul_i32 s20, s15, 5
    s_sub_u32 s14, s14, s20                  ; qt
    s_and_b32 s20, s13, 3                    ; p
    s_bfe_u32 s21, s13, 0x10002              ; hh
    s_lshr_b32 s22, s13, 3                   ; rh
    s_and_b32 s23, s9, 7                     ; b
    s_lshr_b32 s24, s9, 3                    ; branch
    s_mul_i32 s23, s23, 160
    s_mul_i32 s22, s22, 80
    s_add_u32 s23, s23, s22
    s_lshl_b32 s14, s14, 4
    s_add_u32 s23, s23, s14
    s_lshl_b32 s23, s23, 11
    s_lshl_b32 s24, s24, 10
    s_add_u32 s23, s23, s24
    s_lshl_b32 s21, s21, 9
    s_add_u32 s23, s23, s21
    s_lshl_b32 s20, s20, 7
    s_add_u32 s23, s23, s20
    s_lshl_b32 s15, s15, 6
    s_add_u32 s{38 + k}, s23, s15
    """)
    A = TV; T = TV + 8
    nst = 0
    for k in range(NP):
        for hp in range(16):
            e(f"s_waitcnt vmcnt({16 * (NP - 1 - k) + 15 - hp + nst})")
            for d in range(4):
                r = 8 + 64 * k + 4 * hp + d
                if hp == 0:
                    e(f"v_lshlrev_b32 v{A + 2*d}, 16, v{r}")
                    e(f"v_and_b32 v{A + 2*d + 1}, 0xffff0000, v{r}")
                else:
                    e(f"v_lshlrev_b32 v{T + 2*(d&1)}, 16, v{r}")
                    e(f"v_and_b32 v{T + 2*(d&1) + 1}, 0xffff0000, v{r}")
                    if o.pk:
                        e(f"v_pk_add_f32 v[{A + 2*d}:{A + 2*d + 1}], v[{A + 2*d}:{A + 2*d + 1}], v[{T + 2*(d&1)}:{T + 2*(d&1) + 1}]")
                    else:
                        e(f"v_add_f32 v{A + 2*d}, v{A + 2*d}, v{T + 2*(d&1)}")
                        e(f"v_add_f32 v{A + 2*d + 1}, v{A + 2*d + 1}, v{T + 2*(d&1) + 1}")
        o0 = 8 + 64 * k
        for d in range(4):
            e(f"v_cvt_pk_bf16_f32 v{o0 + d}, v{A + 2*d}, v{A + 2*d + 1}")
        e(f"buffer_store_dwordx2 v[{o0}:{o0+1}], v4, s[28:31], s{38 + k} offen")
        e(f"buffer_store_dwordx2 v[{o0+2}:{o0+3}], v4, s[28:31], s{38 + k} offen offset:32")
        nst += 2
    if o.stamps:
        e(f"""
    s_waitcnt vmcnt(0)
    s_memrealtime s[42:43]
    s_waitcnt lgkmcnt(0)
    s_cmp_eq_u32 s8, 0
    s_cbranch_scc0 L_end_{name}
    v_mov_b32 v0, s40
    v_mov_b32 v1, s41
    v_mov_b32 v2, s42
    v_mov_b32 v3, s43
    s_lshl_b32 s3, s2, 7
    s_add_u32 s3, s3, {201*1024*1024}
    v_mov_b32 v6, s3
    s_mov_b64 exec, 1
    global_store_dwordx4 v6, v[0:3], s[6:7]
    s_waitcnt vmcnt(0)
    """)
        if o.dbg:
            e(f"""
    s_cmp_eq_u32 s2, 0
    s_cbranch_scc0 L_end_{name}
    s_load_dwordx2 s[60:61], s[0:1], 88
    s_mov_b64 exec, 0xffff
    v_mbcnt_lo_u32_b32 v8, -1, 0
    v_lshlrev_b32 v9, 3, v8
    v_add_u32 v9, {200*1024*1024}, v9
    global_load_dword v10, v9, s[6:7] sc1
    v_lshlrev_b32 v8, 2, v8
    s_waitcnt vmcnt(0) lgkmcnt(0)
    v_mov_b32 v11, s40
    v_mov_b32 v12, s42
    v_cmp_eq_u32 vcc, 56, v8
    s_nop 1
    v_cndmask_b32 v10, v10, v11, vcc
    v_cmp_eq_u32 vcc, 60, v8
    s_nop 1
    v_cndmask_b32 v10, v10, v12, vcc
    global_store_dword v8, v10, s[60:61]
    s_waitcnt vmcnt(0)
    """)
    e.label(f"L_end_{name}")
    e("s_endpgm")
    e.label("K3_END")
    nv = (64 * o.npc + 8 + 20 + 7) // 8 * 8
    return e.text() + kernel_desc(name, nv, nv, 64)
```

```python
from common import *
from sched import *

KRING = 0
VRING = 98304
WQ0 = 32768; WQ_HEAD = 8224; WQ_SLOT = 2 * WQ_HEAD
X0 = 82176; X_SLOT = 20480
LDS_BYTES = 163840
VTOG = 0x38000
S_W, S_HH, S_RH = 4, 5, 6
SRD_X, SRD_WQ, SRD_K, SRD_V, SRD_O = 8, 12, 16, 20, 24
S_T0, S_T1 = 32, 33
S_WQL, S_XL, S_XG, S_WQG = 35, 36, 37, 38
S_KDST, S_VDST, S_KOFF, S_VOFF, S_CNT = 40, 41, 42, 43, 44
S_IDX, S_HG, S_B, S_BR, S_H = 45, 46, 47, 48, 49
S_SC = 50
S_KV = 39; S_WQK = 51; S_XK = 34; S_PT = 7
V_Q = 0
V_XB = [0, 20]
V_AW = 40
V_AX = 44
V_OWQ = 46
V_OX = 50
V_T = 56
V_ACC = 80
V_S = [80, 120]
V_P = [160, 180]
V_OV = 200
V_E = 202
V_OV0 = 70
V_AK = 240; V_AV = 244; V_OK = 252
A_O = 0; A_L = 160; A_ONE = 180; A_F = 184
A_SAVE = 216
SRD_WO, SRD_P = 28, 24
S_WA, S_WB, S_WL = 52, 53, 54
POFF = 32 * 1024 * 1024
WRING = 98304
V_OW = 232
V_AW2 = 236
V_XA = 231
A_ACC2 = [0, 80]
V_BIAS = 208
S_K0 = 93; S_KEND = 63
S_MODE = 92
S_BAD = 64
R_LO, R_HI = 0x27800000, 0x4f800000

def acc(dt, qt): return V_ACC + (dt * 5 + qt) * 4
def qf(j, qt): return V_Q + (j * 5 + qt) * 4
def sreg(par, kt, qt): return V_S[par] + (kt * 5 + qt) * 4
def preg(par, qt): return V_P[par] + qt * 4
def oacc(dt, qt): return A_O + (dt * 5 + qt) * 4
def fbuf(n): return A_F + 4 * (n % 8)

class Opt:
    kv_flag = "nt"
    q_flag = ""
    o_flag = ""
    stamps = False
    pre_all = True
    pf_start = 0
    pf_per = 3
    pf_late = False
    pf_steps = ""
    q_nodma = False
    q_nowait = False
    q_nobar = False
    q_nods = False
    q_nowq = False
    q_nox = False
    rotg = 8
    rot = True
    pace = 4
    apf = True
    stamp_list = ""
    stamp_set = "q"
    fuse = False
    spin_sleep = 1
    nosync = False
    r_depth = 12
    r_loop = False
    r_flag = "sc1"
    cnt_ws = False
    t3 = True
    p_flag = ""
    w_flag = ""
    c_k3_at = 3
    c_k3 = 0
    c_early = 0
    c_touch = 0
    acc_hi = True
    vmax = 3
    wo_early = True
    skew = 0
    tlb = 0
    q_ahead = False
    q_lfirst = False
    q_urg = 3
    few_bar = False
    krot = 0
    st_late = False
    early_k = False
    v_first = False
    dK = 4
    dV = 2
    setup_late = False
    q_lgap = 0
    t_lgap = 0
    w_pace = 2
    kv_pace = 0
    t3_nostore = False
    t3_nodma = False
    w_touch = -1
    dbg = False

NSTAMP = [0]
NSK = [0]
def stamp(e, o, tag):
    if not o.stamps: return
    if o.stamp_list:
        if tag not in o.stamp_list.split(","): return
        k = NSTAMP[0]; NSTAMP[0] += 1
        assert k < 11
        e.comment("stamp " + tag)
        e(f"s_memtime s[{70 + 2*k}:{71 + 2*k}]")
        return
    early = tag in ("issued", "bar0", "B3", "B9", "qconv")
    late = tag.startswith("T")
    if (o.stamp_set == "tail" and early) or (o.stamp_set != "tail" and late): return
    if o.fuse and o.stamp_set != "tail" and tag == "stores_issued": pass
    k = NSTAMP[0]; NSTAMP[0] += 1
    assert k < 12
    e.comment("stamp " + tag)
    e(f"s_memtime s[{70 + 2*k}:{71 + 2*k}]")

def prologue(e, o, name):
    e(f"""
    s_cmp_ge_u32 s2, 256
    s_cbranch_scc1 L_end_{name}
    s_mov_b32 s{S_MODE}, 0
    """)
    if o.c_early: code_touch_early(e, o, name)
    e(f"""
L_restart_{name}:
    s_load_dwordx8 s[52:59], s[0:1], 0       ; A_x A_k A_v A_wq
    s_load_dwordx8 s[60:67], s[0:1], 40      ; B_x B_k B_v B_wq
    s_load_dwordx2 s[68:69], s[0:1], 96      ; ws
    s_load_dwordx2 s[98:99], s[0:1], 32      ; A_wo
    s_load_dwordx2 s[100:101], s[0:1], 72    ; B_wo
    v_lshrrev_b32 v{V_T}, 6, v0
    v_and_b32 v{V_T+1}, 63, v0               ; lane
    v_readfirstlane_b32 s{S_W}, v{V_T}
    s_and_b32 s3, s2, 7
    s_lshr_b32 s{S_IDX}, s2, 3
    s_lshr_b32 s{S_BR}, s3, 2
    s_and_b32 s{S_HG}, s3, 3
    s_lshr_b32 s{S_B}, s{S_IDX}, 2
    s_and_b32 s7, s{S_IDX}, 3
    s_lshr_b32 s{S_HH}, s{S_W}, 1
    s_and_b32 s{S_RH}, s{S_W}, 1
    s_lshl_b32 s{S_H}, s{S_HG}, 3
    s_lshl_b32 s7, s7, 1
    s_add_u32 s{S_H}, s{S_H}, s7
    s_add_u32 s{S_H}, s{S_H}, s{S_HH}
    """)
    if o.stamps:
        e("s_memrealtime s[94:95]")
    stamp(e, o, "start")
    L = V_T + 1
    c, g, rp, cp, t0, t1 = V_T + 2, V_T + 3, V_T + 4, V_T + 5, V_T + 6, V_T + 7
    e(f"""
    v_and_b32 v{c}, 15, v{L}
    v_lshrrev_b32 v{g}, 4, v{L}
    v_bfe_u32 v{rp}, v{L}, 2, 2
    v_and_b32 v{cp}, 3, v{L}
    """)
    e(f"""
    v_lshlrev_b32 v{t0}, 2, v{g}
    v_xor_b32 v{t0}, v{t0}, v{c}
    v_lshlrev_b32 v{t0}, 4, v{t0}
    v_lshl_add_u32 v{V_OWQ}, v{g}, 13, v{t0}
    """)
    for u in range(1, 4):
        e(f"v_add_u32 v{V_OWQ+u}, {u * 32768 - wq_imm(u)}, v{V_OWQ}")
    e(f"""
    v_and_b32 v{t0}, 7, v{L}
    v_xor_b32 v{t0}, v{t0}, v{g}
    v_lshlrev_b32 v{t0}, 4, v{t0}
    v_lshrrev_b32 v{t1}, 3, v{L}
    v_lshl_add_u32 v{t0}, v{t1}, 10, v{t0}
    s_and_b32 s3, s{S_W}, 1
    s_lshl_b32 s3, s3, 6
    v_xor_b32 v{t0}, s3, v{t0}
    v_xor_b32 v{t1}, 64, v{t0}
    """)
    for u in range(5):
        src = t0 if u % 2 == 0 else t1
        e(f"v_add_u32 v{V_OX+u}, {u * 8192 - (u & 3) * 1024}, v{src}")
    e(f"""
    v_xor_b32 v{t0}, v{c}, v{g}
    v_lshlrev_b32 v{t0}, 4, v{t0}
    v_lshl_add_u32 v{V_OK}, v{g}, 8, v{t0}
    v_xor_b32 v{V_OK+1}, 64, v{V_OK}
    v_xor_b32 v{V_OK+2}, 0x80, v{V_OK}
    v_xor_b32 v{V_OK+3}, 0xc0, v{V_OK}
    """)
    e(f"""
    v_lshlrev_b32 v{t0}, 1, v{g}
    v_xor_b32 v{t0}, v{t0}, v{c}
    v_lshlrev_b32 v{t0}, 4, v{t0}
    v_lshl_add_u32 v{V_OV0}, v{g}, 8, v{t0}
    v_xor_b32 v{V_OV0+1}, 0x80, v{V_OV0}
    """)
    e(f"""
    s_mul_i32 s3, s{S_HH}, {WQ_HEAD}
    s_add_u32 s3, s3, {WQ0}
    v_mul_u32_u24 v{t0}, 2056, v{g}
    v_lshl_add_u32 v{t0}, v{rp}, 8, v{t0}
    v_lshl_add_u32 v{t0}, v{cp}, 4, v{t0}
    v_add_u32 v{t0}, s3, v{t0}
    s_mul_i32 s7, s{S_RH}, {4 * 1024 + 16}
    s_add_u32 s{S_WQL}, s3, s7
    s_lshl_b32 s{S_WQG}, s{S_RH}, 17
    """)
    for j in range(4):
        e(f"""
    v_xor_b32 v{t1}, {j}, v{rp}
    v_lshl_add_u32 v{V_AW+j}, v{t1}, 6, v{t0}""")
    e(f"""
    s_mul_i32 s3, s{S_RH}, {80*128}
    s_add_u32 s3, s3, {X0}
    v_lshrrev_b32 v{t0}, 1, v{c}
    v_xor_b32 v{t0}, v{t0}, v{g}
    v_lshlrev_b32 v{t0}, 4, v{t0}
    v_lshl_add_u32 v{t0}, v{c}, 7, v{t0}
    v_add_u32 v{V_AX}, s3, v{t0}
    v_xor_b32 v{V_AX+1}, 64, v{V_AX}
    s_mul_i32 s{S_XL}, s{S_W}, 5120
    s_add_u32 s{S_XL}, s{S_XL}, {X0}
    s_mul_i32 s{S_XG}, s{S_W}, 40960
    """)
    e(f"""
    s_lshl_b32 s3, s{S_HH}, 13
    s_lshl_b32 s7, s{S_RH}, 12
    s_add_u32 s{S_KV}, s3, s7
    v_xor_b32 v{t0}, v{g}, v{c}
    v_lshlrev_b32 v{t0}, 4, v{t0}
    v_lshl_add_u32 v{t0}, v{c}, 8, v{t0}
    v_add_u32 v{V_AK}, s3, v{t0}
    v_xor_b32 v{V_AK+1}, 64, v{V_AK}
    v_xor_b32 v{V_AK+2}, 0x80, v{V_AK}
    v_xor_b32 v{V_AK+3}, 0xc0, v{V_AK}
    """)
    e(f"""
    v_lshlrev_b32 v{V_APA}, 4, v{L}
    v_add_u32 v{V_APA}, s{S_KV}, v{V_APA}
    v_add_u32 v{V_APA+1}, {VRING}, v{V_APA}
    """)
    e(f"""
    s_add_u32 s3, s3, 0x20000
    v_lshl_add_u32 v{t0}, v{g}, 2, v{rp}       ; 4g + r'
    v_and_b32 v{t1}, 7, v{t0}                  ; rho7
    v_lshlrev_b32 v{t0}, 8, v{t0}
    v_lshl_add_u32 v{t0}, v{t1}, 5, v{t0}
    v_lshl_add_u32 v{t0}, v{cp}, 3, v{t0}
    v_add_u32 v{V_AV}, s3, v{t0}
    """)
    for dt in range(1, 8):
        e(f"v_xor_b32 v{V_AV+dt}, {32*dt}, v{V_AV}")
    e(f"""
    s_waitcnt lgkmcnt(0)
    s_cmp_eq_u32 s{S_BR}, 0
    s_cselect_b32 s52, s52, s60
    s_cselect_b32 s53, s53, s61
    s_cselect_b32 s54, s54, s62
    s_cselect_b32 s55, s55, s63
    s_cselect_b32 s56, s56, s64
    s_cselect_b32 s57, s57, s65
    s_cselect_b32 s58, s58, s66
    s_cselect_b32 s59, s59, s67
    s_lshl_b32 s3, s{S_H}, 8
    s_add_u32 s{SRD_WQ}, s58, s3
    s_addc_u32 s{SRD_WQ+1}, s59, 0
    s_sub_u32 s{SRD_WQ+2}, 4194304, s3
    s_mov_b32 s{SRD_WQ+3}, 0x20000
    s_mul_i32 s3, s{S_B}, 163840
    s_add_u32 s{SRD_X}, s52, s3
    s_addc_u32 s{SRD_X+1}, s53, 0
    s_mov_b32 s{SRD_X+2}, 163840
    s_mov_b32 s{SRD_X+3}, 0x20000
    """)
    if o.rot and o.rotg > 1:
        G = o.rotg
        e(f"""
    s_and_b32 s3, s{S_IDX}, 3                ; p
    s_lshl_b32 s3, s3, {1 if G == 8 else 0}
    s_add_u32 s3, s3, s{S_B}
    s_and_b32 s3, s3, {G - 1}
    s_mul_i32 s3, s3, {8 // G}
    s_lshl_b32 s{S_WQK}, s3, 7
    s_lshl_b32 s3, s3, 19                    ; 64 rows * 8192
    s_add_u32 s{S_WQG}, s{S_WQG}, s3
    """)
    else:
        e(f"s_mov_b32 s{S_WQK}, 0")

def prologue2(e, o):
    e(f"""
    s_lshl_b32 s3, s{S_B}, 5
    s_add_u32 s3, s3, s{S_H}
    s_lshl_b32 s3, s3, 17
    s_add_u32 s{SRD_K}, s54, s3
    s_addc_u32 s{SRD_K+1}, s55, 0
    s_mov_b32 s{SRD_K+2}, 131072
    s_mov_b32 s{SRD_K+3}, 0x20000
    s_add_u32 s{SRD_V}, s56, s3
    s_addc_u32 s{SRD_V+1}, s57, 0
    s_mov_b32 s{SRD_V+2}, 131072
    s_mov_b32 s{SRD_V+3}, 0x20000
    s_lshl_b32 s3, s{S_BR}, 3
    s_add_u32 s3, s3, s{S_B}
    s_lshl_b32 s3, s3, 1
    s_add_u32 s3, s3, s{S_RH}
    s_lshl_b32 s3, s3, 5
    s_add_u32 s3, s3, s{S_H}
    s_mul_i32 s3, s3, 20480
    s_add_u32 s{SRD_O}, s68, s3
    s_addc_u32 s{SRD_O+1}, s69, 0
    s_mov_b32 s{SRD_O+2}, 20480
    s_mov_b32 s{SRD_O+3}, 0x20000
    s_mov_b32 s{S_SC}, {f32hex(C_SCALE)}
    s_mul_i32 s3, s2, {o.krot}
    s_lshr_b32 s3, s3, 3
    s_and_b32 s3, s3, {15 if o.krot else 0}
    s_lshl_b32 s3, s3, 13
    s_lshl_b32 s{S_K0}, s{S_RH}, 12
    s_add_u32 s{S_K0}, s{S_K0}, s3
    s_add_u32 s{S_KEND}, s{S_K0}, 0x20000
    """)

def wq_imm(u): return u * 1024 + 8 * (u >> 1)

def wqs(o, m): return (m + 2) % 3 if o.early_k else m % 3

def dma_wq(o, m, after=-1, before=10**9, pace=0):
    fl = [F('s', txt(f"s_add_u32 m0, s{S_WQL}, {wqs(o, m) * WQ_SLOT}"), after, before)]
    for u in range(4):
        fl.append(F('l', lambda e, u=u: e.vm_op(f"buffer_load_dwordx4 v{V_OWQ+u}, s[{SRD_WQ}:{SRD_WQ+3}], s{S_WQG} offen offset:{wq_imm(u)} {o.q_flag} lds", f"wq{m}"), after + pace * u, before))
    fl.append(F('s', txt(f"s_add_u32 s{S_WQG}, s{S_WQG}, {32 * 8192}"), after, before))
    fl.append(F('s', txt(f"s_and_b32 s{S_WQG}, s{S_WQG}, 0x3fffff"), after, before))
    return fl

def dma_x(o, M, after=-1, before=10**9, pace=0):
    fl = [F('s', txt(f"s_add_u32 m0, s{S_XL}, {(M % 2) * X_SLOT}"), after, before),
          F('s', txt(f"s_add_u32 s{S_T1}, s{S_XG}, s{S_WQK}"), after, before)]
    for u in range(5):
        if u == 4: fl.append(F('s', txt(f"s_add_u32 m0, s{S_XL}, {(M % 2) * X_SLOT + 4096}"), after, before))
        if u == 4: fl.append(F('s', txt("s_nop 0"), after, before))
        fl.append(F('l', lambda e, u=u: e.vm_op(f"buffer_load_dwordx4 v{V_OX+u}, s[{SRD_X}:{SRD_X+3}], s{S_T1} offen offset:{(u & 3) * 1024} {o.q_flag} lds", f"x{M}"), after + pace * u, before))
    fl.append(F('s', txt(f"s_add_u32 s{S_WQK}, s{S_WQK}, 128"), after, before))
    fl.append(F('s', txt(f"s_and_b32 s{S_WQK}, s{S_WQK}, 0x3ff"), after, before))
    return fl

def dma_pref(o, which, s, after=-1, before=10**9, pace=0):
    if which == 'K':
        base = KRING + 16384 * s; srd = SRD_K; vo = lambda t: V_OK + t
    else:
        base = (0x20000 + 16384 * s) if s < 2 else (VRING + 16384 * (s - 2)); srd = SRD_V; vo = lambda t: V_OV0 + (t & 1)
    fl = [F('s', txt(f"s_add_u32 m0, s{S_KV}, {base}"), after, before),
          F('s', txt(f"s_add_u32 s34, s{S_K0}, {s * 8192}"), after, before),
          F('s', txt(f"s_and_b32 s34, s34, 0x1ffff"), after, before)]
    for t in range(4):
        fl.append(F('l', lambda e, t=t: e.vm_op(f"buffer_load_dwordx4 v{vo(t)}, s[{srd}:{srd+3}], s34 offen offset:{t * 1024} {o.kv_flag} lds", f"{which}{s}"), after + pace * t, before))
    return fl

APF = {('K', 2): 0, ('K', 3): 16, ('V', 2): 32, ('V', 3): 48}
def dma_apf(o, which, s, after=-1, before=10**9, pace=0):
    srd = SRD_K if which == 'K' else SRD_V
    vo = (lambda t: V_OK + t) if which == 'K' else (lambda t: V_OV0 + (t & 1))
    fl = [F('s', txt(f"s_add_u32 s34, s{S_K0}, {s * 8192}"), after, before),
          F('s', txt(f"s_and_b32 s34, s34, 0x1ffff"), after, before)]
    for t in range(4):
        a = APF[(which, s)] + 4 * t
        fl.append(F('l', lambda e, t=t, a=a: e.vm_op(f"buffer_load_dwordx4 a[{a}:{a+3}], v{vo(t)}, s[{srd}:{srd+3}], s34 offen offset:{t * 1024} {o.kv_flag}", f"{which}{s}"), after + pace * t, before))
    return fl
V_APA = 72
def apf_copy(after):
    fl = []
    for (which, s), a0 in APF.items():
        for t in range(4):
            a = a0 + 4 * t
            if which == 'K': txt_ = f"ds_write_b128 v{V_APA}, a[{a}:{a+3}] offset:{KRING + 16384 * s + 1024 * t}"
            else: txt_ = f"ds_write_b128 v{V_APA+1}, a[{a}:{a+3}] offset:{16384 * (s - 2) + 1024 * t}"
            fl.append(F('d', lambda e, txt_=txt_: e.ds_op(txt_, "APF"), after))
    return fl

def zero_acc(e):
    e(f"v_mov_b32 v{V_T+8}, 0x3f803f80")
    for r in range(4):
        e(f"v_accvgpr_write_b32 a{A_ONE + r}, v{V_T+8}")

def code_touch_early(e, o, name):
    e("s_getpc_b64 s[66:67]")
    e.label(f"L_pce_{name}")
    e(f"s_sub_u32 s66, s66, L_pce_{name}-{name}")
    e("s_subb_u32 s67, s67, 0")
    if o.c_early == 1:
        e("v_lshlrev_b32 v74, 7, v0")
        e(f"v_min_u32 v75, CODE_END-{name}-4, v74")
        e.vm_op("global_load_dword v76, v75, s[66:67]", "ce")
        e("v_add_u32 v74, 0x8000, v74")
        e(f"v_min_u32 v75, CODE_END-{name}-4, v74")
        e.vm_op("global_load_dword v77, v75, s[66:67]", "ce")
    elif o.c_early == 2:
        e("v_and_b32 v74, 63, v0")
        e("v_lshlrev_b32 v74, 7, v74")
        e.vm_op("global_load_dword v76, v74, s[66:67]", "ce")
        e("s_lshr_b32 s3, s2, 3")
        e("s_lshl_b32 s3, s3, 11")
        e("v_and_b32 v74, 15, v0")
        e("v_lshlrev_b32 v74, 7, v74")
        e("v_add_u32 v74, s3, v74")
        e(f"v_min_u32 v75, CODE_END-{name}-4, v74")
        e.vm_op("global_load_dword v77, v75, s[66:67]", "ce")
    elif o.c_early == 3:
        e("v_lshlrev_b32 v74, 7, v0")
        e(f"v_min_u32 v75, CODE_END-{name}-4, v74")
        e.vm_op("global_load_dword v76, v75, s[66:67]", "ce")
        e("s_lshr_b32 s3, s2, 3")
        e("s_lshl_b32 s3, s3, 9")
        e("s_add_u32 s3, s3, 0x8000")
        e("v_and_b32 v74, 3, v0")
        e("v_lshlrev_b32 v74, 7, v74")
        e("v_add_u32 v74, s3, v74")
        e(f"v_min_u32 v75, CODE_END-{name}-4, v74")
        e.vm_op("global_load_dword v77, v75, s[66:67]", "ce")

def code_touch(e, va, vd, first):
    e("s_getpc_b64 s[66:67]")
    e.label(f"L_pc{first}_{CODE_NAME[0]}")
    e(f"s_sub_u32 s66, s66, L_pc{first}_{CODE_NAME[0]}-{CODE_NAME[0]}")
    e("s_subb_u32 s67, s67, 0")
    e(f"s_lshl_b32 s3, s{S_IDX}, 11")
    e(f"v_mbcnt_lo_u32_b32 v{va}, -1, 0")
    e(f"v_mbcnt_hi_u32_b32 v{va}, -1, v{va}")
    e(f"v_and_b32 v{va}, 15, v{va}")
    e(f"v_lshlrev_b32 v{va}, 7, v{va}")
    e(f"v_add_u32 v{va}, s3, v{va}")
    e(f"v_min_u32 v{va}, CODE_END-{CODE_NAME[0]}-4, v{va}")
    e.vm_op(f"global_load_dword v{vd}, v{va}, s[66:67]", "ctouch")

CODE_NAME = [""]
def run(e, fl):
    for f in fl: f.fn(e)

def qphase(e, o):
    run(e, dma_wq(o, 0) + dma_x(o, 0) + dma_wq(o, 1))
    if o.pre_all: run(e, dma_wq(o, 2) + dma_x(o, 1))
    prologue2(e, o)
    if o.c_touch: code_touch(e, V_T + 9, V_T + 10, 0)
    if o.tlb:
        e(f"""
    s_lshl_b32 s3, s{S_BR}, 3
    s_add_u32 s3, s3, s{S_B}
    s_lshl_b32 s3, s3, 4
    s_lshr_b32 s7, s{S_H}, 1
    s_add_u32 s3, s3, s7
    s_mul_i32 s3, s3, 163840
    s_add_u32 s3, s3, {POFF}
    s_add_u32 s28, s68, s3
    s_addc_u32 s29, s69, 0
    s_mov_b32 s30, 163840
    s_mov_b32 s31, 0x20000
    v_mov_b32 v78, 0
    """)
        if o.tlb & 1: e.vm_op(f"buffer_load_dword v79, v78, s[28:31], 0 offen", "tlb")
        if o.tlb & 2:
            e.vm_op(f"buffer_load_dword v79, v78, s[{SRD_K}:{SRD_K+3}], 0 offen", "tlb")
            e.vm_op(f"buffer_load_dword v79, v78, s[{SRD_V}:{SRD_V+3}], 0 offen", "tlb")
    stamp(e, o, "issued")
    zero_acc(e)
    idx = lambda m, dt, qt: 40 * m + 5 * dt + qt
    def wfrag(m, dt, after=-1, before=10**9):
        j, tp = dt >> 1, dt & 1
        return [F('d', lambda e, n=n: e.ds_op(f"ds_read_b64_tr_b16 a[{fbuf(dt) + 2 * n}:{fbuf(dt) + 2 * n + 1}], v{V_AW + j} offset:{wqs(o, m) * WQ_SLOT + n * 1024 + 8 * tp}", f"F{m}_{dt}"), after, before) for n in range(2)]
    def xfrag(m, qt, after=-1, before=10**9):
        M, h = m >> 1, m & 1
        b = V_XB[m & 1] + 4 * qt
        return [F('d', lambda e: e.ds_op(f"ds_read_b128 v[{b}:{b+3}], v{V_AX + h} offset:{(M % 2) * X_SLOT + qt * 2048}", f"B{m}_{qt}"), after, before)]
    def barrier(m):
        def fn(e):
            e.ds_all()
            tags = [f"wq{m+1}"]
            if (m + 1) % 2 == 0: tags.append(f"x{(m+1)//2}")
            if m == 15:
                if o.early_k: e.need_vm("K0")
                else: e.vm_all()
            elif not o.q_nowait or m < 0:
                e.need_vm(tags)
            if not o.q_nobar or m in (-1, 15): e("s_barrier")
            if o.skew and -1 <= m < 15:
                n_ = NSK[0]; NSK[0] += 1
                e(f"s_cmp_eq_u32 s{S_W}, 0")
                e(f"s_cbranch_scc1 L_sk{n_}")
                e(f"s_nop {o.skew - 1}")
                e(f"s_cmp_eq_u32 s{S_W}, 1")
                e(f"s_cbranch_scc1 L_sk{n_}")
                e(f"s_nop {o.skew - 1}")
                e(f"s_cmp_eq_u32 s{S_W}, 2")
                e(f"s_cbranch_scc1 L_sk{n_}")
                e(f"s_nop {o.skew - 1}")
                e.label(f"L_sk{n_}")
            stamp(e, o, f"B{m}") if (o.stamp_list or m in (3, 9)) else None
        return fn
    barrier(-1)(e)
    stamp(e, o, "bar0")
    def nextfrags(m, after, before):
        fl = wfrag(m, 0, after, before)
        for q in range(5): fl += xfrag(m, q, after, before)
        return fl + wfrag(m, 1, after, before) + wfrag(m, 2, after, before)
    run(e, nextfrags(0, -1, 0))
    mains = []; rd = []; dm = []
    pref = [('K', 0), ('K', 1), ('V', 0), ('V', 1)]
    if o.apf: pref += [('K', 2), ('K', 3), ('V', 2), ('V', 3)]
    tnext = [0]
    for m in range(16):
        for dt in range(8):
            for qt in range(5):
                cin = "0" if m == 0 else vr(acc(dt, qt), 4)
                needs = []
                if qt == 0: needs.append(f"F{m}_{dt}")
                if dt == 0: needs.append(f"B{m}_{qt}")
                pre = barrier(m) if (dt == 5 and qt == 0) else None
                mains.append(Main(f"{MFMA} {vr(acc(dt, qt), 4)}, {ar(fbuf(dt), 4)}, {vr(V_XB[m & 1] + 4 * qt, 4)}, {cin}", needs, pre))
        if o.q_ahead:
            if m == 0:
                for dt in (3, 4, 5, 6, 7): rd += wfrag(0, dt, -1, idx(0, min(dt - 1, 4), 0))
            if m < 15:
                a_ = idx(m, 5, 0)
                rd += nextfrags(m + 1, a_, idx(m, 7, 4))
                for dt in (3, 4): rd += wfrag(m + 1, dt, a_, idx(m + 1, dt - 2, 0))
                for dt in (5, 6, 7): rd += wfrag(m + 1, dt, idx(m, dt, 4), idx(m + 1, min(dt - 2, 4), 0))
        else:
            for dt in (3, 4, 5):
                rd += wfrag(m, dt, idx(m, dt - 3, 0), idx(m, dt - 1, 0))
            for dt in (6, 7):
                rd += wfrag(m, dt, idx(m, 2, 2), idx(m, 4, 3))
            if m < 15:
                rd += nextfrags(m + 1, idx(m, 5, 0), idx(m, 7, 4))
        a = idx(m, 5, 0); b = idx(m + 1, 5, 0) if m < 15 else 10**9
        if m == 0 and not o.pre_all:
            dm += dma_wq(o, 2, -1, idx(0, 4, 0)) + dma_x(o, 1, -1, idx(0, 4, 4))
        t = max(a, tnext[0])
        if m + 3 < 16 and not o.q_nodma and not o.q_nowq:
            dm += dma_wq(o, m + 3, t, b, o.pace); t += 4 * o.pace
        if m % 2 == 1 and (m - 1) // 2 + 2 < 8 and not o.q_nodma and not o.q_nox:
            dm += dma_x(o, (m - 1) // 2 + 2, t, idx(m + 2, 4, 0) if m < 14 else 10**9, o.pace); t += 5 * o.pace
        for n_, (w, s) in enumerate(pref):
            when = int(o.pf_steps.split(",")[n_]) if o.pf_steps else min(o.pf_start + n_ * o.pf_per, 15 if o.pf_late else 13)
            if m == when:
                fn_ = dma_pref if s < 2 else dma_apf
                dm += fn_(o, w, s, t, idx(m + 2, 5, 0) if m < 14 else 10**9, o.pace); t += 4 * o.pace
        tnext[0] = t
        if m == 15 and o.apf:
            rd += apf_copy(a)
        if o.early_k and m == 13: dm += dma_pref(o, 'K', 2, max(a, tnext[0]), idx(14, 5, 0), o.pace)
        if o.early_k and m == 14: dm += dma_pref(o, 'K', 3, a, idx(15, 5, 0), o.pace)
        if o.early_k and m == 15: dm += dma_pref(o, 'V', 2, a) + dma_pref(o, 'V', 3, a)
        if m == 15 and not o.apf and not o.early_k:
            for s in (2, 3):
                dm += [F('s', txt(f"s_add_u32 m0, s{S_KV}, {KRING + 16384 * s}"), a),
                       F('s', txt(f"s_add_u32 s34, s{S_K0}, {s * 8192}"), a),
                       F('s', txt(f"s_and_b32 s34, s34, 0x1ffff"), a)]
                for t in range(4):
                    dm.append(F('l', lambda e, t=t, s=s: e.vm_op(f"buffer_load_dwordx4 v{V_OK + t}, s[{SRD_K}:{SRD_K+3}], s34 offen offset:{t * 1024} {o.kv_flag} lds", f"K{s}"), a))
    if o.q_nods: rd = []
    zip2(e, mains, [rd, dm], lgap=o.q_lgap, lfirst=o.q_lfirst, urgency=o.q_urg)

def qconvert(e):
    e("s_nop 7")
    for r in range(V_ACC, V_ACC + 160, 2):
        e(f"v_pk_mul_f32 v[{r}:{r+1}], v[{r}:{r+1}], s[{S_SC}:{S_SC+1}] op_sel_hi:[1,0]")
    for j in range(4):
        for qt in range(5):
            for tp in range(2):
                a0 = acc(2 * j + tp, qt); d = qf(j, qt) + 2 * tp
                e(f"v_cvt_pk_bf16_f32 v{d}, v{a0}, v{a0+1}")
                e(f"v_cvt_pk_bf16_f32 v{d+1}, v{a0+2}, v{a0+3}")

def dma_kv(o, which, after0, i):
    fl = []
    P = o.kv_pace
    after = after0
    def off(run, tmp):
        return [F('s', txt(f"s_and_b32 s{tmp}, s{run}, 0x1ffff"), after0),
                F('s', txt(f"s_cmp_lt_u32 s{run}, s{S_KEND}"), after0),
                F('s', txt(f"s_cselect_b32 s{tmp}, s{tmp}, 0x20000"), after0),
                F('s', txt(f"s_add_u32 s{run}, s{run}, 8192"), after0)]
    if 'K' in which:
        fl.append(F('s', txt(f"s_mov_b32 m0, s{S_KDST}"), after))
        if o.krot: fl += off(S_KOFF, S_T0)
        fl.append(F('s', txt(f"s_add_u32 s{S_KDST}, s{S_KDST}, 16384"), after))
        ko = S_T0 if o.krot else S_KOFF
        for t in range(4):
            fl.append(F('l', lambda e, t=t: e.vm_op(f"buffer_load_dwordx4 v{V_OK + t}, s[{SRD_K}:{SRD_K+3}], s{ko} offen offset:{t * 1024} {o.kv_flag} lds", f"K{i+o.dK}"), after))
            after += P
        fl.append(F('s', txt(f"s_and_b32 s{S_KDST}, s{S_KDST}, 0xffff"), after0))
        if not o.krot: fl.append(F('s', txt(f"s_add_u32 s{S_KOFF}, s{S_KOFF}, 8192"), after0))
    if 'V' in which:
        fl.append(F('s', txt(f"s_add_u32 m0, s{S_VDST}, {VRING}"), after0))
        if o.krot: fl += off(S_VOFF, 34)
        fl.append(F('s', txt(f"s_add_u32 s{S_VDST}, s{S_VDST}, 16384"), after0))
        vo_ = 34 if o.krot else S_VOFF
        for t in range(4):
            fl.append(F('l', lambda e, t=t: e.vm_op(f"buffer_load_dwordx4 v{V_OV + (t & 1)}, s[{SRD_V}:{SRD_V+3}], s{vo_} offen offset:{t * 1024} {o.kv_flag} lds", f"V{i+o.dV}"), after))
            after += P
        fl.append(F('s', txt(f"s_and_b32 s{S_VDST}, s{S_VDST}, 0xffff"), after0))
        if not o.krot: fl.append(F('s', txt(f"s_add_u32 s{S_VOFF}, s{S_VOFF}, 8192"), after0))
    if o.v_first and which == 'KV':
        n = next(k for k, f in enumerate(fl) if k and f.kind == 's' and 'V' in which and fl[k - 1].kind == 's' and False) if False else None
        cut = 2 + 4 + 2 if not o.krot else 2 + 4 + 4 + 1
        kpart, vpart = fl[:cut], fl[cut:]
        a_ = after0
        out = []
        for part in (vpart, kpart):
            for f in part:
                f.after = a_ if f.kind == 'l' else after0
                if f.kind == 'l': a_ += P
                out.append(f)
        fl = out
    return fl

def kfrag(par_slot, kt, j, n, after=-1, before=10**9):
    return [F('d', lambda e: e.ds_op(f"ds_read_b128 a[{fbuf(n)}:{fbuf(n)+3}], v{V_AK + j} offset:{kt * 4096 + 16384 * par_slot}", f"F{n}"), after, before)]
def vfrag(par_slot, dt, n, after=-1, before=10**9):
    return [F('d', lambda e, h=h: e.ds_op(f"ds_read_b64_tr_b16 a[{fbuf(n) + 2*h}:{fbuf(n) + 2*h + 1}], v{V_AV + dt} offset:{h * 4096 + 16384 * par_slot}", f"F{n}"), after, before) for h in range(2)]

def softmax_fill(par):
    seq = []
    for qt in range(5):
        for kt in range(2):
            s = sreg(par, kt, qt); p = preg(par, qt) + 2 * kt
            seq += [("e", s), ("e", s + 1), ("c", p, s, s + 1), ("e", s + 2), ("e", s + 3), ("c", p + 1, s + 2, s + 3)]
    out = []; pend = None
    for x in seq:
        if x[0] == "c": pend = x
        else:
            out.append(x)
            if pend is not None: out.append(pend); pend = None
    if pend is not None: out.append(("n",)); out.append(pend)
    fl = []
    for x in out:
        if x[0] == "e": fl.append(F('e', txt(f"v_exp_f32 v{x[1]}, v{x[1]}")))
        elif x[0] == "c": fl.append(F('v', txt(f"v_cvt_pk_bf16_f32 v{x[1]}, v{x[2]}, v{x[3]}")))
        else: fl.append(F('s', txt("s_nop 0")))
    return fl

def attn_iter(e, o, i, qk, sm, pv, vwait, dma, pre_next, epi=None, first_pv=False, extra_dm=None):
    par = i & 1; ks = (i + 1) & 1
    mains = []; rd = []; dm = []
    gstart = {}
    if qk:
        for kt in range(2):
            for j in range(4):
                n = kt * 4 + j
                gstart[n] = len(mains)
                for qt in range(5):
                    d = sreg(par ^ 1, kt, qt)
                    cin = vr(V_BIAS + 4 * qt, 4) if j == 0 else vr(d, 4)
                    mains.append(Main(f"{MFMA} {vr(d, 4)}, {ar(fbuf(n), 4)}, {vr(qf(j, qt), 4)}, {cin}", [f"F{n}"] if qt == 0 else []))
    if pv:
        gstart['l'] = len(mains)
        for qt in range(5):
            mains.append(Main(f"{MFMA} {ar(A_L + 4 * qt, 4)}, {ar(A_ONE, 4)}, {vr(preg(par ^ 1, qt), 4)}, {'0' if first_pv else ar(A_L + 4 * qt, 4)}"))
        for dt in range(8):
            n = 8 + dt
            gstart[n] = len(mains)
            for qt in range(5):
                mains.append(Main(f"{MFMA} {ar(oacc(dt, qt), 4)}, {ar(fbuf(n), 4)}, {vr(preg(par ^ 1, qt), 4)}, {'0' if first_pv else ar(oacc(dt, qt), 4)}", [f"F{n}"] if qt == 0 else []))
    order = [n for n in range(16) if n in gstart]
    ln = len(order)
    for k, n in enumerate(order):
        if qk and n < 3: continue
        after = gstart[order[k - 4]] if k >= 4 else -1
        if k >= ln - 3 and ln >= 6: after = gstart[order[ln - 6]]
        before = gstart[order[k - 1]] if k >= 1 else 0
        if k >= ln - 3 and ln >= 4: before = min(before, gstart[order[ln - 3]])
        rd += kfrag(ks, n >> 2, n & 3, n, after, before) if n < 8 else vfrag(ks, n - 8, n, after, before)
    has_bar = pre_next or vwait is not None
    if has_bar:
        bpos = gstart[order[-2]]
        def bar(e):
            e.ds_all()
            if vwait == 0:
                if 'OLD' in e.vm: e.need_vm('OLD')
                else: e.vm_all()
            elif vwait is not None: e.need_vm([f"K{i+2}", f"V{i}"])
            e("s_barrier")
        mains[bpos].pre = bar
        if par == 0 and qk:
            for j in range(4): rd.append(F('v', txt(f"v_xor_b32 v{V_AK + j}, 0x8000, v{V_AK + j}"), bpos))
        if pre_next:
            for n in range(3): rd += kfrag(ks ^ 1, 0, n, n, bpos, len(mains) - 1)
        if par == 0 and pv:
            for dt in range(8): rd.append(F('v', txt(f"v_xor_b32 v{V_AV + dt}, {hex(VTOG)}, v{V_AV + dt}"), bpos))
    dm += dma_kv(o, dma, -1, i)
    if extra_dm: dm += extra_dm
    sf = softmax_fill(par) if sm else []
    qs = [rd, dm, sf]
    if epi: qs.append(epi(gstart))
    zip2(e, mains, qs, flush_nop=bool(epi))

def epilogue_fill(o):
    def build(gstart):
        fl = []
        RL = V_E
        W = V_E + 6
        l0 = gstart['l']
        for qt in range(5):
            fl.append(F('v', txt(f"v_accvgpr_read_b32 v{RL + qt}, a{A_L + 4 * qt}"), l0 + 5 + 8))
        for qt in range(5):
            fl.append(F('e', txt(f"v_rcp_f32 v{RL + qt}, v{RL + qt}"), l0 + 5 + 8))
        k = 0
        for jj in range(4):
            ready = gstart[8 + 2 * jj + 1] + 5 + 4
            for qt in range(5):
                w = W + 12 * (k & 1); k += 1
                for tp in range(2):
                    for i in range(4):
                        fl.append(F('v', txt(f"v_accvgpr_read_b32 v{w + 4*tp + i}, a{oacc(2*jj + tp, qt) + i}"), ready))
                for r in range(8):
                    fl.append(F('v', txt(f"v_mul_f32 v{w + r}, v{w + r}, v{RL + qt}"), ready))
                for r in range(4):
                    fl.append(F('v', txt(f"v_cvt_pk_bf16_f32 v{w + 8 + r}, v{w + 2*r}, v{w + 2*r + 1}"), ready))
                off = (jj * 5 + qt) * 1024
                fl.append(F('s', txt(f"s_mov_b32 s{S_T0}, {off}"), ready))
                fl.append(F('l', lambda e, w=w: e.vm_op(f"buffer_store_dwordx4 v[{w+8}:{w+11}], v{V_E + 5}, s[{SRD_O}:{SRD_O+3}], s{S_T0} offen {o.o_flag}", "st"), ready))
        return fl
    return build

WO_A = [131072, 147456, 98304, 81920, 114688]
WO_B = [0, 16384, 32768, 49152, 65536]
def wo_slot(si): return WO_A[si] if si < 5 else WO_B[si - 5] if si < 10 else WO_A[si - 10] if si < 15 else WO_B[0]
VOTE_LDS = 16384
V_AWS = 160

def t3_setup(e, o):
    L = V_E + 5
    t0, t1, t2, t3_ = V_E, V_E + 1, V_E + 2, V_E + 3
    e(f"""
    v_lshrrev_b32 v{t0}, 4, v{L}             ; lane
    v_lshrrev_b32 v{t1}, 4, v{t0}            ; g
    v_and_b32 v{t2}, 7, v{t0}
    v_lshlrev_b32 v{t3_}, 1, v{t1}
    v_xor_b32 v{t2}, v{t2}, v{t3_}
    v_lshlrev_b32 v{t2}, 4, v{t2}
    v_lshrrev_b32 v{t3_}, 3, v{t0}
    v_lshl_add_u32 v{V_OW}, v{t3_}, 10, v{t2}
    v_add_u32 v{V_OW+1}, {7168}, v{V_OW}
    v_add_u32 v{V_OW+2}, {2*7168}, v{V_OW}
    v_add_u32 v{V_OW+3}, {3*7168}, v{V_OW}
    v_bfe_u32 v{t2}, v{t0}, 2, 2             ; r'
    v_lshl_add_u32 v{t2}, v{t1}, 2, v{t2}    ; 4g + r'
    v_lshrrev_b32 v{t3_}, 1, v{t2}
    v_and_b32 v{t3_}, 3, v{t3_}
    v_lshlrev_b32 v{t2}, 7, v{t2}
    v_lshl_add_u32 v{t2}, v{t3_}, 5, v{t2}
    v_and_b32 v{t3_}, 3, v{t0}               ; c'
    v_lshl_add_u32 v{t2}, v{t3_}, 3, v{t2}
    s_lshl_b32 s3, s{S_HH}, 13
    v_add_u32 v{V_AW2}, s3, v{t2}
    v_xor_b32 v{V_AW2+1}, 32, v{V_AW2}
    v_xor_b32 v{V_AW2+2}, 64, v{V_AW2}
    v_xor_b32 v{V_AW2+3}, 0x60, v{V_AW2}
    s_mul_i32 s3, s{S_W}, 20480
    v_add_u32 v{V_XA}, s3, v{L}
    s_mov_b32 s{S_WL}, s{S_KV}
    s_lshl_b32 s3, s{S_RH}, 15
    s_lshl_b32 s7, s{S_HH}, 9
    s_add_u32 s3, s3, s7
    s_lshl_b32 s7, s{S_HH}, 17
    s_add_u32 s{S_WA}, s3, s7
    s_xor_b32 s7, s7, 0x20000
    s_add_u32 s{S_WB}, s3, s7
    s_cmp_eq_u32 s{S_BR}, 0
    s_cselect_b32 s60, s98, s100
    s_cselect_b32 s61, s99, s101
    s_sub_u32 s3, s{S_H}, s{S_HH}
    s_lshl_b32 s3, s3, 17                    ; * 128 rows * 1024
    s_add_u32 s{SRD_WO}, s60, s3
    s_addc_u32 s{SRD_WO+1}, s61, 0
    s_mov_b32 s{SRD_WO+2}, 262144
    s_mov_b32 s{SRD_WO+3}, 0x20000
    s_lshl_b32 s3, s{S_BR}, 3
    s_add_u32 s3, s3, s{S_B}
    s_lshl_b32 s3, s3, 4
    s_lshr_b32 s7, s{S_H}, 1
    s_add_u32 s3, s3, s7
    s_lshl_b32 s3, s3, 2
    s_lshl_b32 s7, s{S_RH}, 1
    s_add_u32 s3, s3, s7
    s_add_u32 s3, s3, s{S_HH}
    s_mul_i32 s3, s3, 40960
    s_add_u32 s3, s3, {POFF}
    s_add_u32 s{SRD_P}, s68, s3
    s_addc_u32 s{SRD_P+1}, s69, 0
    s_mov_b32 s{SRD_P+2}, 40960
    s_mov_b32 s{SRD_P+3}, 0x20000
    s_lshl_b32 s3, s{S_HG}, 20
    s_add_u32 s56, s60, s3
    s_addc_u32 s57, s61, 0
    s_mov_b32 s58, 0x100000
    s_mov_b32 s59, 0x20000
    s_lshl_b32 s3, s{S_IDX}, 2
    s_add_u32 s3, s3, s{S_W}
    s_lshl_b32 s3, s3, 13
    v_lshlrev_b32 v{t0}, 3, v{L}             ; lane*128
    v_add_u32 v{t0}, s3, v{t0}
    """)

def dma_wo(o, p, kq, after=-1, before=10**9, pace=0, mark=None):
    src = S_WA if kq < 2 else S_WB
    fl = [F('s', txt(f"s_add_u32 m0, s{S_WL}, {wo_slot(4 * p + kq)}"), after, before),
          F('s', txt(f"s_add_u32 s{S_T1}, s{src}, {(kq & 1) * 65536 + 128 * p}"), after, before)]
    for t in range(4):
        fl.append(F('l', lambda e, t=t: e.vm_op(f"buffer_load_dwordx4 v{V_OW+t}, s[{SRD_WO}:{SRD_WO+3}], s{S_T1} offen offset:{t*1024} {o.w_flag} lds", f"W{p}_{kq}"), after + pace * t, before, mark=(mark if t == 3 else None)))
    return fl

def t3_tail(e, o):
    i = 16; par = 0; ks = 1
    mains = []; rd = []; dm = []; cv = []; st = []; xw = []; xr = []
    gstart = {}
    gstart['l'] = 0
    for qt in range(5):
        mains.append(Main(f"{MFMA} {ar(A_L + 4 * qt, 4)}, {ar(A_ONE, 4)}, {vr(preg(1, qt), 4)}, {ar(A_L + 4 * qt, 4)}"))
    for dt in range(8):
        n = 8 + dt
        gstart[n] = len(mains)
        for qt in range(5):
            mains.append(Main(f"{MFMA} {ar(oacc(dt, qt), 4)}, {ar(fbuf(n), 4)}, {vr(preg(1, qt), 4)}, {ar(oacc(dt, qt), 4)}", [f"F{n}"] if qt == 0 else []))
    for k in range(8):
        n = 8 + k
        after = gstart[8 + k - 4] if k >= 4 else -1
        before = gstart[8 + k - 1] if k >= 1 else 0
        rd += vfrag(ks, k, n, after, before)
    NPV = len(mains)
    def a2(p, nt, qt):
        if (p & 1) == 0 and nt >= 2 and o.acc_hi: return 216 + ((nt - 2) * 5 + qt) * 4
        return A_ACC2[p & 1] + (nt * 5 + qt) * 4
    def bfr(kk, qt): return (kk * 5 + qt) * 4
    S0 = {}
    nfrag = 16
    for p in range(4):
        for kq in range(4):
            S0[(p, kq)] = len(mains)
            for ks2 in range(2):
                kk = 2 * kq + ks2
                for nt in range(4):
                    n = nfrag; nfrag += 1
                    g0 = len(mains)
                    for qt in range(5):
                        cin = "0" if (kq == 0 and ks2 == 0) else ar(a2(p, nt, qt), 4)
                        needs = [f"G{n}"] if qt == 0 else []
                        if p == 0 and kk >= 4 and nt == 0: needs = needs + [f"X{kk}_{qt}"]
                        mains.append(Main(f"{MFMA} {ar(a2(p, nt, qt), 4)}, {ar(fbuf(n), 4)}, {vr(bfr(kk, qt), 4)}, {cin}", needs))
                    gstart[('g', p, kq, ks2, nt)] = (g0, n)
    N = len(mains)
    stages = [(p, kq) for p in range(4) for kq in range(4)]
    def gidx(p, kq, j): return gstart[('g', p, kq, j >> 2, j & 3)]
    BAR = {}
    for si, (p, kq) in enumerate(stages):
        BAR[si] = gidx(p, kq, 5)[0]
    def wfrag(p, kq, j, after, before):
        g0, n = gidx(p, kq, j)
        return [F('d', lambda e, h=h, n=n: e.ds_op(f"ds_read_b64_tr_b16 a[{fbuf(n) + 2*h}:{fbuf(n) + 2*h + 1}], v{V_AWS + 4 * (wo_slot(4 * p + kq) >> 16) + (j & 3)} offset:{(wo_slot(4 * p + kq) & 0xffff) + (j >> 2) * 4096 + h * 2048}", f"G{n}"), after, before) for h in range(2)]
    pv_bar = gstart[8 + 6]
    def bar_first(e):
        e.ds_all()
        e.need_vm("W0_0")
        e("s_barrier")
    mains[pv_bar].pre = bar_first
    rd_pv_last = [f for f in rd]
    for f in rd:
        f.before = min(f.before, pv_bar - 3)
    for si, (p, kq) in enumerate(stages):
        prevbar = pv_bar if si == 0 else BAR[si - 1]
        for j in range(8):
            g0 = gidx(p, kq, j)[0]
            if j < 3:
                after = prevbar; before = S0[(p, kq)] - 1 if j == 0 else gidx(p, kq, j - 1)[0]
                if si == 0 and j == 0: before = NPV - 1
            elif j < 6:
                after = gidx(p, kq, j - 3)[0]; before = gidx(p, kq, j - 1)[0]
            else:
                after = gidx(p, kq, 2)[0] + 2; before = gidx(p, kq, 4)[0] + 3
            rd += wfrag(p, kq, j, after, before)
        def bar(e, si=si):
            if si == o.c_k3_at and o.c_k3:
                n_ = CODE_NAME[0]
                e("s_getpc_b64 s[60:61]")
                e.label(f"L_pck_{n_}")
                e(f"s_add_u32 s60, s60, reduce_kernel-L_pck_{n_}")
                e("s_addc_u32 s61, s61, 0")
                e(f"v_mbcnt_lo_u32_b32 v178, -1, 0")
                e(f"v_mbcnt_hi_u32_b32 v178, -1, v178")
                e(f"v_lshlrev_b32 v178, 7, v178")
                e(f"v_min_u32 v178, K3_END-reduce_kernel-4, v178")
                e.vm_op(f"global_load_dword v179, v178, s[60:61]", "k3t")
            if o.stamp_list or si in ((0, 3, 7, 15) if o.fuse else (0, 3, 7, 11, 15)): stamp(e, o, f"T{si}")
            if o.few_bar and si not in (0, 1, 2, 3, 4, 5, 10):
                return
            e.ds_all()
            cover = [si + 1]
            if o.few_bar and si == 5: cover = list(range(6, 12))
            if o.few_bar and si == 10: cover = list(range(11, 16))
            e.need_vm([f"W{stages[x][0]}_{stages[x][1]}" for x in cover if x < 16])
            e("s_barrier")
        mains[BAR[si]].pre = bar
    if o.wo_early: pre = dma_wo(o, 0, 2, -1, 24, 3)
    else: pre = dma_wo(o, 0, 0, -1, 3) + dma_wo(o, 0, 1, -1, 10) + dma_wo(o, 0, 2, -1, 18) + dma_wo(o, 0, 3, -1, 26)
    def st_(si): return stages[si]
    P = o.w_pace
    dm = pre + dma_wo(o, *st_(4), pv_bar, BAR[0], P)
    dm += dma_wo(o, *st_(10), BAR[0], BAR[1], P)
    dm += dma_wo(o, *st_(11), BAR[1], BAR[2], P)
    t = BAR[2]
    for si in (5, 6, 7, 8, 9):
        dl = BAR[si - 2] if si > 5 else BAR[3]
        if o.few_bar: dl = min(dl, BAR[5] - 8)
        dm += dma_wo(o, *st_(si), t, dl, P); t += 4 * P
    dm += dma_wo(o, *st_(12), t, BAR[8] if not o.st_late else BAR[5] - 6, P); t += 4 * P
    dm += dma_wo(o, *st_(13), max(t, BAR[3]), BAR[9] if not o.st_late else BAR[5] - 4, P); t += 4 * P
    dm += dma_wo(o, *st_(14), max(t, BAR[4]), (BAR[10] - (8 if o.few_bar else 0)) if not o.st_late else BAR[5] + 4, P); t += 4 * P
    dm += dma_wo(o, *st_(15), max(t, BAR[5]), (BAR[11] if not o.few_bar else BAR[10] - 4) if not o.st_late else BAR[5] + 14, P, mark="lastW")
    if o.t3_nodma: dm = pre
    RL = V_E; W = V_E + 6
    l0 = 0
    for qt in range(5): cv.append(F('v', txt(f"v_accvgpr_read_b32 v{RL + qt}, a{A_L + 4 * qt}"), l0 + 5 + 6))
    for qt in range(5): cv.append(F('e', txt(f"v_rcp_f32 v{RL + qt}, v{RL + qt}"), l0 + 5 + 6))
    k = 0
    for jj in range(4):
        ready = gstart[8 + 2 * jj + 1] + 5 + 4
        need = gidx(0, jj >> 1, (jj & 1) * 4)[0]
        if jj == 1 and not o.acc_hi: need = gidx(0, 0, 2)[0]
        for qt in range(5):
            w = W + 8 * (k & 1); k += 1
            dl = need + qt - 2 if need + qt - 2 > ready else need
            for tp in range(2):
                for i_ in range(4):
                    cv.append(F('v', txt(f"v_accvgpr_read_b32 v{w + 4*tp + i_}, a{oacc(2*jj + tp, qt) + i_}"), ready, need - 2))
            for r in range(8):
                cv.append(F('v', txt(f"v_mul_f32 v{w + r}, v{w + r}, v{RL + qt}"), ready, need - 2))
            d = bfr(jj, qt)
            for r in range(4):
                cv.append(F('v', txt(f"v_cvt_pk_bf16_f32 v{d + r}, v{w + 2*r}, v{w + 2*r + 1}"), ready, need - 2, mark=(f"of{jj}_{qt}" if r == 3 else None)))
            xw.append(F('d', lambda e, d=d, jj=jj, qt=qt: e.ds_op(f"ds_write_b128 v{V_XA}, v[{d}:{d+3}] offset:{(jj * 5 + qt) * 1024}", "XW"), ready, BAR[1] - 2, dep=f"of{jj}_{qt}"))
    xbar = BAR[1]
    xw.append(F('v', txt(f"v_add_u32 v{V_XA}, s55, v{V_XA}"), xbar, xbar + 2))
    for jj in range(4):
        for qt in range(5):
            d = bfr(4 + jj, qt)
            xw.append(F('d', lambda e, d=d, jj=jj, qt=qt: e.ds_op(f"ds_read_b128 v[{d}:{d+3}], v{V_XA} offset:{(jj * 5 + qt) * 1024}", f"X{4+jj}_{qt}"), xbar + 1, S0[(0, 2)] - 6 if jj < 2 else BAR[2] - 4))
    gd = []
    for qt in range(5):
        a_, b_ = S0[(0, 2)], S0[(1, 0)] - 2
        gd.append(F('v', txt(f"v_med3_f32 v224, v{RL + qt}, s66, v225"), a_, b_))
        gd.append(F('v', txt(f"v_cmp_neq_f32 s[62:63], v224, v{RL + qt}"), a_, b_))
        gd.append(F('s', txt("s_nop 1"), a_, b_))
        gd.append(F('s', txt(f"s_or_b64 s[{S_BAD}:{S_BAD+1}], s[{S_BAD}:{S_BAD+1}], s[62:63]"), a_, b_))
    W2 = V_E + 6
    k = 0
    for p in range(4):
        start = S0[(p + 1, 0)] + 6 if p < 3 else N
        end = S0[(p + 1, 3)] if p < 2 else 10**9
        if o.st_late and p == 0: start = BAR[5] + 2; end = S0[(2, 0)] - 8
        if o.st_late and p == 1: start = max(start, S0[(2, 0)] + 6); end = S0[(3, 0)] - 8
        if p == 2: end = N - 10
        for u in range(2):
            for qt in range(5):
                w = W2 + 12 * (k & 1); k += 1
                for tp in range(2):
                    for i_ in range(4):
                        st.append(F('v', txt(f"v_accvgpr_read_b32 v{w + 4*tp + i_}, a{a2(p, 2*u + tp, qt) + i_}"), start, end))
                for r in range(4):
                    st.append(F('v', txt(f"v_cvt_pk_bf16_f32 v{w + 8 + r}, v{w + 2*r}, v{w + 2*r + 1}"), start, end))
                off = (p * 10 + u * 5 + qt) * 1024
                st.append(F('s', txt(f"s_mov_b32 s{S_T0}, {off}"), start, end))
                if not o.t3_nostore: st.append(F('l', lambda e, w=w: e.vm_op(f"buffer_store_dwordx4 v[{w+8}:{w+11}], v{V_E + 5}, s[{SRD_P}:{SRD_P+3}], s{S_T0} offen {o.p_flag}", "st"), start, end,
                                                    dep=("lastW" if (o.st_late and p == 0 and u == 0 and qt == 0) else None)))
    e(f"s_mov_b64 s[{S_BAD}:{S_BAD+1}], 0")
    e(f"s_mov_b32 s66, {hex(R_LO)}")
    e(f"v_mov_b32 v225, {hex(R_HI)}")
    for k_ in range(3):
        for j in range(4):
            e(f"v_add_u32 v{V_AWS + 4 * k_ + j}, {65536 * k_}, v{V_AW2 + j}")
    e(f"s_lshl_b32 s{S_T0}, s{S_HH}, 1")
    e(f"s_sub_u32 s{S_T0}, 1, s{S_T0}")
    e(f"s_mul_i32 s{S_T0}, s{S_T0}, 40960")
    e(f"s_mov_b32 s55, s{S_T0}")
    for f in cv:
        pass
    zip2(e, mains, [rd, dm, cv, xw, gd, st], flush_nop=True, dense=2 if o.vmax > 1 else None, vmax=o.vmax, lgap=o.t_lgap)

def max_pass(e, o, name):
    M = 120; L16 = V_E + 5; T = 126
    e.label(f"L_maxpass_{name}")
    e("s_waitcnt vmcnt(0) lgkmcnt(0)")
    for qt in range(5): e(f"v_mov_b32 v{M + qt}, 0xff800000")
    e(f"s_mov_b32 s{S_CNT}, 0")
    e(f"s_lshl_b32 s{S_T1}, s{S_RH}, 12")
    e.label(f"L_maxloop_{name}")
    e("s_barrier")
    e(f"s_mov_b32 m0, s{S_KV}")
    e("s_nop 0")
    for t in range(4):
        e(f"buffer_load_dwordx4 v{V_OK + t}, s[{SRD_K}:{SRD_K+3}], s{S_T1} offen offset:{t * 1024} lds")
    e("s_waitcnt vmcnt(0)")
    e("s_barrier")
    for n in range(8):
        e(f"ds_read_b128 a[{fbuf(n)}:{fbuf(n)+3}], v{V_AK + (n & 3)} offset:{(n >> 2) * 4096}")
    e("s_waitcnt lgkmcnt(0)")
    for kt in range(2):
        for j in range(4):
            for qt in range(5):
                d = sreg(0, kt, qt)
                e(f"{MFMA} {vr(d, 4)}, {ar(fbuf(kt * 4 + j), 4)}, {vr(qf(j, qt), 4)}, {'0' if j == 0 else vr(d, 4)}")
    e("s_nop 7")
    e("s_nop 3")
    for qt in range(5):
        for kt in range(2):
            d = sreg(0, kt, qt)
            e(f"v_max3_f32 v{M + qt}, v{d}, v{d+1}, v{M + qt}")
            e(f"v_max3_f32 v{M + qt}, v{d+2}, v{d+3}, v{M + qt}")
    e(f"s_add_u32 s{S_T1}, s{S_T1}, 8192")
    e(f"s_add_u32 s{S_CNT}, s{S_CNT}, 1")
    e(f"s_cmp_lt_u32 s{S_CNT}, 16")
    e(f"s_cbranch_scc1 L_maxloop_{name}")
    e("s_barrier")
    e(f"s_and_b32 s{S_T1}, s{S_K0}, 0x1ffff")
    e(f"s_mov_b32 m0, s{S_KV}")
    e("s_nop 0")
    for t in range(4):
        e(f"buffer_load_dwordx4 v{V_OK + t}, s[{SRD_K}:{SRD_K+3}], s{S_T1} offen offset:{t * 1024} lds")
    e(f"v_lshrrev_b32 v{T}, 2, v{L16}")
    e(f"v_xor_b32 v{T+1}, 64, v{T}")
    e(f"v_xor_b32 v{T+2}, 0x80, v{T}")
    for x in (1, 2):
        for qt in range(5): e(f"ds_bpermute_b32 v{T + 3 + qt}, v{T + x}, v{M + qt}")
        e("s_waitcnt lgkmcnt(0)")
        for qt in range(5): e(f"v_max_f32 v{M + qt}, v{M + qt}, v{T + 3 + qt}")
    for qt in range(5):
        for r in range(4): e(f"v_sub_f32 v{V_BIAS + 4 * qt + r}, 0, v{M + qt}")
    e("s_waitcnt vmcnt(0)")
    e("s_barrier")
    for n in range(3): run(e, kfrag(0, 0, n, n))
    e(f"s_branch L_maxdone_{name}")

def vote(e, o, name):
    T = V_E
    e(f"s_cmp_lg_u64 s[{S_BAD}:{S_BAD+1}], 0")
    e(f"s_cselect_b32 s3, 1, 0")
    e(f"v_mov_b32 v{T}, s3")
    e(f"s_lshl_b32 s7, s{S_W}, 2")
    e(f"s_add_u32 s7, s7, {VOTE_LDS}")
    e(f"v_mov_b32 v{T+1}, s7")
    e(f"ds_write_b32 v{T+1}, v{T}")
    if o.fuse:
        e("s_load_dwordx4 s[56:59], s[0:1], 80")
        e("s_waitcnt vmcnt(0) lgkmcnt(0)")
    else:
        e("s_waitcnt lgkmcnt(0)")
    e("s_barrier")
    e(f"v_mov_b32 v{T+1}, {VOTE_LDS}")
    e(f"ds_read_b128 v[{T+2}:{T+5}], v{T+1}")
    e("s_waitcnt lgkmcnt(0)")
    e(f"v_or_b32 v{T+2}, v{T+2}, v{T+3}")
    e(f"v_or3_b32 v{T+2}, v{T+2}, v{T+4}, v{T+5}")
    e("s_nop 0")
    e(f"v_readfirstlane_b32 s3, v{T+2}")
    e(f"s_cmp_eq_u32 s{S_MODE}, 0")
    e(f"s_cselect_b32 s3, s3, 0")
    e(f"s_cmp_eq_u32 s3, 0")
    e(f"s_cbranch_scc1 L_fine_{name}")
    e(f"s_mov_b32 s{S_MODE}, 1")
    e("s_waitcnt vmcnt(0)")
    e("s_barrier")
    e("v_mbcnt_lo_u32_b32 v0, -1, 0")
    e("v_mbcnt_hi_u32_b32 v0, -1, v0")
    e(f"s_lshl_b32 s3, s{S_W}, 6")
    e("v_add_u32 v0, s3, v0")
    e(f"s_branch L_restart_{name}")
    e.label(f"L_fine_{name}")

def fused_reduce(e, o, name):
    G, R, J = 60, 61, 62
    e(f"""
    s_lshl_b32 s{G}, s{S_BR}, 3
    s_add_u32 s{G}, s{G}, s{S_B}             ; group
    s_lshr_b32 s{R}, s{S_H}, 1
    v_mbcnt_lo_u32_b32 v248, -1, 0
    v_mbcnt_hi_u32_b32 v248, -1, v248        ; lane
    s_cmp_eq_u32 s{S_W}, {99 if o.nosync else 0}
    s_cbranch_scc0 L_arrived_{name}
    s_lshl_b32 s3, s{G}, {12 if o.cnt_ws else 4}
    {f"s_add_u32 s3, s3, {220*1024*1024}" if o.cnt_ws else ""}
    {"s_mov_b32 s58, s68" if o.cnt_ws else ""}
    {"s_mov_b32 s59, s69" if o.cnt_ws else ""}
    v_mov_b32 v249, s3
    v_mov_b32 v250, 1
    s_mov_b64 s[64:65], exec
    s_mov_b64 exec, 1
    global_atomic_add v249, v250, s[58:59]
    s_mov_b32 s7, 0
L_poll_{name}:
    global_load_dword v251, v249, s[58:59] sc1
    s_waitcnt vmcnt(0)
    v_readfirstlane_b32 s3, v251
    s_add_u32 s7, s7, 1
    s_cmp_ge_u32 s3, 16
    s_cbranch_scc1 L_polled_{name}
    s_sleep {o.spin_sleep}
    s_cmp_lt_u32 s7, 0x40000
    s_cbranch_scc1 L_poll_{name}
L_polled_{name}:
    s_mov_b64 exec, s[64:65]
L_arrived_{name}:
    s_barrier
    """)
    stamp(e, o, "polled")
    e(f"""
    v_lshlrev_b32 v249, 4, v248              ; lane*16
    s_mul_i32 s3, s{G}, {16 * 163840}
    s_add_u32 s3, s3, {POFF}
    s_add_u32 s8, s68, s3
    s_addc_u32 s9, s69, 0
    s_mov_b32 s10, {16 * 163840}
    s_mov_b32 s11, 0x20000
    s_mul_i32 s{J}, s{R}, 10
    s_add_u32 s{J}, s{J}, s{S_W}
    s_mov_b32 s12, s56
    s_mov_b32 s13, s57
    s_mov_b32 s14, 2621440
    s_mov_b32 s15, 0x20000
    v_and_b32 v250, 15, v248
    v_lshrrev_b32 v251, 4, v248
    v_lshlrev_b32 v250, 11, v250
    v_lshl_add_u32 v250, v251, 3, v250       ; c*2048 + g*8
    """)
    def load1(k, hp):
        r = 64 * k + 4 * hp
        if hp == 0:
            e(f"s_add_u32 s3, s{J}, {4 * k}")
            e(f"s_lshl_b32 s3, s3, 10")
        e.vm_op(f"buffer_load_dwordx4 v[{r}:{r+3}], v249, s[8:11], s3 offen {o.r_flag}", f"R{k}_{hp}")
        if hp < 15: e("s_add_u32 s3, s3, 163840")
    def outaddr(k, dst):
        e(f"""
    s_add_u32 s16, s{J}, {4 * k}
    s_mul_hi_u32 s17, s16, 0x1999999a
    s_mul_i32 s18, s17, 10
    s_sub_u32 s18, s16, s18
    s_cmp_ge_u32 s18, 5
    s_cselect_b32 s19, 1, 0                  ; u
    s_mul_i32 s20, s19, 5
    s_sub_u32 s18, s18, s20                  ; qt
    s_and_b32 s20, s17, 3                    ; p
    s_bfe_u32 s21, s17, 0x10002              ; hh
    s_lshr_b32 s22, s17, 3                   ; rh
    s_mul_i32 s23, s{S_B}, 160
    s_mul_i32 s22, s22, 80
    s_add_u32 s23, s23, s22
    s_lshl_b32 s18, s18, 4
    s_add_u32 s23, s23, s18
    s_lshl_b32 s23, s23, 11
    s_lshl_b32 s22, s{S_BR}, 10
    s_add_u32 s23, s23, s22
    s_lshl_b32 s21, s21, 9
    s_add_u32 s23, s23, s21
    s_lshl_b32 s20, s20, 7
    s_add_u32 s23, s23, s20
    s_lshl_b32 s19, s19, 6
    s_add_u32 s{dst}, s23, s19
    """)
    def run_pieces(np_):
        A = 224; T = 232
        order = [(k, hp) for k in range(np_) for hp in range(16)]
        D = o.r_depth
        e.vm = []; e.vm_waited = set()
        for x in order[:D]: load1(*x)
        for k in range(np_): outaddr(k, 24 + k)
        for n, (k, hp) in enumerate(order):
            e.need_vm(f"R{k}_{hp}")
            if n + D < len(order): load1(*order[n + D])
            for d in range(4):
                r = 64 * k + 4 * hp + d
                if hp == 0:
                    e(f"v_lshlrev_b32 v{A + 2*d}, 16, v{r}")
                    e(f"v_and_b32 v{A + 2*d + 1}, 0xffff0000, v{r}")
                else:
                    e(f"v_lshlrev_b32 v{T + 2*(d & 1)}, 16, v{r}")
                    e(f"v_and_b32 v{T + 2*(d & 1) + 1}, 0xffff0000, v{r}")
                    e(f"v_add_f32 v{A + 2*d}, v{A + 2*d}, v{T + 2*(d & 1)}")
                    e(f"v_add_f32 v{A + 2*d + 1}, v{A + 2*d + 1}, v{T + 2*(d & 1) + 1}")
            if hp == 15:
                o0 = 236 + 4 * (k & 1)
                for d in range(4): e(f"v_cvt_pk_bf16_f32 v{o0 + d}, v{A + 2*d}, v{A + 2*d + 1}")
                e.vm_op(f"buffer_store_dwordx2 v[{o0}:{o0+1}], v250, s[12:15], s{24 + k} offen", f"S{k}")
                e.vm_op(f"buffer_store_dwordx2 v[{o0+2}:{o0+3}], v250, s[12:15], s{24 + k} offen offset:32", f"S{k}")
    if o.r_loop:
        A = 224; T = 232
        e.label(f"L_rloop_{name}")
        e(f"s_lshl_b32 s3, s{J}, 10")
        for hp in range(16):
            e(f"buffer_load_dwordx4 v[{4*hp}:{4*hp+3}], v249, s[8:11], s3 offen {o.r_flag}")
            if hp < 15: e("s_add_u32 s3, s3, 163840")
        outaddr(0, 24)
        for hp in range(16):
            e(f"s_waitcnt vmcnt({15 - hp})")
            for d in range(4):
                r = 4 * hp + d
                if hp == 0:
                    e(f"v_lshlrev_b32 v{A + 2*d}, 16, v{r}")
                    e(f"v_and_b32 v{A + 2*d + 1}, 0xffff0000, v{r}")
                else:
                    e(f"v_lshlrev_b32 v{T + 2*(d & 1)}, 16, v{r}")
                    e(f"v_and_b32 v{T + 2*(d & 1) + 1}, 0xffff0000, v{r}")
                    e(f"v_add_f32 v{A + 2*d}, v{A + 2*d}, v{T + 2*(d & 1)}")
                    e(f"v_add_f32 v{A + 2*d + 1}, v{A + 2*d + 1}, v{T + 2*(d & 1) + 1}")
        for d in range(4): e(f"v_cvt_pk_bf16_f32 v{236 + d}, v{A + 2*d}, v{A + 2*d + 1}")
        e(f"buffer_store_dwordx2 v[236:237], v250, s[12:15], s24 offen")
        e(f"buffer_store_dwordx2 v[238:239], v250, s[12:15], s24 offen offset:32")
        e(f"s_add_u32 s{J}, s{J}, 4")
        e(f"s_mul_i32 s3, s{R}, 10")
        e(f"s_add_u32 s3, s3, 10")
        e(f"s_cmp_lt_u32 s{J}, s3")
        e(f"s_cbranch_scc1 L_rloop_{name}")
        return
    e(f"s_cmp_lt_u32 s{S_W}, 2")
    e(f"s_cbranch_scc0 L_two_{name}")
    run_pieces(3)
    e(f"s_branch L_reduced_{name}")
    e.label(f"L_two_{name}")
    run_pieces(2)
    e.label(f"L_reduced_{name}")

def gen_k1(name, o):
    NSTAMP[0] = 0
    CODE_NAME[0] = name
    e = Em()
    e.lines.append(kernel_head(name))
    prologue(e, o, name)
    qphase(e, o)
    stamp(e, o, "qdone")
    e(f"v_accvgpr_write_b32 a{A_SAVE}, v{V_OV0}")
    e(f"v_accvgpr_write_b32 a{A_SAVE+1}, v{V_OV0+1}")
    e(f"v_accvgpr_write_b32 a{A_SAVE+2}, v{V_T+1}")
    for n in range(3): run(e, kfrag(0, 0, n, n))
    qconvert(e)
    stamp(e, o, "qconv")
    firstV = 4 if (o.apf or o.early_k) else 2
    def which(i):
        return ('K' if i + o.dK >= 4 else '') + ('V' if i + o.dV >= firstV else '')
    e(f"""
    v_accvgpr_read_b32 v{V_OV}, a{A_SAVE}
    v_accvgpr_read_b32 v{V_OV+1}, a{A_SAVE+1}
    v_accvgpr_read_b32 v{V_E+5}, a{A_SAVE+2}
    s_mov_b32 s{S_KDST}, s{S_KV}             ; K(4) -> slot 0
    s_add_u32 s{S_VDST}, s{S_KV}, {((firstV + 2) & 3) * 16384}
    s_add_u32 s{S_KOFF}, s{S_K0}, {4 * 8192}
    s_add_u32 s{S_VOFF}, s{S_K0}, {firstV * 8192}
    v_lshlrev_b32 v{V_E+5}, 4, v{V_E+5}
    """)
    if o.t3 and not o.setup_late: t3_setup(e, o)
    for r in range(20): e(f"v_mov_b32 v{V_BIAS + r}, 0")
    e(f"s_cmp_eq_u32 s{S_MODE}, 0")
    e(f"s_cbranch_scc0 L_maxpass_{name}")
    e.label(f"L_maxdone_{name}")
    if o.pf_late:
        e("s_waitcnt vmcnt(0) lgkmcnt(0)"); e("s_barrier"); e.vm = []; e.ds = []
        for n in range(3): e.fresh[f"F{n}"] = 0
        for n in range(3): run(e, kfrag(0, 0, n, n))
    attn_iter(e, o, -1, True, False, False, 1, '', True)
    stamp(e, o, "Titm1")
    attn_iter(e, o, 0, True, True, False, 1, which(0), True)
    stamp(e, o, "Tit0")
    attn_iter(e, o, 1, True, True, True, 1, which(1), True, first_pv=True)
    stamp(e, o, "Tit1")
    attn_iter(e, o, 2, True, True, True, 1, which(2), True)
    assert which(3) == 'KV'
    stamp(e, o, "iter0_done")
    if o.t3 and o.setup_late: t3_setup(e, o)
    e(f"s_mov_b32 s{S_CNT}, 0")
    ds0 = list(e.ds)
    e.label(f"L_loop_{name}")
    if o.t3 and o.w_touch >= 0:
        e(f"s_cmp_eq_u32 s{S_CNT}, {o.w_touch}")
        e(f"s_cbranch_scc0 L_nowt_{name}")
        e(f"buffer_load_dword v{V_E + 1}, v{V_E}, s[56:59], 0 offen")
        if o.c_touch >= 2:
            vq = list(e.vm); code_touch(e, V_E + 2, V_E + 3, 1); e.vm = vq
        e.label(f"L_nowt_{name}")
    n0 = len(e.lines)
    redirect = [F('s', txt(f"s_cmp_eq_u32 s{S_CNT}, 5")), F('s', txt(f"s_sub_u32 s{S_T1}, s{S_KV}, 32768")),
                F('s', txt(f"s_cmp_eq_u32 s{S_CNT}, 5")), F('s', txt(f"s_cselect_b32 s{S_VDST}, s{S_T1}, s{S_VDST}"))]
    attn_iter(e, o, 3, True, True, True, 1, 'KV', True)
    if o.t3 and o.wo_early and o.dV == 2: run(e, redirect[1:])
    attn_iter(e, o, 4, True, True, True, 1, 'KV', True)
    import copy
    e2 = copy.deepcopy(e); n1 = len(e2.lines)
    attn_iter(e2, o, 5, True, True, True, 1, 'KV', True)
    if o.t3 and o.wo_early and o.dV == 2: run(e2, redirect[1:])
    attn_iter(e2, o, 6, True, True, True, 1, 'KV', True)
    assert e.lines[n0:n1] == e2.lines[n1:], "loop body is not in steady state"
    assert e.ds == ds0, (e.ds, ds0)
    e(f"s_add_u32 s{S_CNT}, s{S_CNT}, 1")
    e(f"s_cmp_lt_u32 s{S_CNT}, 6")
    e(f"s_cbranch_scc1 L_loop_{name}")
    e.ds_all()
    stamp(e, o, "loop_done")
    xdm = None
    if o.t3 and o.wo_early:
        e.vm = ['OLD']
        xdm = dma_wo(o, 0, 0, 0, 10**9, 3) + dma_wo(o, 0, 1, 12, 10**9, 3) + dma_wo(o, 0, 3, 24, 10**9, 3)
    attn_iter(e, o, 15, False, True, True, 0, '', False, extra_dm=xdm)
    stamp(e, o, "Tit15")
    if o.t3:
        t3_tail(e, o)
    else:
        attn_iter(e, o, 16, False, False, True, None, '', False, epi=epilogue_fill(o))
    stamp(e, o, "stores_issued")
    vote(e, o, name)
    if o.fuse:
        stamp(e, o, "Tsig")
        fused_reduce(e, o, name)
    if o.stamps: e("s_waitcnt vmcnt(0)")
    stamp(e, o, "end")
    if o.stamps:
        e(f"""
    s_memrealtime s[96:97]
    s_waitcnt lgkmcnt(0)
    s_lshl_b32 s3, s2, 2
    s_add_u32 s3, s3, s{S_W}
    s_lshl_b32 s3, s3, 7
    s_add_u32 s3, s3, {200*1024*1024}
    v_mov_b32 v30, s3
    s_mov_b64 exec, 1
    """)
        for k in range(14):
            e(f"v_mov_b32 v0, s{70 + 2*k}")
            e(f"v_mov_b32 v1, s{71 + 2*k}")
            e(f"global_store_dwordx2 v30, v[0:1], s[68:69] offset:{8*k}")
            e("s_nop 1")
        e("s_waitcnt vmcnt(0)")
        if o.dbg:
            e(f"""
    s_or_b32 s3, s2, s{S_W}
    s_cmp_eq_u32 s3, 0
    s_cbranch_scc0 L_end_{name}
    s_load_dwordx2 s[98:99], s[0:1], 88
    s_waitcnt lgkmcnt(0)
    v_mov_b32 v30, 0
    """)
            for k in range(1, 11):
                e(f"s_sub_u32 s3, s{70 + 2*k}, s70")
                e(f"v_mov_b32 v0, s3")
                e(f"global_store_dword v30, v0, s[98:99] offset:{4*k}")
                e("s_nop 1")
            e("s_sub_u32 s3, s96, s94")
            e("v_mov_b32 v0, s3")
            e("global_store_dword v30, v0, s[98:99] offset:0")
            e("s_waitcnt vmcnt(0)")
    e.label(f"L_end_{name}")
    e("s_endpgm")
    dsq, vmq = list(e.ds), list(e.vm)
    max_pass(e, o, name)
    e.label("CODE_END")
    return e.text() + kernel_desc(name, 512, 256)
```

```python
from common import *
from sched import *

KRING = 0
VRING = 98304
WQ0 = 32768; WQ_HEAD = 8224; WQ_SLOT = 2 * WQ_HEAD
X0 = 82176; X_SLOT = 20480
LDS_BYTES = 163840
VTOG = 0x38000
S_W, S_HH, S_RH = 4, 5, 6
SRD_X, SRD_WQ, SRD_K, SRD_V, SRD_O = 8, 12, 16, 20, 24
S_T0, S_T1 = 32, 33
S_WQL, S_XL, S_XG, S_WQG = 35, 36, 37, 38
S_KDST, S_VDST, S_KOFF, S_VOFF, S_CNT = 40, 41, 42, 43, 44
S_IDX, S_HG, S_B, S_BR, S_H = 45, 46, 47, 48, 49
S_SC = 50
S_KV = 39; S_WQK = 51; S_XK = 34; S_PT = 7
V_Q = 0
V_XB = [0, 20]
V_AW = 40
V_AX = 44
V_OWQ = 46
V_OX = 50
V_T = 56
V_ACC = 80
V_S = [80, 120]
V_P = [160, 180]
V_OV = 200
V_E = 202
V_OV0 = 70
V_AK = 240; V_AV = 244; V_OK = 252
A_O = 0; A_L = 160; A_ONE = 180; A_F = 184
A_SAVE = 216
SRD_WO, SRD_P = 28, 24
S_WA, S_WB, S_WL = 52, 53, 54
POFF = 32 * 1024 * 1024
WRING = 98304
V_OW = 232
V_AW2 = 236
V_XA = 231
A_ACC2 = [0, 80]
V_BIAS = 208
S_K0 = 93; S_KEND = 63
S_MODE = 92
S_BAD = 64
R_LO, R_HI = 0x27800000, 0x4f800000

def acc(dt, qt): return V_ACC + (dt * 5 + qt) * 4
def qf(j, qt): return V_Q + (j * 5 + qt) * 4
def sreg(par, kt, qt): return V_S[par] + (kt * 5 + qt) * 4
def preg(par, qt): return V_P[par] + qt * 4
def oacc(dt, qt): return A_O + (dt * 5 + qt) * 4
def fbuf(n): return A_F + 4 * (n % 8)

class Opt:
    kv_flag = "nt"
    q_flag = ""
    o_flag = ""
    stamps = False
    pre_all = True
    pf_start = 0
    pf_per = 3
    pf_late = False
    pf_steps = ""
    q_nodma = False
    q_nowait = False
    q_nobar = False
    q_nods = False
    q_nowq = False
    q_nox = False
    rotg = 8
    rot = True
    pace = 4
    apf = True
    stamp_list = ""
    stamp_set = "q"
    fuse = False
    spin_sleep = 1
    nosync = False
    r_depth = 12
    r_loop = False
    r_flag = "sc1"
    cnt_ws = False
    t3 = True
    p_flag = ""
    w_flag = ""
    c_k3_at = 3
    c_k3 = 0
    c_early = 0
    c_touch = 0
    acc_hi = True
    vmax = 3
    wo_early = True
    skew = 0
    tlb = 0
    q_ahead = False
    q_lfirst = False
    q_urg = 3
    few_bar = False
    krot = 0
    st_late = False
    early_k = False
    v_first = False
    dK = 4
    dV = 2
    setup_late = False
    last_early = False
    w_touch_pos = 0
    q_lgap = 0
    t_lgap = 0
    w_pace = 2
    kv_pace = 0
    t3_nostore = False
    t3_nodma = False
    w_touch = -1
    dbg = False

NSTAMP = [0]
NSK = [0]
def stamp(e, o, tag):
    if not o.stamps: return
    if o.stamp_list:
        if tag not in o.stamp_list.split(","): return
        k = NSTAMP[0]; NSTAMP[0] += 1
        assert k < 11
        e.comment("stamp " + tag)
        e(f"s_memtime s[{70 + 2*k}:{71 + 2*k}]")
        return
    early = tag in ("issued", "bar0", "B3", "B9", "qconv")
    late = tag.startswith("T")
    if (o.stamp_set == "tail" and early) or (o.stamp_set != "tail" and late): return
    if o.fuse and o.stamp_set != "tail" and tag == "stores_issued": pass
    k = NSTAMP[0]; NSTAMP[0] += 1
    assert k < 12
    e.comment("stamp " + tag)
    e(f"s_memtime s[{70 + 2*k}:{71 + 2*k}]")

def prologue(e, o, name):
    e(f"""
    s_cmp_ge_u32 s2, 256
    s_cbranch_scc1 L_end_{name}
    s_mov_b32 s{S_MODE}, 0
    """)
    if o.c_early: code_touch_early(e, o, name)
    e(f"""
L_restart_{name}:
    s_load_dwordx8 s[52:59], s[0:1], 0       ; A_x A_k A_v A_wq
    s_load_dwordx8 s[60:67], s[0:1], 40      ; B_x B_k B_v B_wq
    s_load_dwordx2 s[68:69], s[0:1], 96      ; ws
    s_load_dwordx2 s[98:99], s[0:1], 32      ; A_wo
    s_load_dwordx2 s[100:101], s[0:1], 72    ; B_wo
    v_lshrrev_b32 v{V_T}, 6, v0
    v_and_b32 v{V_T+1}, 63, v0               ; lane
    v_readfirstlane_b32 s{S_W}, v{V_T}
    s_and_b32 s3, s2, 7
    s_lshr_b32 s{S_IDX}, s2, 3
    s_lshr_b32 s{S_BR}, s3, 2
    s_and_b32 s{S_HG}, s3, 3
    s_lshr_b32 s{S_B}, s{S_IDX}, 2
    s_and_b32 s7, s{S_IDX}, 3
    s_lshr_b32 s{S_HH}, s{S_W}, 1
    s_and_b32 s{S_RH}, s{S_W}, 1
    s_lshl_b32 s{S_H}, s{S_HG}, 3
    s_lshl_b32 s7, s7, 1
    s_add_u32 s{S_H}, s{S_H}, s7
    s_add_u32 s{S_H}, s{S_H}, s{S_HH}
    """)
    if o.stamps:
        e("s_memrealtime s[94:95]")
    stamp(e, o, "start")
    L = V_T + 1
    c, g, rp, cp, t0, t1 = V_T + 2, V_T + 3, V_T + 4, V_T + 5, V_T + 6, V_T + 7
    e(f"""
    v_and_b32 v{c}, 15, v{L}
    v_lshrrev_b32 v{g}, 4, v{L}
    v_bfe_u32 v{rp}, v{L}, 2, 2
    v_and_b32 v{cp}, 3, v{L}
    """)
    e(f"""
    v_lshlrev_b32 v{t0}, 2, v{g}
    v_xor_b32 v{t0}, v{t0}, v{c}
    v_lshlrev_b32 v{t0}, 4, v{t0}
    v_lshl_add_u32 v{V_OWQ}, v{g}, 13, v{t0}
    """)
    for u in range(1, 4):
        e(f"v_add_u32 v{V_OWQ+u}, {u * 32768 - wq_imm(u)}, v{V_OWQ}")
    e(f"""
    v_and_b32 v{t0}, 7, v{L}
    v_xor_b32 v{t0}, v{t0}, v{g}
    v_lshlrev_b32 v{t0}, 4, v{t0}
    v_lshrrev_b32 v{t1}, 3, v{L}
    v_lshl_add_u32 v{t0}, v{t1}, 10, v{t0}
    s_and_b32 s3, s{S_W}, 1
    s_lshl_b32 s3, s3, 6
    v_xor_b32 v{t0}, s3, v{t0}
    v_xor_b32 v{t1}, 64, v{t0}
    """)
    for u in range(5):
        src = t0 if u % 2 == 0 else t1
        e(f"v_add_u32 v{V_OX+u}, {u * 8192 - (u & 3) * 1024}, v{src}")
    e(f"""
    v_xor_b32 v{t0}, v{c}, v{g}
    v_lshlrev_b32 v{t0}, 4, v{t0}
    v_lshl_add_u32 v{V_OK}, v{g}, 8, v{t0}
    v_xor_b32 v{V_OK+1}, 64, v{V_OK}
    v_xor_b32 v{V_OK+2}, 0x80, v{V_OK}
    v_xor_b32 v{V_OK+3}, 0xc0, v{V_OK}
    """)
    e(f"""
    v_lshlrev_b32 v{t0}, 1, v{g}
    v_xor_b32 v{t0}, v{t0}, v{c}
    v_lshlrev_b32 v{t0}, 4, v{t0}
    v_lshl_add_u32 v{V_OV0}, v{g}, 8, v{t0}
    v_xor_b32 v{V_OV0+1}, 0x80, v{V_OV0}
    """)
    e(f"""
    s_mul_i32 s3, s{S_HH}, {WQ_HEAD}
    s_add_u32 s3, s3, {WQ0}
    v_mul_u32_u24 v{t0}, 2056, v{g}
    v_lshl_add_u32 v{t0}, v{rp}, 8, v{t0}
    v_lshl_add_u32 v{t0}, v{cp}, 4, v{t0}
    v_add_u32 v{t0}, s3, v{t0}
    s_mul_i32 s7, s{S_RH}, {4 * 1024 + 16}
    s_add_u32 s{S_WQL}, s3, s7
    s_lshl_b32 s{S_WQG}, s{S_RH}, 17
    """)
    for j in range(4):
        e(f"""
    v_xor_b32 v{t1}, {j}, v{rp}
    v_lshl_add_u32 v{V_AW+j}, v{t1}, 6, v{t0}""")
    e(f"""
    s_mul_i32 s3, s{S_RH}, {80*128}
    s_add_u32 s3, s3, {X0}
    v_lshrrev_b32 v{t0}, 1, v{c}
    v_xor_b32 v{t0}, v{t0}, v{g}
    v_lshlrev_b32 v{t0}, 4, v{t0}
    v_lshl_add_u32 v{t0}, v{c}, 7, v{t0}
    v_add_u32 v{V_AX}, s3, v{t0}
    v_xor_b32 v{V_AX+1}, 64, v{V_AX}
    s_mul_i32 s{S_XL}, s{S_W}, 5120
    s_add_u32 s{S_XL}, s{S_XL}, {X0}
    s_mul_i32 s{S_XG}, s{S_W}, 40960
    """)
    e(f"""
    s_lshl_b32 s3, s{S_HH}, 13
    s_lshl_b32 s7, s{S_RH}, 12
    s_add_u32 s{S_KV}, s3, s7
    v_xor_b32 v{t0}, v{g}, v{c}
    v_lshlrev_b32 v{t0}, 4, v{t0}
    v_lshl_add_u32 v{t0}, v{c}, 8, v{t0}
    v_add_u32 v{V_AK}, s3, v{t0}
    v_xor_b32 v{V_AK+1}, 64, v{V_AK}
    v_xor_b32 v{V_AK+2}, 0x80, v{V_AK}
    v_xor_b32 v{V_AK+3}, 0xc0, v{V_AK}
    """)
    e(f"""
    v_lshlrev_b32 v{V_APA}, 4, v{L}
    v_add_u32 v{V_APA}, s{S_KV}, v{V_APA}
    v_add_u32 v{V_APA+1}, {VRING}, v{V_APA}
    """)
    e(f"""
    s_add_u32 s3, s3, 0x20000
    v_lshl_add_u32 v{t0}, v{g}, 2, v{rp}       ; 4g + r'
    v_and_b32 v{t1}, 7, v{t0}                  ; rho7
    v_lshlrev_b32 v{t0}, 8, v{t0}
    v_lshl_add_u32 v{t0}, v{t1}, 5, v{t0}
    v_lshl_add_u32 v{t0}, v{cp}, 3, v{t0}
    v_add_u32 v{V_AV}, s3, v{t0}
    """)
    for dt in range(1, 8):
        e(f"v_xor_b32 v{V_AV+dt}, {32*dt}, v{V_AV}")
    e(f"""
    s_waitcnt lgkmcnt(0)
    s_cmp_eq_u32 s{S_BR}, 0
    s_cselect_b32 s52, s52, s60
    s_cselect_b32 s53, s53, s61
    s_cselect_b32 s54, s54, s62
    s_cselect_b32 s55, s55, s63
    s_cselect_b32 s56, s56, s64
    s_cselect_b32 s57, s57, s65
    s_cselect_b32 s58, s58, s66
    s_cselect_b32 s59, s59, s67
    s_lshl_b32 s3, s{S_H}, 8
    s_add_u32 s{SRD_WQ}, s58, s3
    s_addc_u32 s{SRD_WQ+1}, s59, 0
    s_sub_u32 s{SRD_WQ+2}, 4194304, s3
    s_mov_b32 s{SRD_WQ+3}, 0x20000
    s_mul_i32 s3, s{S_B}, 163840
    s_add_u32 s{SRD_X}, s52, s3
    s_addc_u32 s{SRD_X+1}, s53, 0
    s_mov_b32 s{SRD_X+2}, 163840
    s_mov_b32 s{SRD_X+3}, 0x20000
    """)
    if o.rot and o.rotg > 1:
        G = o.rotg
        e(f"""
    s_and_b32 s3, s{S_IDX}, 3                ; p
    s_lshl_b32 s3, s3, {1 if G == 8 else 0}
    s_add_u32 s3, s3, s{S_B}
    s_and_b32 s3, s3, {G - 1}
    s_mul_i32 s3, s3, {8 // G}
    s_lshl_b32 s{S_WQK}, s3, 7
    s_lshl_b32 s3, s3, 19                    ; 64 rows * 8192
    s_add_u32 s{S_WQG}, s{S_WQG}, s3
    """)
    else:
        e(f"s_mov_b32 s{S_WQK}, 0")

def prologue2(e, o):
    e(f"""
    s_lshl_b32 s3, s{S_B}, 5
    s_add_u32 s3, s3, s{S_H}
    s_lshl_b32 s3, s3, 17
    s_add_u32 s{SRD_K}, s54, s3
    s_addc_u32 s{SRD_K+1}, s55, 0
    s_mov_b32 s{SRD_K+2}, 131072
    s_mov_b32 s{SRD_K+3}, 0x20000
    s_add_u32 s{SRD_V}, s56, s3
    s_addc_u32 s{SRD_V+1}, s57, 0
    s_mov_b32 s{SRD_V+2}, 131072
    s_mov_b32 s{SRD_V+3}, 0x20000
    s_lshl_b32 s3, s{S_BR}, 3
    s_add_u32 s3, s3, s{S_B}
    s_lshl_b32 s3, s3, 1
    s_add_u32 s3, s3, s{S_RH}
    s_lshl_b32 s3, s3, 5
    s_add_u32 s3, s3, s{S_H}
    s_mul_i32 s3, s3, 20480
    s_add_u32 s{SRD_O}, s68, s3
    s_addc_u32 s{SRD_O+1}, s69, 0
    s_mov_b32 s{SRD_O+2}, 20480
    s_mov_b32 s{SRD_O+3}, 0x20000
    s_mov_b32 s{S_SC}, {f32hex(C_SCALE)}
    s_mul_i32 s3, s2, {o.krot}
    s_lshr_b32 s3, s3, 3
    s_and_b32 s3, s3, {15 if o.krot else 0}
    s_lshl_b32 s3, s3, 13
    s_lshl_b32 s{S_K0}, s{S_RH}, 12
    s_add_u32 s{S_K0}, s{S_K0}, s3
    s_add_u32 s{S_KEND}, s{S_K0}, 0x20000
    """)

def wq_imm(u): return u * 1024 + 8 * (u >> 1)

def wqs(o, m): return (m + 2) % 3 if o.early_k else m % 3

def dma_wq(o, m, after=-1, before=10**9, pace=0):
    fl = [F('s', txt(f"s_add_u32 m0, s{S_WQL}, {wqs(o, m) * WQ_SLOT}"), after, before)]
    for u in range(4):
        fl.append(F('l', lambda e, u=u: e.vm_op(f"buffer_load_dwordx4 v{V_OWQ+u}, s[{SRD_WQ}:{SRD_WQ+3}], s{S_WQG} offen offset:{wq_imm(u)} {o.q_flag} lds", f"wq{m}"), after + pace * u, before))
    fl.append(F('s', txt(f"s_add_u32 s{S_WQG}, s{S_WQG}, {32 * 8192}"), after, before))
    fl.append(F('s', txt(f"s_and_b32 s{S_WQG}, s{S_WQG}, 0x3fffff"), after, before))
    return fl

def dma_x(o, M, after=-1, before=10**9, pace=0):
    fl = [F('s', txt(f"s_add_u32 m0, s{S_XL}, {(M % 2) * X_SLOT}"), after, before),
          F('s', txt(f"s_add_u32 s{S_T1}, s{S_XG}, s{S_WQK}"), after, before)]
    for u in range(5):
        if u == 4: fl.append(F('s', txt(f"s_add_u32 m0, s{S_XL}, {(M % 2) * X_SLOT + 4096}"), after, before))
        if u == 4: fl.append(F('s', txt("s_nop 0"), after, before))
        fl.append(F('l', lambda e, u=u: e.vm_op(f"buffer_load_dwordx4 v{V_OX+u}, s[{SRD_X}:{SRD_X+3}], s{S_T1} offen offset:{(u & 3) * 1024} {o.q_flag} lds", f"x{M}"), after + pace * u, before))
    fl.append(F('s', txt(f"s_add_u32 s{S_WQK}, s{S_WQK}, 128"), after, before))
    fl.append(F('s', txt(f"s_and_b32 s{S_WQK}, s{S_WQK}, 0x3ff"), after, before))
    return fl

def dma_pref(o, which, s, after=-1, before=10**9, pace=0):
    if which == 'K':
        base = KRING + 16384 * s; srd = SRD_K; vo = lambda t: V_OK + t
    else:
        base = (0x20000 + 16384 * s) if s < 2 else (VRING + 16384 * (s - 2)); srd = SRD_V; vo = lambda t: V_OV0 + (t & 1)
    fl = [F('s', txt(f"s_add_u32 m0, s{S_KV}, {base}"), after, before),
          F('s', txt(f"s_add_u32 s34, s{S_K0}, {s * 8192}"), after, before),
          F('s', txt(f"s_and_b32 s34, s34, 0x1ffff"), after, before)]
    for t in range(4):
        fl.append(F('l', lambda e, t=t: e.vm_op(f"buffer_load_dwordx4 v{vo(t)}, s[{srd}:{srd+3}], s34 offen offset:{t * 1024} {o.kv_flag} lds", f"{which}{s}"), after + pace * t, before))
    return fl

APF = {('K', 2): 0, ('K', 3): 16, ('V', 2): 32, ('V', 3): 48}
def dma_apf(o, which, s, after=-1, before=10**9, pace=0):
    srd = SRD_K if which == 'K' else SRD_V
    vo = (lambda t: V_OK + t) if which == 'K' else (lambda t: V_OV0 + (t & 1))
    fl = [F('s', txt(f"s_add_u32 s34, s{S_K0}, {s * 8192}"), after, before),
          F('s', txt(f"s_and_b32 s34, s34, 0x1ffff"), after, before)]
    for t in range(4):
        a = APF[(which, s)] + 4 * t
        fl.append(F('l', lambda e, t=t, a=a: e.vm_op(f"buffer_load_dwordx4 a[{a}:{a+3}], v{vo(t)}, s[{srd}:{srd+3}], s34 offen offset:{t * 1024} {o.kv_flag}", f"{which}{s}"), after + pace * t, before))
    return fl
V_APA = 72
def apf_copy(after):
    fl = []
    for (which, s), a0 in APF.items():
        for t in range(4):
            a = a0 + 4 * t
            if which == 'K': txt_ = f"ds_write_b128 v{V_APA}, a[{a}:{a+3}] offset:{KRING + 16384 * s + 1024 * t}"
            else: txt_ = f"ds_write_b128 v{V_APA+1}, a[{a}:{a+3}] offset:{16384 * (s - 2) + 1024 * t}"
            fl.append(F('d', lambda e, txt_=txt_: e.ds_op(txt_, "APF"), after))
    return fl

def zero_acc(e):
    e(f"v_mov_b32 v{V_T+8}, 0x3f803f80")
    for r in range(4):
        e(f"v_accvgpr_write_b32 a{A_ONE + r}, v{V_T+8}")

def code_touch_early(e, o, name):
    e("s_getpc_b64 s[66:67]")
    e.label(f"L_pce_{name}")
    e(f"s_sub_u32 s66, s66, L_pce_{name}-{name}")
    e("s_subb_u32 s67, s67, 0")
    if o.c_early == 1:
        e("v_lshlrev_b32 v74, 7, v0")
        e(f"v_min_u32 v75, CODE_END-{name}-4, v74")
        e.vm_op("global_load_dword v76, v75, s[66:67]", "ce")
        e("v_add_u32 v74, 0x8000, v74")
        e(f"v_min_u32 v75, CODE_END-{name}-4, v74")
        e.vm_op("global_load_dword v77, v75, s[66:67]", "ce")
    elif o.c_early == 2:
        e("v_and_b32 v74, 63, v0")
        e("v_lshlrev_b32 v74, 7, v74")
        e.vm_op("global_load_dword v76, v74, s[66:67]", "ce")
        e("s_lshr_b32 s3, s2, 3")
        e("s_lshl_b32 s3, s3, 11")
        e("v_and_b32 v74, 15, v0")
        e("v_lshlrev_b32 v74, 7, v74")
        e("v_add_u32 v74, s3, v74")
        e(f"v_min_u32 v75, CODE_END-{name}-4, v74")
        e.vm_op("global_load_dword v77, v75, s[66:67]", "ce")
    elif o.c_early == 3:
        e("v_lshlrev_b32 v74, 7, v0")
        e(f"v_min_u32 v75, CODE_END-{name}-4, v74")
        e.vm_op("global_load_dword v76, v75, s[66:67]", "ce")
        e("s_lshr_b32 s3, s2, 3")
        e("s_lshl_b32 s3, s3, 9")
        e("s_add_u32 s3, s3, 0x8000")
        e("v_and_b32 v74, 3, v0")
        e("v_lshlrev_b32 v74, 7, v74")
        e("v_add_u32 v74, s3, v74")
        e(f"v_min_u32 v75, CODE_END-{name}-4, v74")
        e.vm_op("global_load_dword v77, v75, s[66:67]", "ce")

def code_touch(e, va, vd, first):
    e("s_getpc_b64 s[66:67]")
    e.label(f"L_pc{first}_{CODE_NAME[0]}")
    e(f"s_sub_u32 s66, s66, L_pc{first}_{CODE_NAME[0]}-{CODE_NAME[0]}")
    e("s_subb_u32 s67, s67, 0")
    e(f"s_lshl_b32 s3, s{S_IDX}, 11")
    e(f"v_mbcnt_lo_u32_b32 v{va}, -1, 0")
    e(f"v_mbcnt_hi_u32_b32 v{va}, -1, v{va}")
    e(f"v_and_b32 v{va}, 15, v{va}")
    e(f"v_lshlrev_b32 v{va}, 7, v{va}")
    e(f"v_add_u32 v{va}, s3, v{va}")
    e(f"v_min_u32 v{va}, CODE_END-{CODE_NAME[0]}-4, v{va}")
    e.vm_op(f"global_load_dword v{vd}, v{va}, s[66:67]", "ctouch")

CODE_NAME = [""]
def run(e, fl):
    for f in fl: f.fn(e)

def qphase(e, o):
    run(e, dma_wq(o, 0) + dma_x(o, 0) + dma_wq(o, 1))
    if o.pre_all: run(e, dma_wq(o, 2) + dma_x(o, 1))
    prologue2(e, o)
    if o.c_touch: code_touch(e, V_T + 9, V_T + 10, 0)
    if o.tlb:
        e(f"""
    s_lshl_b32 s3, s{S_BR}, 3
    s_add_u32 s3, s3, s{S_B}
    s_lshl_b32 s3, s3, 4
    s_lshr_b32 s7, s{S_H}, 1
    s_add_u32 s3, s3, s7
    s_mul_i32 s3, s3, 163840
    s_add_u32 s3, s3, {POFF}
    s_add_u32 s28, s68, s3
    s_addc_u32 s29, s69, 0
    s_mov_b32 s30, 163840
    s_mov_b32 s31, 0x20000
    v_mov_b32 v78, 0
    """)
        if o.tlb & 1: e.vm_op(f"buffer_load_dword v79, v78, s[28:31], 0 offen", "tlb")
        if o.tlb & 2:
            e.vm_op(f"buffer_load_dword v79, v78, s[{SRD_K}:{SRD_K+3}], 0 offen", "tlb")
            e.vm_op(f"buffer_load_dword v79, v78, s[{SRD_V}:{SRD_V+3}], 0 offen", "tlb")
    stamp(e, o, "issued")
    zero_acc(e)
    idx = lambda m, dt, qt: 40 * m + 5 * dt + qt
    def wfrag(m, dt, after=-1, before=10**9):
        j, tp = dt >> 1, dt & 1
        return [F('d', lambda e, n=n: e.ds_op(f"ds_read_b64_tr_b16 a[{fbuf(dt) + 2 * n}:{fbuf(dt) + 2 * n + 1}], v{V_AW + j} offset:{wqs(o, m) * WQ_SLOT + n * 1024 + 8 * tp}", f"F{m}_{dt}"), after, before) for n in range(2)]
    def xfrag(m, qt, after=-1, before=10**9):
        M, h = m >> 1, m & 1
        b = V_XB[m & 1] + 4 * qt
        return [F('d', lambda e: e.ds_op(f"ds_read_b128 v[{b}:{b+3}], v{V_AX + h} offset:{(M % 2) * X_SLOT + qt * 2048}", f"B{m}_{qt}"), after, before)]
    def barrier(m):
        def fn(e):
            e.ds_all()
            tags = [f"wq{m+1}"]
            if (m + 1) % 2 == 0: tags.append(f"x{(m+1)//2}")
            if m == 15:
                if o.early_k: e.need_vm("K0")
                else: e.vm_all()
            elif not o.q_nowait or m < 0:
                e.need_vm(tags)
            if not o.q_nobar or m in (-1, 15): e("s_barrier")
            if o.skew and -1 <= m < 15:
                n_ = NSK[0]; NSK[0] += 1
                e(f"s_cmp_eq_u32 s{S_W}, 0")
                e(f"s_cbranch_scc1 L_sk{n_}")
                e(f"s_nop {o.skew - 1}")
                e(f"s_cmp_eq_u32 s{S_W}, 1")
                e(f"s_cbranch_scc1 L_sk{n_}")
                e(f"s_nop {o.skew - 1}")
                e(f"s_cmp_eq_u32 s{S_W}, 2")
                e(f"s_cbranch_scc1 L_sk{n_}")
                e(f"s_nop {o.skew - 1}")
                e.label(f"L_sk{n_}")
            stamp(e, o, f"B{m}") if (o.stamp_list or m in (3, 9)) else None
        return fn
    barrier(-1)(e)
    stamp(e, o, "bar0")
    def nextfrags(m, after, before):
        fl = wfrag(m, 0, after, before)
        for q in range(5): fl += xfrag(m, q, after, before)
        return fl + wfrag(m, 1, after, before) + wfrag(m, 2, after, before)
    run(e, nextfrags(0, -1, 0))
    mains = []; rd = []; dm = []
    pref = [('K', 0), ('K', 1), ('V', 0), ('V', 1)]
    if o.apf: pref += [('K', 2), ('K', 3), ('V', 2), ('V', 3)]
    tnext = [0]
    for m in range(16):
        for dt in range(8):
            for qt in range(5):
                cin = "0" if m == 0 else vr(acc(dt, qt), 4)
                needs = []
                if qt == 0: needs.append(f"F{m}_{dt}")
                if dt == 0: needs.append(f"B{m}_{qt}")
                pre = barrier(m) if (dt == 5 and qt == 0) else None
                mains.append(Main(f"{MFMA} {vr(acc(dt, qt), 4)}, {ar(fbuf(dt), 4)}, {vr(V_XB[m & 1] + 4 * qt, 4)}, {cin}", needs, pre))
        if o.q_ahead:
            if m == 0:
                for dt in (3, 4, 5, 6, 7): rd += wfrag(0, dt, -1, idx(0, min(dt - 1, 4), 0))
            if m < 15:
                a_ = idx(m, 5, 0)
                rd += nextfrags(m + 1, a_, idx(m, 7, 4))
                for dt in (3, 4): rd += wfrag(m + 1, dt, a_, idx(m + 1, dt - 2, 0))
                for dt in (5, 6, 7): rd += wfrag(m + 1, dt, idx(m, dt, 4), idx(m + 1, min(dt - 2, 4), 0))
        else:
            for dt in (3, 4, 5):
                rd += wfrag(m, dt, idx(m, dt - 3, 0), idx(m, dt - 1, 0))
            for dt in (6, 7):
                rd += wfrag(m, dt, idx(m, 2, 2), idx(m, 4, 3))
            if m < 15:
                rd += nextfrags(m + 1, idx(m, 5, 0), idx(m, 7, 4))
        a = idx(m, 5, 0); b = idx(m + 1, 5, 0) if m < 15 else 10**9
        if m == 0 and not o.pre_all:
            dm += dma_wq(o, 2, -1, idx(0, 4, 0)) + dma_x(o, 1, -1, idx(0, 4, 4))
        t = max(a, tnext[0])
        if m + 3 < 16 and not o.q_nodma and not o.q_nowq:
            dm += dma_wq(o, m + 3, t, b, o.pace); t += 4 * o.pace
        if m % 2 == 1 and (m - 1) // 2 + 2 < 8 and not o.q_nodma and not o.q_nox:
            dm += dma_x(o, (m - 1) // 2 + 2, t, idx(m + 2, 4, 0) if m < 14 else 10**9, o.pace); t += 5 * o.pace
        for n_, (w, s) in enumerate(pref):
            when = int(o.pf_steps.split(",")[n_]) if o.pf_steps else min(o.pf_start + n_ * o.pf_per, 15 if o.pf_late else 13)
            if m == when:
                fn_ = dma_pref if s < 2 else dma_apf
                dm += fn_(o, w, s, t, idx(m + 2, 5, 0) if m < 14 else 10**9, o.pace); t += 4 * o.pace
        tnext[0] = t
        if m == 15 and o.apf:
            rd += apf_copy(a)
        if o.early_k and m == 13: dm += dma_pref(o, 'K', 2, max(a, tnext[0]), idx(14, 5, 0), o.pace)
        if o.early_k and m == 14: dm += dma_pref(o, 'K', 3, a, idx(15, 5, 0), o.pace)
        if o.early_k and m == 15: dm += dma_pref(o, 'V', 2, a) + dma_pref(o, 'V', 3, a)
        if m == 15 and not o.apf and not o.early_k:
            for s in (2, 3):
                dm += [F('s', txt(f"s_add_u32 m0, s{S_KV}, {KRING + 16384 * s}"), a),
                       F('s', txt(f"s_add_u32 s34, s{S_K0}, {s * 8192}"), a),
                       F('s', txt(f"s_and_b32 s34, s34, 0x1ffff"), a)]
                for t in range(4):
                    dm.append(F('l', lambda e, t=t, s=s: e.vm_op(f"buffer_load_dwordx4 v{V_OK + t}, s[{SRD_K}:{SRD_K+3}], s34 offen offset:{t * 1024} {o.kv_flag} lds", f"K{s}"), a))
    if o.q_nods: rd = []
    zip2(e, mains, [rd, dm], lgap=o.q_lgap, lfirst=o.q_lfirst, urgency=o.q_urg)

def qconvert(e):
    e("s_nop 7")
    for r in range(V_ACC, V_ACC + 160, 2):
        e(f"v_pk_mul_f32 v[{r}:{r+1}], v[{r}:{r+1}], s[{S_SC}:{S_SC+1}] op_sel_hi:[1,0]")
    for j in range(4):
        for qt in range(5):
            for tp in range(2):
                a0 = acc(2 * j + tp, qt); d = qf(j, qt) + 2 * tp
                e(f"v_cvt_pk_bf16_f32 v{d}, v{a0}, v{a0+1}")
                e(f"v_cvt_pk_bf16_f32 v{d+1}, v{a0+2}, v{a0+3}")

def dma_kv(o, which, after0, i):
    fl = []
    P = o.kv_pace
    after = after0
    def off(run, tmp):
        return [F('s', txt(f"s_and_b32 s{tmp}, s{run}, 0x1ffff"), after0),
                F('s', txt(f"s_cmp_lt_u32 s{run}, s{S_KEND}"), after0),
                F('s', txt(f"s_cselect_b32 s{tmp}, s{tmp}, 0x20000"), after0),
                F('s', txt(f"s_add_u32 s{run}, s{run}, 8192"), after0)]
    if 'K' in which:
        fl.append(F('s', txt(f"s_mov_b32 m0, s{S_KDST}"), after))
        if o.krot: fl += off(S_KOFF, S_T0)
        fl.append(F('s', txt(f"s_add_u32 s{S_KDST}, s{S_KDST}, 16384"), after))
        ko = S_T0 if o.krot else S_KOFF
        for t in range(4):
            fl.append(F('l', lambda e, t=t: e.vm_op(f"buffer_load_dwordx4 v{V_OK + t}, s[{SRD_K}:{SRD_K+3}], s{ko} offen offset:{t * 1024} {o.kv_flag} lds", f"K{i+o.dK}"), after))
            after += P
        fl.append(F('s', txt(f"s_and_b32 s{S_KDST}, s{S_KDST}, 0xffff"), after0))
        if not o.krot: fl.append(F('s', txt(f"s_add_u32 s{S_KOFF}, s{S_KOFF}, 8192"), after0))
    if 'V' in which:
        fl.append(F('s', txt(f"s_add_u32 m0, s{S_VDST}, {VRING}"), after0))
        if o.krot: fl += off(S_VOFF, 34)
        fl.append(F('s', txt(f"s_add_u32 s{S_VDST}, s{S_VDST}, 16384"), after0))
        vo_ = 34 if o.krot else S_VOFF
        for t in range(4):
            fl.append(F('l', lambda e, t=t: e.vm_op(f"buffer_load_dwordx4 v{V_OV + (t & 1)}, s[{SRD_V}:{SRD_V+3}], s{vo_} offen offset:{t * 1024} {o.kv_flag} lds", f"V{i+o.dV}"), after))
            after += P
        fl.append(F('s', txt(f"s_and_b32 s{S_VDST}, s{S_VDST}, 0xffff"), after0))
        if not o.krot: fl.append(F('s', txt(f"s_add_u32 s{S_VOFF}, s{S_VOFF}, 8192"), after0))
    if o.v_first and which == 'KV':
        n = next(k for k, f in enumerate(fl) if k and f.kind == 's' and 'V' in which and fl[k - 1].kind == 's' and False) if False else None
        cut = 2 + 4 + 2 if not o.krot else 2 + 4 + 4 + 1
        kpart, vpart = fl[:cut], fl[cut:]
        a_ = after0
        out = []
        for part in (vpart, kpart):
            for f in part:
                f.after = a_ if f.kind == 'l' else after0
                if f.kind == 'l': a_ += P
                out.append(f)
        fl = out
    return fl

def kfrag(par_slot, kt, j, n, after=-1, before=10**9):
    return [F('d', lambda e: e.ds_op(f"ds_read_b128 a[{fbuf(n)}:{fbuf(n)+3}], v{V_AK + j} offset:{kt * 4096 + 16384 * par_slot}", f"F{n}"), after, before)]
def vfrag(par_slot, dt, n, after=-1, before=10**9):
    return [F('d', lambda e, h=h: e.ds_op(f"ds_read_b64_tr_b16 a[{fbuf(n) + 2*h}:{fbuf(n) + 2*h + 1}], v{V_AV + dt} offset:{h * 4096 + 16384 * par_slot}", f"F{n}"), after, before) for h in range(2)]

def softmax_fill(par):
    seq = []
    for qt in range(5):
        for kt in range(2):
            s = sreg(par, kt, qt); p = preg(par, qt) + 2 * kt
            seq += [("e", s), ("e", s + 1), ("c", p, s, s + 1), ("e", s + 2), ("e", s + 3), ("c", p + 1, s + 2, s + 3)]
    out = []; pend = None
    for x in seq:
        if x[0] == "c": pend = x
        else:
            out.append(x)
            if pend is not None: out.append(pend); pend = None
    if pend is not None: out.append(("n",)); out.append(pend)
    fl = []
    for x in out:
        if x[0] == "e": fl.append(F('e', txt(f"v_exp_f32 v{x[1]}, v{x[1]}")))
        elif x[0] == "c": fl.append(F('v', txt(f"v_cvt_pk_bf16_f32 v{x[1]}, v{x[2]}, v{x[3]}")))
        else: fl.append(F('s', txt("s_nop 0")))
    return fl

def attn_iter(e, o, i, qk, sm, pv, vwait, dma, pre_next, epi=None, first_pv=False, extra_dm=None):
    par = i & 1; ks = (i + 1) & 1
    mains = []; rd = []; dm = []
    gstart = {}
    if qk:
        for kt in range(2):
            for j in range(4):
                n = kt * 4 + j
                gstart[n] = len(mains)
                for qt in range(5):
                    d = sreg(par ^ 1, kt, qt)
                    cin = vr(V_BIAS + 4 * qt, 4) if j == 0 else vr(d, 4)
                    mains.append(Main(f"{MFMA} {vr(d, 4)}, {ar(fbuf(n), 4)}, {vr(qf(j, qt), 4)}, {cin}", [f"F{n}"] if qt == 0 else []))
    if pv:
        gstart['l'] = len(mains)
        for qt in range(5):
            mains.append(Main(f"{MFMA} {ar(A_L + 4 * qt, 4)}, {ar(A_ONE, 4)}, {vr(preg(par ^ 1, qt), 4)}, {'0' if first_pv else ar(A_L + 4 * qt, 4)}"))
        for dt in range(8):
            n = 8 + dt
            gstart[n] = len(mains)
            for qt in range(5):
                mains.append(Main(f"{MFMA} {ar(oacc(dt, qt), 4)}, {ar(fbuf(n), 4)}, {vr(preg(par ^ 1, qt), 4)}, {'0' if first_pv else ar(oacc(dt, qt), 4)}", [f"F{n}"] if qt == 0 else []))
    order = [n for n in range(16) if n in gstart]
    ln = len(order)
    for k, n in enumerate(order):
        if qk and n < 3: continue
        after = gstart[order[k - 4]] if k >= 4 else -1
        if k >= ln - 3 and ln >= 6: after = gstart[order[ln - 6]]
        before = gstart[order[k - 1]] if k >= 1 else 0
        if k >= ln - 3 and ln >= 4: before = min(before, gstart[order[ln - 3]])
        rd += kfrag(ks, n >> 2, n & 3, n, after, before) if n < 8 else vfrag(ks, n - 8, n, after, before)
    has_bar = pre_next or vwait is not None
    if has_bar:
        bpos = gstart[order[-2]]
        def bar(e):
            e.ds_all()
            if vwait == 0:
                if 'OLD' in e.vm: e.need_vm('OLD')
                else: e.vm_all()
            elif vwait is not None: e.need_vm([f"K{i+2}", f"V{i}"])
            e("s_barrier")
        mains[bpos].pre = bar
        if par == 0 and qk:
            for j in range(4): rd.append(F('v', txt(f"v_xor_b32 v{V_AK + j}, 0x8000, v{V_AK + j}"), bpos))
        if pre_next:
            for n in range(3): rd += kfrag(ks ^ 1, 0, n, n, bpos, len(mains) - 1)
        if par == 0 and pv:
            for dt in range(8): rd.append(F('v', txt(f"v_xor_b32 v{V_AV + dt}, {hex(VTOG)}, v{V_AV + dt}"), bpos))
    dm += dma_kv(o, dma, -1, i)
    if extra_dm: dm += extra_dm
    sf = softmax_fill(par) if sm else []
    qs = [rd, dm, sf]
    if epi: qs.append(epi(gstart))
    zip2(e, mains, qs, flush_nop=bool(epi))

def epilogue_fill(o):
    def build(gstart):
        fl = []
        RL = V_E
        W = V_E + 6
        l0 = gstart['l']
        for qt in range(5):
            fl.append(F('v', txt(f"v_accvgpr_read_b32 v{RL + qt}, a{A_L + 4 * qt}"), l0 + 5 + 8))
        for qt in range(5):
            fl.append(F('e', txt(f"v_rcp_f32 v{RL + qt}, v{RL + qt}"), l0 + 5 + 8))
        k = 0
        for jj in range(4):
            ready = gstart[8 + 2 * jj + 1] + 5 + 4
            for qt in range(5):
                w = W + 12 * (k & 1); k += 1
                for tp in range(2):
                    for i in range(4):
                        fl.append(F('v', txt(f"v_accvgpr_read_b32 v{w + 4*tp + i}, a{oacc(2*jj + tp, qt) + i}"), ready))
                for r in range(8):
                    fl.append(F('v', txt(f"v_mul_f32 v{w + r}, v{w + r}, v{RL + qt}"), ready))
                for r in range(4):
                    fl.append(F('v', txt(f"v_cvt_pk_bf16_f32 v{w + 8 + r}, v{w + 2*r}, v{w + 2*r + 1}"), ready))
                off = (jj * 5 + qt) * 1024
                fl.append(F('s', txt(f"s_mov_b32 s{S_T0}, {off}"), ready))
                fl.append(F('l', lambda e, w=w: e.vm_op(f"buffer_store_dwordx4 v[{w+8}:{w+11}], v{V_E + 5}, s[{SRD_O}:{SRD_O+3}], s{S_T0} offen {o.o_flag}", "st"), ready))
        return fl
    return build

WO_A = [131072, 147456, 98304, 81920, 114688]
WO_B = [0, 16384, 32768, 49152, 65536]
def wo_slot(si): return WO_A[si] if si < 5 else WO_B[si - 5] if si < 10 else WO_A[si - 10] if si < 15 else WO_B[0]
VOTE_LDS = 16384
V_AWS = 160

def t3_setup(e, o):
    L = V_E + 5
    t0, t1, t2, t3_ = V_E, V_E + 1, V_E + 2, V_E + 3
    e(f"""
    v_lshrrev_b32 v{t0}, 4, v{L}             ; lane
    v_lshrrev_b32 v{t1}, 4, v{t0}            ; g
    v_and_b32 v{t2}, 7, v{t0}
    v_lshlrev_b32 v{t3_}, 1, v{t1}
    v_xor_b32 v{t2}, v{t2}, v{t3_}
    v_lshlrev_b32 v{t2}, 4, v{t2}
    v_lshrrev_b32 v{t3_}, 3, v{t0}
    v_lshl_add_u32 v{V_OW}, v{t3_}, 10, v{t2}
    v_add_u32 v{V_OW+1}, {7168}, v{V_OW}
    v_add_u32 v{V_OW+2}, {2*7168}, v{V_OW}
    v_add_u32 v{V_OW+3}, {3*7168}, v{V_OW}
    v_bfe_u32 v{t2}, v{t0}, 2, 2             ; r'
    v_lshl_add_u32 v{t2}, v{t1}, 2, v{t2}    ; 4g + r'
    v_lshrrev_b32 v{t3_}, 1, v{t2}
    v_and_b32 v{t3_}, 3, v{t3_}
    v_lshlrev_b32 v{t2}, 7, v{t2}
    v_lshl_add_u32 v{t2}, v{t3_}, 5, v{t2}
    v_and_b32 v{t3_}, 3, v{t0}               ; c'
    v_lshl_add_u32 v{t2}, v{t3_}, 3, v{t2}
    s_lshl_b32 s3, s{S_HH}, 13
    v_add_u32 v{V_AW2}, s3, v{t2}
    v_xor_b32 v{V_AW2+1}, 32, v{V_AW2}
    v_xor_b32 v{V_AW2+2}, 64, v{V_AW2}
    v_xor_b32 v{V_AW2+3}, 0x60, v{V_AW2}
    s_mul_i32 s3, s{S_W}, 20480
    v_add_u32 v{V_XA}, s3, v{L}
    s_mov_b32 s{S_WL}, s{S_KV}
    s_lshl_b32 s3, s{S_RH}, 15
    s_lshl_b32 s7, s{S_HH}, 9
    s_add_u32 s3, s3, s7
    s_lshl_b32 s7, s{S_HH}, 17
    s_add_u32 s{S_WA}, s3, s7
    s_xor_b32 s7, s7, 0x20000
    s_add_u32 s{S_WB}, s3, s7
    s_cmp_eq_u32 s{S_BR}, 0
    s_cselect_b32 s60, s98, s100
    s_cselect_b32 s61, s99, s101
    s_sub_u32 s3, s{S_H}, s{S_HH}
    s_lshl_b32 s3, s3, 17                    ; * 128 rows * 1024
    s_add_u32 s{SRD_WO}, s60, s3
    s_addc_u32 s{SRD_WO+1}, s61, 0
    s_mov_b32 s{SRD_WO+2}, 262144
    s_mov_b32 s{SRD_WO+3}, 0x20000
    s_lshl_b32 s3, s{S_BR}, 3
    s_add_u32 s3, s3, s{S_B}
    s_lshl_b32 s3, s3, 4
    s_lshr_b32 s7, s{S_H}, 1
    s_add_u32 s3, s3, s7
    s_lshl_b32 s3, s3, 2
    s_lshl_b32 s7, s{S_RH}, 1
    s_add_u32 s3, s3, s7
    s_add_u32 s3, s3, s{S_HH}
    s_mul_i32 s3, s3, 40960
    s_add_u32 s3, s3, {POFF}
    s_add_u32 s{SRD_P}, s68, s3
    s_addc_u32 s{SRD_P+1}, s69, 0
    s_mov_b32 s{SRD_P+2}, 40960
    s_mov_b32 s{SRD_P+3}, 0x20000
    s_lshl_b32 s3, s{S_HG}, 20
    s_add_u32 s56, s60, s3
    s_addc_u32 s57, s61, 0
    s_mov_b32 s58, 0x100000
    s_mov_b32 s59, 0x20000
    s_lshl_b32 s3, s{S_IDX}, 2
    s_add_u32 s3, s3, s{S_W}
    s_lshl_b32 s3, s3, 13
    v_lshlrev_b32 v{t0}, 3, v{L}             ; lane*128
    v_add_u32 v{t0}, s3, v{t0}
    """)

def dma_wo(o, p, kq, after=-1, before=10**9, pace=0, mark=None):
    src = S_WA if kq < 2 else S_WB
    fl = [F('s', txt(f"s_add_u32 m0, s{S_WL}, {wo_slot(4 * p + kq)}"), after, before),
          F('s', txt(f"s_add_u32 s{S_T1}, s{src}, {(kq & 1) * 65536 + 128 * p}"), after, before)]
    for t in range(4):
        fl.append(F('l', lambda e, t=t: e.vm_op(f"buffer_load_dwordx4 v{V_OW+t}, s[{SRD_WO}:{SRD_WO+3}], s{S_T1} offen offset:{t*1024} {o.w_flag} lds", f"W{p}_{kq}"), after + pace * t, before, mark=(mark if t == 3 else None)))
    return fl

def t3_tail(e, o):
    i = 16; par = 0; ks = 1
    mains = []; rd = []; dm = []; cv = []; st = []; xw = []; xr = []
    gstart = {}
    gstart['l'] = 0
    for qt in range(5):
        mains.append(Main(f"{MFMA} {ar(A_L + 4 * qt, 4)}, {ar(A_ONE, 4)}, {vr(preg(1, qt), 4)}, {ar(A_L + 4 * qt, 4)}"))
    for dt in range(8):
        n = 8 + dt
        gstart[n] = len(mains)
        for qt in range(5):
            mains.append(Main(f"{MFMA} {ar(oacc(dt, qt), 4)}, {ar(fbuf(n), 4)}, {vr(preg(1, qt), 4)}, {ar(oacc(dt, qt), 4)}", [f"F{n}"] if qt == 0 else []))
    for k in range(8):
        n = 8 + k
        after = gstart[8 + k - 4] if k >= 4 else -1
        before = gstart[8 + k - 1] if k >= 1 else 0
        rd += vfrag(ks, k, n, after, before)
    NPV = len(mains)
    def a2(p, nt, qt):
        if (p & 1) == 0 and nt >= 2 and o.acc_hi: return 216 + ((nt - 2) * 5 + qt) * 4
        return A_ACC2[p & 1] + (nt * 5 + qt) * 4
    def bfr(kk, qt): return (kk * 5 + qt) * 4
    S0 = {}
    nfrag = 16
    for p in range(4):
        for kq in range(4):
            S0[(p, kq)] = len(mains)
            for ks2 in range(2):
                kk = 2 * kq + ks2
                for nt in range(4):
                    n = nfrag; nfrag += 1
                    g0 = len(mains)
                    for qt in range(5):
                        cin = "0" if (kq == 0 and ks2 == 0) else ar(a2(p, nt, qt), 4)
                        needs = [f"G{n}"] if qt == 0 else []
                        if p == 0 and kk >= 4 and nt == 0: needs = needs + [f"X{kk}_{qt}"]
                        mains.append(Main(f"{MFMA} {ar(a2(p, nt, qt), 4)}, {ar(fbuf(n), 4)}, {vr(bfr(kk, qt), 4)}, {cin}", needs))
                    gstart[('g', p, kq, ks2, nt)] = (g0, n)
    N = len(mains)
    stages = [(p, kq) for p in range(4) for kq in range(4)]
    def gidx(p, kq, j): return gstart[('g', p, kq, j >> 2, j & 3)]
    BAR = {}
    for si, (p, kq) in enumerate(stages):
        BAR[si] = gidx(p, kq, 5)[0]
    def wfrag(p, kq, j, after, before):
        g0, n = gidx(p, kq, j)
        return [F('d', lambda e, h=h, n=n: e.ds_op(f"ds_read_b64_tr_b16 a[{fbuf(n) + 2*h}:{fbuf(n) + 2*h + 1}], v{V_AWS + 4 * (wo_slot(4 * p + kq) >> 16) + (j & 3)} offset:{(wo_slot(4 * p + kq) & 0xffff) + (j >> 2) * 4096 + h * 2048}", f"G{n}"), after, before) for h in range(2)]
    pv_bar = gstart[8 + 6]
    def bar_first(e):
        e.ds_all()
        e.need_vm("W0_0")
        e("s_barrier")
    mains[pv_bar].pre = bar_first
    rd_pv_last = [f for f in rd]
    for f in rd:
        f.before = min(f.before, pv_bar - 3)
    for si, (p, kq) in enumerate(stages):
        prevbar = pv_bar if si == 0 else BAR[si - 1]
        for j in range(8):
            g0 = gidx(p, kq, j)[0]
            if j < 3:
                after = prevbar; before = S0[(p, kq)] - 1 if j == 0 else gidx(p, kq, j - 1)[0]
                if si == 0 and j == 0: before = NPV - 1
            elif j < 6:
                after = gidx(p, kq, j - 3)[0]; before = gidx(p, kq, j - 1)[0]
            else:
                after = gidx(p, kq, 2)[0] + 2; before = gidx(p, kq, 4)[0] + 3
            rd += wfrag(p, kq, j, after, before)
        def bar(e, si=si):
            if si == o.c_k3_at and o.c_k3:
                n_ = CODE_NAME[0]
                e("s_getpc_b64 s[60:61]")
                e.label(f"L_pck_{n_}")
                e(f"s_add_u32 s60, s60, reduce_kernel-L_pck_{n_}")
                e("s_addc_u32 s61, s61, 0")
                e(f"v_mbcnt_lo_u32_b32 v178, -1, 0")
                e(f"v_mbcnt_hi_u32_b32 v178, -1, v178")
                e(f"v_lshlrev_b32 v178, 7, v178")
                e(f"v_min_u32 v178, K3_END-reduce_kernel-4, v178")
                e.vm_op(f"global_load_dword v179, v178, s[60:61]", "k3t")
            if o.stamp_list or si in ((0, 3, 7, 15) if o.fuse else (0, 3, 7, 11, 15)): stamp(e, o, f"T{si}")
            if o.few_bar and si not in (0, 1, 2, 3, 4, 5, 10):
                return
            e.ds_all()
            cover = [si + 1]
            if o.few_bar and si == 5: cover = list(range(6, 12))
            if o.few_bar and si == 10: cover = list(range(11, 16))
            e.need_vm([f"W{stages[x][0]}_{stages[x][1]}" for x in cover if x < 16])
            e("s_barrier")
        mains[BAR[si]].pre = bar
    if o.wo_early: pre = dma_wo(o, 0, 2, -1, 24, 3)
    else: pre = dma_wo(o, 0, 0, -1, 3) + dma_wo(o, 0, 1, -1, 10) + dma_wo(o, 0, 2, -1, 18) + dma_wo(o, 0, 3, -1, 26)
    def st_(si): return stages[si]
    P = o.w_pace
    dm = pre + dma_wo(o, *st_(4), pv_bar, BAR[0], P)
    dm += dma_wo(o, *st_(10), BAR[0], BAR[1], P)
    dm += dma_wo(o, *st_(11), BAR[1], BAR[2], P)
    t = BAR[2]
    for si in (5, 6, 7, 8, 9):
        dl = BAR[si - 2] if si > 5 else BAR[3]
        if o.few_bar: dl = min(dl, BAR[5] - 8)
        dm += dma_wo(o, *st_(si), t, dl, P); t += 4 * P
    dm += dma_wo(o, *st_(12), t, BAR[8] if not o.st_late else BAR[5] - 6, P); t += 4 * P
    dm += dma_wo(o, *st_(13), max(t, BAR[3]), BAR[9] if not o.st_late else BAR[5] - 4, P); t += 4 * P
    dm += dma_wo(o, *st_(14), max(t, BAR[4]), (BAR[10] - (8 if o.few_bar else 0)) if not o.st_late else BAR[5] + 4, P); t += 4 * P
    dm += dma_wo(o, *st_(15), max(t, BAR[5]), (BAR[11] if not o.few_bar else BAR[10] - 4) if not o.st_late else BAR[5] + 14, P, mark="lastW")
    if o.t3_nodma: dm = pre
    RL = V_E; W = V_E + 6
    l0 = 0
    for qt in range(5): cv.append(F('v', txt(f"v_accvgpr_read_b32 v{RL + qt}, a{A_L + 4 * qt}"), l0 + 5 + 6))
    for qt in range(5): cv.append(F('e', txt(f"v_rcp_f32 v{RL + qt}, v{RL + qt}"), l0 + 5 + 6))
    k = 0
    for jj in range(4):
        ready = gstart[8 + 2 * jj + 1] + 5 + 4
        need = gidx(0, jj >> 1, (jj & 1) * 4)[0]
        if jj == 1 and not o.acc_hi: need = gidx(0, 0, 2)[0]
        for qt in range(5):
            w = W + 8 * (k & 1); k += 1
            dl = need + qt - 2 if need + qt - 2 > ready else need
            for tp in range(2):
                for i_ in range(4):
                    cv.append(F('v', txt(f"v_accvgpr_read_b32 v{w + 4*tp + i_}, a{oacc(2*jj + tp, qt) + i_}"), ready, need - 2))
            for r in range(8):
                cv.append(F('v', txt(f"v_mul_f32 v{w + r}, v{w + r}, v{RL + qt}"), ready, need - 2))
            d = bfr(jj, qt)
            for r in range(4):
                cv.append(F('v', txt(f"v_cvt_pk_bf16_f32 v{d + r}, v{w + 2*r}, v{w + 2*r + 1}"), ready, need - 2, mark=(f"of{jj}_{qt}" if r == 3 else None)))
            xw.append(F('d', lambda e, d=d, jj=jj, qt=qt: e.ds_op(f"ds_write_b128 v{V_XA}, v[{d}:{d+3}] offset:{(jj * 5 + qt) * 1024}", "XW"), ready, BAR[1] - 2, dep=f"of{jj}_{qt}"))
    xbar = BAR[1]
    xw.append(F('v', txt(f"v_add_u32 v{V_XA}, s55, v{V_XA}"), xbar, xbar + 2))
    for jj in range(4):
        for qt in range(5):
            d = bfr(4 + jj, qt)
            xw.append(F('d', lambda e, d=d, jj=jj, qt=qt: e.ds_op(f"ds_read_b128 v[{d}:{d+3}], v{V_XA} offset:{(jj * 5 + qt) * 1024}", f"X{4+jj}_{qt}"), xbar + 1, S0[(0, 2)] - 6 if jj < 2 else BAR[2] - 4))
    gd = []
    for qt in range(5):
        a_, b_ = S0[(0, 2)], S0[(1, 0)] - 2
        gd.append(F('v', txt(f"v_med3_f32 v224, v{RL + qt}, s66, v225"), a_, b_))
        gd.append(F('v', txt(f"v_cmp_neq_f32 s[62:63], v224, v{RL + qt}"), a_, b_))
        gd.append(F('s', txt("s_nop 1"), a_, b_))
        gd.append(F('s', txt(f"s_or_b64 s[{S_BAD}:{S_BAD+1}], s[{S_BAD}:{S_BAD+1}], s[62:63]"), a_, b_))
    W2 = V_E + 6
    k = 0
    for p in range(4):
        start = S0[(p + 1, 0)] + 6 if p < 3 else N
        end = S0[(p + 1, 3)] if p < 2 else 10**9
        if o.st_late and p == 0: start = BAR[5] + 2; end = S0[(2, 0)] - 8
        if o.st_late and p == 1: start = max(start, S0[(2, 0)] + 6); end = S0[(3, 0)] - 8
        if p == 2: end = N - 10
        for u in range(2):
            if p == 3 and u == 0 and o.last_early: start = gidx(3, 3, 5)[0] + 5 + 3
            if p == 3 and u == 1: start = N
            for qt in range(5):
                w = W2 + 12 * (k & 1); k += 1
                for tp in range(2):
                    for i_ in range(4):
                        st.append(F('v', txt(f"v_accvgpr_read_b32 v{w + 4*tp + i_}, a{a2(p, 2*u + tp, qt) + i_}"), start, end))
                for r in range(4):
                    st.append(F('v', txt(f"v_cvt_pk_bf16_f32 v{w + 8 + r}, v{w + 2*r}, v{w + 2*r + 1}"), start, end))
                off = (p * 10 + u * 5 + qt) * 1024
                st.append(F('s', txt(f"s_mov_b32 s{S_T0}, {off}"), start, end))
                if not o.t3_nostore: st.append(F('l', lambda e, w=w: e.vm_op(f"buffer_store_dwordx4 v[{w+8}:{w+11}], v{V_E + 5}, s[{SRD_P}:{SRD_P+3}], s{S_T0} offen {o.p_flag}", "st"), start, end,
                                                    dep=("lastW" if (o.st_late and p == 0 and u == 0 and qt == 0) else None)))
    e(f"s_mov_b64 s[{S_BAD}:{S_BAD+1}], 0")
    e(f"s_mov_b32 s66, {hex(R_LO)}")
    e(f"v_mov_b32 v225, {hex(R_HI)}")
    for k_ in range(3):
        for j in range(4):
            e(f"v_add_u32 v{V_AWS + 4 * k_ + j}, {65536 * k_}, v{V_AW2 + j}")
    e(f"s_lshl_b32 s{S_T0}, s{S_HH}, 1")
    e(f"s_sub_u32 s{S_T0}, 1, s{S_T0}")
    e(f"s_mul_i32 s{S_T0}, s{S_T0}, 40960")
    e(f"s_mov_b32 s55, s{S_T0}")
    for f in cv:
        pass
    zip2(e, mains, [rd, dm, cv, xw, gd, st], flush_nop=True, dense=2 if o.vmax > 1 else None, vmax=o.vmax, lgap=o.t_lgap)

def max_pass(e, o, name):
    M = 120; L16 = V_E + 5; T = 126
    e.label(f"L_maxpass_{name}")
    e("s_waitcnt vmcnt(0) lgkmcnt(0)")
    for qt in range(5): e(f"v_mov_b32 v{M + qt}, 0xff800000")
    e(f"s_mov_b32 s{S_CNT}, 0")
    e(f"s_lshl_b32 s{S_T1}, s{S_RH}, 12")
    e.label(f"L_maxloop_{name}")
    e("s_barrier")
    e(f"s_mov_b32 m0, s{S_KV}")
    e("s_nop 0")
    for t in range(4):
        e(f"buffer_load_dwordx4 v{V_OK + t}, s[{SRD_K}:{SRD_K+3}], s{S_T1} offen offset:{t * 1024} lds")
    e("s_waitcnt vmcnt(0)")
    e("s_barrier")
    for n in range(8):
        e(f"ds_read_b128 a[{fbuf(n)}:{fbuf(n)+3}], v{V_AK + (n & 3)} offset:{(n >> 2) * 4096}")
    e("s_waitcnt lgkmcnt(0)")
    for kt in range(2):
        for j in range(4):
            for qt in range(5):
                d = sreg(0, kt, qt)
                e(f"{MFMA} {vr(d, 4)}, {ar(fbuf(kt * 4 + j), 4)}, {vr(qf(j, qt), 4)}, {'0' if j == 0 else vr(d, 4)}")
    e("s_nop 7")
    e("s_nop 3")
    for qt in range(5):
        for kt in range(2):
            d = sreg(0, kt, qt)
            e(f"v_max3_f32 v{M + qt}, v{d}, v{d+1}, v{M + qt}")
            e(f"v_max3_f32 v{M + qt}, v{d+2}, v{d+3}, v{M + qt}")
    e(f"s_add_u32 s{S_T1}, s{S_T1}, 8192")
    e(f"s_add_u32 s{S_CNT}, s{S_CNT}, 1")
    e(f"s_cmp_lt_u32 s{S_CNT}, 16")
    e(f"s_cbranch_scc1 L_maxloop_{name}")
    e("s_barrier")
    e(f"s_and_b32 s{S_T1}, s{S_K0}, 0x1ffff")
    e(f"s_mov_b32 m0, s{S_KV}")
    e("s_nop 0")
    for t in range(4):
        e(f"buffer_load_dwordx4 v{V_OK + t}, s[{SRD_K}:{SRD_K+3}], s{S_T1} offen offset:{t * 1024} lds")
    e(f"v_lshrrev_b32 v{T}, 2, v{L16}")
    e(f"v_xor_b32 v{T+1}, 64, v{T}")
    e(f"v_xor_b32 v{T+2}, 0x80, v{T}")
    for x in (1, 2):
        for qt in range(5): e(f"ds_bpermute_b32 v{T + 3 + qt}, v{T + x}, v{M + qt}")
        e("s_waitcnt lgkmcnt(0)")
        for qt in range(5): e(f"v_max_f32 v{M + qt}, v{M + qt}, v{T + 3 + qt}")
    for qt in range(5):
        for r in range(4): e(f"v_sub_f32 v{V_BIAS + 4 * qt + r}, 0, v{M + qt}")
    e("s_waitcnt vmcnt(0)")
    e("s_barrier")
    for n in range(3): run(e, kfrag(0, 0, n, n))
    e(f"s_branch L_maxdone_{name}")

def vote(e, o, name):
    T = V_E
    e(f"s_cmp_lg_u64 s[{S_BAD}:{S_BAD+1}], 0")
    e(f"s_cselect_b32 s3, 1, 0")
    e(f"v_mov_b32 v{T}, s3")
    e(f"s_lshl_b32 s7, s{S_W}, 2")
    e(f"s_add_u32 s7, s7, {VOTE_LDS}")
    e(f"v_mov_b32 v{T+1}, s7")
    e(f"ds_write_b32 v{T+1}, v{T}")
    if o.fuse:
        e("s_load_dwordx4 s[56:59], s[0:1], 80")
        e("s_waitcnt vmcnt(0) lgkmcnt(0)")
    else:
        e("s_waitcnt lgkmcnt(0)")
    e("s_barrier")
    e(f"v_mov_b32 v{T+1}, {VOTE_LDS}")
    e(f"ds_read_b128 v[{T+2}:{T+5}], v{T+1}")
    e("s_waitcnt lgkmcnt(0)")
    e(f"v_or_b32 v{T+2}, v{T+2}, v{T+3}")
    e(f"v_or3_b32 v{T+2}, v{T+2}, v{T+4}, v{T+5}")
    e("s_nop 0")
    e(f"v_readfirstlane_b32 s3, v{T+2}")
    e(f"s_cmp_eq_u32 s{S_MODE}, 0")
    e(f"s_cselect_b32 s3, s3, 0")
    e(f"s_cmp_eq_u32 s3, 0")
    e(f"s_cbranch_scc1 L_fine_{name}")
    e(f"s_mov_b32 s{S_MODE}, 1")
    e("s_waitcnt vmcnt(0)")
    e("s_barrier")
    e("v_mbcnt_lo_u32_b32 v0, -1, 0")
    e("v_mbcnt_hi_u32_b32 v0, -1, v0")
    e(f"s_lshl_b32 s3, s{S_W}, 6")
    e("v_add_u32 v0, s3, v0")
    e(f"s_branch L_restart_{name}")
    e.label(f"L_fine_{name}")

def fused_reduce(e, o, name):
    G, R, J = 60, 61, 62
    e(f"""
    s_lshl_b32 s{G}, s{S_BR}, 3
    s_add_u32 s{G}, s{G}, s{S_B}             ; group
    s_lshr_b32 s{R}, s{S_H}, 1
    v_mbcnt_lo_u32_b32 v248, -1, 0
    v_mbcnt_hi_u32_b32 v248, -1, v248        ; lane
    s_cmp_eq_u32 s{S_W}, {99 if o.nosync else 0}
    s_cbranch_scc0 L_arrived_{name}
    s_lshl_b32 s3, s{G}, {12 if o.cnt_ws else 4}
    {f"s_add_u32 s3, s3, {220*1024*1024}" if o.cnt_ws else ""}
    {"s_mov_b32 s58, s68" if o.cnt_ws else ""}
    {"s_mov_b32 s59, s69" if o.cnt_ws else ""}
    v_mov_b32 v249, s3
    v_mov_b32 v250, 1
    s_mov_b64 s[64:65], exec
    s_mov_b64 exec, 1
    global_atomic_add v249, v250, s[58:59]
    s_mov_b32 s7, 0
L_poll_{name}:
    global_load_dword v251, v249, s[58:59] sc1
    s_waitcnt vmcnt(0)
    v_readfirstlane_b32 s3, v251
    s_add_u32 s7, s7, 1
    s_cmp_ge_u32 s3, 16
    s_cbranch_scc1 L_polled_{name}
    s_sleep {o.spin_sleep}
    s_cmp_lt_u32 s7, 0x40000
    s_cbranch_scc1 L_poll_{name}
L_polled_{name}:
    s_mov_b64 exec, s[64:65]
L_arrived_{name}:
    s_barrier
    """)
    stamp(e, o, "polled")
    e(f"""
    v_lshlrev_b32 v249, 4, v248              ; lane*16
    s_mul_i32 s3, s{G}, {16 * 163840}
    s_add_u32 s3, s3, {POFF}
    s_add_u32 s8, s68, s3
    s_addc_u32 s9, s69, 0
    s_mov_b32 s10, {16 * 163840}
    s_mov_b32 s11, 0x20000
    s_mul_i32 s{J}, s{R}, 10
    s_add_u32 s{J}, s{J}, s{S_W}
    s_mov_b32 s12, s56
    s_mov_b32 s13, s57
    s_mov_b32 s14, 2621440
    s_mov_b32 s15, 0x20000
    v_and_b32 v250, 15, v248
    v_lshrrev_b32 v251, 4, v248
    v_lshlrev_b32 v250, 11, v250
    v_lshl_add_u32 v250, v251, 3, v250       ; c*2048 + g*8
    """)
    def load1(k, hp):
        r = 64 * k + 4 * hp
        if hp == 0:
            e(f"s_add_u32 s3, s{J}, {4 * k}")
            e(f"s_lshl_b32 s3, s3, 10")
        e.vm_op(f"buffer_load_dwordx4 v[{r}:{r+3}], v249, s[8:11], s3 offen {o.r_flag}", f"R{k}_{hp}")
        if hp < 15: e("s_add_u32 s3, s3, 163840")
    def outaddr(k, dst):
        e(f"""
    s_add_u32 s16, s{J}, {4 * k}
    s_mul_hi_u32 s17, s16, 0x1999999a
    s_mul_i32 s18, s17, 10
    s_sub_u32 s18, s16, s18
    s_cmp_ge_u32 s18, 5
    s_cselect_b32 s19, 1, 0                  ; u
    s_mul_i32 s20, s19, 5
    s_sub_u32 s18, s18, s20                  ; qt
    s_and_b32 s20, s17, 3                    ; p
    s_bfe_u32 s21, s17, 0x10002              ; hh
    s_lshr_b32 s22, s17, 3                   ; rh
    s_mul_i32 s23, s{S_B}, 160
    s_mul_i32 s22, s22, 80
    s_add_u32 s23, s23, s22
    s_lshl_b32 s18, s18, 4
    s_add_u32 s23, s23, s18
    s_lshl_b32 s23, s23, 11
    s_lshl_b32 s22, s{S_BR}, 10
    s_add_u32 s23, s23, s22
    s_lshl_b32 s21, s21, 9
    s_add_u32 s23, s23, s21
    s_lshl_b32 s20, s20, 7
    s_add_u32 s23, s23, s20
    s_lshl_b32 s19, s19, 6
    s_add_u32 s{dst}, s23, s19
    """)
    def run_pieces(np_):
        A = 224; T = 232
        order = [(k, hp) for k in range(np_) for hp in range(16)]
        D = o.r_depth
        e.vm = []; e.vm_waited = set()
        for x in order[:D]: load1(*x)
        for k in range(np_): outaddr(k, 24 + k)
        for n, (k, hp) in enumerate(order):
            e.need_vm(f"R{k}_{hp}")
            if n + D < len(order): load1(*order[n + D])
            for d in range(4):
                r = 64 * k + 4 * hp + d
                if hp == 0:
                    e(f"v_lshlrev_b32 v{A + 2*d}, 16, v{r}")
                    e(f"v_and_b32 v{A + 2*d + 1}, 0xffff0000, v{r}")
                else:
                    e(f"v_lshlrev_b32 v{T + 2*(d & 1)}, 16, v{r}")
                    e(f"v_and_b32 v{T + 2*(d & 1) + 1}, 0xffff0000, v{r}")
                    e(f"v_add_f32 v{A + 2*d}, v{A + 2*d}, v{T + 2*(d & 1)}")
                    e(f"v_add_f32 v{A + 2*d + 1}, v{A + 2*d + 1}, v{T + 2*(d & 1) + 1}")
            if hp == 15:
                o0 = 236 + 4 * (k & 1)
                for d in range(4): e(f"v_cvt_pk_bf16_f32 v{o0 + d}, v{A + 2*d}, v{A + 2*d + 1}")
                e.vm_op(f"buffer_store_dwordx2 v[{o0}:{o0+1}], v250, s[12:15], s{24 + k} offen", f"S{k}")
                e.vm_op(f"buffer_store_dwordx2 v[{o0+2}:{o0+3}], v250, s[12:15], s{24 + k} offen offset:32", f"S{k}")
    if o.r_loop:
        A = 224; T = 232
        e.label(f"L_rloop_{name}")
        e(f"s_lshl_b32 s3, s{J}, 10")
        for hp in range(16):
            e(f"buffer_load_dwordx4 v[{4*hp}:{4*hp+3}], v249, s[8:11], s3 offen {o.r_flag}")
            if hp < 15: e("s_add_u32 s3, s3, 163840")
        outaddr(0, 24)
        for hp in range(16):
            e(f"s_waitcnt vmcnt({15 - hp})")
            for d in range(4):
                r = 4 * hp + d
                if hp == 0:
                    e(f"v_lshlrev_b32 v{A + 2*d}, 16, v{r}")
                    e(f"v_and_b32 v{A + 2*d + 1}, 0xffff0000, v{r}")
                else:
                    e(f"v_lshlrev_b32 v{T + 2*(d & 1)}, 16, v{r}")
                    e(f"v_and_b32 v{T + 2*(d & 1) + 1}, 0xffff0000, v{r}")
                    e(f"v_add_f32 v{A + 2*d}, v{A + 2*d}, v{T + 2*(d & 1)}")
                    e(f"v_add_f32 v{A + 2*d + 1}, v{A + 2*d + 1}, v{T + 2*(d & 1) + 1}")
        for d in range(4): e(f"v_cvt_pk_bf16_f32 v{236 + d}, v{A + 2*d}, v{A + 2*d + 1}")
        e(f"buffer_store_dwordx2 v[236:237], v250, s[12:15], s24 offen")
        e(f"buffer_store_dwordx2 v[238:239], v250, s[12:15], s24 offen offset:32")
        e(f"s_add_u32 s{J}, s{J}, 4")
        e(f"s_mul_i32 s3, s{R}, 10")
        e(f"s_add_u32 s3, s3, 10")
        e(f"s_cmp_lt_u32 s{J}, s3")
        e(f"s_cbranch_scc1 L_rloop_{name}")
        return
    e(f"s_cmp_lt_u32 s{S_W}, 2")
    e(f"s_cbranch_scc0 L_two_{name}")
    run_pieces(3)
    e(f"s_branch L_reduced_{name}")
    e.label(f"L_two_{name}")
    run_pieces(2)
    e.label(f"L_reduced_{name}")

def gen_k1(name, o):
    NSTAMP[0] = 0
    CODE_NAME[0] = name
    e = Em()
    e.lines.append(kernel_head(name))
    prologue(e, o, name)
    qphase(e, o)
    stamp(e, o, "qdone")
    e(f"v_accvgpr_write_b32 a{A_SAVE}, v{V_OV0}")
    e(f"v_accvgpr_write_b32 a{A_SAVE+1}, v{V_OV0+1}")
    e(f"v_accvgpr_write_b32 a{A_SAVE+2}, v{V_T+1}")
    for n in range(3): run(e, kfrag(0, 0, n, n))
    qconvert(e)
    stamp(e, o, "qconv")
    firstV = 4 if (o.apf or o.early_k) else 2
    def which(i):
        return ('K' if i + o.dK >= 4 else '') + ('V' if i + o.dV >= firstV else '')
    e(f"""
    v_accvgpr_read_b32 v{V_OV}, a{A_SAVE}
    v_accvgpr_read_b32 v{V_OV+1}, a{A_SAVE+1}
    v_accvgpr_read_b32 v{V_E+5}, a{A_SAVE+2}
    s_mov_b32 s{S_KDST}, s{S_KV}             ; K(4) -> slot 0
    s_add_u32 s{S_VDST}, s{S_KV}, {((firstV + 2) & 3) * 16384}
    s_add_u32 s{S_KOFF}, s{S_K0}, {4 * 8192}
    s_add_u32 s{S_VOFF}, s{S_K0}, {firstV * 8192}
    v_lshlrev_b32 v{V_E+5}, 4, v{V_E+5}
    """)
    if o.t3 and not o.setup_late: t3_setup(e, o)
    for r in range(20): e(f"v_mov_b32 v{V_BIAS + r}, 0")
    e(f"s_cmp_eq_u32 s{S_MODE}, 0")
    e(f"s_cbranch_scc0 L_maxpass_{name}")
    e.label(f"L_maxdone_{name}")
    if o.pf_late:
        e("s_waitcnt vmcnt(0) lgkmcnt(0)"); e("s_barrier"); e.vm = []; e.ds = []
        for n in range(3): e.fresh[f"F{n}"] = 0
        for n in range(3): run(e, kfrag(0, 0, n, n))
    attn_iter(e, o, -1, True, False, False, 1, '', True)
    stamp(e, o, "Titm1")
    attn_iter(e, o, 0, True, True, False, 1, which(0), True)
    stamp(e, o, "Tit0")
    attn_iter(e, o, 1, True, True, True, 1, which(1), True, first_pv=True)
    stamp(e, o, "Tit1")
    attn_iter(e, o, 2, True, True, True, 1, which(2), True)
    assert which(3) == 'KV'
    stamp(e, o, "iter0_done")
    if o.t3 and o.setup_late: t3_setup(e, o)
    e(f"s_mov_b32 s{S_CNT}, 0")
    ds0 = list(e.ds)
    e.label(f"L_loop_{name}")
    def wtouch(e, tag):
        e(f"s_cmp_eq_u32 s{S_CNT}, {o.w_touch}")
        e(f"s_cbranch_scc0 L_nowt{tag}_{name}")
        e(f"buffer_load_dword v{V_E + 1}, v{V_E}, s[56:59], 0 offen")
        e.label(f"L_nowt{tag}_{name}")
    if o.t3 and o.w_touch >= 0 and o.w_touch_pos == 0:
        e(f"s_cmp_eq_u32 s{S_CNT}, {o.w_touch}")
        e(f"s_cbranch_scc0 L_nowt_{name}")
        e(f"buffer_load_dword v{V_E + 1}, v{V_E}, s[56:59], 0 offen")
        if o.c_touch >= 2:
            vq = list(e.vm); code_touch(e, V_E + 2, V_E + 3, 1); e.vm = vq
        e.label(f"L_nowt_{name}")
    n0 = len(e.lines)
    redirect = [F('s', txt(f"s_cmp_eq_u32 s{S_CNT}, 5")), F('s', txt(f"s_sub_u32 s{S_T1}, s{S_KV}, 32768")),
                F('s', txt(f"s_cmp_eq_u32 s{S_CNT}, 5")), F('s', txt(f"s_cselect_b32 s{S_VDST}, s{S_T1}, s{S_VDST}"))]
    attn_iter(e, o, 3, True, True, True, 1, 'KV', True)
    if o.t3 and o.wo_early and o.dV == 2: run(e, redirect[1:])
    if o.t3 and o.w_touch >= 0 and o.w_touch_pos == 1: wtouch(e, "b")
    attn_iter(e, o, 4, True, True, True, 1, 'KV', True)
    import copy
    e2 = copy.deepcopy(e); n1 = len(e2.lines)
    attn_iter(e2, o, 5, True, True, True, 1, 'KV', True)
    if o.t3 and o.wo_early and o.dV == 2: run(e2, redirect[1:])
    if o.t3 and o.w_touch >= 0 and o.w_touch_pos == 1: wtouch(e2, "b")
    attn_iter(e2, o, 6, True, True, True, 1, 'KV', True)
    assert e.lines[n0:n1] == e2.lines[n1:], "loop body is not in steady state"
    assert e.ds == ds0, (e.ds, ds0)
    e(f"s_add_u32 s{S_CNT}, s{S_CNT}, 1")
    e(f"s_cmp_lt_u32 s{S_CNT}, 6")
    e(f"s_cbranch_scc1 L_loop_{name}")
    e.ds_all()
    stamp(e, o, "loop_done")
    xdm = None
    if o.t3 and o.wo_early:
        e.vm = ['OLD']
        if o.w_touch_pos == 2: e.vm_op(f"buffer_load_dword v228, v{V_E}, s[56:59], 0 offen", "wt")
        xdm = dma_wo(o, 0, 0, 0, 10**9, 3) + dma_wo(o, 0, 1, 12, 10**9, 3) + dma_wo(o, 0, 3, 24, 10**9, 3)
    attn_iter(e, o, 15, False, True, True, 0, '', False, extra_dm=xdm)
    stamp(e, o, "Tit15")
    if o.t3:
        t3_tail(e, o)
    else:
        attn_iter(e, o, 16, False, False, True, None, '', False, epi=epilogue_fill(o))
    stamp(e, o, "stores_issued")
    vote(e, o, name)
    if o.fuse:
        stamp(e, o, "Tsig")
        fused_reduce(e, o, name)
    if o.stamps: e("s_waitcnt vmcnt(0)")
    stamp(e, o, "end")
    if o.stamps:
        e(f"""
    s_memrealtime s[96:97]
    s_waitcnt lgkmcnt(0)
    s_lshl_b32 s3, s2, 2
    s_add_u32 s3, s3, s{S_W}
    s_lshl_b32 s3, s3, 7
    s_add_u32 s3, s3, {200*1024*1024}
    v_mov_b32 v30, s3
    s_mov_b64 exec, 1
    """)
        for k in range(14):
            e(f"v_mov_b32 v0, s{70 + 2*k}")
            e(f"v_mov_b32 v1, s{71 + 2*k}")
            e(f"global_store_dwordx2 v30, v[0:1], s[68:69] offset:{8*k}")
            e("s_nop 1")
        e("s_waitcnt vmcnt(0)")
        if o.dbg:
            e(f"""
    s_or_b32 s3, s2, s{S_W}
    s_cmp_eq_u32 s3, 0
    s_cbranch_scc0 L_end_{name}
    s_load_dwordx2 s[98:99], s[0:1], 88
    s_waitcnt lgkmcnt(0)
    v_mov_b32 v30, 0
    """)
            for k in range(1, 11):
                e(f"s_sub_u32 s3, s{70 + 2*k}, s70")
                e(f"v_mov_b32 v0, s3")
                e(f"global_store_dword v30, v0, s[98:99] offset:{4*k}")
                e("s_nop 1")
            e("s_sub_u32 s3, s96, s94")
            e("v_mov_b32 v0, s3")
            e("global_store_dword v30, v0, s[98:99] offset:0")
            e("s_waitcnt vmcnt(0)")
    e.label(f"L_end_{name}")
    e("s_endpgm")
    dsq, vmq = list(e.ds), list(e.vm)
    max_pass(e, o, name)
    e.label("CODE_END")
    return e.text() + kernel_desc(name, 512, 256)
```
